```python
import torch

def _softmax(x, axis=-1):
    return torch.softmax(x, dim=axis)
def _gelu(x):
    return torch.nn.functional.gelu(x, approximate="tanh")
def _silu(x):
    return torch.nn.functional.silu(x)
def _sigmoid(x):
    return torch.sigmoid(x)
def _layernorm(x, axis=-1, eps=1e-5):
    m = x.mean(dim=axis, keepdim=True)
    v = x.var(dim=axis, keepdim=True, unbiased=False)
    return (x - m) / torch.sqrt(v + eps)
def _scatter_add(tgt, idx, src, axis=0):
    return tgt.clone().index_add_(axis, idx, src)
def _segment_sum(src, seg, n):
    out = torch.zeros((n,) + src.shape[1:], dtype=src.dtype)
    return out.index_add_(0, seg, src)
def _pad(x, pw):
    flat = tuple(v for pair in reversed(pw) for v in pair)
    return torch.nn.functional.pad(x, flat)

kernel_name = 'gated_mix__mha_block__dense_activation_relu__prompt'

def setup_inputs():

    _w = (lambda a: (lambda t: t.to(torch.bfloat16) if t.is_floating_point() else t)(torch.as_tensor(a)))
    def _A_setup():
        B, S, D, H = 1, 2048, 512, 32
        return {
            "x": _w((lambda *s: torch.randn(*s, dtype=torch.bfloat16) * 0.05)(B, S, D)),
            "wqkv": _w((lambda *s: torch.randn(*s, dtype=torch.bfloat16) * 0.8)(D, 3 * D)),
            "wo": _w((lambda *s: torch.randn(*s, dtype=torch.bfloat16) * 0.2)(D, D)),
        }
    _A_in = _A_setup()

    def _B_setup():
        B, S, D, Dff = 1, 2048, 512, 1792
        return {
            "x": _w((lambda *s: torch.randn(*s, dtype=torch.bfloat16) * 0.05)(B, S, D)),
            "w1": _w((lambda *s: torch.randn(*s, dtype=torch.bfloat16) * 0.05)(D, Dff)),
            "w2": _w((lambda *s: torch.randn(*s, dtype=torch.bfloat16) * 0.05)(Dff, D)),
        }
    _B_in = _B_setup()

    return {
        "A_x": _A_in["x"],
        "A_wqkv": _A_in["wqkv"],
        "A_wo": _A_in["wo"],
        "B_x": _B_in["x"],
        "B_w1": _B_in["w1"],
        "B_w2": _B_in["w2"],
        "gate_w": _w((lambda *s: torch.randn(*s, dtype=torch.bfloat16) * 0.05)(512) * 16.0),
    }

def reference(A_x, A_wqkv, A_wo, B_x, B_w1, B_w2, gate_w):
    def _A_ref(x, wqkv, wo):
        B, S, D = x.shape
        H = 32
        Dh = D // H
        qkv = (lambda x, *d: x.permute(*d))((x @ wqkv).reshape(B, S, 3, H, Dh), 2, 0, 3, 1, 4)
        q, k, v = qkv[0], qkv[1], qkv[2]
        scores = torch.einsum("bhqd,bhkd->bhqk", q, k) * (Dh ** -0.5)
        p = _softmax(scores, axis=-1)
        o = torch.einsum("bhqk,bhkd->bhqd", p, v)
        return (lambda x, *d: x.permute(*d))(o, 0, 2, 1, 3).reshape(B, S, D) @ wo

    def _B_ref(x, w1, w2):
        h = torch.einsum("bsd,df->bsf", x, w1)
        zero = torch.zeros_like(h)
        h = torch.maximum(h, zero)
        return torch.einsum("bsf,fd->bsd", h, w2)

    x = A_x
    g = _sigmoid((x * gate_w).sum(-1, keepdims=True))
    a = _A_ref(x, A_wqkv, A_wo)
    b = _B_ref(x, B_w1, B_w2)
    return g * a + (1 - g) * b
```

```python
import math, struct, sys

NAME = "gated_mix__mha_block__dense_activation_relu__prompt"

def f32bits(x):
    return struct.unpack("<I", struct.pack("<f", x))[0]

class Asm:
    def __init__(self):
        self.l = []
    def __call__(self, s):
        for line in s.strip("\n").split("\n"):
            self.l.append("    " + line.strip())
    def label(self, s):
        self.l.append(s + ":")
    def raw(self, s):
        self.l.append(s)
    def text(self):
        return "\n".join(self.l) + "\n"

QF = 0x000000
KV = 0x200000
XF = 0x600000
W1F = 0x800000
W2F = 0xA00000
WOF = 0xC00000
GB = 0xD00000
HF = 0x1000000
OF = 0x1800000
WS_BYTES = 0x2000000

QSCALE = 0.25 * math.log2(math.e)
LOG2E = math.log2(math.e)

def vr(a, n):
    return f"v[{a}:{a+n-1}]"

def prologue(a, nwg=256):
    a(f"""
    s_cmp_ge_u32 s2, {nwg}
    s_cbranch_scc1 L_end_{a.kname}
    """)
    a("""
    s_load_dwordx16 s[8:23], s[0:1], 0
    s_load_dwordx4 s[24:27], s[0:1], 64
    v_lshrrev_b32 v2, 6, v0
    v_and_b32 v1, 63, v0
    s_nop 0
    v_readfirstlane_b32 s40, v2
    s_waitcnt lgkmcnt(0)
    """)

def srd(a, d, base, nbytes):
    a(f"""
    s_mov_b32 s{d}, s{base}
    s_and_b32 s{d+1}, s{base+1}, 0xffff
    s_mov_b32 s{d+2}, {nbytes:#x}
    s_mov_b32 s{d+3}, 0x20000
    """)

def kernel_begin(a, kname):
    a.kname = kname
    a.raw(f".globl {kname}")
    a.raw(".p2align 8")
    a.raw(f".type {kname},@function")
    a.label(kname)

def kernel_end(a):
    a.label(f"L_end_{a.kname}")
    a("s_endpgm")

S_X, S_WQKV, S_WS, S_SRC = 28, 32, 36, 44

L_WQK, L_WV, L_XR = 0, 32768, 49152
K1_LDS = L_XR + 8 * 12288

def k1(a):
    kernel_begin(a, "k1_kernel")
    prologue(a)
    srd(a, S_X, 8, 2048 * 1024)
    srd(a, S_WQKV, 10, 512 * 3072)
    srd(a, S_WS, 26, WS_BYTES)
    a("""
    s_and_b32 s3, s2, 7          ; xcd j
    s_lshr_b32 s4, s2, 3         ; i
    s_and_b32 s41, s4, 3
    s_lshl_b32 s5, s3, 2
    s_add_u32 s41, s41, s5       ; h = 4j + (i&3)
    s_lshr_b32 s42, s4, 2        ; c = i>>2
    """)
    a("""
    v_lshrrev_b32 v3, 2, v1
    v_mul_u32_u24 v3, 3072, v3
    v_and_b32 v4, 1, v1
    v_lshl_add_u32 v3, v4, 4, v3
    v_bfe_u32 v4, v1, 1, 1
    v_lshl_add_u32 v3, v4, 10, v3
    v_lshrrev_b32 v5, 1, v1
    v_mul_u32_u24 v5, 3072, v5
    v_and_b32 v4, 1, v1
    v_lshl_add_u32 v5, v4, 4, v5
    s_lshl_b32 s43, s41, 5             ; h*32 bytes
    s_cmp_ge_u32 s40, 8
    s_cbranch_scc1 L_k1_wv
    """)
    a("""
    s_lshl_b32 s5, s40, 2              ; idx0 = 4w
    s_mul_i32 s6, s5, 49152            ; 16 rows * 3072
    s_add_u32 s6, s6, s43
    s_lshl_b32 s7, s5, 10
    """)
    for q in range(4):
        a(f"""
        s_add_u32 m0, s7, {L_WQK + q*1024}
        s_add_u32 s50, s6, {q*49152}
        buffer_load_dwordx4 v3, s[{S_WQKV}:{S_WQKV+3}], s50 offen lds
        """)
    a("s_branch L_k1_wdone")
    a.label("L_k1_wv")
    a("""
    s_sub_u32 s5, s40, 8
    s_lshl_b32 s5, s5, 2
    s_mul_i32 s6, s5, 98304            ; 32 rows * 3072
    s_add_u32 s6, s6, s43
    s_add_u32 s6, s6, 2048
    s_lshl_b32 s7, s5, 10
    """)
    for q in range(4):
        a(f"""
        s_add_u32 m0, s7, {L_WV + q*1024}
        s_add_u32 s50, s6, {q*98304}
        buffer_load_dwordx4 v5, s[{S_WQKV}:{S_WQKV+3}], s50 offen lds
        """)
    a("s_branch L_k1_aux")
    a.label("L_k1_wdone")
    VXE, VXO = 6, 7
    VXA = 8
    VWQ, VWV = 12, 13
    DQK, DV = 32, 48
    XB = 64
    WB = 72
    XS = 88
    a(f"""
    s_lshl_b32 s5, s42, 3
    s_add_u32 s5, s5, s40              ; T = 8c + w
    s_mov_b32 s51, s5                  ; s51 = T
    s_lshl_b32 s52, s5, 15
    s_mul_i32 s53, s40, 12288
    s_add_u32 s53, s53, {L_XR}
    v_lshrrev_b32 v3, 3, v1            ; l>>3
    v_lshlrev_b32 v3, 10, v3
    v_and_b32 v4, 7, v1
    v_lshrrev_b32 v5, 4, v1            ; l>>4
    v_xor_b32 v4, v4, v5
    v_lshl_add_u32 v{VXE}, v4, 4, v3
    v_xor_b32 v4, 4, v4
    v_lshl_add_u32 v{VXO}, v4, 4, v3
    """)
    def dma_slab(sig):
        slot = sig % 3
        for i in range(4):
            a(f"""
            s_add_u32 m0, s53, {slot*4096 + i*1024}
            s_add_u32 s50, s52, {i*8192 + sig*128}
            buffer_load_dwordx4 v{VXE if i%2==0 else VXO}, s[{S_X}:{S_X+3}], s50 offen lds
            """)
    for sig in range(3):
        dma_slab(sig)
    a(f"""
    v_and_b32 v3, 31, v1               ; m
    v_lshrrev_b32 v4, 5, v1            ; hh
    v_bfe_u32 v5, v1, 1, 3             ; (m>>1)&7
    v_xor_b32 v5, v5, v4               ; hh ^ z
    v_lshlrev_b32 v3, 7, v3
    v_add_u32 v3, s53, v3
    """)
    for s in range(4):
        a(f"""
        v_xor_b32 v2, {2*s}, v5
        v_lshl_add_u32 v{VXA+s}, v2, 4, v3
        """)
    a(f"""
    v_lshrrev_b32 v4, 5, v1            ; hh
    v_bfe_u32 v2, v1, 2, 2             ; i>>2
    v_and_b32 v3, 3, v1                ; i&3
    v_bfe_u32 v5, v1, 4, 1             ; g
    v_lshlrev_b32 v{VWQ}, 9, v4        ; hh*2*256
    v_lshl_add_u32 v{VWQ}, v2, 6, v{VWQ}
    v_lshl_add_u32 v{VWQ}, v5, 5, v{VWQ}
    v_lshl_add_u32 v{VWQ}, v3, 3, v{VWQ}
    v_lshlrev_b32 v{VWV}, 8, v4        ; hh*2*128
    v_lshl_add_u32 v{VWV}, v2, 5, v{VWV}
    v_lshl_add_u32 v{VWV}, v3, 3, v{VWV}
    v_add_u32 v{VWV}, {L_WV}, v{VWV}
    """)
    for r in range(32):
        a(f"v_mov_b32 v{DQK+r}, 0")
    a("""
    s_waitcnt vmcnt(12)
    s_barrier
    """)
    def reads(s):
        b = s % 2
        sig, ss = s // 4, s % 4
        w = WB + 8 * b
        a(f"""
        ds_read_b64_tr_b16 {vr(w,2)}, v{VWQ} offset:{L_WQK + s*1024}
        ds_read_b64_tr_b16 {vr(w+2,2)}, v{VWQ} offset:{L_WQK + s*1024 + 256}
        ds_read_b64_tr_b16 {vr(w+4,2)}, v{VWV} offset:{s*512}
        ds_read_b64_tr_b16 {vr(w+6,2)}, v{VWV} offset:{s*512 + 128}
        """)
        if ss == 0:
            n = 8 if sig == 0 else (4 if sig <= 6 else 0)
            a(f"s_waitcnt vmcnt({n})")
        a(f"ds_read_b128 {vr(XB+4*b,4)}, v{VXA+ss} offset:{(sig%3)*4096}")
    reads(0)
    for s in range(32):
        b = s % 2
        if s + 1 < 32:
            reads(s + 1)
            a("s_waitcnt lgkmcnt(5)")
        else:
            a("s_waitcnt lgkmcnt(0)")
        if s % 4 == 3 and s // 4 + 3 < 8:
            dma_slab(s // 4 + 3)
        w = WB + 8 * b
        x = XB + 4 * b
        a(f"""
        v_mfma_f32_32x32x16_bf16 {vr(DQK,16)}, {vr(w,4)}, {vr(x,4)}, {vr(DQK,16)}
        v_mfma_f32_32x32x16_bf16 {vr(DV,16)}, {vr(x,4)}, {vr(w+4,4)}, {vr(DV,16)}
        s_cmp_eq_u32 s41, {s}
        s_cbranch_scc0 L_k1_nx{s}
        v_mov_b32 v{XS}, v{x}
        v_mov_b32 v{XS+1}, v{x+1}
        v_mov_b32 v{XS+2}, v{x+2}
        v_mov_b32 v{XS+3}, v{x+3}
        """)
        a.label(f"L_k1_nx{s}")
    a(f"""
    v_lshlrev_b32 v2, 4, v1            ; lane*16
    s_lshl_b32 s5, s51, 15
    s_lshl_b32 s6, s41, 10
    s_add_u32 s5, s5, s6
    s_add_u32 s5, s5, {XF}
    buffer_store_dwordx4 {vr(XS,4)}, v2, s[{S_WS}:{S_WS+3}], s5 offen
    s_mov_b32 s54, {f32bits(QSCALE):#x}
    s_lshl_b32 s5, s41, 6
    s_add_u32 s5, s5, s51              ; h*64+T
    s_lshl_b32 s6, s5, 10
    s_add_u32 s6, s6, {QF}
    s_lshl_b32 s7, s5, 11
    s_add_u32 s7, s7, {KV}
    v_bfe_u32 v3, v1, 4, 1             ; grp
    v_lshrrev_b32 v4, 5, v1            ; hh
    v_and_b32 v5, 15, v1
    v_lshlrev_b32 v5, 4, v5
    v_lshl_add_u32 v5, v4, 8, v5
    v_lshl_add_u32 v5, v3, 9, v5
    v_cmp_eq_u32 vcc, 1, v3
    s_nop 7
    s_nop 7
    """)
    for r in range(8):
        a(f"v_mul_f32 v{DQK+r}, s54, v{DQK+r}")
    for r in range(4):
        a(f"v_cvt_pk_bf16_f32 v{64+r}, v{DQK+2*r}, v{DQK+2*r+1}")
    for r in range(4):
        a(f"v_cvt_pk_bf16_f32 v{68+r}, v{DQK+8+2*r}, v{DQK+8+2*r+1}")
    a(f"""
    buffer_store_dwordx4 v[64:67], v2, s[{S_WS}:{S_WS+3}], s6 offen
    buffer_store_dwordx4 v[68:71], v2, s[{S_WS}:{S_WS+3}], s7 offen
    """)
    for r in range(8):
        a(f"v_cndmask_b32 v{DV+r}, v{DV+r}, v{DV+8+r}, vcc")
    for r in range(4):
        a(f"v_cvt_pk_bf16_f32 v{72+r}, v{DV+2*r}, v{DV+2*r+1}")
    a(f"""
    buffer_store_dwordx4 v[72:75], v5, s[{S_WS}:{S_WS+3}], s7 offen offset:1024
    s_endpgm
    """)
    a.label("L_k1_aux")
    a(f"""
    s_sub_u32 s5, s40, 8
    s_lshl_b32 s51, s2, 2
    s_add_u32 s51, s51, s5             ; gw
    s_cmp_ge_u32 s51, 448
    s_cbranch_scc1 L_k1_w2
    """)
    srd(a, S_SRC, 16, 512 * 3584)
    a(f"""
    s_lshr_b32 s52, s51, 5             ; nb
    s_and_b32 s53, s51, 31             ; s
    s_mov_b32 s48, 3584                ; RS
    s_mov_b32 s49, {8*3584}
    s_mov_b32 s55, {4*3584}            ; JH
    s_mov_b32 s56, {32*1024}
    s_mov_b32 s57, {W1F}
    s_branch L_k1_rl
    """)
    a.label("L_k1_w2")
    a("""
    s_cmp_ge_u32 s51, 896
    s_cbranch_scc1 L_k1_wo
    """)
    srd(a, S_SRC, 18, 1792 * 1024)
    a(f"""
    s_sub_u32 s5, s51, 448
    s_and_b32 s52, s5, 3
    s_lshr_b32 s53, s5, 2
    s_mov_b32 s48, 1024
    s_mov_b32 s49, 4096
    s_mov_b32 s55, 8192
    s_mov_b32 s56, {112*1024}
    s_mov_b32 s57, {W2F}
    s_branch L_k1_rl
    """)
    a.label("L_k1_wo")
    srd(a, S_SRC, 12, 512 * 1024)
    a(f"""
    s_sub_u32 s5, s51, 896
    s_and_b32 s52, s5, 3
    s_lshr_b32 s53, s5, 2
    s_mov_b32 s48, 1024
    s_mov_b32 s49, 4096
    s_mov_b32 s55, 8192
    s_mov_b32 s56, {32*1024}
    s_mov_b32 s57, {WOF}
    """)
    a.label("L_k1_rl")
    R = 16
    F = 32
    a(f"""
    v_and_b32 v3, 31, v1               ; i
    v_lshrrev_b32 v4, 5, v1            ; hh
    v_mul_lo_u32 v5, v4, s49
    v_lshl_add_u32 v5, v3, 3, v5
    s_mul_i32 s58, s53, s48
    s_lshl_b32 s58, s58, 4             ; 16*s*RS
    s_lshl_b32 s5, s52, 8
    s_add_u32 s58, s58, s5             ; + nb*256
    """)
    for j in range(8):
        if j == 0:
            a("s_mov_b32 s59, s58")
        elif j == 4:
            a("s_add_u32 s59, s58, s55")
        else:
            a("s_add_u32 s59, s59, s48")
        a(f"buffer_load_dwordx2 {vr(R+2*j,2)}, v5, s[{S_SRC}:{S_SRC+3}], s59 offen")
    srd(a, 60, 20, 1024)
    a(f"""
    v_lshlrev_b32 v2, 4, v1
    s_lshl_b32 s5, s51, 11
    buffer_load_dwordx4 v[48:51], v2, s[60:63], 0 offen
    buffer_load_dwordx4 v[52:55], v2, s[{S_X}:{S_X+3}], s5 offen
    buffer_load_dwordx4 v[56:59], v2, s[{S_X}:{S_X+3}], s5 offen offset:1024
    v_lshrrev_b32 v6, 3, v3
    v_mul_lo_u32 v6, v6, s56
    v_lshl_add_u32 v6, v4, 9, v6
    v_and_b32 v7, 7, v3
    v_lshl_add_u32 v6, v7, 6, v6
    s_lshl_b32 s5, s52, 2
    s_mul_i32 s5, s5, s56              ; nb*4*tilestride
    s_add_u32 s57, s57, s5
    s_lshl_b32 s5, s53, 10
    s_add_u32 s57, s57, s5
    s_mov_b32 s6, 0x05040100
    s_mov_b32 s7, 0x07060302
    s_waitcnt vmcnt(11)
    s_barrier
    s_waitcnt vmcnt(3)
    """)
    for p in range(2):
        for jj in range(4):
            A = R + 2 * (2 * jj) + p
            B = R + 2 * (2 * jj + 1) + p
            a(f"v_perm_b32 v{F+4*(2*p)+jj}, v{B}, v{A}, s6")
            a(f"v_perm_b32 v{F+4*(2*p+1)+jj}, v{B}, v{A}, s7")
    for c in range(4):
        a(f"buffer_store_dwordx4 {vr(F+4*c,4)}, v6, s[{S_WS}:{S_WS+3}], s57 offen offset:{16*c}")
    a("""
    s_waitcnt vmcnt(4)
    v_mov_b32 v8, 0
    v_mov_b32 v9, 0
    """)
    for r in range(4):
        a(f"v_dot2_f32_bf16 v8, v{48+r}, v{52+r}, v8")
        a(f"v_dot2_f32_bf16 v9, v{48+r}, v{56+r}, v9")
    a("s_nop 3")
    for dpp in ("quad_perm:[1,0,3,2]", "quad_perm:[2,3,0,1]", "row_half_mirror", "row_mirror"):
        a(f"""
        v_add_f32_dpp v8, v8, v8 {dpp} row_mask:0xf bank_mask:0xf
        v_add_f32_dpp v9, v9, v9 {dpp} row_mask:0xf bank_mask:0xf
        s_nop 1
        """)
    for op in ("v_permlane16_swap_b32", "v_permlane32_swap_b32"):
        a(f"""
        v_mov_b32 v10, v8
        v_mov_b32 v11, v9
        s_nop 1
        {op} v8, v10
        {op} v9, v11
        s_nop 1
        v_add_f32 v8, v8, v10
        v_add_f32 v9, v9, v11
        """)
    a(f"""
    v_cmp_eq_u32 vcc, 1, v1
    s_nop 1
    v_cndmask_b32 v8, v8, v9, vcc
    v_mul_f32 v8, {f32bits(-LOG2E):#x}, v8
    v_exp_f32 v8, v8
    s_nop 0
    v_add_f32 v8, 1.0, v8
    v_rcp_f32 v8, v8
    v_lshlrev_b32 v2, 2, v1
    s_lshl_b32 s5, s51, 3
    s_add_u32 s5, s5, {GB}
    v_cmp_gt_u32 vcc, 2, v1
    s_and_saveexec_b64 s[6:7], vcc
    buffer_store_dword v8, v2, s[{S_WS}:{S_WS+3}], s5 offen
    """)
    kernel_end(a)

def stream_gemm(a, nsteps, na, nb, ACC, BUF, depth, VA, VB, SA, SB, first=True):
    per = na + nb
    def issue(s):
        slot = BUF + (s % depth) * 4 * per
        imm = (s % 4) * 1024
        for t in range(na):
            a(f"buffer_load_dwordx4 {vr(slot+4*t,4)}, v{VA+t}, s[{S_WS}:{S_WS+3}], s{SA} offen offset:{imm}")
        for t in range(nb):
            a(f"buffer_load_dwordx4 {vr(slot+4*(na+t),4)}, v{VB+t}, s[{S_WS}:{S_WS+3}], s{SB} offen offset:{imm}")
        if s % 4 == 3 or s == nsteps - 1:
            adv = ((s % 4) + 1) * 1024
            a(f"s_add_u32 s{SA}, s{SA}, {adv}")
            a(f"s_add_u32 s{SB}, s{SB}, {adv}")
    for s in range(min(depth - 1, nsteps)):
        issue(s)
    for s in range(nsteps):
        if s + depth - 1 < nsteps:
            issue(s + depth - 1)
        outstanding = min(depth - 1, nsteps - 1 - s)
        a(f"s_waitcnt vmcnt({outstanding*per})")
        slot = BUF + (s % depth) * 4 * per
        for at in range(na):
            for bt in range(nb):
                d = ACC + 16 * (at * nb + bt)
                c = "0" if (first and s == 0) else vr(d, 16)
                a(f"v_mfma_f32_32x32x16_bf16 {vr(d,16)}, {vr(slot+4*at,4)}, {vr(slot+4*(na+bt),4)}, {c}")

K2_LDS = 131072 + 8192

def k2(a):
    kernel_begin(a, "k2_kernel")
    prologue(a)
    srd(a, S_WS, 26, WS_BYTES)
    a("""
    s_and_b32 s3, s2, 7          ; xcd j
    s_lshr_b32 s4, s2, 3         ; i
    s_and_b32 s41, s4, 3
    s_lshl_b32 s5, s3, 2
    s_add_u32 s41, s41, s5
    s_lshr_b32 s42, s4, 2
    v_lshlrev_b32 v2, 4, v1      ; lane*16
    s_cmp_ge_u32 s40, 8
    s_cbranch_scc1 L_k2_ffn
    """)
    Q = 8; KB = 12; VB = 20; P = 36; VKA = 52; VVA = 53; VG = 54
    S = 64; NM = 96; O = 112
    a(f"""
    s_lshl_b32 s5, s42, 3
    s_add_u32 s51, s5, s40             ; T
    s_lshl_b32 s5, s41, 6
    s_add_u32 s6, s5, s51
    s_lshl_b32 s6, s6, 10
    s_add_u32 s6, s6, {QF}
    s_add_u32 s7, s5, s40              ; h*64 + w
    s_lshl_b32 s7, s7, 11
    s_add_u32 s7, s7, {KV}
    s_lshl_b32 s52, s40, 11            ; lds w*2048
    """)
    for i in range(8):
        a(f"""
        s_add_u32 m0, s52, {i*16384}
        s_add_u32 s50, s7, {i*16384}
        buffer_load_dwordx4 v2, s[{S_WS}:{S_WS+3}], s50 offen lds
        buffer_load_dwordx4 v2, s[{S_WS}:{S_WS+3}], s50 offen offset:1024 lds
        """)
        if i == 0:
            a(f"""
            buffer_load_dwordx4 {vr(Q,4)}, v2, s[{S_WS}:{S_WS+3}], s6 offen
            v_and_b32 v3, 31, v1
            v_lshlrev_b32 v3, 2, v3
            s_lshl_b32 s5, s51, 7
            s_add_u32 s5, s5, {GB}
            buffer_load_dword v{VG}, v3, s[{S_WS}:{S_WS+3}], s5 offen
            """)
    a(f"""
    v_mov_b32 v{VKA}, v2
    v_lshrrev_b32 v4, 5, v1
    v_and_b32 v5, 15, v1
    v_lshlrev_b32 v5, 4, v5
    v_lshl_add_u32 v{VVA}, v4, 8, v5
    s_mov_b32 s56, 0x0000ffff
    s_mov_b32 s57, 0x0000ffff
    s_mov_b32 s58, 0
    """)
    for r in range(16):
        a(f"v_mov_b32 v{VB+r}, 0x3f803f80")
    a(f"""
    s_waitcnt vmcnt(14)
    s_barrier
    ds_read_b128 {vr(KB,4)}, v{VKA}
    s_waitcnt lgkmcnt(0)
    v_mfma_f32_32x32x16_bf16 {vr(S,16)}, {vr(KB,4)}, {vr(Q,4)}, 0
    s_nop 7
    s_nop 7
    v_max3_f32 v3, v{S}, v{S+1}, v{S+2}
    """)
    for r in range(3, 15, 2):
        a(f"v_max3_f32 v3, v3, v{S+r}, v{S+r+1}")
    a(f"v_max_f32 v3, v3, v{S+15}")
    a.label("L_k2_havemax")
    a(f"""
    v_mov_b32 v4, v3
    s_nop 1
    v_permlane32_swap_b32 v3, v4
    s_nop 1
    v_max_f32 v3, v3, v4
    """)
    for r in range(16):
        a(f"v_sub_f32 v{NM+r}, 0, v3")
    for r in range(16):
        a(f"v_mov_b32 v{O+r}, 0")
    for r in range(4):
        a(f"v_mov_b32 v{P+8+4+r}, 0")
    a(f"""
    v_mov_b32 v{VKA}, v2
    v_lshrrev_b32 v4, 5, v1
    v_and_b32 v5, 15, v1
    v_lshlrev_b32 v5, 4, v5
    v_lshl_add_u32 v{VVA}, v4, 8, v5
    ds_read_b128 {vr(KB,4)}, v{VKA}
    ds_read_b128 {vr(KB+4,4)}, v{VKA} offset:2048
    s_mov_b64 exec, s[56:57]
    ds_read_b128 {vr(VB,4)}, v{VVA} offset:1024
    ds_read_b128 {vr(VB+4,4)}, v{VVA} offset:1536
    ds_read_b128 {vr(VB+12,4)}, v{VVA} offset:1536
    s_mov_b64 exec, -1
    s_waitcnt lgkmcnt(0)
    v_mfma_f32_32x32x16_bf16 {vr(S,16)}, {vr(KB,4)}, {vr(Q,4)}, {vr(NM,16)}
    s_mov_b32 s53, 0
    s_nop 7
    s_nop 3
    """)
    a.label("L_k2_loop")
    for t in range(8):
        Sc = S + 16 * (t % 2); Sn = S + 16 * ((t + 1) % 2)
        Kc = KB + 4 * ((t + 1) % 2); Kn = KB + 4 * (t % 2)
        Vc = VB + 8 * (t % 2); Vn = VB + 8 * ((t + 1) % 2)
        Pc = P + 8 * (t % 2); Pp = P + 8 * ((t + 1) % 2)
        def ex(i): a(f"v_exp_f32 v{Sc+i}, v{Sc+i}")
        def cv(i): a(f"v_cvt_pk_bf16_f32 v{Pc+i}, v{Sc+2*i}, v{Sc+2*i+1}")
        if t == 6:
            a(f"""
            s_or_b32 s5, s53, s58
            s_cmp_lg_u32 s5, 0
            s_cbranch_scc1 L_k2_nobar
            s_waitcnt vmcnt(0)
            s_barrier
            """)
            a.label("L_k2_nobar")
        a("s_waitcnt lgkmcnt(0)")
        a(f"v_mfma_f32_32x32x16_bf16 {vr(Sn,16)}, {vr(Kc,4)}, {vr(Q,4)}, {vr(NM,16)}")
        a(f"ds_read_b128 {vr(Kn,4)}, v{VKA} offset:{(t+2)*2048}")
        for i in range(6): ex(i)
        a(f"v_mfma_f32_32x32x16_bf16 {vr(O,16)}, {vr(Vn+4,4)}, {vr(Pp+4,4)}, {vr(O,16)}")
        a(f"""
        s_mov_b64 exec, s[56:57]
        ds_read_b128 {vr(Vn,4)}, v{VVA} offset:{(t+1)*2048+1024}
        ds_read_b128 {vr(Vn+4,4)}, v{VVA} offset:{(t+1)*2048+1536}
        s_mov_b64 exec, -1
        """)
        ex(6); ex(7); cv(0); cv(1); cv(2); cv(3); ex(8); ex(9)
        a(f"v_mfma_f32_32x32x16_bf16 {vr(O,16)}, {vr(Vc,4)}, {vr(Pc,4)}, {vr(O,16)}")
        for i in range(10, 16): ex(i)
        cv(4); cv(5); cv(6); cv(7)
    a(f"""
    v_add_u32 v{VKA}, 16384, v{VKA}
    v_add_u32 v{VVA}, 16384, v{VVA}
    s_add_u32 s53, s53, 1
    s_cmp_lt_u32 s53, 8
    s_cbranch_scc1 L_k2_loop
    """)
    a(f"""
    v_mfma_f32_32x32x16_bf16 {vr(O,16)}, {vr(VB+12,4)}, {vr(P+12,4)}, {vr(O,16)}
    s_waitcnt lgkmcnt(0)
    s_nop 7
    s_nop 7
    s_cmp_lg_u32 s58, 0
    s_cbranch_scc1 L_k2_fin
    v_max3_f32 v3, |v{O}|, |v{O+1}|, |v{O+2}|
    v_max3_f32 v3, v3, |v{O+3}|, |v{O+4}|
    v_max3_f32 v3, v3, |v{O+5}|, |v{O+6}|
    v_max_f32 v4, |v{O+7}|, |v{O+7}|
    v_max_f32 v3, v3, v4
    v_add_f32 v4, v{O}, v{O+1}
    v_add_f32 v5, v{O+2}, v{O+3}
    v_add_f32 v4, v4, v5
    v_add_f32 v5, v{O+4}, v{O+5}
    v_add_f32 v4, v4, v5
    v_add_f32 v5, v{O+6}, v{O+7}
    v_add_f32 v4, v4, v5
    s_mov_b32 s5, 0x53800000           ; 2^40
    s_mov_b32 s6, 0x7f000000           ; 2^127
    v_cmp_nle_f32 vcc, v{O+8}, s5
    v_cmp_nle_f32 s[60:61], v3, s6
    v_cmp_u_f32 s[62:63], v4, v4
    s_or_b64 vcc, vcc, s[60:61]
    s_or_b64 vcc, vcc, s[62:63]
    s_cbranch_scc0 L_k2_fin
    """)
    a(f"""
    s_mov_b32 s58, 1
    v_mov_b32 v{VKA}, v2
    v_mov_b32 v3, 0xff800000
    s_mov_b32 s53, 0
    """)
    a.label("L_k2_mx")
    a(f"""
    ds_read_b128 {vr(KB,4)}, v{VKA}
    s_waitcnt lgkmcnt(0)
    v_mfma_f32_32x32x16_bf16 {vr(S,16)}, {vr(KB,4)}, {vr(Q,4)}, 0
    v_add_u32 v{VKA}, 2048, v{VKA}
    s_nop 7
    s_nop 7
    """)
    for r in range(0, 16, 2):
        a(f"v_max3_f32 v3, v3, v{S+r}, v{S+r+1}")
    a(f"""
    s_add_u32 s53, s53, 1
    s_cmp_lt_u32 s53, 64
    s_cbranch_scc1 L_k2_mx
    s_branch L_k2_havemax
    """)
    a.label("L_k2_fin")
    a(f"""
    v_rcp_f32 v3, v{O+8}
    s_waitcnt vmcnt(0)
    v_mul_f32 v3, v3, v{VG}
    """)
    for r in range(8):
        a(f"v_mul_f32 v{O+r}, v{O+r}, v3")
    for r in range(4):
        a(f"v_cvt_pk_bf16_f32 v{P+r}, v{O+2*r}, v{O+2*r+1}")
    a(f"""
    s_lshl_b32 s5, s51, 5
    s_add_u32 s5, s5, s41
    s_lshl_b32 s5, s5, 10
    s_add_u32 s5, s5, {OF}
    buffer_store_dwordx4 {vr(P,4)}, v2, s[{S_WS}:{S_WS+3}], s5 offen
    s_endpgm
    """)
    a.label("L_k2_ffn")
    ACC = 16; BUF = 80
    a(f"""
    s_sub_u32 s43, s40, 8              ; u
    s_mul_i32 s5, s42, 7
    s_lshl_b32 s6, s43, 1
    s_add_u32 s51, s5, s6
    s_lshl_b32 s52, s51, 15
    s_add_u32 s52, s52, {W1F}          ; A stream
    s_lshl_b32 s53, s41, 16
    s_add_u32 s53, s53, {XF}
    v_mov_b32 v4, v2
    v_add_u32 v5, 32768, v2
    v_and_b32 v3, 31, v1
    v_lshlrev_b32 v3, 2, v3
    s_lshl_b32 s5, s41, 8
    s_add_u32 s5, s5, {GB}
    buffer_load_dword v8, v3, s[{S_WS}:{S_WS+3}], s5 offen
    buffer_load_dword v9, v3, s[{S_WS}:{S_WS+3}], s5 offen offset:128
    s_barrier
    s_barrier
    s_mul_i32 s54, s41, {2*112*1024}
    s_lshl_b32 s5, s51, 11
    s_add_u32 s54, s54, s5
    s_add_u32 s54, s54, {HF}           ; HF[2tau][2*ft0]
    s_add_u32 s55, s54, {112*1024}
    s_cmp_eq_u32 s43, 3
    s_cbranch_scc1 L_k2_ffn1
    """)
    def f1(na):
        stream_gemm(a, 32, na, 2, ACC, BUF, 5, 4, 4, 52, 53)
        a("""
        v_sub_f32 v8, 1.0, v8
        v_sub_f32 v9, 1.0, v9
        s_nop 7
        s_nop 7
        """)
        for at in range(na):
            for bt in range(2):
                d = ACC + 16 * (at * 2 + bt)
                for r in range(16):
                    a(f"v_max_f32 v{d+r}, 0, v{d+r}")
                    a(f"v_mul_f32 v{d+r}, v{d+r}, v{8+bt}")
                o = BUF + 8 * (at * 2 + bt)
                for r in range(8):
                    a(f"v_cvt_pk_bf16_f32 v{o+r}, v{d+2*r}, v{d+2*r+1}")
                for half in range(2):
                    a(f"buffer_store_dwordx4 {vr(o+4*half,4)}, v2, s[{S_WS}:{S_WS+3}], s{54+bt} offen offset:{(2*at+half)*1024}")
        a("s_endpgm")
    f1(2)
    a.label("L_k2_ffn1")
    f1(1)
    kernel_end(a)

K3_LDS = 65536

def k3(a):
    kernel_begin(a, "k3_kernel")
    prologue(a)
    srd(a, S_WS, 26, WS_BYTES)
    srd(a, 28, 22, 2048 * 1024)
    ACC = 16; BUF = 80
    a(f"""
    s_and_b32 s3, s2, 7
    s_lshr_b32 s4, s2, 3
    s_and_b32 s41, s4, 3
    s_lshl_b32 s5, s3, 2
    s_add_u32 s41, s41, s5       ; tau
    s_lshr_b32 s42, s4, 2        ; phi
    v_lshlrev_b32 v2, 4, v1
    v_mov_b32 v4, v2
    v_add_u32 v5, {112*1024}, v2
    v_mov_b32 v6, v2
    v_add_u32 v7, 32768, v2
    s_mul_i32 s5, s40, {28*1024}
    s_mul_i32 s52, s42, {2*112*1024}
    s_add_u32 s52, s52, s5
    s_add_u32 s52, s52, {W2F}
    s_mul_i32 s53, s41, {2*112*1024}
    s_add_u32 s53, s53, s5
    s_add_u32 s53, s53, {HF}
    s_lshl_b32 s5, s40, 13
    s_lshl_b32 s54, s42, 16
    s_add_u32 s54, s54, s5
    s_add_u32 s54, s54, {WOF}
    s_lshl_b32 s55, s41, 16
    s_add_u32 s55, s55, s5
    s_add_u32 s55, s55, {OF}
    """)
    stream_gemm(a, 28, 2, 2, ACC, BUF, 5, 4, 4, 52, 53)
    stream_gemm(a, 8, 2, 2, ACC, BUF, 5, 6, 6, 54, 55, first=False)
    a(f"""
    s_lshl_b32 s5, s40, 14
    v_add_u32 v3, s5, v2
    s_lshl_b32 s5, s40, 12
    v_add_u32 v8, s5, v2
    s_nop 7
    s_nop 7
    """)
    for t in range(4):
        for q in range(4):
            a(f"ds_write_b128 v3, {vr(ACC+16*t+4*q,4)} offset:{t*4096+q*1024}")
    a("""
    s_waitcnt lgkmcnt(0)
    s_barrier
    """)
    for u in range(4):
        for q in range(4):
            a(f"ds_read_b128 {vr(ACC+16*u+4*q,4)}, v8 offset:{u*16384+q*1024}")
        if u == 2:
            a("s_waitcnt lgkmcnt(4)")
    a("s_waitcnt lgkmcnt(0)")
    for r in range(16):
        a(f"v_add_f32 v{ACC+r}, v{ACC+r}, v{ACC+16+r}")
        a(f"v_add_f32 v{ACC+32+r}, v{ACC+32+r}, v{ACC+48+r}")
    for r in range(16):
        a(f"v_add_f32 v{ACC+r}, v{ACC+r}, v{ACC+32+r}")
    for r in range(8):
        a(f"v_cvt_pk_bf16_f32 v{BUF+r}, v{ACC+2*r}, v{ACC+2*r+1}")
    a(f"""
    s_and_b32 s5, s40, 1
    s_lshl_b32 s5, s5, 5
    s_lshl_b32 s6, s41, 6
    s_add_u32 s5, s5, s6
    s_lshl_b32 s5, s5, 10
    s_lshr_b32 s6, s40, 1
    s_lshl_b32 s6, s6, 6
    s_add_u32 s5, s5, s6
    s_lshl_b32 s6, s42, 7
    s_add_u32 s5, s5, s6
    v_and_b32 v3, 31, v1
    v_lshlrev_b32 v3, 10, v3
    v_lshrrev_b32 v4, 5, v1
    v_lshl_add_u32 v3, v4, 4, v3
    v_permlane32_swap_b32 v{BUF}, v{BUF+2}
    v_permlane32_swap_b32 v{BUF+1}, v{BUF+3}
    v_permlane32_swap_b32 v{BUF+4}, v{BUF+6}
    v_permlane32_swap_b32 v{BUF+5}, v{BUF+7}
    s_nop 1
    buffer_store_dwordx4 {vr(BUF,4)}, v3, s[28:31], s5 offen
    buffer_store_dwordx4 {vr(BUF+4,4)}, v3, s[28:31], s5 offen offset:32
    """)
    kernel_end(a)

def kd(name, nv, ns=96):
    return f""".p2align 6
.amdhsa_kernel {name}
  .amdhsa_next_free_vgpr {nv}
  .amdhsa_next_free_sgpr {ns}
  .amdhsa_accum_offset {(nv+3)//4*4}
  .amdhsa_group_segment_fixed_size 0
  .amdhsa_kernarg_size 80
  .amdhsa_user_sgpr_count 2
  .amdhsa_user_sgpr_kernarg_segment_ptr 1
  .amdhsa_system_sgpr_workgroup_id_x 1
.end_amdhsa_kernel
"""

def main(out):
    hdr = open("cdna_kernels/" + NAME + ".s.ref").read().split("\n")
    hdr = [l for l in hdr if l.startswith(";") and "@launch" not in l and "Override launch" not in l and "grid=ceil" not in l]
    a = Asm()
    k1(a); k2(a); k3(a)
    txt = "\n".join(hdr) + "\n"
    txt += f"; @launch kernel=k1_kernel grid=(256,1,1) block=(768,1,1) lds={K1_LDS}\n"
    txt += f"; @launch kernel=k2_kernel grid=(256,1,1) block=(768,1,1) lds={K2_LDS}\n"
    txt += f"; @launch kernel=k3_kernel grid=(256,1,1) block=(256,1,1) lds={K3_LDS}\n"
    txt += '.amdgcn_target "amdgcn-amd-amdhsa--gfx950"\n.text\n'
    txt += a.text()
    txt += '.section .rodata,"a"\n'
    txt += kd("k1_kernel", 96) + kd("k2_kernel", 160) + kd("k3_kernel", 160)
    open(out, "w").write(txt)

if __name__ == "__main__":
    main(sys.argv[1] if len(sys.argv) > 1 else "cdna_kernels/" + NAME + ".s")
```

```python
import math, os, struct, sys

NAME = "gated_mix__mha_block__dense_activation_relu__prompt"
STAMP = os.environ.get("STAMP")

def f32bits(x):
    return struct.unpack("<I", struct.pack("<f", x))[0]

class Asm:
    def __init__(self):
        self.l = []
        self.uid = 0
    def __call__(self, s):
        for line in s.strip("\n").split("\n"):
            line = line.strip()
            if line:
                self.l.append(("" if line.endswith(":") else "    ") + line)
    def label(self, s):
        self.l.append(s + ":")
    def raw(self, s):
        self.l.append(s)
    def new(self, p="L"):
        self.uid += 1
        return f"{p}_{self.uid}"
    def text(self):
        return "\n".join(self.l) + "\n"

EPOCH = 0x0
QF = 0x1A00000
XID = 0xD38000
KV = 0x200000
XF = 0x600000
W1F = 0x800000
W2F = 0xA00000
WOF = 0xC00000
FLS = 0xD00000
FL2 = 0xD10000
FL1 = 0xD40000
FL3 = 0xD80000
GBUF = 0xD20000
FLG = 0xD30000
HF = 0x1000000
OF = 0x1800000
STB = 0x1F00000
WS_BYTES = 0x2000000

L_X = 0
L_W = 65536
L_OX = 131072
L_MISC = 157696
L_LX = 158720
L_GF = 160768
LDS_BYTES = 163840
M_C0, M_C1, M_CALL, M_PAIR, M_GF, M_E0, M_E0R, M_E2, M_E2R, M_FAST, M_DMA = 0, 16, 32, 64, 128, 132, 136, 140, 144, 164, 168

QSCALE = 0.25 * math.log2(math.e)
LOG2E = math.log2(math.e)
SPIN_MAX = 200000

S_X, S_WQKV, S_WS, S_SRC, S_OUT = 28, 32, 36, 44, 60
S_TAG = 82
S_EP = 84
S_SPIN = 83

def vr(a, n):
    return f"v[{a}:{a+n-1}]"
def sr(a):
    return f"s[{a}:{a+3}]"

def srd(a, d, base, nbytes):
    a(f"""
    s_mov_b32 s{d}, s{base}
    s_and_b32 s{d+1}, s{base+1}, 0xffff
    s_mov_b32 s{d+2}, {nbytes:#x}
    s_mov_b32 s{d+3}, 0x20000
    """)

NST = 7
def stamp_begin(a):
    if not STAMP: return
    a("""
    s_memtime s[64:65]
    s_memrealtime s[66:67]
    s_waitcnt lgkmcnt(0)
    """)
    for i in range(NST):
        a(f"s_mov_b32 s{88+2*i}, s64")
def stamp(a, i):
    if not STAMP: return
    a(f"""
    s_waitcnt lgkmcnt(0)
    s_memtime s[{88+2*i}:{89+2*i}]
    s_waitcnt lgkmcnt(0)
    """)
def stamp_end(a):
    if not STAMP: return
    a(f"""
    s_waitcnt vmcnt(0) lgkmcnt(0)
    s_memtime s[68:69]
    s_memrealtime s[70:71]
    s_waitcnt lgkmcnt(0)
    s_mov_b64 exec, 1
    v_mov_b32 v4, s64
    v_mov_b32 v5, s66
    v_mov_b32 v6, s68
    v_mov_b32 v7, s70
    """)
    for i in range(8):
        a(f"v_mov_b32 v{8+i}, s{88+2*min(i,NST-1)}" if i < NST else "v_mov_b32 v15, s73")
    a(f"""
    s_lshl_b32 s72, s2, 4
    s_add_u32 s72, s72, s40
    s_lshl_b32 s72, s72, 6
    s_add_u32 s72, s72, {STB}
    v_mov_b32 v3, 0
    buffer_store_dwordx4 v[4:7], v3, {sr(S_WS)}, s72 offen
    buffer_store_dwordx4 v[8:11], v3, {sr(S_WS)}, s72 offen offset:16
    buffer_store_dwordx4 v[12:15], v3, {sr(S_WS)}, s72 offen offset:32
    """)

def spin_guard(a, again, sleep=4):
    a(f"""
    s_sleep {sleep}
    s_add_u32 s{S_SPIN}, s{S_SPIN}, 1
    s_cmp_lt_u32 s{S_SPIN}, {SPIN_MAX}
    s_cbranch_scc1 {again}
    s_endpgm
    """)

def poll_flags(a, voff, soff, loads, T, sleep=8):
    L = a.new("L_poll"); D = a.new("L_pdone")
    a.label(L)
    r = T
    regs = []
    for nd, imm in loads:
        op = {1: "buffer_load_dword", 2: "buffer_load_dwordx2", 4: "buffer_load_dwordx4"}[nd]
        dst = f"v{r}" if nd == 1 else vr(r, nd)
        a(f"{op} {dst}, v{voff}, {sr(S_WS)}, {soff} offen offset:{imm} sc1")
        regs += list(range(r, r + nd)); r += nd
    a("s_waitcnt vmcnt(0)")
    a(f"v_xor_b32 v{regs[0]}, s{S_TAG}, v{regs[0]}")
    for q in regs[1:]:
        a(f"v_xor_b32 v{q}, s{S_TAG}, v{q}")
        a(f"v_or_b32 v{regs[0]}, v{regs[0]}, v{q}")
    a(f"""
    v_cmp_ne_u32 vcc, 0, v{regs[0]}
    s_cmp_eq_u64 vcc, 0
    s_cbranch_scc1 {D}
    """)
    spin_guard(a, L, sleep)
    a.label(D)

def lds_wait(a, vaddr, off, val, T, sleep=1):
    L = a.new("L_lw"); D = a.new("L_lwd")
    a.label(L)
    a(f"""
    ds_read_b32 v{T}, v{vaddr} offset:{off}
    s_waitcnt lgkmcnt(0)
    v_readfirstlane_b32 s5, v{T}
    s_cmp_eq_u32 s5, {val}
    s_cbranch_scc1 {D}
    """)
    spin_guard(a, L, sleep)
    a.label(D)

def lds_add(a, vaddr, off, T):
    a(f"""
    s_mov_b64 exec, 1
    v_mov_b32 v{T}, 1
    ds_add_u32 v{vaddr}, v{T} offset:{off}
    s_mov_b64 exec, -1
    """)

def dual(a, sfast, lines):
    for l in lines: a(l + " sc1")

def store_flag(a, soff, T, sfast=None, second=None):
    a(f"""
    s_mov_b64 exec, 0xff
    v_mov_b32 v{T}, s{S_TAG}
    v_mov_b32 v{T+1}, {second if second else 's%d' % S_TAG}
    v_mov_b32 v{T+2}, s{S_TAG}
    v_mov_b32 v{T+3}, s{S_TAG}
    """)
    line = f"buffer_store_dwordx4 {vr(T,4)}, v2, {sr(S_WS)}, {soff} offen"
    if sfast is None:
        a(line + " sc1")
    else:
        dual(a, sfast, [line])
    a("s_mov_b64 exec, -1")
    a("s_nop 1")

def stream_gemm(a, nsteps, na, nb, ACC, BUF, depth, VA, VB, SA, SB, SG, first=True, gate=None):
    per = na + nb
    ng = nsteps // 4
    def group():
        a(f"""
        s_lshl_b32 s5, s{SG}, 12
        s_add_u32 s80, s{SA}, s5
        s_add_u32 s81, s{SB}, s5
        s_lshl_b32 s79, s{SG}, 7
        s_add_u32 s{SG}, s{SG}, 1
        s_cmp_eq_u32 s{SG}, {ng}
        s_cselect_b32 s{SG}, 0, s{SG}
        """)
    def issue(s):
        slot = BUF + (s % depth) * 4 * per
        imm = (s % 4) * 1024
        if s % 4 == 0:
            group()
        for t in range(na):
            if gate and t == 1:
                a(f"buffer_load_dwordx4 {vr(slot+4*t,4)}, v{gate[1]}, {sr(gate[0])}, s79 offen offset:{(s%4)*32}")
            else:
                a(f"buffer_load_dwordx4 {vr(slot+4*t,4)}, v{VA+t}, {sr(S_WS)}, s80 offen offset:{imm}")
        for t in range(nb):
            a(f"buffer_load_dwordx4 {vr(slot+4*(na+t),4)}, v{VB+t}, {sr(S_WS)}, s81 offen offset:{imm}")
    for s in range(min(depth - 1, nsteps)):
        issue(s)
    for s in range(nsteps):
        if s + depth - 1 < nsteps:
            issue(s + depth - 1)
        outstanding = min(depth - 1, nsteps - 1 - s)
        a(f"s_waitcnt vmcnt({outstanding*per})")
        slot = BUF + (s % depth) * 4 * per
        for at in range(na):
            for bt in range(nb):
                d = ACC + 16 * (at * nb + bt)
                c = "0" if (first and s == 0) else vr(d, 16)
                a(f"v_mfma_f32_32x32x16_bf16 {vr(d,16)}, {vr(slot+4*at,4)}, {vr(slot+4*(na+bt),4)}, {c}")

def sigmoid(a, v):
    a(f"""
    v_mul_f32 v{v}, {f32bits(-LOG2E):#x}, v{v}
    v_exp_f32 v{v}, v{v}
    s_nop 0
    v_add_f32 v{v}, 1.0, v{v}
    v_rcp_f32 v{v}, v{v}
    s_nop 0
    """)

def gen(a):
    KN = NAME + "_kernel"
    a.raw(f".globl {KN}")
    a.raw(".p2align 8")
    a.raw(f".type {KN},@function")
    a.label(KN)
    a(f"""
    s_cmp_ge_u32 s2, 256
    s_cbranch_scc1 L_end
    s_load_dwordx16 s[8:23], s[0:1], 0
    s_load_dwordx4 s[24:27], s[0:1], 64
    v_lshrrev_b32 v2, 6, v0
    v_and_b32 v1, 63, v0
    s_mov_b32 s{S_SPIN}, 0
    v_readfirstlane_b32 s40, v2
    s_and_b32 s3, s2, 7          ; j
    s_lshr_b32 s4, s2, 3         ; i
    s_and_b32 s43, s4, 3
    s_lshl_b32 s5, s3, 2
    s_add_u32 s41, s43, s5       ; h = tau = 4j + (i&3)
    s_lshr_b32 s42, s4, 2        ; c = phi = i>>2
    s_add_u32 s49, s3, s4
    s_and_b32 s49, s49, 7        ; rot
    v_lshlrev_b32 v2, 4, v1      ; v2 = lane*16
    s_waitcnt lgkmcnt(0)
    """)
    stamp_begin(a)
    a(f"s_load_dword s{S_EP}, s[26:27], {EPOCH}")
    srd(a, S_X, 8, 2048 * 1024)
    srd(a, S_WQKV, 10, 512 * 3072)
    srd(a, S_WS, 26, WS_BYTES)
    a(f"""
    s_cmp_ge_u32 s40, 8
    s_cbranch_scc1 L_aux
    """)
    attention_wave(a)
    a.label("L_aux")
    aux_wave(a)
    a.label("L_end")
    a("s_endpgm")

VXA = 8
VWA = 12
VMI = 13
VD0, VD1 = 14, 15
ACCA = 64
XB = 80
WB = 96

def make_tag(a):
    a(f"""
    s_waitcnt lgkmcnt(0)
    s_mul_i32 s{S_TAG}, s{S_EP}, 0x9e3779b1
    s_add_u32 s{S_TAG}, s{S_TAG}, 0x7f4a7c15
    """)

def pa_addr(a):
    a(f"""
    v_and_b32 v3, 31, v1               ; m
    v_lshrrev_b32 v4, 5, v1            ; hh
    v_bfe_u32 v5, v1, 1, 3             ; (m>>1)&7
    v_xor_b32 v5, v5, v4
    v_lshlrev_b32 v3, 7, v3
    s_and_b32 s5, s40, 1
    s_lshl_b32 s5, s5, 12              ; tt*32*128
    v_add_u32 v3, s5, v3
    """)
    for ss in range(4):
        a(f"""
        v_xor_b32 v7, {2*ss}, v5
        v_lshl_add_u32 v{VXA+ss}, v7, 4, v3
        """)
    a(f"""
    v_bfe_u32 v7, v1, 2, 2
    v_lshl_add_u32 v7, v4, 3, v7       ; + 8hh
    v_lshlrev_b32 v{VWA}, 7, v7        ; row*128
    v_bfe_u32 v5, v1, 4, 1             ; g
    v_bfe_u32 v6, v1, 1, 1             ; (i&3)>>1
    v_lshl_add_u32 v6, v5, 1, v6
    v_bfe_u32 v5, v1, 3, 1
    s_lshr_b32 s5, s40, 1
    s_and_b32 s5, s5, 1                ; half
    v_xor_b32 v5, s5, v5
    v_lshl_add_u32 v6, v5, 2, v6       ; piece
    v_lshl_add_u32 v{VWA}, v6, 4, v{VWA}
    v_and_b32 v5, 1, v1
    v_lshl_add_u32 v{VWA}, v5, 3, v{VWA}
    s_lshr_b32 s5, s40, 2              ; part
    s_lshl_b32 s5, s5, 13
    s_add_u32 s5, s5, {L_W}
    v_add_u32 v{VWA}, s5, v{VWA}
    v_mov_b32 v{VMI}, {L_MISC}
    """)

def pa_compute(a, sig, vrole):
    slot = sig % 3
    for ss in range(4):
        a(f"""
        ds_read_b128 {vr(XB+4*ss,4)}, v{VXA+ss} offset:{sig*8192}
        ds_read_b64_tr_b16 {vr(WB+4*ss,2)}, v{VWA} offset:{slot*24576 + ss*2048}
        ds_read_b64_tr_b16 {vr(WB+4*ss+2,2)}, v{VWA} offset:{slot*24576 + ss*2048 + 512}
        """)
    for ss in range(4):
        a(f"s_waitcnt lgkmcnt({9-3*ss})")
        c = "0" if (sig == 0 and ss == 0) else vr(ACCA, 16)
        if vrole:
            a(f"v_mfma_f32_32x32x16_bf16 {vr(ACCA,16)}, {vr(XB+4*ss,4)}, {vr(WB+4*ss,4)}, {c}")
        else:
            a(f"v_mfma_f32_32x32x16_bf16 {vr(ACCA,16)}, {vr(WB+4*ss,4)}, {vr(XB+4*ss,4)}, {c}")

def attention_wave(a):
    a(f"""
    v_lshrrev_b32 v3, 3, v1            ; row = l>>3
    v_mul_u32_u24 v4, 3072, v3
    v_bfe_u32 v5, v1, 4, 1             ; (row>>1)&1
    v_lshlrev_b32 v5, 2, v5
    v_and_b32 v6, 7, v1
    v_xor_b32 v6, v6, v5
    v_lshl_add_u32 v{VD0}, v6, 4, v4
    s_mul_i32 s52, s40, {8*3072}
    s_lshl_b32 s5, s3, 7
    s_add_u32 s52, s52, s5
    s_lshl_b32 s53, s40, 10
    s_add_u32 s53, s53, {L_W}
    """)
    def wdma(sig):
        a(f"""
        s_add_u32 s5, s49, {sig}
        s_and_b32 s5, s5, 7
        s_mul_i32 s50, s5, {64*3072}
        s_add_u32 s50, s50, s52
        """)
        for p in range(3):
            a(f"""
            s_add_u32 m0, s53, {(sig%3)*24576 + p*8192}
            s_add_u32 s51, s50, {p*1024}
            buffer_load_dwordx4 v{VD0}, {sr(S_WQKV)}, s51 offen lds
            """)
    wdma(0)
    a("s_barrier")
    wdma(1)
    wdma(2)
    make_tag(a)
    pa_addr(a)
    for sig in range(8):
        n = 6 if sig == 0 else (3 if sig < 7 else 0)
        a(f"s_waitcnt vmcnt({n})")
        if sig == 0: stamp(a, 0)
        a("s_barrier")
        if 1 <= sig <= 5:
            wdma(sig + 2)
        pa_compute(a, sig, False)
    stamp(a, 1)
    a(f"""
    s_lshr_b32 s5, s40, 1
    s_and_b32 s5, s5, 1
    s_lshl_b32 s5, s5, 1
    s_lshl_b32 s6, s3, 2
    s_add_u32 s5, s5, s6               ; head0
    s_lshl_b32 s5, s5, 6
    s_lshl_b32 s6, s4, 1
    s_add_u32 s5, s5, s6
    s_and_b32 s6, s40, 1
    s_add_u32 s5, s5, s6               ; head0*64 + T
    s_cmp_ge_u32 s40, 4
    s_cbranch_scc1 L_isk
    s_lshl_b32 s54, s5, 10
    s_add_u32 s54, s54, {QF}
    s_add_u32 s55, s54, {64*1024}
    s_mov_b32 s56, {f32bits(QSCALE):#x}
    s_branch L_qk
    L_isk:
    s_lshl_b32 s54, s5, 11
    s_add_u32 s54, s54, {KV}
    s_add_u32 s55, s54, {64*2048}
    s_mov_b32 s56, 1.0
    L_qk:
    s_nop 3
    """)
    for r in range(16):
        a(f"v_mul_f32 v{ACCA+r}, s56, v{ACCA+r}")
    for r in range(8):
        a(f"v_cvt_pk_bf16_f32 v{XB+r}, v{ACCA+2*r}, v{ACCA+2*r+1}")
    dual(a, 73, [f"buffer_store_dwordx4 {vr(XB,4)}, v2, {sr(S_WS)}, s54 offen",
                 f"buffer_store_dwordx4 {vr(XB+4,4)}, v2, {sr(S_WS)}, s55 offen"])
    Q = 8; KB = 16; VB = 24; P = 40; VKA = 56; VVA = 57; VG = 58; VMISC = 59; VPL = 60; VT = 160
    S = 64; NM = 96; O = 128
    def slot(t, aq):
        Sc = S + 16 * aq; Sn = S + 16 * (1 - aq)
        tn = t if aq == 0 else t + 1
        Kc = KB + 4 * (tn % 2)
        Pc = P + 8 * aq; Pp = P + 8 * (1 - aq)
        Oc = O + 16 * aq; Op = O + 16 * (1 - aq)
        tp = t if aq == 1 else t - 1
        Vc = VB + 8 * (t % 2); Vp = VB + 8 * (tp % 2)
        noff = (t + 1) * 2048 if t < 3 else 16384
        def ex(i): a(f"v_exp_f32 v{Sc+i}, v{Sc+i}")
        def cv(i): a(f"v_cvt_pk_bf16_f32 v{Pc+i}, v{Sc+2*i}, v{Sc+2*i+1}")
        if aq == 1: a("s_waitcnt lgkmcnt(0)")
        a(f"v_mfma_f32_32x32x16_bf16 {vr(Sn,16)}, {vr(Kc,4)}, {vr(Q+4*(1-aq),4)}, {vr(NM+16*(1-aq),16)}")
        if aq == 0:
            a(f"ds_read_b128 {vr(KB+4*((t+1)%2),4)}, v{VKA} offset:{noff}")
        for i in range(6): ex(i)
        a(f"v_mfma_f32_32x32x16_bf16 {vr(Op,16)}, {vr(Vp+4,4)}, {vr(Pp+4,4)}, {vr(Op,16)}")
        if aq == 0:
            Vn = VB + 8 * ((t + 1) % 2)
            a(f"""
            s_mov_b64 exec, s[74:75]
            ds_read_b128 {vr(Vn,4)}, v{VVA} offset:{noff+1024}
            ds_read_b128 {vr(Vn+4,4)}, v{VVA} offset:{noff+1536}
            s_mov_b64 exec, -1
            """)
        ex(6); ex(7); cv(0); cv(1); cv(2); cv(3); ex(8); ex(9)
        a(f"v_mfma_f32_32x32x16_bf16 {vr(Oc,16)}, {vr(Vc,4)}, {vr(Pc,4)}, {vr(Oc,16)}")
        for i in range(10, 16): ex(i)
        cv(4); cv(5); cv(6); cv(7)
    def advance():
        a(f"""
        v_add_u32 v{VKA}, 16384, v{VKA}
        v_add_u32 v{VVA}, 16384, v{VVA}
        """)
    def issue_poll():
        a(f"buffer_load_dword v{VT}, v{VPL}, {sr(S_WS)}, s76 offen sc1")
    def lds_signal(off):
        a(f"""
        s_lshr_b32 s5, s40, 2
        s_lshl_b32 s5, s5, 2
        s_mov_b64 exec, 1
        v_add_u32 v{VT+1}, s5, v{VMISC}
        v_mov_b32 v{VT+2}, 1
        ds_add_u32 v{VT+1}, v{VT+2} offset:{off}
        s_mov_b64 exec, -1
        """)
    def service():
        L1 = a.new("L_sv1"); LD = a.new("L_svd"); LR = a.new("L_svr")
        a(f"""
        s_cmp_lg_u32 s77, 0
        s_cbranch_scc1 {L1}
        s_waitcnt vmcnt(0)
        s_setprio 3
        v_cmp_ne_u32 vcc, s{S_TAG}, v{VT}
        s_cmp_eq_u64 vcc, 0
        s_cbranch_scc0 {LR}
        s_or_b32 s5, s4, s40
        s_cmp_lg_u32 s5, 0
        s_cbranch_scc1 {LR}_ns
        s_lshl_b32 s5, s3, 7
        s_add_u32 s5, s5, {FLS}
        """)
        store_flag(a, "s5", VT)
        a(f"""
        {LR}_ns:
        s_lshl_b32 s5, s41, 6
        s_add_u32 s5, s5, s40
        s_lshl_b32 s5, s5, 11
        s_add_u32 s5, s5, {KV}             ; KV[h][w]
        """)
        for sg in range(1, 8):
            a(f"""
            s_add_u32 s6, s42, {sg}
            s_and_b32 s6, s6, 7
            s_lshl_b32 s6, s6, 14
            s_add_u32 m0, s53, {sg*16384}
            s_add_u32 s6, s6, s5
            buffer_load_dwordx4 v2, {sr(S_WS)}, s6 offen lds
            buffer_load_dwordx4 v2, {sr(S_WS)}, s6 offen offset:1024 lds
            """)
        a(f"""
        s_mov_b32 s77, 1
        s_mov_b64 exec, 1
        v_mov_b32 v{VT+2}, 1
        ds_add_u32 v{VMISC}, v{VT+2} offset:{M_DMA}
        s_mov_b64 exec, -1
        s_branch {LD}
        {LR}:
        """)
        issue_poll()
        a(f"""
        s_branch {LD}
        {L1}:
        s_cmp_lg_u32 s77, 1
        s_cbranch_scc1 {LD}
        s_waitcnt vmcnt(12)
        """)
        lds_signal(M_C1)
        a(f"""
        s_mov_b32 s77, 2
        {LD}:
        s_setprio 0
        """)
    a(f"""
    s_lshl_b32 s76, s3, 12
    s_add_u32 s76, s76, {FL1}          ; FL1[j]
    s_lshl_b32 s53, s40, 11            ; w*2048
    s_and_b32 s58, s40, 1              ; kh
    v_mov_b32 v{VMISC}, {L_MISC}
    v_and_b32 v3, 3, v1
    v_lshlrev_b32 v3, 7, v3
    s_lshl_b32 s5, s42, 9
    v_add_u32 v{VPL}, s5, v3
    s_waitcnt vmcnt(0)
    s_barrier
    s_setprio 3
    s_cmp_lg_u32 s40, 0
    s_cbranch_scc1 L_nofl1
    s_lshl_b32 s5, s4, 7
    s_add_u32 s5, s5, s76
    """)
    store_flag(a, "s5", VT, sfast=73)
    a.label("L_nofl1")
    stamp(a, 2)
    a(f"""
    s_lshl_b32 s59, s58, 13            ; kh*8192
    v_add_u32 v{VKA}, s59, v2
    v_lshrrev_b32 v4, 5, v1
    v_and_b32 v5, 15, v1
    v_lshlrev_b32 v5, 4, v5
    v_lshl_add_u32 v{VVA}, v4, 8, v5
    v_add_u32 v{VVA}, s59, v{VVA}
    s_mov_b32 s74, 0x0000ffff
    s_mov_b32 s75, 0x0000ffff
    v_and_b32 v3, 31, v1
    v_cmp_eq_u32 vcc, 16, v3
    v_mov_b32 v4, 0x3f803f80
    s_lshl_b32 s5, s41, 6
    s_lshl_b32 s6, s42, 3
    s_add_u32 s5, s5, s6               ; h*64 + 8c
    s_add_u32 s6, s5, s40
    s_lshl_b32 s54, s6, 11
    s_add_u32 s54, s54, {KV}
    s_and_b32 s6, s40, 6
    s_add_u32 s6, s6, s5
    s_lshl_b32 s55, s6, 10
    s_add_u32 s55, s55, {QF}           ; Q tiles 2p, 2p+1
    """)
    for r in range(16):
        a(f"v_cndmask_b32 v{VB+r}, 0, v4, vcc")
    for r in range(32):
        a(f"v_mov_b32 v{O+r}, 0")
    for r in range(4):
        a(f"v_mov_b32 v{P+8+4+r}, 0")
    poll_flags(a, VPL, "s76", [(1, 0)], VT, sleep=2)
    stamp(a, 3)
    a(f"""
    s_mov_b32 m0, s53
    v_and_b32 v3, 31, v1
    buffer_load_dwordx4 v2, {sr(S_WS)}, s54 offen lds
    buffer_load_dwordx4 v2, {sr(S_WS)}, s54 offen offset:1024 lds
    buffer_load_dwordx4 {vr(Q,4)}, v2, {sr(S_WS)}, s55 offen
    buffer_load_dwordx4 {vr(Q+4,4)}, v2, {sr(S_WS)}, s55 offen offset:1024
    v_lshlrev_b32 v{VPL}, 7, v3
    s_waitcnt vmcnt(2)
    """)
    lds_add(a, VMISC, M_C0, 3)
    lds_wait(a, VMISC, M_C0, 8, 3, sleep=0)
    stamp(a, 4)
    a(f"""
    buffer_load_dword v{VT}, v{VPL}, {sr(S_WS)}, s76 offen sc1
    ds_read_b128 {vr(KB,4)}, v2
    s_waitcnt vmcnt(1) lgkmcnt(0)
    v_mfma_f32_32x32x16_bf16 {vr(S,16)}, {vr(KB,4)}, {vr(Q,4)}, 0
    v_mfma_f32_32x32x16_bf16 {vr(S+16,16)}, {vr(KB,4)}, {vr(Q+4,4)}, 0
    s_mov_b32 s77, 0
    """)
    service()
    a(f"""
    ds_read_b128 {vr(KB,4)}, v{VKA}
    s_mov_b64 exec, s[74:75]
    ds_read_b128 {vr(VB,4)}, v{VVA} offset:1024
    ds_read_b128 {vr(VB+4,4)}, v{VVA} offset:1536
    s_mov_b64 exec, -1
    s_nop 4
    """)
    for q in range(2):
        Sq = S + 16 * q
        a(f"v_max3_f32 v{3+q}, v{Sq}, v{Sq+1}, v{Sq+2}")
        for r in range(3, 15, 2):
            a(f"v_max3_f32 v{3+q}, v{3+q}, v{Sq+r}, v{Sq+r+1}")
        a(f"v_max_f32 v{3+q}, v{3+q}, v{Sq+15}")
    a(f"""
    v_mov_b32 v5, v3
    v_mov_b32 v6, v4
    s_nop 1
    v_permlane32_swap_b32 v3, v5
    v_permlane32_swap_b32 v4, v6
    s_nop 1
    v_max_f32 v3, v3, v5
    v_max_f32 v4, v4, v6
    """)
    for q in range(2):
        for r in range(16):
            a(f"v_sub_f32 v{NM+16*q+r}, 0, v{3+q}")
    a(f"""
    s_waitcnt lgkmcnt(0)
    v_mfma_f32_32x32x16_bf16 {vr(S,16)}, {vr(KB,4)}, {vr(Q,4)}, {vr(NM,16)}
    s_nop 7
    s_nop 4
    """)
    slot(0, 0)
    slot(0, 1)
    service()
    slot(1, 0)
    slot(1, 1)
    service()
    slot(2, 0)
    slot(2, 1)
    LW = a.new("L_w1"); LWD = a.new("L_w1d")
    a(f"""
    s_lshl_b32 s78, s58, 2
    v_add_u32 v3, s78, v{VMISC}
    {LW}:
    """)
    service()
    a(f"""
    ds_read_b32 v4, v3 offset:{M_C1}
    s_waitcnt lgkmcnt(0)
    v_readfirstlane_b32 s5, v4
    s_cmp_eq_u32 s5, 4
    s_cbranch_scc0 {LW}_again
    s_cmp_eq_u32 s77, 2
    s_cbranch_scc1 {LWD}
    {LW}_again:
    """)
    spin_guard(a, LW)
    a.label(LWD)
    stamp(a, 5)
    slot(3, 0)
    slot(3, 1)
    advance()
    slot(0, 0); slot(0, 1); slot(1, 0)
    a("s_waitcnt vmcnt(0)")
    lds_signal(M_CALL)
    slot(1, 1); slot(2, 0); slot(2, 1)
    a(f"v_add_u32 v3, s78, v{VMISC}")
    lds_wait(a, 3, M_CALL, 4, 4)
    slot(3, 0); slot(3, 1)
    advance()
    a("s_mov_b32 s79, 2")
    a.label("L_att_loop")
    for t in range(4):
        slot(t, 0); slot(t, 1)
    advance()
    a(f"""
    s_add_u32 s79, s79, 1
    s_cmp_lt_u32 s79, 7
    s_cbranch_scc1 L_att_loop
    s_setprio 3
    s_lshl_b32 s5, s42, 3
    s_add_u32 s5, s5, s40              ; T
    s_lshr_b32 s6, s5, 1
    s_lshl_b32 s6, s6, 7
    s_add_u32 s76, s6, {FLG}           ; FLG[tau]
    s_lshl_b32 s57, s5, 7
    s_add_u32 s57, s57, {GBUF}
    v_mov_b32 v{VPL}, 0
    """)
    poll_flags(a, VPL, "s76", [(1, 0)], VT)
    a(f"""
    v_and_b32 v3, 31, v1
    v_lshlrev_b32 v3, 2, v3
    buffer_load_dword v{VG}, v3, {sr(S_WS)}, s57 offen
    s_setprio 0
    """)
    for t in range(4):
        slot(t, 0); slot(t, 1)
    a(f"""
    s_setprio 3
    s_nop 0
    v_mfma_f32_32x32x16_bf16 {vr(O+16,16)}, {vr(VB+12,4)}, {vr(P+12,4)}, {vr(O+16,16)}
    s_waitcnt lgkmcnt(0)
    """)
    stamp(a, 6)
    LS = a.new("L_noswap")
    a(f"""
    s_xor_b32 s5, s40, 1
    s_lshl_b32 s6, s5, 11
    v_add_u32 v3, s6, v2
    v_add_u32 v3, {L_OX}, v3
    v_add_u32 v4, s53, v2
    v_add_u32 v4, {L_OX}, v4
    v_lshlrev_b32 v5, 2, v1
    s_lshl_b32 s6, s5, 8
    v_add_u32 v6, s6, v5
    v_add_u32 v6, {L_LX}, v6
    s_lshl_b32 s6, s40, 8
    v_add_u32 v7, s6, v5
    v_add_u32 v7, {L_LX}, v7
    s_lshl_b32 s6, s5, 2
    v_add_u32 v{VT}, s6, v{VMISC}
    s_lshl_b32 s6, s40, 2
    v_add_u32 v{VT+1}, s6, v{VMISC}
    v_mov_b32 v{VT+2}, 1
    s_nop 4
    s_cmp_eq_u32 s58, 0
    s_cbranch_scc1 {LS}
    """)
    for r in range(9):
        a(f"v_swap_b32 v{O+r}, v{O+16+r}")
    for r in range(4):
        a(f"v_swap_b32 v{Q+r}, v{Q+4+r}")
    a(f"""
    {LS}:
    ds_write_b128 v3, {vr(O+16,4)}
    ds_write_b128 v3, {vr(O+20,4)} offset:1024
    ds_write_b32 v6, v{O+24}
    s_waitcnt lgkmcnt(0)
    ds_write_b32 v{VT}, v{VT+2} offset:{M_PAIR}
    """)
    lds_wait(a, VT + 1, M_PAIR, 1, 5)
    a(f"""
    ds_read_b128 {vr(O+16,4)}, v4
    ds_read_b128 {vr(O+20,4)}, v4 offset:1024
    ds_read_b32 v{O+24}, v7
    s_waitcnt lgkmcnt(0)
    """)
    for r in range(9):
        a(f"v_add_f32 v{O+r}, v{O+r}, v{O+16+r}")
    a.label("L_att_check")
    a(f"""
    v_mov_b32 v3, v{O+8}
    s_nop 1
    v_permlane32_swap_b32 v{O+8}, v3
    s_cmp_eq_u32 s77, 3
    s_cbranch_scc1 L_att_fin
    v_max3_f32 v3, |v{O}|, |v{O+1}|, |v{O+2}|
    v_max3_f32 v3, v3, |v{O+3}|, |v{O+4}|
    v_max3_f32 v3, v3, |v{O+5}|, |v{O+6}|
    v_max_f32 v4, |v{O+7}|, |v{O+7}|
    v_max_f32 v3, v3, v4
    v_add_f32 v4, v{O}, v{O+1}
    v_add_f32 v5, v{O+2}, v{O+3}
    v_add_f32 v4, v4, v5
    v_add_f32 v5, v{O+4}, v{O+5}
    v_add_f32 v4, v4, v5
    v_add_f32 v5, v{O+6}, v{O+7}
    v_add_f32 v4, v4, v5
    s_mov_b32 s5, 0x53800000           ; 2^40
    s_mov_b32 s6, 0x7f000000           ; 2^127
    v_cmp_nle_f32 vcc, v{O+8}, s5
    v_cmp_nle_f32 s[48:49], v3, s6
    v_cmp_u_f32 s[50:51], v4, v4
    s_or_b64 vcc, vcc, s[48:49]
    s_or_b64 vcc, vcc, s[50:51]
    s_cbranch_scc0 L_att_fin
    """)
    a(f"""
    v_mov_b32 v3, {L_MISC}
    """)
    lds_wait(a, 3, M_CALL, 4, 4)
    lds_wait(a, 3, M_CALL + 4, 4, 4)
    a(f"""
    s_mov_b32 s77, 3
    v_mov_b32 v{VKA}, v2
    v_mov_b32 v3, 0xff800000
    s_mov_b32 s79, 0
    L_fb_max:
    ds_read_b128 {vr(KB,4)}, v{VKA}
    s_waitcnt lgkmcnt(0)
    v_mfma_f32_32x32x16_bf16 {vr(S,16)}, {vr(KB,4)}, {vr(Q,4)}, 0
    v_add_u32 v{VKA}, 2048, v{VKA}
    s_nop 7
    s_nop 7
    """)
    for r in range(0, 16, 2):
        a(f"v_max3_f32 v3, v3, v{S+r}, v{S+r+1}")
    a(f"""
    s_add_u32 s79, s79, 1
    s_cmp_lt_u32 s79, 64
    s_cbranch_scc1 L_fb_max
    v_mov_b32 v4, v3
    s_nop 1
    v_permlane32_swap_b32 v3, v4
    s_nop 1
    v_max_f32 v3, v3, v4
    """)
    for r in range(16):
        a(f"v_sub_f32 v{NM+r}, 0, v3")
        a(f"v_mov_b32 v{O+r}, 0")
    a(f"""
    v_mov_b32 v{VKA}, v2
    v_lshrrev_b32 v4, 5, v1
    v_and_b32 v5, 15, v1
    v_lshlrev_b32 v5, 4, v5
    v_lshl_add_u32 v{VVA}, v4, 8, v5
    s_mov_b32 s79, 0
    L_fb_loop:
    ds_read_b128 {vr(KB,4)}, v{VKA}
    s_mov_b64 exec, s[74:75]
    ds_read_b128 {vr(VB,4)}, v{VVA} offset:1024
    ds_read_b128 {vr(VB+4,4)}, v{VVA} offset:1536
    s_mov_b64 exec, -1
    s_waitcnt lgkmcnt(0)
    v_mfma_f32_32x32x16_bf16 {vr(S,16)}, {vr(KB,4)}, {vr(Q,4)}, {vr(NM,16)}
    v_add_u32 v{VKA}, 2048, v{VKA}
    v_add_u32 v{VVA}, 2048, v{VVA}
    s_nop 7
    s_nop 7
    """)
    for r in range(16):
        a(f"v_exp_f32 v{S+r}, v{S+r}")
    a("s_nop 0")
    for r in range(8):
        a(f"v_cvt_pk_bf16_f32 v{P+r}, v{S+2*r}, v{S+2*r+1}")
    a(f"""
    s_nop 1
    v_mfma_f32_32x32x16_bf16 {vr(O,16)}, {vr(VB,4)}, {vr(P,4)}, {vr(O,16)}
    v_mfma_f32_32x32x16_bf16 {vr(O,16)}, {vr(VB+4,4)}, {vr(P+4,4)}, {vr(O,16)}
    s_add_u32 s79, s79, 1
    s_cmp_lt_u32 s79, 64
    s_cbranch_scc1 L_fb_loop
    s_nop 7
    s_nop 7
    s_branch L_att_check
    L_att_fin:
    v_rcp_f32 v3, v{O+8}
    s_waitcnt vmcnt(0)
    v_mul_f32 v3, v3, v{VG}
    """)
    for r in range(8):
        a(f"v_mul_f32 v{O+r}, v{O+r}, v3")
    for r in range(4):
        a(f"v_cvt_pk_bf16_f32 v{P+r}, v{O+2*r}, v{O+2*r+1}")
    a(f"""
    s_lshl_b32 s5, s42, 3
    s_add_u32 s5, s5, s40              ; T
    s_lshl_b32 s5, s5, 5
    s_add_u32 s5, s5, s41              ; T*32 + h
    s_lshl_b32 s6, s5, 10
    s_add_u32 s6, s6, {OF}
    s_lshl_b32 s7, s5, 7
    s_add_u32 s7, s7, {FL3}
    buffer_store_dwordx4 {vr(P,4)}, v2, {sr(S_WS)}, s6 offen sc1
    s_waitcnt vmcnt(0)
    """)
    store_flag(a, "s7", VT)
    stamp_end(a)
    a("s_endpgm")

def aux_wave(a):
    srd(a, S_OUT, 20, 1024)
    R = 16; F = 32
    a(f"""
    s_setprio 3
    s_sub_u32 s43, s40, 8              ; u
    v_mov_b32 v3, 0
    v_lshlrev_b32 v4, 2, v1
    v_add_u32 v4, {L_MISC}, v4
    ds_write_b32 v4, v3
    v_lshrrev_b32 v3, 3, v1
    v_lshlrev_b32 v3, 10, v3
    v_and_b32 v4, 7, v1
    v_lshrrev_b32 v5, 4, v1
    v_xor_b32 v4, v4, v5
    v_lshl_add_u32 v{VD0}, v4, 4, v3
    v_xor_b32 v4, 4, v4
    v_lshl_add_u32 v{VD1}, v4, 4, v3
    v_add_u32 v{VD1}, 8192, v{VD1}
    s_lshl_b32 s52, s4, 16
    s_lshl_b32 s5, s43, 14
    s_add_u32 s52, s52, s5
    s_lshl_b32 s53, s43, 11
    """)
    a("""
    s_mov_b32 s78, s52
    s_mov_b32 s79, s53
    """)
    q = []
    def xdma(sig):
        a(f"""
        s_add_u32 s5, s49, {sig}
        s_and_b32 s5, s5, 7
        s_lshl_b32 s5, s5, 7
        s_add_u32 m0, s79, {sig*8192}
        s_add_u32 s50, s5, s78
        buffer_load_dwordx4 v{VD0}, {sr(S_X)}, s50 offen lds
        s_add_u32 m0, s79, {sig*8192+1024}
        s_nop 0
        buffer_load_dwordx4 v{VD1}, {sr(S_X)}, s50 offen lds
        """)
        q.extend([("x", sig)] * 2)
    XD = 5
    for sig in range(XD):
        xdma(sig)
        if sig == 1: a("s_barrier")
    a(f"""
    s_lshl_b32 s51, s2, 2
    s_add_u32 s51, s51, s43            ; gw
    s_and_b32 s5, s4, 3
    s_lshl_b32 s5, s5, 1
    s_add_u32 s73, s5, s42
    v_and_b32 v3, 31, v1               ; i
    v_lshrrev_b32 v4, 5, v1            ; hh
    s_cmp_ge_u32 s51, 448
    s_cbranch_scc1 L_w2
    """)
    srd(a, S_SRC, 16, 512 * 3584)
    a(f"""
    s_mul_hi_u32 s53, s51, 0x924924a
    s_mul_i32 s5, s53, 28
    s_sub_u32 s52, s51, s5             ; cb
    s_mul_i32 s59, s53, {32*3584}
    s_mov_b32 s48, 3584
    s_mov_b32 s55, 3584                ; j3->j4 step
    s_mov_b32 s74, {9*3584}
    s_mov_b32 s75, {8*3584}
    s_mov_b32 s56, {32*1024}
    s_mov_b32 s57, {W1F}
    s_branch L_rl2
    L_w2:
    s_cmp_ge_u32 s51, 896
    s_cbranch_scc1 L_wo
    """)
    srd(a, S_SRC, 18, 1792 * 1024)
    a(f"""
    s_sub_u32 s5, s51, 448
    s_and_b32 s52, s5, 7               ; cb
    s_lshr_b32 s53, s5, 3              ; kp (0..55)
    s_lshr_b32 s5, s53, 1
    s_lshl_b32 s59, s5, 6
    s_and_b32 s5, s53, 1
    s_add_u32 s59, s59, s5
    s_lshl_b32 s59, s59, 10
    s_mov_b32 s48, 2048
    s_mov_b32 s55, {5*2048}
    s_mov_b32 s74, {5*2048}
    s_mov_b32 s75, {4*2048}
    s_mov_b32 s56, {112*1024}
    s_mov_b32 s57, {W2F}
    s_branch L_rl2
    L_wo:
    """)
    srd(a, S_SRC, 12, 512 * 1024)
    a(f"""
    s_sub_u32 s5, s51, 896
    s_and_b32 s52, s5, 7               ; cb
    s_lshr_b32 s53, s5, 3              ; kp (0..15)
    s_lshl_b32 s59, s53, 15
    s_mov_b32 s48, 1024
    s_mov_b32 s55, {5*1024}
    s_mov_b32 s74, {5*1024}
    s_mov_b32 s75, 4096
    s_mov_b32 s56, {32*1024}
    s_mov_b32 s57, {WOF}
    L_rl2:
    s_lshl_b32 s5, s52, 7
    s_add_u32 s59, s59, s5
    v_mul_lo_u32 v5, v4, s75
    v_lshl_add_u32 v5, v3, 2, v5
    """)
    a("v_mov_b32 v48, v5")
    def rl_loads(half):
        for j in range(8):
            a(f"buffer_load_dword v{R+8*half+j}, v48, {sr(S_SRC)}, s59 offen")
            q.append(("r", half))
            if not (half == 1 and j == 7):
                a(f"s_add_u32 s59, s59, {'s55' if j == 3 else ('s74' if j == 7 else 's48')}")
    a(f"""
    s_lshl_b32 s5, s52, 1
    s_mul_i32 s5, s5, s56
    s_add_u32 s57, s57, s5
    s_lshl_b32 s5, s53, 11
    s_add_u32 s57, s57, s5
    s_add_u32 s56, s56, s57
    """)
    make_tag(a)
    pa_addr(a)
    a(f"""
    s_lshl_b32 s58, s4, 1
    s_and_b32 s5, s43, 1
    s_add_u32 s58, s58, s5
    s_lshl_b32 s58, s58, 5
    s_lshl_b32 s5, s49, 2
    s_add_u32 s58, s58, s5
    s_and_b32 s5, s43, 2
    s_add_u32 s58, s58, s5
    s_lshl_b32 s58, s58, 10
    s_add_u32 s58, s58, {XF}
    s_mov_b32 s80, 0x05040100
    s_mov_b32 s81, 0x07060302
    s_setprio 0
    """)
    def wait_for(tagv):
        last = max(k for k, e in enumerate(q) if e == tagv)
        a(f"s_waitcnt vmcnt({len(q) - 1 - last})")
    for sig in range(8):
        wait_for(("x", sig))
        if sig == 0: stamp(a, 0)
        a("s_barrier")
        if sig + XD < 8:
            xdma(sig + XD)
        if sig in (0, 1):
            rl_loads(sig)
        pa_compute(a, sig, True)
        if sig == 0:
            LX = a.new("L_xf")
            a(f"""
            s_cmp_ge_u32 s43, 2
            s_cbranch_scc1 {LX}
            buffer_store_dwordx4 {vr(XB,4)}, v2, {sr(S_WS)}, s58 offen sc1
            buffer_store_dwordx4 {vr(XB+4,4)}, v2, {sr(S_WS)}, s58 offen offset:1024 sc1
            s_branch {LX}_d
            {LX}:
            buffer_store_dwordx4 {vr(XB+8,4)}, v2, {sr(S_WS)}, s58 offen sc1
            buffer_store_dwordx4 {vr(XB+12,4)}, v2, {sr(S_WS)}, s58 offen offset:1024 sc1
            {LX}_d:
            """)
            q.extend([("s", 0)] * 2)
        if sig in (4, 5):
            half = sig - 4
            wait_for(("r", half))
            for jj in range(4):
                A = R + 8 * half + 2 * jj
                B = A + 1
                a(f"v_perm_b32 v{F+8*half+jj}, v{B}, v{A}, s80")
                a(f"v_perm_b32 v{F+8*half+4+jj}, v{B}, v{A}, s81")
            a(f"buffer_store_dwordx4 {vr(F+8*half,4)}, v2, {sr(S_WS)}, s57 offen offset:{half*1024} sc1")
            a(f"buffer_store_dwordx4 {vr(F+8*half+4,4)}, v2, {sr(S_WS)}, s56 offen offset:{half*1024} sc1")
            q.extend([("s", 1 + half)] * 2)
    a(f"""
    s_lshr_b32 s5, s43, 1
    s_lshl_b32 s5, s5, 1
    s_lshl_b32 s6, s3, 2
    s_add_u32 s5, s5, s6
    s_lshl_b32 s5, s5, 6
    s_lshl_b32 s6, s4, 1
    s_add_u32 s5, s5, s6
    s_and_b32 s6, s43, 1
    s_add_u32 s5, s5, s6
    s_lshl_b32 s54, s5, 11
    s_add_u32 s54, s54, {KV}
    v_bfe_u32 v3, v1, 4, 1
    v_lshlrev_b32 v3, 17, v3
    v_lshrrev_b32 v4, 5, v1
    v_lshl_add_u32 v3, v4, 8, v3
    v_and_b32 v4, 15, v1
    v_lshl_add_u32 v3, v4, 4, v3
    """)
    for r in range(8):
        a(f"v_cvt_pk_bf16_f32 v{XB+r}, v{ACCA+2*r}, v{ACCA+2*r+1}")
    dual(a, 77, [f"buffer_store_dwordx4 {vr(XB,4)}, v3, {sr(S_WS)}, s54 offen offset:1024",
                 f"buffer_store_dwordx4 {vr(XB+4,4)}, v3, {sr(S_WS)}, s54 offen offset:1536"])
    VM = VMI
    ACC = 16; BUF = 80
    a(f"""
    s_waitcnt vmcnt(0)
    s_barrier
    s_cmp_lg_u32 s43, 0
    s_cbranch_scc1 L_e0skip
    v_and_b32 v7, 7, v1
    v_lshlrev_b32 v7, 7, v7
    s_mov_b32 s58, {FLS}
    """)
    lds_wait(a, VM, M_DMA, 8, 8, sleep=4)
    a("s_sleep 8")
    poll_flags(a, 7, "s58", [(1, 0)], BUF, sleep=12)
    a(f"""
    s_cmp_lg_u32 s2, 0
    s_cbranch_scc1 L_nobump
    s_mov_b64 exec, 1
    s_add_u32 s5, s{S_EP}, 1
    v_mov_b32 v7, s5
    buffer_store_dword v7, v2, {sr(S_WS)}, 0 offen offset:{EPOCH} sc1
    s_mov_b64 exec, -1
    L_nobump:
    v_mov_b32 v6, 1
    ds_write_b32 v{VM}, v6 offset:{M_E0R}
    L_e0skip:
    """)
    stamp(a, 1)
    lds_wait(a, VM, M_E0R, 1, 6, sleep=4)
    stamp(a, 2)
    a(f"""
    s_mul_i32 s5, s42, 7
    s_lshl_b32 s6, s43, 1
    s_add_u32 s51, s5, s6
    s_lshl_b32 s52, s51, 15
    s_add_u32 s52, s52, {W1F}
    s_lshl_b32 s53, s41, 16
    s_add_u32 s53, s53, {XF}
    v_mov_b32 v4, v2
    v_add_u32 v5, 32768, v2
    v_lshrrev_b32 v6, 5, v1
    v_lshlrev_b32 v6, 4, v6
    s_mul_i32 s54, s41, {2*112*1024}
    s_lshl_b32 s5, s51, 11
    s_add_u32 s54, s54, s5
    s_add_u32 s54, s54, {HF}
    s_add_u32 s55, s54, {112*1024}
    s_and_b32 s78, s73, 7
    s_cmp_eq_u32 s43, 3
    s_cbranch_scc1 L_f1g
    """)
    def f1(gate):
        stream_gemm(a, 32, 2, 2, ACC, BUF, 5, 4, 4, 52, 53, 78, gate=(S_OUT, 6) if gate else None)
        a("""
        s_setprio 3
        s_nop 7
        s_nop 7
        """)
        lines = []
        for at in range(1 if gate else 2):
            for bt in range(2):
                d = ACC + 16 * (at * 2 + bt)
                o = BUF + 8 * (at * 2 + bt)
                for r in range(8):
                    a(f"v_cvt_pk_bf16_f32 v{o+r}, v{d+2*r}, v{d+2*r+1}")
                for r in range(8):
                    a(f"v_pk_max_i16 v{o+r}, v{o+r}, 0")
                for half in range(2):
                    lines.append(f"buffer_store_dwordx4 {vr(o+4*half,4)}, v2, {sr(S_WS)}, s{54+bt} offen offset:{(2*at+half)*1024}")
        dual(a, 77, lines)
        if gate:
            a(f"""
            v_cmp_gt_u32 vcc, 32, v1
            s_nop 1
            v_cndmask_b32 v8, v{ACC+48}, v{ACC+32}, vcc
            """)
            sigmoid(a, 8)
            a(f"""
            v_lshlrev_b32 v9, 2, v1
            s_cmp_lg_u32 s42, 0
            s_cbranch_scc1 L_nog
            s_lshl_b32 s5, s41, 8
            s_add_u32 s5, s5, {GBUF}
            buffer_store_dword v8, v9, {sr(S_WS)}, s5 offen sc1
            s_waitcnt vmcnt(0)
            s_lshl_b32 s5, s41, 7
            s_add_u32 s5, s5, {FLG}
            """)
            store_flag(a, "s5", 12)
            a(f"""
            L_nog:
            v_sub_f32 v8, 1.0, v8
            v_add_u32 v9, {L_GF}, v9
            ds_write_b32 v9, v8
            v_mov_b32 v9, {L_MISC}
            v_mov_b32 v8, 1
            s_waitcnt lgkmcnt(0)
            ds_write_b32 v9, v8 offset:{M_GF}
            """)
    f1(False)
    a("s_branch L_f1done")
    a.label("L_f1g")
    f1(True)
    a.label("L_f1done")
    a(f"""
    s_waitcnt vmcnt(0)
    v_mov_b32 v9, {L_MISC}
    s_mov_b64 exec, 1
    v_mov_b32 v8, 1
    ds_add_rtn_u32 v8, v9, v8 offset:{M_E2}
    s_waitcnt lgkmcnt(0)
    s_mov_b64 exec, -1
    v_readfirstlane_b32 s5, v8
    s_cmp_lg_u32 s5, 3
    s_cbranch_scc1 L_e2skip
    s_lshl_b32 s5, s41, 3
    s_add_u32 s5, s5, s42
    s_lshl_b32 s5, s5, 7
    s_add_u32 s5, s5, {FL2}
    """)
    store_flag(a, "s5", 12, sfast=77)
    a.label("L_e2skip")
    stamp(a, 3)
    a(f"""
    v_and_b32 v3, 31, v1
    v_lshlrev_b32 v3, 2, v3
    s_lshl_b32 s58, s41, 10
    s_add_u32 s58, s58, {FL2}
    v_and_b32 v8, 7, v1
    v_lshlrev_b32 v8, 7, v8
    v_add_u32 v5, {112*1024}, v2
    v_mov_b32 v6, v2
    v_add_u32 v7, 32768, v2
    s_mul_i32 s5, s43, {28*1024}
    s_mul_i32 s52, s42, {2*112*1024}
    s_add_u32 s52, s52, s5
    s_add_u32 s52, s52, {W2F}
    s_mul_i32 s53, s41, {2*112*1024}
    s_add_u32 s53, s53, s5
    s_add_u32 s53, s53, {HF}
    s_lshl_b32 s5, s43, 13
    s_lshl_b32 s54, s42, 16
    s_add_u32 s54, s54, s5
    s_add_u32 s54, s54, {WOF}
    s_lshl_b32 s55, s41, 16
    s_add_u32 s55, s55, s5
    s_add_u32 s55, s55, {OF}
    """)
    a("""
    s_cmp_lg_u32 s43, 0
    s_cbranch_scc1 L_e2lds
    """)
    poll_flags(a, 8, "s58", [(1, 0)], BUF)
    a(f"""
    v_mov_b32 v8, 1
    ds_write_b32 v9, v8 offset:{M_E2R}
    L_e2lds:
    """)
    lds_wait(a, 9, M_E2R, 1, 8)
    a("""
    s_sub_u32 s78, s73, 7
    s_cmp_ge_u32 s73, 7
    s_cselect_b32 s78, s78, s73
    """)
    a("s_setprio 0")
    stream_gemm(a, 28, 2, 2, ACC, BUF, 5, 4, 4, 52, 53, 78)
    a("s_setprio 3")
    stamp(a, 4)
    WOB = 80; OB = 8
    for k in range(8):
        for at in range(2):
            if k == 4 and at == 0:
                a("s_add_u32 s54, s54, 4096")
            a(f"buffer_load_dwordx4 {vr(WOB+8*k+4*at,4)}, v{6+at}, {sr(S_WS)}, s54 offen offset:{(k%4)*1024}")
    a(f"v_mov_b32 v9, {L_MISC}")
    lds_wait(a, 9, M_GF, 1, 8)
    a(f"""
    v_add_u32 v9, {L_GF}, v3
    ds_read_b32 v10, v9
    ds_read_b32 v11, v9 offset:128
    s_waitcnt lgkmcnt(0)
    """)
    for at in range(2):
        for bt in range(2):
            d = ACC + 16 * (at * 2 + bt)
            for r in range(16):
                a(f"v_mul_f32 v{d+r}, v{d+r}, v{10+bt}")
    a(f"""
    v_and_b32 v3, 7, v1
    v_bfe_u32 v4, v1, 3, 1
    v_lshlrev_b32 v3, 7, v3
    v_lshl_add_u32 v3, v4, 12, v3
    s_lshl_b32 s58, s41, 13
    s_lshl_b32 s5, s43, 10
    s_add_u32 s58, s58, s5
    s_add_u32 s58, s58, {FL3}
    """)
    poll_flags(a, 3, "s58", [(1, 0)], 8)
    stamp(a, 5)
    oslots = [144, 148, 152, 156, 160, 164, 8, 12]
    for half in range(2):
        for k in range(4):
            for bt in range(2):
                a(f"buffer_load_dwordx4 {vr(oslots[2*k+bt],4)}, v{6+bt}, {sr(S_WS)}, s55 offen offset:{k*1024}")
        a("s_add_u32 s55, s55, 4096")
        for k in range(4):
            a(f"s_waitcnt vmcnt({6-2*k})")
            kk = 4 * half + k
            for at in range(2):
                for bt in range(2):
                    d = ACC + 16 * (at * 2 + bt)
                    a(f"v_mfma_f32_32x32x16_bf16 {vr(d,16)}, {vr(WOB+8*kk+4*at,4)}, {vr(oslots[2*k+bt],4)}, {vr(d,16)}")
    srd(a, S_OUT, 22, 2048 * 1024)
    a(f"""
    s_lshl_b32 s5, s43, 14
    v_add_u32 v3, s5, v2
    s_and_b32 s5, s43, 1
    s_lshl_b32 s5, s5, 12
    s_lshr_b32 s6, s43, 1
    s_lshl_b32 s6, s6, 11
    s_add_u32 s5, s5, s6
    v_add_u32 v8, s5, v2
    s_barrier
    s_nop 7
    """)
    for t in range(4):
        for q in range(4):
            a(f"ds_write_b128 v3, {vr(ACC+16*t+4*q,4)} offset:{t*4096+q*1024}")
    a("""
    s_waitcnt lgkmcnt(0)
    s_barrier
    """)
    for u in range(4):
        for at in range(2):
            for q in range(2):
                a(f"ds_read_b128 {vr(ACC+16*u+8*at+4*q,4)}, v8 offset:{u*16384+at*8192+q*1024}")
        if u == 2:
            a("s_waitcnt lgkmcnt(4)")
    a("s_waitcnt lgkmcnt(0)")
    for r in range(16):
        a(f"v_add_f32 v{ACC+r}, v{ACC+r}, v{ACC+16+r}")
        a(f"v_add_f32 v{ACC+32+r}, v{ACC+32+r}, v{ACC+48+r}")
    for r in range(16):
        a(f"v_add_f32 v{ACC+r}, v{ACC+r}, v{ACC+32+r}")
    BUF = 80
    for r in range(8):
        a(f"v_cvt_pk_bf16_f32 v{BUF+r}, v{ACC+r}, v{ACC+8+r}")
    a(f"""
    s_and_b32 s5, s43, 1
    s_lshl_b32 s5, s5, 5
    s_lshl_b32 s6, s41, 6
    s_add_u32 s5, s5, s6
    s_lshl_b32 s5, s5, 10
    s_lshr_b32 s6, s43, 1
    s_lshl_b32 s6, s6, 6
    s_add_u32 s5, s5, s6
    s_lshl_b32 s6, s42, 7
    s_add_u32 s5, s5, s6
    v_and_b32 v3, 31, v1
    v_lshlrev_b32 v3, 10, v3
    v_lshrrev_b32 v4, 5, v1
    v_lshl_add_u32 v3, v4, 4, v3
    buffer_store_dwordx4 {vr(BUF,4)}, v3, {sr(S_OUT)}, s5 offen
    buffer_store_dwordx4 {vr(BUF+4,4)}, v3, {sr(S_OUT)}, s5 offen offset:32
    """)
    stamp_end(a)

def kd(name, nv, ns=102):
    return f""".p2align 6
.amdhsa_kernel {name}
  .amdhsa_next_free_vgpr {nv}
  .amdhsa_next_free_sgpr {ns}
  .amdhsa_accum_offset {(nv+3)//4*4}
  .amdhsa_group_segment_fixed_size 0
  .amdhsa_kernarg_size 80
  .amdhsa_user_sgpr_count 2
  .amdhsa_user_sgpr_kernarg_segment_ptr 1
  .amdhsa_system_sgpr_workgroup_id_x 1
.end_amdhsa_kernel
"""

def main(out):
    hdr = open("cdna_kernels/" + NAME + ".s.ref").read().split("\n")
    hdr = [l for l in hdr if l.startswith(";") and "@launch" not in l]
    a = Asm()
    gen(a)
    txt = "\n".join(hdr) + "\n"
    txt += f"; @launch grid=(256,1,1) block=(768,1,1) lds={LDS_BYTES}\n"
    txt += '.amdgcn_target "amdgcn-amd-amdhsa--gfx950"\n.text\n'
    txt += a.text()
    txt += '.section .rodata,"a"\n'
    txt += kd(NAME + "_kernel", 168)
    open(out, "w").write(txt)

if __name__ == "__main__":
    main(sys.argv[1] if len(sys.argv) > 1 else "cdna_kernels/" + NAME + ".s")
```

```python
import math, os, struct, sys

NAME = "gated_mix__mha_block__dense_activation_relu__prompt"
STAMP = os.environ.get("STAMP")

def f32bits(x):
    return struct.unpack("<I", struct.pack("<f", x))[0]

class Asm:
    def __init__(self):
        self.l = []
        self.uid = 0
    def __call__(self, s):
        for line in s.strip("\n").split("\n"):
            line = line.strip()
            if line:
                self.l.append(("" if line.endswith(":") else "    ") + line)
    def label(self, s):
        self.l.append(s + ":")
    def raw(self, s):
        self.l.append(s)
    def new(self, p="L"):
        self.uid += 1
        return f"{p}_{self.uid}"
    def text(self):
        return "\n".join(self.l) + "\n"

EPOCH = 0x0
QF = 0x1A00000
XID = 0xD38000
KV = 0x200000
XF = 0x600000
W1F = 0x800000
W2F = 0xA00000
WOF = 0xC00000
FLS = 0xD00000
FL2 = 0xD10000
FL1 = 0xD40000
FL3 = 0xD80000
GBUF = 0xD20000
FLG = 0xD30000
HF = 0x1000000
OF = 0x1800000
STB = 0x1F00000
WS_BYTES = 0x2000000

L_X = 0
L_W = 65536
L_OX = 131072
L_MISC = 157696
L_MISC0 = 65536
L_LX = 158720
L_GF = 160768
LDS_BYTES = 163840
M_PROG, M_QOK, M_PAIR, M_GF, M_E0R, M_E2, M_E2R, M_DMA = 0, 32, 64, 128, 136, 140, 144, 168

QSCALE = 0.25 * math.log2(math.e)
LOG2E = math.log2(math.e)
SPIN_MAX = 200000
ILV = int(os.environ.get('ILV', '0'))
FPRIO = int(os.environ.get('FPRIO', '0'))

S_X, S_WQKV, S_WS, S_SRC, S_OUT = 28, 32, 36, 44, 60
S_TAG = 82
S_EP = 84
S_SPIN = 83

def vr(a, n):
    return f"v[{a}:{a+n-1}]"
def sr(a):
    return f"s[{a}:{a+3}]"

def srd(a, d, base, nbytes):
    a(f"""
    s_mov_b32 s{d}, s{base}
    s_and_b32 s{d+1}, s{base+1}, 0xffff
    s_mov_b32 s{d+2}, {nbytes:#x}
    s_mov_b32 s{d+3}, 0x20000
    """)

NST = 7
def stamp_begin(a):
    if not STAMP: return
    a("""
    s_memtime s[64:65]
    s_memrealtime s[66:67]
    s_waitcnt lgkmcnt(0)
    """)
    for i in range(NST):
        a(f"s_mov_b32 s{88+2*i}, s64")
PAST = os.environ.get("PAST")
def stamp(a, i, pa=False):
    if not STAMP: return
    if bool(PAST) != pa: return
    a(f"""
    s_waitcnt lgkmcnt(0)
    s_memtime s[{88+2*i}:{89+2*i}]
    s_waitcnt lgkmcnt(0)
    """)
def stamp_end(a):
    if not STAMP: return
    a(f"""
    s_waitcnt vmcnt(0) lgkmcnt(0)
    s_memtime s[68:69]
    s_memrealtime s[70:71]
    s_waitcnt lgkmcnt(0)
    s_mov_b64 exec, 1
    v_mov_b32 v4, s64
    v_mov_b32 v5, s66
    v_mov_b32 v6, s68
    v_mov_b32 v7, s70
    """)
    for i in range(8):
        a(f"v_mov_b32 v{8+i}, s{88+2*min(i,NST-1)}" if i < NST else "v_mov_b32 v15, s73")
    a(f"""
    s_lshl_b32 s72, s2, 4
    s_add_u32 s72, s72, s40
    s_lshl_b32 s72, s72, 6
    s_add_u32 s72, s72, {STB}
    v_mov_b32 v3, 0
    buffer_store_dwordx4 v[4:7], v3, {sr(S_WS)}, s72 offen
    buffer_store_dwordx4 v[8:11], v3, {sr(S_WS)}, s72 offen offset:16
    buffer_store_dwordx4 v[12:15], v3, {sr(S_WS)}, s72 offen offset:32
    """)

def spin_guard(a, again, sleep=4):
    a(f"""
    s_sleep {sleep}
    s_add_u32 s{S_SPIN}, s{S_SPIN}, 1
    s_cmp_lt_u32 s{S_SPIN}, {SPIN_MAX}
    s_cbranch_scc1 {again}
    s_endpgm
    """)

def poll_flags(a, voff, soff, loads, T, sleep=8):
    L = a.new("L_poll"); D = a.new("L_pdone")
    a.label(L)
    r = T
    regs = []
    for nd, imm in loads:
        op = {1: "buffer_load_dword", 2: "buffer_load_dwordx2", 4: "buffer_load_dwordx4"}[nd]
        dst = f"v{r}" if nd == 1 else vr(r, nd)
        a(f"{op} {dst}, v{voff}, {sr(S_WS)}, {soff} offen offset:{imm} sc1")
        regs += list(range(r, r + nd)); r += nd
    a("s_waitcnt vmcnt(0)")
    a(f"v_xor_b32 v{regs[0]}, s{S_TAG}, v{regs[0]}")
    for q in regs[1:]:
        a(f"v_xor_b32 v{q}, s{S_TAG}, v{q}")
        a(f"v_or_b32 v{regs[0]}, v{regs[0]}, v{q}")
    a(f"""
    v_cmp_ne_u32 vcc, 0, v{regs[0]}
    s_cmp_eq_u64 vcc, 0
    s_cbranch_scc1 {D}
    """)
    spin_guard(a, L, sleep)
    a.label(D)

def lds_wait(a, vaddr, off, val, T, sleep=1):
    L = a.new("L_lw"); D = a.new("L_lwd")
    a.label(L)
    a(f"""
    ds_read_b32 v{T}, v{vaddr} offset:{off}
    s_waitcnt lgkmcnt(0)
    v_readfirstlane_b32 s5, v{T}
    s_cmp_eq_u32 s5, {val}
    s_cbranch_scc1 {D}
    """)
    spin_guard(a, L, sleep)
    a.label(D)

def lds_add(a, vaddr, off, T):
    a(f"""
    s_mov_b64 exec, 1
    v_mov_b32 v{T}, 1
    ds_add_u32 v{vaddr}, v{T} offset:{off}
    s_mov_b64 exec, -1
    """)

def dual(a, sfast, lines):
    for l in lines: a(l + " sc1")

def store_flag(a, soff, T, sfast=None, second=None):
    a(f"""
    s_mov_b64 exec, 0xff
    v_mov_b32 v{T}, s{S_TAG}
    v_mov_b32 v{T+1}, {second if second else 's%d' % S_TAG}
    v_mov_b32 v{T+2}, s{S_TAG}
    v_mov_b32 v{T+3}, s{S_TAG}
    """)
    line = f"buffer_store_dwordx4 {vr(T,4)}, v2, {sr(S_WS)}, {soff} offen"
    if sfast is None:
        a(line + " sc1")
    else:
        dual(a, sfast, [line])
    a("s_mov_b64 exec, -1")
    a("s_nop 1")

def stream_gemm(a, nsteps, na, nb, ACC, BUF, depth, VA, VB, SA, SB, SG, first=True, gate=None):
    per = na + nb
    ng = nsteps // 4
    def group():
        a(f"""
        s_lshl_b32 s5, s{SG}, 12
        s_add_u32 s80, s{SA}, s5
        s_add_u32 s81, s{SB}, s5
        s_lshl_b32 s79, s{SG}, 7
        s_add_u32 s{SG}, s{SG}, 1
        s_cmp_eq_u32 s{SG}, {ng}
        s_cselect_b32 s{SG}, 0, s{SG}
        """)
    def issue_list(s):
        slot = BUF + (s % depth) * 4 * per
        imm = (s % 4) * 1024
        l = []
        for t in range(na):
            if gate and t == 1:
                l.append(f"buffer_load_dwordx4 {vr(slot+4*t,4)}, v{gate[1]}, {sr(gate[0])}, s79 offen offset:{(s%4)*32}")
            else:
                l.append(f"buffer_load_dwordx4 {vr(slot+4*t,4)}, v{VA+t}, {sr(S_WS)}, s80 offen offset:{imm}")
        for t in range(nb):
            l.append(f"buffer_load_dwordx4 {vr(slot+4*(na+t),4)}, v{VB+t}, {sr(S_WS)}, s81 offen offset:{imm}")
        return l
    for s in range(min(depth - 1, nsteps)):
        if s % 4 == 0: group()
        for l in issue_list(s): a(l)
    for s in range(nsteps):
        nxt = []
        if s + depth - 1 < nsteps:
            if (s + depth - 1) % 4 == 0: group()
            nxt = issue_list(s + depth - 1)
        if not ILV:
            for l in nxt: a(l)
            outstanding = min(depth - 1, nsteps - 1 - s)
        else:
            outstanding = min(depth - 2, nsteps - 1 - s)
        a(f"s_waitcnt vmcnt({outstanding*per})")
        slot = BUF + (s % depth) * 4 * per
        k = 0
        for at in range(na):
            for bt in range(nb):
                d = ACC + 16 * (at * nb + bt)
                c = "0" if (first and s == 0) else vr(d, 16)
                a(f"v_mfma_f32_32x32x16_bf16 {vr(d,16)}, {vr(slot+4*at,4)}, {vr(slot+4*(na+bt),4)}, {c}")
                if ILV and k < len(nxt): a(nxt[k])
                k += 1

def sigmoid(a, v):
    a(f"""
    v_mul_f32 v{v}, {f32bits(-LOG2E):#x}, v{v}
    v_exp_f32 v{v}, v{v}
    s_nop 0
    v_add_f32 v{v}, 1.0, v{v}
    v_rcp_f32 v{v}, v{v}
    s_nop 0
    """)

def gen(a):
    KN = NAME + "_kernel"
    a.raw(f".globl {KN}")
    a.raw(".p2align 8")
    a.raw(f".type {KN},@function")
    a.label(KN)
    a(f"""
    s_cmp_ge_u32 s2, 256
    s_cbranch_scc1 L_end
    s_load_dwordx16 s[8:23], s[0:1], 0
    s_load_dwordx4 s[24:27], s[0:1], 64
    v_lshrrev_b32 v2, 6, v0
    v_and_b32 v1, 63, v0
    s_mov_b32 s{S_SPIN}, 0
    v_readfirstlane_b32 s40, v2
    s_and_b32 s3, s2, 7          ; j
    s_lshr_b32 s4, s2, 3         ; i
    s_and_b32 s43, s4, 3
    s_lshl_b32 s5, s3, 2
    s_add_u32 s41, s43, s5       ; h = tau = 4j + (i&3)
    s_lshr_b32 s42, s4, 2        ; c = phi = i>>2
    """)
    if PAM == "8x4":
        a("""
        s_lshr_b32 s5, s3, 1
        s_lshl_b32 s5, s5, 3
        s_and_b32 s6, s4, 7
        s_add_u32 s86, s5, s6        ; tb = 8(j>>1) + (i&7)
        s_and_b32 s5, s3, 1
        s_lshl_b32 s87, s5, 2
        s_lshr_b32 s7, s4, 3
        s_add_u32 s87, s87, s7       ; g = 4(j&1) + (i>>3)
        s_lshl_b32 s7, s7, 1
        s_add_u32 s49, s6, s7
        s_add_u32 s49, s49, s5
        s_and_b32 s49, s49, 7        ; rot
        """)
    elif PAM == "16x2":
        a("""
        s_lshr_b32 s5, s3, 2
        s_lshl_b32 s5, s5, 4
        s_and_b32 s6, s4, 15
        s_add_u32 s86, s5, s6        ; tb = 16(j>>2) + (i&15)
        s_and_b32 s5, s3, 3
        s_lshl_b32 s87, s5, 1
        s_lshr_b32 s7, s4, 4
        s_add_u32 s87, s87, s7       ; g = 2(j&3) + (i>>4)
        s_lshl_b32 s7, s7, 2
        s_add_u32 s49, s6, s7
        s_add_u32 s49, s49, s5
        s_and_b32 s49, s49, 7        ; rot = i + 4(i>>4) + (j&3)
        """)
    else:
        a("""
        s_mov_b32 s86, s4
        s_mov_b32 s87, s3
        s_add_u32 s49, s3, s4
        s_and_b32 s49, s49, 7
        """)
    a(f"""
    v_lshlrev_b32 v2, 4, v1      ; v2 = lane*16
    s_waitcnt lgkmcnt(0)
    """)
    stamp_begin(a)
    a(f"s_load_dword s{S_EP}, s[26:27], {EPOCH}")
    srd(a, S_X, 8, 2048 * 1024)
    srd(a, S_WQKV, 10, 512 * 3072)
    srd(a, S_WS, 26, WS_BYTES)
    a(f"""
    s_cmp_ge_u32 s40, 8
    s_cbranch_scc1 L_aux
    """)
    attention_wave(a)
    a.label("L_aux")
    aux_wave(a)
    a.label("L_end")
    a("s_endpgm")

VXA = 8
VWA = 12
VMI = 13
VWA2 = 62
NSL = 4
PAM = os.environ.get('PAM', '8x4')
SCHEDS = {
 "a": ({-1: [0, 1], 0: [2, 3], 1: [4], 2: [5], 3: [6], 4: [7, "P"]}, {-1: [0, 1, 2, 3, 4, 5, 6, 7, "r0", "r1"]}, 5),
 "b": ({-1: [0], 0: [1, 2], 1: [3, 4], 2: [5], 3: [6], 4: [7, "P"]}, {-1: [0, 1, 2, 3], 0: [4, 5, 6, 7, "r0", "r1"]}, 5),
 "c": ({-1: [0], 0: [1, 2, 3], 1: [4], 2: [5], 3: [6], 4: [7, "P"]}, {-1: [0, 1, 2, 3, 4, 5, 6, 7], 0: ["r0", "r1"]}, 5),
 "e": ({-1: [0, 1], 0: [2, 3], 1: [4], 2: [5], 3: [6], 4: [7, "P"]}, {-1: [0, 1, 2, 3], 0: [4, 5, "r0"], 1: [6, 7, "r1"]}, 5),
 "f": ({-1: [0, 1, 2, 3], 1: [4], 2: [5], 3: [6], 4: [7, "P"]}, {-1: [0, 1, "r0", "r1", 2, 3, 4], 0: [5], 1: [6], 2: [7]}, 4),
 "d": ({-1: [0, 1], 0: [2, 3], 1: [4], 2: [5], 3: [6], 4: [7, "P"]}, {-1: [0, 1, 2, 3, 4, 5, 6, 7], 4: ["r0", "r1"]}, 6),
}
WSCHED, XSCHED, RLS = SCHEDS[os.environ.get("SCHED", "e")]
VD0, VD1 = 14, 15
ACCA = 64
XB = 80
WB = 96

def make_tag(a):
    a(f"""
    s_waitcnt lgkmcnt(0)
    s_mul_i32 s{S_TAG}, s{S_EP}, 0x9e3779b1
    s_add_u32 s{S_TAG}, s{S_TAG}, 0x7f4a7c15
    """)

def pa_addr(a):
    a(f"""
    v_and_b32 v3, 31, v1               ; m
    v_lshrrev_b32 v4, 5, v1            ; hh
    v_bfe_u32 v5, v1, 1, 3             ; (m>>1)&7
    v_xor_b32 v5, v5, v4
    v_lshlrev_b32 v3, 7, v3
    s_and_b32 s5, s40, 1
    s_lshl_b32 s5, s5, 12              ; tt*32*128
    v_add_u32 v3, s5, v3
    """)
    for ss in range(4):
        a(f"""
        v_xor_b32 v7, {2*ss}, v5
        v_lshl_add_u32 v{VXA+ss}, v7, 4, v3
        """)
    a(f"""
    v_bfe_u32 v7, v1, 2, 2
    v_lshl_add_u32 v7, v4, 3, v7       ; + 8hh
    v_lshlrev_b32 v{VWA}, 7, v7        ; row*128
    v_bfe_u32 v5, v1, 4, 1             ; g
    v_bfe_u32 v6, v1, 1, 1             ; (i&3)>>1
    v_lshl_add_u32 v6, v5, 1, v6
    v_bfe_u32 v5, v1, 3, 1
    s_lshr_b32 s5, s40, 1
    s_and_b32 s5, s5, 1                ; half
    v_xor_b32 v5, s5, v5
    v_lshl_add_u32 v6, v5, 2, v6       ; piece
    v_lshl_add_u32 v{VWA}, v6, 4, v{VWA}
    v_and_b32 v5, 1, v1
    v_lshl_add_u32 v{VWA}, v5, 3, v{VWA}
    s_lshr_b32 s5, s40, 2              ; part
    s_lshl_b32 s5, s5, 13
    s_add_u32 s5, s5, {L_W}
    v_add_u32 v{VWA}, s5, v{VWA}
    v_add_u32 v{VWA2}, 49152, v{VWA}
    v_mov_b32 v{VMI}, {L_MISC}
    """)

def pa_reads(a, sig):
    slot = (sig + 3) % NSL
    wa = VWA if slot < 2 else VWA2
    so = (slot % 2) * 24576
    xb = XB + 32 * (sig % 2); wb = WB + 32 * (sig % 2)
    for ss in range(4):
        a(f"""
        ds_read_b128 {vr(xb+4*ss,4)}, v{VXA+ss} offset:{sig*8192}
        ds_read_b64_tr_b16 {vr(wb+4*ss,2)}, v{wa} offset:{so + ss*2048}
        ds_read_b64_tr_b16 {vr(wb+4*ss+2,2)}, v{wa} offset:{so + ss*2048 + 512}
        """)
def pa_mfma(a, sig, vrole):
    xb = XB + 32 * (sig % 2); wb = WB + 32 * (sig % 2)
    for ss in range(4):
        c = "0" if (sig == 0 and ss == 0) else vr(ACCA, 16)
        if vrole:
            a(f"v_mfma_f32_32x32x16_bf16 {vr(ACCA,16)}, {vr(xb+4*ss,4)}, {vr(wb+4*ss,4)}, {c}")
        else:
            a(f"v_mfma_f32_32x32x16_bf16 {vr(ACCA,16)}, {vr(wb+4*ss,4)}, {vr(xb+4*ss,4)}, {c}")
def pa_compute(a, sig, vrole):
    pa_reads(a, sig)
    if sig > 0:
        pa_mfma(a, sig - 1, vrole)
    a("s_waitcnt lgkmcnt(0)")
    if sig == 7:
        pa_mfma(a, 7, vrole)

def attention_wave(a):
    a(f"""
    v_lshrrev_b32 v3, 3, v1            ; row = l>>3
    v_mul_u32_u24 v4, 3072, v3
    v_bfe_u32 v5, v1, 4, 1             ; (row>>1)&1
    v_lshlrev_b32 v5, 2, v5
    v_and_b32 v6, 7, v1
    v_xor_b32 v6, v6, v5
    v_lshl_add_u32 v{VD0}, v6, 4, v4
    s_mul_i32 s52, s40, {8*3072}
    s_lshl_b32 s5, s87, 7
    s_add_u32 s52, s52, s5
    s_lshl_b32 s53, s40, 10
    s_add_u32 s53, s53, {L_W}
    """)
    def wdma(sig):
        a(f"""
        s_add_u32 s5, s49, {sig}
        s_and_b32 s5, s5, 7
        s_mul_i32 s50, s5, {64*3072}
        s_add_u32 s50, s50, s52
        """)
        for p in range(3):
            a(f"""
            s_add_u32 m0, s53, {((sig+3)%NSL)*24576 + p*8192}
            s_add_u32 s51, s50, {p*1024}
            buffer_load_dwordx4 v{VD0}, {sr(S_WQKV)}, s51 offen lds
            """)
    wq = []
    def wissue(items):
        for it in items:
            if it == "P":
                a(f"""
                s_lshl_b32 s5, s42, 3
                s_add_u32 s5, s5, s40
                s_lshl_b32 s5, s5, 5
                s_add_u32 s5, s5, s41
                s_lshl_b32 s5, s5, 10
                s_add_u32 s5, s5, {OF}
                v_mov_b32 v20, -1
                v_mov_b32 v21, -1
                v_mov_b32 v22, -1
                v_mov_b32 v23, -1
                buffer_store_dwordx4 v[20:23], v2, {sr(S_WS)}, s5 offen sc1
                """)
                wq.append("P")
            else:
                wdma(it); wq.extend([it] * 3)
    wissue(WSCHED[-1])
    make_tag(a)
    pa_addr(a)
    for sig in range(8):
        last = max(k for k, e in enumerate(wq) if e == sig)
        a(f"s_waitcnt vmcnt({len(wq) - 1 - last})")
        if sig == 0: stamp(a, 0)
        if sig <= 6: stamp(a, sig, pa=True)
        a("s_barrier")
        for it in WSCHED.get(sig, []):
            assert it == "P" or it - NSL < sig, (it, sig)
        wissue(WSCHED.get(sig, []))
        pa_compute(a, sig, False)
    stamp(a, 1)
    a(f"""
    s_lshr_b32 s5, s40, 1
    s_and_b32 s5, s5, 1
    s_lshl_b32 s5, s5, 1
    s_lshl_b32 s6, s87, 2
    s_add_u32 s5, s5, s6               ; head0
    s_lshl_b32 s5, s5, 6
    s_lshl_b32 s6, s86, 1
    s_add_u32 s5, s5, s6
    s_and_b32 s6, s40, 1
    s_add_u32 s5, s5, s6               ; head0*64 + T
    s_cmp_ge_u32 s40, 4
    s_cbranch_scc1 L_isk
    s_lshl_b32 s54, s5, 10
    s_add_u32 s54, s54, {QF}
    s_add_u32 s55, s54, {64*1024}
    s_mov_b32 s56, {f32bits(QSCALE):#x}
    s_branch L_qk
    L_isk:
    s_lshl_b32 s54, s5, 11
    s_add_u32 s54, s54, {KV}
    s_add_u32 s55, s54, {64*2048}
    s_mov_b32 s56, 1.0
    L_qk:
    s_nop 3
    """)
    for r in range(16):
        a(f"v_mul_f32 v{ACCA+r}, s56, v{ACCA+r}")
    for r in range(8):
        a(f"v_cvt_pk_bf16_f32 v{XB+r}, v{ACCA+2*r}, v{ACCA+2*r+1}")
    dual(a, 73, [f"buffer_store_dwordx4 {vr(XB,4)}, v2, {sr(S_WS)}, s54 offen",
                 f"buffer_store_dwordx4 {vr(XB+4,4)}, v2, {sr(S_WS)}, s55 offen"])
    Q = 8; KB = 16; VB = 24; P = 40; VKA = 56; VVA = 57; VG = 58; VMISC = 59; VPL = 60; VG2 = 61; VT = 160
    S = 64; NM = 96; O = 128
    def slot(t, aq):
        Sc = S + 16 * aq; Sn = S + 16 * (1 - aq)
        tn = t if aq == 0 else t + 1
        Kc = KB + 4 * (tn % 2)
        Pc = P + 8 * aq; Pp = P + 8 * (1 - aq)
        Oc = O + 16 * aq; Op = O + 16 * (1 - aq)
        tp = t if aq == 1 else t - 1
        Vc = VB + 8 * (t % 2); Vp = VB + 8 * (tp % 2)
        noff = (t + 1) * 2048 if t < 3 else 16384
        def ex(i): a(f"v_exp_f32 v{Sc+i}, v{Sc+i}")
        def cv(i): a(f"v_cvt_pk_bf16_f32 v{Pc+i}, v{Sc+2*i}, v{Sc+2*i+1}")
        if aq == 1: a("s_waitcnt lgkmcnt(0)")
        a(f"v_mfma_f32_32x32x16_bf16 {vr(Sn,16)}, {vr(Kc,4)}, {vr(Q+4*(1-aq),4)}, {vr(NM+16*(1-aq),16)}")
        if aq == 0:
            a(f"ds_read_b128 {vr(KB+4*((t+1)%2),4)}, v{VKA} offset:{noff}")
        for i in range(6): ex(i)
        a(f"v_mfma_f32_32x32x16_bf16 {vr(Op,16)}, {vr(Vp+4,4)}, {vr(Pp+4,4)}, {vr(Op,16)}")
        if aq == 0:
            Vn = VB + 8 * ((t + 1) % 2)
            a(f"""
            s_mov_b64 exec, s[74:75]
            ds_read_b128 {vr(Vn,4)}, v{VVA} offset:{noff+1024}
            ds_read_b128 {vr(Vn+4,4)}, v{VVA} offset:{noff+1536}
            s_mov_b64 exec, -1
            """)
        ex(6); ex(7); cv(0); cv(1); cv(2); cv(3); ex(8); ex(9)
        a(f"v_mfma_f32_32x32x16_bf16 {vr(Oc,16)}, {vr(Vc,4)}, {vr(Pc,4)}, {vr(Oc,16)}")
        for i in range(10, 16): ex(i)
        cv(4); cv(5); cv(6); cv(7)
    def advance():
        a(f"""
        v_add_u32 v{VKA}, 16384, v{VKA}
        v_add_u32 v{VVA}, 16384, v{VVA}
        """)
    def prog_wait(n, both=False):
        L = a.new("L_pw"); D = a.new("L_pwd")
        a.label(L)
        if both:
            a(f"""
            ds_read_b128 v[4:7], v{VMISC} offset:{M_PROG}
            s_waitcnt lgkmcnt(0)
            v_min_u32 v4, v4, v5
            v_min_u32 v6, v6, v7
            v_min_u32 v4, v4, v6
            """)
        else:
            a(f"""
            ds_read_b64 v[4:5], v{VPL} offset:{M_PROG}
            s_waitcnt lgkmcnt(0)
            v_min_u32 v4, v4, v5
            """)
        a(f"""
        s_nop 0
        v_readfirstlane_b32 s5, v4
        s_cmp_ge_u32 s5, {n}
        s_cbranch_scc1 {D}
        """)
        spin_guard(a, L, 1)
        a.label(D)
    a(f"""
    s_lshl_b32 s76, s87, 12
    s_add_u32 s76, s76, {FL1}          ; FL1[j]
    s_lshl_b32 s53, s40, 11            ; w*2048
    s_and_b32 s58, s40, 1              ; kh
    v_mov_b32 v{VMISC}, {L_MISC}
    s_lshl_b32 s5, s58, 3
    v_add_u32 v{VPL}, s5, v{VMISC}
    s_waitcnt vmcnt(0)
    s_barrier
    s_cmp_lg_u32 s40, 0
    s_cbranch_scc1 L_nofl1
    s_lshl_b32 s5, s86, 7
    s_add_u32 s5, s5, s76
    """)
    store_flag(a, "s5", VT, sfast=73)
    a.label("L_nofl1")
    stamp(a, 2)
    a(f"""
    s_lshl_b32 s59, s58, 13            ; kh*8192
    v_add_u32 v{VKA}, s59, v2
    v_lshrrev_b32 v4, 5, v1
    v_and_b32 v5, 15, v1
    v_lshlrev_b32 v5, 4, v5
    v_lshl_add_u32 v{VVA}, v4, 8, v5
    v_add_u32 v{VVA}, s59, v{VVA}
    s_mov_b32 s74, 0x0000ffff
    s_mov_b32 s75, 0x0000ffff
    v_and_b32 v3, 31, v1
    v_cmp_eq_u32 vcc, 16, v3
    v_mov_b32 v4, 0x3f803f80
    s_lshl_b32 s5, s41, 6
    s_lshl_b32 s6, s42, 3
    s_add_u32 s5, s5, s6               ; h*64 + 8c
    s_add_u32 s6, s5, s40
    s_lshl_b32 s54, s6, 11
    s_add_u32 s54, s54, {KV}
    s_and_b32 s6, s40, 6
    s_add_u32 s6, s6, s5
    s_lshl_b32 s55, s6, 10
    s_add_u32 s55, s55, {QF}           ; Q tiles 2p, 2p+1
    """)
    for r in range(16):
        a(f"v_cndmask_b32 v{VB+r}, 0, v4, vcc")
    for r in range(32):
        a(f"v_mov_b32 v{O+r}, 0")
    for r in range(4):
        a(f"v_mov_b32 v{P+8+4+r}, 0")
    lds_wait(a, VMISC, M_QOK, 1, 3, sleep=1)
    stamp(a, 3)
    a(f"""
    buffer_load_dwordx4 {vr(Q,4)}, v2, {sr(S_WS)}, s55 offen
    buffer_load_dwordx4 {vr(Q+4,4)}, v2, {sr(S_WS)}, s55 offen offset:1024
    """)
    prog_wait(1, both=True)
    stamp(a, 4)
    a(f"""
    ds_read_b128 {vr(KB,4)}, v2
    s_waitcnt vmcnt(0) lgkmcnt(0)
    v_mfma_f32_32x32x16_bf16 {vr(S,16)}, {vr(KB,4)}, {vr(Q,4)}, 0
    v_mfma_f32_32x32x16_bf16 {vr(S+16,16)}, {vr(KB,4)}, {vr(Q+4,4)}, 0
    s_mov_b32 s77, 0
    s_nop 7
    """)
    a(f"""
    ds_read_b128 {vr(KB,4)}, v{VKA}
    s_mov_b64 exec, s[74:75]
    ds_read_b128 {vr(VB,4)}, v{VVA} offset:1024
    ds_read_b128 {vr(VB+4,4)}, v{VVA} offset:1536
    s_mov_b64 exec, -1
    s_nop 4
    """)
    for q in range(2):
        Sq = S + 16 * q
        a(f"v_max3_f32 v{3+q}, v{Sq}, v{Sq+1}, v{Sq+2}")
        for r in range(3, 15, 2):
            a(f"v_max3_f32 v{3+q}, v{3+q}, v{Sq+r}, v{Sq+r+1}")
        a(f"v_max_f32 v{3+q}, v{3+q}, v{Sq+15}")
    a(f"""
    v_mov_b32 v5, v3
    v_mov_b32 v6, v4
    s_nop 1
    v_permlane32_swap_b32 v3, v5
    v_permlane32_swap_b32 v4, v6
    s_nop 1
    v_max_f32 v3, v3, v5
    v_max_f32 v4, v4, v6
    """)
    for q in range(2):
        for r in range(16):
            a(f"v_sub_f32 v{NM+16*q+r}, 0, v{3+q}")
    a(f"""
    s_waitcnt lgkmcnt(0)
    v_mfma_f32_32x32x16_bf16 {vr(S,16)}, {vr(KB,4)}, {vr(Q,4)}, {vr(NM,16)}
    s_nop 7
    s_nop 4
    """)
    for t in range(3):
        slot(t, 0); slot(t, 1)
    prog_wait(2)
    stamp(a, 5)
    slot(3, 0); slot(3, 1)
    advance()
    for t in range(3):
        slot(t, 0); slot(t, 1)
    prog_wait(8)
    slot(3, 0); slot(3, 1)
    advance()
    a("s_mov_b32 s79, 2")
    a.label("L_att_loop")
    for t in range(4):
        slot(t, 0); slot(t, 1)
    advance()
    a(f"""
    s_add_u32 s79, s79, 1
    s_cmp_lt_u32 s79, 7
    s_cbranch_scc1 L_att_loop
    s_setprio 3
    s_lshl_b32 s5, s42, 3
    s_add_u32 s5, s5, s40              ; T
    s_lshr_b32 s6, s5, 1
    s_lshl_b32 s6, s6, 7
    s_add_u32 s76, s6, {FLG}           ; FLG[tau]
    s_lshl_b32 s57, s5, 7
    s_add_u32 s57, s57, {GBUF}
    v_mov_b32 v{VPL}, 0
    """)
    if not os.environ.get("NOFFN"):
        poll_flags(a, VPL, "s76", [(1, 0)], VT)
    a(f"""
    v_and_b32 v3, 31, v1
    v_lshlrev_b32 v3, 2, v3
    buffer_load_dword v{VG}, v3, {sr(S_WS)}, s57 offen
    s_setprio 0
    """)
    for t in range(4):
        slot(t, 0); slot(t, 1)
    a(f"""
    s_setprio 3
    s_nop 0
    v_mfma_f32_32x32x16_bf16 {vr(O+16,16)}, {vr(VB+12,4)}, {vr(P+12,4)}, {vr(O+16,16)}
    s_waitcnt lgkmcnt(0)
    """)
    stamp(a, 6)
    LS = a.new("L_noswap")
    a(f"""
    s_xor_b32 s5, s40, 1
    s_lshl_b32 s6, s5, 11
    v_add_u32 v3, s6, v2
    v_add_u32 v3, {L_OX}, v3
    v_add_u32 v4, s53, v2
    v_add_u32 v4, {L_OX}, v4
    v_lshlrev_b32 v5, 2, v1
    s_lshl_b32 s6, s5, 8
    v_add_u32 v6, s6, v5
    v_add_u32 v6, {L_LX}, v6
    s_lshl_b32 s6, s40, 8
    v_add_u32 v7, s6, v5
    v_add_u32 v7, {L_LX}, v7
    s_lshl_b32 s6, s5, 2
    v_add_u32 v{VT}, s6, v{VMISC}
    s_lshl_b32 s6, s40, 2
    v_add_u32 v{VT+1}, s6, v{VMISC}
    v_mov_b32 v{VT+2}, 1
    s_nop 4
    s_cmp_eq_u32 s58, 0
    s_cbranch_scc1 {LS}
    """)
    for r in range(9):
        a(f"v_swap_b32 v{O+r}, v{O+16+r}")
    for r in range(4):
        a(f"v_swap_b32 v{Q+r}, v{Q+4+r}")
    a(f"""
    {LS}:
    ds_write_b128 v3, {vr(O+16,4)}
    ds_write_b128 v3, {vr(O+20,4)} offset:1024
    ds_write_b32 v6, v{O+24}
    s_waitcnt lgkmcnt(0)
    ds_write_b32 v{VT}, v{VT+2} offset:{M_PAIR}
    """)
    lds_wait(a, VT + 1, M_PAIR, 1, 5)
    a(f"""
    ds_read_b128 {vr(O+16,4)}, v4
    ds_read_b128 {vr(O+20,4)}, v4 offset:1024
    ds_read_b32 v{O+24}, v7
    s_waitcnt lgkmcnt(0)
    """)
    for r in range(9):
        a(f"v_add_f32 v{O+r}, v{O+r}, v{O+16+r}")
    a.label("L_att_check")
    a(f"""
    v_mov_b32 v3, v{O+8}
    s_nop 1
    v_permlane32_swap_b32 v{O+8}, v3
    s_cmp_eq_u32 s77, 3
    s_cbranch_scc1 L_att_fin
    v_max3_f32 v3, |v{O}|, |v{O+1}|, |v{O+2}|
    v_max3_f32 v3, v3, |v{O+3}|, |v{O+4}|
    v_max3_f32 v3, v3, |v{O+5}|, |v{O+6}|
    v_max_f32 v4, |v{O+7}|, |v{O+7}|
    v_max_f32 v3, v3, v4
    v_add_f32 v4, v{O}, v{O+1}
    v_add_f32 v5, v{O+2}, v{O+3}
    v_add_f32 v4, v4, v5
    v_add_f32 v5, v{O+4}, v{O+5}
    v_add_f32 v4, v4, v5
    v_add_f32 v5, v{O+6}, v{O+7}
    v_add_f32 v4, v4, v5
    s_mov_b32 s5, 0x53800000           ; 2^40
    s_mov_b32 s6, 0x7f000000           ; 2^127
    v_cmp_nle_f32 vcc, v{O+8}, s5
    v_cmp_nle_f32 s[48:49], v3, s6
    v_cmp_u_f32 s[50:51], v4, v4
    s_or_b64 vcc, vcc, s[48:49]
    s_or_b64 vcc, vcc, s[50:51]
    s_cbranch_scc0 L_att_fin
    """)
    prog_wait(8, both=True)
    a(f"""
    s_mov_b32 s77, 3
    v_mov_b32 v{VKA}, v2
    v_mov_b32 v3, 0xff800000
    s_mov_b32 s79, 0
    L_fb_max:
    ds_read_b128 {vr(KB,4)}, v{VKA}
    s_waitcnt lgkmcnt(0)
    v_mfma_f32_32x32x16_bf16 {vr(S,16)}, {vr(KB,4)}, {vr(Q,4)}, 0
    v_add_u32 v{VKA}, 2048, v{VKA}
    s_nop 7
    s_nop 7
    """)
    for r in range(0, 16, 2):
        a(f"v_max3_f32 v3, v3, v{S+r}, v{S+r+1}")
    a(f"""
    s_add_u32 s79, s79, 1
    s_cmp_lt_u32 s79, 64
    s_cbranch_scc1 L_fb_max
    v_mov_b32 v4, v3
    s_nop 1
    v_permlane32_swap_b32 v3, v4
    s_nop 1
    v_max_f32 v3, v3, v4
    """)
    for r in range(16):
        a(f"v_sub_f32 v{NM+r}, 0, v3")
        a(f"v_mov_b32 v{O+r}, 0")
    a(f"""
    v_mov_b32 v{VKA}, v2
    v_lshrrev_b32 v4, 5, v1
    v_and_b32 v5, 15, v1
    v_lshlrev_b32 v5, 4, v5
    v_lshl_add_u32 v{VVA}, v4, 8, v5
    s_mov_b32 s79, 0
    L_fb_loop:
    ds_read_b128 {vr(KB,4)}, v{VKA}
    s_mov_b64 exec, s[74:75]
    ds_read_b128 {vr(VB,4)}, v{VVA} offset:1024
    ds_read_b128 {vr(VB+4,4)}, v{VVA} offset:1536
    s_mov_b64 exec, -1
    s_waitcnt lgkmcnt(0)
    v_mfma_f32_32x32x16_bf16 {vr(S,16)}, {vr(KB,4)}, {vr(Q,4)}, {vr(NM,16)}
    v_add_u32 v{VKA}, 2048, v{VKA}
    v_add_u32 v{VVA}, 2048, v{VVA}
    s_nop 7
    s_nop 7
    """)
    for r in range(16):
        a(f"v_exp_f32 v{S+r}, v{S+r}")
    a("s_nop 0")
    for r in range(8):
        a(f"v_cvt_pk_bf16_f32 v{P+r}, v{S+2*r}, v{S+2*r+1}")
    a(f"""
    s_nop 1
    v_mfma_f32_32x32x16_bf16 {vr(O,16)}, {vr(VB,4)}, {vr(P,4)}, {vr(O,16)}
    v_mfma_f32_32x32x16_bf16 {vr(O,16)}, {vr(VB+4,4)}, {vr(P+4,4)}, {vr(O,16)}
    s_add_u32 s79, s79, 1
    s_cmp_lt_u32 s79, 64
    s_cbranch_scc1 L_fb_loop
    s_nop 7
    s_nop 7
    s_branch L_att_check
    L_att_fin:
    v_rcp_f32 v3, v{O+8}
    s_waitcnt vmcnt(0)
    v_mul_f32 v3, v3, v{VG}
    """)
    for r in range(8):
        a(f"v_mul_f32 v{O+r}, v{O+r}, v3")
    for r in range(4):
        a(f"v_cvt_pk_bf16_f32 v{P+r}, v{O+2*r}, v{O+2*r+1}")
    a("s_mov_b32 s5, 0xfffeffff")
    for r in range(4):
        a(f"v_min_u32 v{P+r}, s5, v{P+r}")
    a(f"""
    s_lshl_b32 s5, s42, 3
    s_add_u32 s5, s5, s40              ; T
    s_lshl_b32 s5, s5, 5
    s_add_u32 s5, s5, s41              ; T*32 + h
    s_lshl_b32 s6, s5, 10
    s_add_u32 s6, s6, {OF}
    s_lshl_b32 s7, s5, 7
    s_add_u32 s7, s7, {FL3}
    buffer_store_dwordx4 {vr(P,4)}, v2, {sr(S_WS)}, s6 offen sc1
    """)
    store_flag(a, "s7", VT)
    stamp_end(a)
    a("s_endpgm")

def aux_wave(a):
    srd(a, S_OUT, 20, 1024)
    R = 16; F = 32
    a(f"""
    s_setprio 3
    s_sub_u32 s43, s40, 8              ; u
    v_lshrrev_b32 v3, 3, v1
    v_lshlrev_b32 v3, 10, v3
    v_and_b32 v4, 7, v1
    v_lshrrev_b32 v5, 4, v1
    v_xor_b32 v4, v4, v5
    v_lshl_add_u32 v{VD0}, v4, 4, v3
    v_xor_b32 v4, 4, v4
    v_lshl_add_u32 v{VD1}, v4, 4, v3
    v_add_u32 v{VD1}, 8192, v{VD1}
    s_lshl_b32 s52, s86, 16
    s_lshl_b32 s5, s43, 14
    s_add_u32 s52, s52, s5
    s_lshl_b32 s53, s43, 11
    """)
    a("""
    s_mov_b32 s78, s52
    s_mov_b32 s79, s53
    """)
    q = []
    def xdma(sig):
        a(f"""
        s_add_u32 s5, s49, {sig}
        s_and_b32 s5, s5, 7
        s_lshl_b32 s5, s5, 7
        s_add_u32 m0, s79, {sig*8192}
        s_add_u32 s50, s5, s78
        buffer_load_dwordx4 v{VD0}, {sr(S_X)}, s50 offen lds
        s_add_u32 m0, s79, {sig*8192+1024}
        s_nop 0
        buffer_load_dwordx4 v{VD1}, {sr(S_X)}, s50 offen lds
        """)
        q.extend([("x", sig)] * 2)
    for it in XSCHED[-1]:
        if isinstance(it, int): xdma(it)
    a(f"""
    s_lshl_b32 s51, s2, 2
    s_add_u32 s51, s51, s43            ; gw
    s_and_b32 s5, s4, 3
    s_lshl_b32 s5, s5, 1
    s_add_u32 s73, s5, s42
    v_and_b32 v3, 31, v1               ; i
    v_lshrrev_b32 v4, 5, v1            ; hh
    s_cmp_ge_u32 s51, 448
    s_cbranch_scc1 L_w2
    """)
    srd(a, S_SRC, 16, 512 * 3584)
    a(f"""
    s_mul_hi_u32 s53, s51, 0x924924a
    s_mul_i32 s5, s53, 28
    s_sub_u32 s52, s51, s5             ; cb
    s_mul_i32 s59, s53, {32*3584}
    s_mov_b32 s48, 3584
    s_mov_b32 s55, 3584                ; j3->j4 step
    s_mov_b32 s74, {9*3584}
    s_mov_b32 s75, {8*3584}
    s_mov_b32 s56, {32*1024}
    s_mov_b32 s57, {W1F}
    s_branch L_rl2
    L_w2:
    s_cmp_ge_u32 s51, 896
    s_cbranch_scc1 L_wo
    """)
    srd(a, S_SRC, 18, 1792 * 1024)
    a(f"""
    s_sub_u32 s5, s51, 448
    s_and_b32 s52, s5, 7               ; cb
    s_lshr_b32 s53, s5, 3              ; kp (0..55)
    s_lshr_b32 s5, s53, 1
    s_lshl_b32 s59, s5, 6
    s_and_b32 s5, s53, 1
    s_add_u32 s59, s59, s5
    s_lshl_b32 s59, s59, 10
    s_mov_b32 s48, 2048
    s_mov_b32 s55, {5*2048}
    s_mov_b32 s74, {5*2048}
    s_mov_b32 s75, {4*2048}
    s_mov_b32 s56, {112*1024}
    s_mov_b32 s57, {W2F}
    s_branch L_rl2
    L_wo:
    """)
    srd(a, S_SRC, 12, 512 * 1024)
    a(f"""
    s_sub_u32 s5, s51, 896
    s_and_b32 s52, s5, 7               ; cb
    s_lshr_b32 s53, s5, 3              ; kp (0..15)
    s_lshl_b32 s59, s53, 15
    s_mov_b32 s48, 1024
    s_mov_b32 s55, {5*1024}
    s_mov_b32 s74, {5*1024}
    s_mov_b32 s75, 4096
    s_mov_b32 s56, {32*1024}
    s_mov_b32 s57, {WOF}
    L_rl2:
    s_lshl_b32 s5, s52, 7
    s_add_u32 s59, s59, s5
    v_mul_lo_u32 v5, v4, s75
    v_lshl_add_u32 v5, v3, 2, v5
    """)
    a("v_mov_b32 v48, v5")
    def rl_loads(half):
        for j in range(8):
            a(f"buffer_load_dword v{R+8*half+j}, v48, {sr(S_SRC)}, s59 offen")
            q.append(("r", half))
            if not (half == 1 and j == 7):
                a(f"s_add_u32 s59, s59, {'s55' if j == 3 else ('s74' if j == 7 else 's48')}")
    a(f"""
    s_lshl_b32 s5, s52, 1
    s_mul_i32 s5, s5, s56
    s_add_u32 s57, s57, s5
    s_lshl_b32 s5, s53, 11
    s_add_u32 s57, s57, s5
    s_add_u32 s56, s56, s57
    """)
    make_tag(a)
    pa_addr(a)
    a(f"""
    s_lshl_b32 s58, s86, 1
    s_and_b32 s5, s43, 1
    s_add_u32 s58, s58, s5
    s_lshl_b32 s58, s58, 5
    s_lshl_b32 s5, s49, 2
    s_add_u32 s58, s58, s5
    s_and_b32 s5, s43, 2
    s_add_u32 s58, s58, s5
    s_lshl_b32 s58, s58, 10
    s_add_u32 s58, s58, {XF}
    s_mov_b32 s80, 0x05040100
    s_mov_b32 s81, 0x07060302
    """)
    for it in XSCHED[-1]:
        if not isinstance(it, int): rl_loads(int(it[1]))
    a("s_setprio 0")
    def wait_for(tagv):
        last = max(k for k, e in enumerate(q) if e == tagv)
        a(f"s_waitcnt vmcnt({len(q) - 1 - last})")
    for sig in range(8):
        wait_for(("x", sig))
        if sig == 0: stamp(a, 0)
        if sig <= 6: stamp(a, sig, pa=True)
        a("s_barrier")
        for it in XSCHED.get(sig, []):
            if isinstance(it, int): xdma(it)
            else: rl_loads(int(it[1]))
        if sig == 5:
            a(f"""
            v_mov_b32 v3, 0
            v_lshlrev_b32 v4, 2, v1
            v_add_u32 v4, {L_MISC}, v4
            ds_write_b32 v4, v3
            """)
        pa_compute(a, sig, True)
        if sig == 0:
            LX = a.new("L_xf")
            a(f"""
            s_cmp_ge_u32 s43, 2
            s_cbranch_scc1 {LX}
            buffer_store_dwordx4 {vr(XB,4)}, v2, {sr(S_WS)}, s58 offen sc1
            buffer_store_dwordx4 {vr(XB+4,4)}, v2, {sr(S_WS)}, s58 offen offset:1024 sc1
            s_branch {LX}_d
            {LX}:
            buffer_store_dwordx4 {vr(XB+8,4)}, v2, {sr(S_WS)}, s58 offen sc1
            buffer_store_dwordx4 {vr(XB+12,4)}, v2, {sr(S_WS)}, s58 offen offset:1024 sc1
            {LX}_d:
            """)
            q.extend([("s", 0)] * 2)
        if sig in (RLS, RLS + 1):
            half = sig - RLS
            wait_for(("r", half))
            for jj in range(4):
                A = R + 8 * half + 2 * jj
                B = A + 1
                a(f"v_perm_b32 v{F+8*half+jj}, v{B}, v{A}, s80")
                a(f"v_perm_b32 v{F+8*half+4+jj}, v{B}, v{A}, s81")
            a(f"buffer_store_dwordx4 {vr(F+8*half,4)}, v2, {sr(S_WS)}, s57 offen offset:{half*1024} sc1")
            a(f"buffer_store_dwordx4 {vr(F+8*half+4,4)}, v2, {sr(S_WS)}, s56 offen offset:{half*1024} sc1")
            q.extend([("s", 1 + half)] * 2)
    a(f"""
    s_lshr_b32 s5, s43, 1
    s_lshl_b32 s5, s5, 1
    s_lshl_b32 s6, s87, 2
    s_add_u32 s5, s5, s6
    s_lshl_b32 s5, s5, 6
    s_lshl_b32 s6, s86, 1
    s_add_u32 s5, s5, s6
    s_and_b32 s6, s43, 1
    s_add_u32 s5, s5, s6
    s_lshl_b32 s54, s5, 11
    s_add_u32 s54, s54, {KV}
    v_bfe_u32 v3, v1, 4, 1
    v_lshlrev_b32 v3, 17, v3
    v_lshrrev_b32 v4, 5, v1
    v_lshl_add_u32 v3, v4, 8, v3
    v_and_b32 v4, 15, v1
    v_lshl_add_u32 v3, v4, 4, v3
    """)
    for r in range(8):
        a(f"v_cvt_pk_bf16_f32 v{XB+r}, v{ACCA+2*r}, v{ACCA+2*r+1}")
    dual(a, 77, [f"buffer_store_dwordx4 {vr(XB,4)}, v3, {sr(S_WS)}, s54 offen offset:1024",
                 f"buffer_store_dwordx4 {vr(XB+4,4)}, v3, {sr(S_WS)}, s54 offen offset:1536"])
    VM = VMI
    ACC = 16; BUF = 80
    a(f"""
    s_lshl_b32 s76, s3, 12
    s_add_u32 s76, s76, {FL1}          ; FL1[j]
    v_and_b32 v3, 3, v1
    v_lshlrev_b32 v3, 7, v3
    s_lshl_b32 s5, s42, 9
    v_add_u32 v7, s5, v3
    v_and_b32 v3, 31, v1
    v_lshlrev_b32 v8, 7, v3
    s_lshl_b32 s5, s41, 17
    s_lshl_b32 s52, s43, 12
    s_add_u32 s53, s5, s52
    s_add_u32 s53, s53, {KV}
    s_lshl_b32 s5, s43, 2
    v_add_u32 v9, s5, v{VM}
    s_setprio 3
    s_waitcnt vmcnt(0)
    s_barrier
    s_sleep 10
    """)
    poll_flags(a, 7, "s76", [(1, 0)], BUF, sleep=3)
    def kvdma(sg):
        a(f"""
        s_add_u32 s6, s42, {sg}
        s_and_b32 s6, s6, 7
        s_lshl_b32 s6, s6, 14
        s_add_u32 m0, s52, {sg*16384}
        s_add_u32 s6, s6, s53
        """)
        for k in range(4):
            a(f"buffer_load_dwordx4 v2, {sr(S_WS)}, s6 offen offset:{k*1024} lds")
    def prog(n):
        a(f"""
        v_mov_b32 v10, {n}
        ds_write_b32 v9, v10 offset:{M_PROG}
        """)
    a(f"""
    v_mov_b32 v10, 1
    ds_write_b32 v{VM}, v10 offset:{M_QOK}
    """)
    kvdma(0)
    a("s_waitcnt vmcnt(0)")
    prog(1)
    poll_flags(a, 8, "s76", [(1, 0)], BUF, sleep=3)
    a(f"""
    s_or_b32 s5, s4, s43
    s_cmp_lg_u32 s5, 0
    s_cbranch_scc1 L_nosum
    s_lshl_b32 s5, s3, 7
    s_add_u32 s5, s5, {FLS}
    """)
    store_flag(a, "s5", BUF)
    a.label("L_nosum")
    for sg in range(1, 8):
        kvdma(sg)
    a("s_waitcnt vmcnt(24)")
    prog(2)
    a("s_waitcnt vmcnt(0)")
    prog(8)
    a(f"""
    s_cmp_lg_u32 s43, 0
    s_cbranch_scc1 L_e0skip
    v_and_b32 v7, 7, v1
    v_lshlrev_b32 v7, 7, v7
    s_mov_b32 s58, {FLS}
    """)
    poll_flags(a, 7, "s58", [(1, 0)], BUF, sleep=12)
    a(f"""
    s_cmp_lg_u32 s2, 0
    s_cbranch_scc1 L_nobump
    s_mov_b64 exec, 1
    s_add_u32 s5, s{S_EP}, 1
    v_mov_b32 v7, s5
    buffer_store_dword v7, v2, {sr(S_WS)}, 0 offen offset:{EPOCH} sc1
    s_mov_b64 exec, -1
    L_nobump:
    v_mov_b32 v6, 1
    ds_write_b32 v{VM}, v6 offset:{M_E0R}
    L_e0skip:
    """)
    stamp(a, 1)
    if os.environ.get("NOFFN"):
        stamp_end(a)
        a("s_endpgm")
    lds_wait(a, VM, M_E0R, 1, 6, sleep=4)
    stamp(a, 2)
    a(f"""
    s_mul_i32 s5, s42, 7
    s_lshl_b32 s6, s43, 1
    s_add_u32 s51, s5, s6
    s_lshl_b32 s52, s51, 15
    s_add_u32 s52, s52, {W1F}
    s_lshl_b32 s53, s41, 16
    s_add_u32 s53, s53, {XF}
    v_mov_b32 v4, v2
    v_add_u32 v5, 32768, v2
    v_lshrrev_b32 v6, 5, v1
    v_lshlrev_b32 v6, 4, v6
    s_mul_i32 s54, s41, {2*112*1024}
    s_lshl_b32 s5, s51, 11
    s_add_u32 s54, s54, s5
    s_add_u32 s54, s54, {HF}
    s_add_u32 s55, s54, {112*1024}
    s_and_b32 s78, s73, 7
    s_cmp_eq_u32 s43, 3
    s_cbranch_scc1 L_f1g
    """)
    def f1(gate):
        a(f"s_setprio {FPRIO}")
        stream_gemm(a, 32, 2, 2, ACC, BUF, 5, 4, 4, 52, 53, 78, gate=(S_OUT, 6) if gate else None)
        a("""
        s_setprio 3
        s_nop 7
        s_nop 7
        """)
        lines = []
        for at in range(1 if gate else 2):
            for bt in range(2):
                d = ACC + 16 * (at * 2 + bt)
                o = BUF + 8 * (at * 2 + bt)
                for r in range(8):
                    a(f"v_cvt_pk_bf16_f32 v{o+r}, v{d+2*r}, v{d+2*r+1}")
                for r in range(8):
                    a(f"v_pk_max_i16 v{o+r}, v{o+r}, 0")
                for half in range(2):
                    lines.append(f"buffer_store_dwordx4 {vr(o+4*half,4)}, v2, {sr(S_WS)}, s{54+bt} offen offset:{(2*at+half)*1024}")
        dual(a, 77, lines)
        if gate:
            a(f"""
            v_cmp_gt_u32 vcc, 32, v1
            s_nop 1
            v_cndmask_b32 v8, v{ACC+48}, v{ACC+32}, vcc
            """)
            sigmoid(a, 8)
            a(f"""
            v_lshlrev_b32 v9, 2, v1
            s_cmp_lg_u32 s42, 0
            s_cbranch_scc1 L_nog
            s_lshl_b32 s5, s41, 8
            s_add_u32 s5, s5, {GBUF}
            buffer_store_dword v8, v9, {sr(S_WS)}, s5 offen sc1
            s_waitcnt vmcnt(0)
            s_lshl_b32 s5, s41, 7
            s_add_u32 s5, s5, {FLG}
            """)
            store_flag(a, "s5", 12)
            a(f"""
            L_nog:
            v_sub_f32 v8, 1.0, v8
            v_add_u32 v9, {L_GF}, v9
            ds_write_b32 v9, v8
            v_mov_b32 v9, {L_MISC}
            v_mov_b32 v8, 1
            s_waitcnt lgkmcnt(0)
            ds_write_b32 v9, v8 offset:{M_GF}
            """)
    f1(False)
    a("s_branch L_f1done")
    a.label("L_f1g")
    f1(True)
    a.label("L_f1done")
    a(f"""
    s_waitcnt vmcnt(0)
    v_mov_b32 v9, {L_MISC}
    s_mov_b64 exec, 1
    v_mov_b32 v8, 1
    ds_add_rtn_u32 v8, v9, v8 offset:{M_E2}
    s_waitcnt lgkmcnt(0)
    s_mov_b64 exec, -1
    v_readfirstlane_b32 s5, v8
    s_cmp_lg_u32 s5, 3
    s_cbranch_scc1 L_e2skip
    s_lshl_b32 s5, s41, 3
    s_add_u32 s5, s5, s42
    s_lshl_b32 s5, s5, 7
    s_add_u32 s5, s5, {FL2}
    """)
    store_flag(a, "s5", 12, sfast=77)
    a.label("L_e2skip")
    stamp(a, 3)
    a(f"""
    v_and_b32 v3, 31, v1
    v_lshlrev_b32 v3, 2, v3
    s_lshl_b32 s58, s41, 10
    s_add_u32 s58, s58, {FL2}
    v_and_b32 v8, 7, v1
    v_lshlrev_b32 v8, 7, v8
    v_add_u32 v5, {112*1024}, v2
    v_mov_b32 v6, v2
    v_add_u32 v7, 32768, v2
    s_mul_i32 s5, s43, {28*1024}
    s_mul_i32 s52, s42, {2*112*1024}
    s_add_u32 s52, s52, s5
    s_add_u32 s52, s52, {W2F}
    s_mul_i32 s53, s41, {2*112*1024}
    s_add_u32 s53, s53, s5
    s_add_u32 s53, s53, {HF}
    s_lshl_b32 s5, s43, 13
    s_lshl_b32 s54, s42, 16
    s_add_u32 s54, s54, s5
    s_add_u32 s54, s54, {WOF}
    s_lshl_b32 s55, s41, 16
    s_add_u32 s55, s55, s5
    s_add_u32 s55, s55, {OF}
    """)
    a("""
    s_cmp_lg_u32 s43, 0
    s_cbranch_scc1 L_e2lds
    """)
    poll_flags(a, 8, "s58", [(1, 0)], BUF)
    a(f"""
    v_mov_b32 v8, 1
    ds_write_b32 v9, v8 offset:{M_E2R}
    L_e2lds:
    """)
    lds_wait(a, 9, M_E2R, 1, 8)
    a("""
    s_sub_u32 s78, s73, 7
    s_cmp_ge_u32 s73, 7
    s_cselect_b32 s78, s78, s73
    """)
    a(f"s_setprio {FPRIO}")
    stream_gemm(a, 28, 2, 2, ACC, BUF, 5, 4, 4, 52, 53, 78)
    a("s_setprio 3")
    stamp(a, 4)
    WOB = 80; OB = 8
    for k in range(8):
        for at in range(2):
            if k == 4 and at == 0:
                a("s_add_u32 s54, s54, 4096")
            a(f"buffer_load_dwordx4 {vr(WOB+8*k+4*at,4)}, v{6+at}, {sr(S_WS)}, s54 offen offset:{(k%4)*1024}")
    a(f"v_mov_b32 v9, {L_MISC}")
    lds_wait(a, 9, M_GF, 1, 8)
    a(f"""
    v_add_u32 v9, {L_GF}, v3
    ds_read_b32 v10, v9
    ds_read_b32 v11, v9 offset:128
    s_waitcnt lgkmcnt(0)
    """)
    for at in range(2):
        for bt in range(2):
            d = ACC + 16 * (at * 2 + bt)
            for r in range(16):
                a(f"v_mul_f32 v{d+r}, v{d+r}, v{10+bt}")
    a(f"""
    v_and_b32 v3, 7, v1
    v_bfe_u32 v4, v1, 3, 1
    v_lshlrev_b32 v3, 7, v3
    v_lshl_add_u32 v3, v4, 12, v3
    s_lshl_b32 s58, s41, 13
    s_lshl_b32 s5, s43, 10
    s_add_u32 s58, s58, s5
    s_add_u32 s58, s58, {FL3}
    """)
    poll_flags(a, 3, "s58", [(1, 0)], 8)
    stamp(a, 5)
    oslots = [144, 148, 152, 156, 160, 164, 8, 12]
    for half in range(2):
        LR = a.new("L_oret"); LD = a.new("L_ook")
        a.label(LR)
        for k in range(4):
            for bt in range(2):
                a(f"buffer_load_dwordx4 {vr(oslots[2*k+bt],4)}, v{6+bt}, {sr(S_WS)}, s55 offen offset:{k*1024} sc1")
        for k in range(8):
            a(f"s_waitcnt vmcnt({7-k})")
            o = oslots[k]
            if k == 0:
                a(f"v_max3_u32 v4, v{o}, v{o+1}, v{o+2}")
                a(f"v_max_u32 v4, v4, v{o+3}")
            else:
                a(f"v_max3_u32 v4, v4, v{o}, v{o+1}")
                a(f"v_max3_u32 v4, v4, v{o+2}, v{o+3}")
        a(f"""
        v_cmp_eq_u32 vcc, -1, v4
        s_cmp_eq_u64 vcc, 0
        s_cbranch_scc1 {LD}
        """)
        spin_guard(a, LR, 4)
        a.label(LD)
        if os.environ.get("TAILST"): stamp(a, half)
        a("s_add_u32 s55, s55, 4096")
        for k in range(4):
            kk = 4 * half + k
            for at in range(2):
                for bt in range(2):
                    d = ACC + 16 * (at * 2 + bt)
                    a(f"v_mfma_f32_32x32x16_bf16 {vr(d,16)}, {vr(WOB+8*kk+4*at,4)}, {vr(oslots[2*k+bt],4)}, {vr(d,16)}")
    srd(a, S_OUT, 22, 2048 * 1024)
    a(f"""
    s_lshl_b32 s5, s43, 14
    v_add_u32 v3, s5, v2
    s_and_b32 s5, s43, 1
    s_lshl_b32 s5, s5, 12
    s_lshr_b32 s6, s43, 1
    s_lshl_b32 s6, s6, 11
    s_add_u32 s5, s5, s6
    v_add_u32 v8, s5, v2
    s_barrier
    s_nop 7
    """)
    if os.environ.get("TAILST"): stamp(a, 2)
    for t in range(4):
        for q in range(4):
            a(f"ds_write_b128 v3, {vr(ACC+16*t+4*q,4)} offset:{t*4096+q*1024}")
    a("""
    s_waitcnt lgkmcnt(0)
    s_barrier
    """)
    if os.environ.get("TAILST"): stamp(a, 3)
    for u in range(4):
        for at in range(2):
            for q in range(2):
                a(f"ds_read_b128 {vr(ACC+16*u+8*at+4*q,4)}, v8 offset:{u*16384+at*8192+q*1024}")
        if u == 2:
            a("s_waitcnt lgkmcnt(4)")
    a("s_waitcnt lgkmcnt(0)")
    for r in range(16):
        a(f"v_add_f32 v{ACC+r}, v{ACC+r}, v{ACC+16+r}")
        a(f"v_add_f32 v{ACC+32+r}, v{ACC+32+r}, v{ACC+48+r}")
    for r in range(16):
        a(f"v_add_f32 v{ACC+r}, v{ACC+r}, v{ACC+32+r}")
    BUF = 80
    for r in range(8):
        a(f"v_cvt_pk_bf16_f32 v{BUF+r}, v{ACC+r}, v{ACC+8+r}")
    a(f"""
    s_and_b32 s5, s43, 1
    s_lshl_b32 s5, s5, 5
    s_lshl_b32 s6, s41, 6
    s_add_u32 s5, s5, s6
    s_lshl_b32 s5, s5, 10
    s_lshr_b32 s6, s43, 1
    s_lshl_b32 s6, s6, 6
    s_add_u32 s5, s5, s6
    s_lshl_b32 s6, s42, 7
    s_add_u32 s5, s5, s6
    v_and_b32 v3, 31, v1
    v_lshlrev_b32 v3, 10, v3
    v_lshrrev_b32 v4, 5, v1
    v_lshl_add_u32 v3, v4, 4, v3
    buffer_store_dwordx4 {vr(BUF,4)}, v3, {sr(S_OUT)}, s5 offen
    buffer_store_dwordx4 {vr(BUF+4,4)}, v3, {sr(S_OUT)}, s5 offen offset:32
    """)
    if os.environ.get("TAILST"): stamp(a, 6)
    stamp_end(a)

def kd(name, nv, ns=102):
    return f""".p2align 6
.amdhsa_kernel {name}
  .amdhsa_next_free_vgpr {nv}
  .amdhsa_next_free_sgpr {ns}
  .amdhsa_accum_offset {(nv+3)//4*4}
  .amdhsa_group_segment_fixed_size 0
  .amdhsa_kernarg_size 80
  .amdhsa_user_sgpr_count 2
  .amdhsa_user_sgpr_kernarg_segment_ptr 1
  .amdhsa_system_sgpr_workgroup_id_x 1
.end_amdhsa_kernel
"""

def main(out):
    hdr = open("cdna_kernels/" + NAME + ".s.ref").read().split("\n")
    hdr = [l for l in hdr if l.startswith(";") and "@launch" not in l]
    a = Asm()
    gen(a)
    txt = "\n".join(hdr) + "\n"
    txt += f"; @launch grid=(256,1,1) block=(768,1,1) lds={LDS_BYTES}\n"
    txt += '.amdgcn_target "amdgcn-amd-amdhsa--gfx950"\n.text\n'
    txt += a.text()
    txt += '.section .rodata,"a"\n'
    txt += kd(NAME + "_kernel", 168)
    open(out, "w").write(txt)

if __name__ == "__main__":
    main(sys.argv[1] if len(sys.argv) > 1 else "cdna_kernels/" + NAME + ".s")
```

```python
import math, os, struct, sys

NAME = "gated_mix__mha_block__dense_activation_relu__prompt"
STAMP = os.environ.get("STAMP")

def f32bits(x):
    return struct.unpack("<I", struct.pack("<f", x))[0]

class Asm:
    def __init__(self):
        self.l = []
        self.uid = 0
    def __call__(self, s):
        for line in s.strip("\n").split("\n"):
            line = line.strip()
            if line:
                self.l.append(("" if line.endswith(":") else "    ") + line)
    def label(self, s):
        self.l.append(s + ":")
    def raw(self, s):
        self.l.append(s)
    def new(self, p="L"):
        self.uid += 1
        return f"{p}_{self.uid}"
    def text(self):
        return "\n".join(self.l) + "\n"

EPOCH = 0x0
QF = 0x1A00000
XID = 0xD38000
KV = 0x200000
XF = 0x600000
W1F = 0x800000
W2F = 0xA00000
WOF = 0xC00000
FLS = 0xD00000
FL2 = 0xD10000
FL1 = 0xD40000
FL3 = 0xD80000
GBUF = 0xD20000
FLG = 0xD30000
HF = 0x1000000
OF = 0x1800000
STB = 0x1F00000
WS_BYTES = 0x2000000

L_X = 49152
L_W = 65536
L_OX = 131072
L_MISC = 157696
L_MISC0 = 65536
L_LX = 158720
L_GF = 160768
LDS_BYTES = 163840
M_PROG, M_QOK, M_PAIR, M_GF, M_E0R, M_E2, M_E2R, M_DMA = 0, 32, 64, 128, 136, 140, 144, 168
M_FP, M_C1, M_F1C, M_S0, M_S1 = 16, 176, 180, 184, 188
WSLOT = [136*1024, 112*1024, 24*1024, 0]
L_VX = 24 * 1024

QSCALE = 0.25 * math.log2(math.e)
LOG2E = math.log2(math.e)
SPIN_MAX = 200000
ILV = int(os.environ.get('ILV', '0'))
FPRIO = int(os.environ.get('FPRIO', '0'))

S_X, S_WQKV, S_WS, S_SRC, S_OUT = 28, 32, 36, 44, 60
S_TAG = 82
S_EP = 84
S_SPIN = 83

def vr(a, n):
    return f"v[{a}:{a+n-1}]"
def sr(a):
    return f"s[{a}:{a+3}]"

def srd(a, d, base, nbytes):
    a(f"""
    s_mov_b32 s{d}, s{base}
    s_and_b32 s{d+1}, s{base+1}, 0xffff
    s_mov_b32 s{d+2}, {nbytes:#x}
    s_mov_b32 s{d+3}, 0x20000
    """)

NST = 7
def stamp_begin(a):
    if not STAMP: return
    a("""
    s_memtime s[64:65]
    s_memrealtime s[66:67]
    s_waitcnt lgkmcnt(0)
    """)
    for i in range(NST):
        a(f"s_mov_b32 s{88+2*i}, {'s66' if os.environ.get('RT') else 's64'}")
PAST = os.environ.get("PAST")
def stamp(a, i, pa=False):
    if not STAMP: return
    if int(PAST or 0) != int(pa): return
    a(f"""
    s_waitcnt lgkmcnt(0)
    {'s_memrealtime' if os.environ.get('RT') else 's_memtime'} s[{88+2*i}:{89+2*i}]
    s_waitcnt lgkmcnt(0)
    """)
def stamp_end(a):
    if not STAMP: return
    a(f"""
    s_waitcnt vmcnt(0) lgkmcnt(0)
    s_memtime s[68:69]
    s_memrealtime s[70:71]
    s_waitcnt lgkmcnt(0)
    s_mov_b64 exec, 1
    v_mov_b32 v4, s64
    v_mov_b32 v5, s66
    v_mov_b32 v6, s68
    v_mov_b32 v7, s70
    """)
    for i in range(8):
        a(f"v_mov_b32 v{8+i}, s{88+2*min(i,NST-1)}" if i < NST else "v_mov_b32 v15, s73")
    a(f"""
    s_lshl_b32 s72, s2, 4
    s_add_u32 s72, s72, s40
    s_lshl_b32 s72, s72, 6
    s_add_u32 s72, s72, {STB}
    v_mov_b32 v3, 0
    buffer_store_dwordx4 v[4:7], v3, {sr(S_WS)}, s72 offen
    buffer_store_dwordx4 v[8:11], v3, {sr(S_WS)}, s72 offen offset:16
    buffer_store_dwordx4 v[12:15], v3, {sr(S_WS)}, s72 offen offset:32
    """)

def spin_guard(a, again, sleep=4):
    a(f"""
    s_sleep {sleep}
    s_add_u32 s{S_SPIN}, s{S_SPIN}, 1
    s_cmp_lt_u32 s{S_SPIN}, {SPIN_MAX}
    s_cbranch_scc1 {again}
    s_endpgm
    """)

def poll_flags(a, voff, soff, loads, T, sleep=8):
    L = a.new("L_poll"); D = a.new("L_pdone")
    a.label(L)
    r = T
    regs = []
    for nd, imm in loads:
        op = {1: "buffer_load_dword", 2: "buffer_load_dwordx2", 4: "buffer_load_dwordx4"}[nd]
        dst = f"v{r}" if nd == 1 else vr(r, nd)
        a(f"{op} {dst}, v{voff}, {sr(S_WS)}, {soff} offen offset:{imm} sc1")
        regs += list(range(r, r + nd)); r += nd
    a("s_waitcnt vmcnt(0)")
    a(f"v_xor_b32 v{regs[0]}, s{S_TAG}, v{regs[0]}")
    for q in regs[1:]:
        a(f"v_xor_b32 v{q}, s{S_TAG}, v{q}")
        a(f"v_or_b32 v{regs[0]}, v{regs[0]}, v{q}")
    a(f"""
    v_cmp_ne_u32 vcc, 0, v{regs[0]}
    s_cmp_eq_u64 vcc, 0
    s_cbranch_scc1 {D}
    """)
    spin_guard(a, L, sleep)
    a.label(D)

def lds_wait(a, vaddr, off, val, T, sleep=1):
    L = a.new("L_lw"); D = a.new("L_lwd")
    a.label(L)
    a(f"""
    ds_read_b32 v{T}, v{vaddr} offset:{off}
    s_waitcnt lgkmcnt(0)
    v_readfirstlane_b32 s5, v{T}
    s_cmp_eq_u32 s5, {val}
    s_cbranch_scc1 {D}
    """)
    spin_guard(a, L, sleep)
    a.label(D)

def lds_add(a, vaddr, off, T):
    a(f"""
    s_mov_b64 exec, 1
    v_mov_b32 v{T}, 1
    ds_add_u32 v{vaddr}, v{T} offset:{off}
    s_mov_b64 exec, -1
    """)

def dual(a, sfast, lines):
    for l in lines: a(l + " sc1")

def store_flag(a, soff, T, sfast=None, second=None):
    a(f"""
    s_mov_b64 exec, 0xff
    v_mov_b32 v{T}, s{S_TAG}
    v_mov_b32 v{T+1}, {second if second else 's%d' % S_TAG}
    v_mov_b32 v{T+2}, s{S_TAG}
    v_mov_b32 v{T+3}, s{S_TAG}
    """)
    line = f"buffer_store_dwordx4 {vr(T,4)}, v2, {sr(S_WS)}, {soff} offen"
    if sfast is None:
        a(line + " sc1")
    else:
        dual(a, sfast, [line])
    a("s_mov_b64 exec, -1")
    a("s_nop 1")

def stream_gemm(a, nsteps, na, nb, ACC, BUF, depth, VA, VB, SA, SB, SG, first=True, gate=None):
    per = na + nb
    ng = nsteps // 4
    def group():
        a(f"""
        s_lshl_b32 s5, s{SG}, 12
        s_add_u32 s80, s{SA}, s5
        s_add_u32 s81, s{SB}, s5
        s_lshl_b32 s79, s{SG}, 7
        s_add_u32 s{SG}, s{SG}, 1
        s_cmp_eq_u32 s{SG}, {ng}
        s_cselect_b32 s{SG}, 0, s{SG}
        """)
    def issue_list(s):
        slot = BUF + (s % depth) * 4 * per
        imm = (s % 4) * 1024
        l = []
        for t in range(na):
            if gate and t == 1:
                l.append(f"buffer_load_dwordx4 {vr(slot+4*t,4)}, v{gate[1]}, {sr(gate[0])}, s79 offen offset:{(s%4)*32}")
            else:
                l.append(f"buffer_load_dwordx4 {vr(slot+4*t,4)}, v{VA+t}, {sr(S_WS)}, s80 offen offset:{imm}")
        for t in range(nb):
            l.append(f"buffer_load_dwordx4 {vr(slot+4*(na+t),4)}, v{VB+t}, {sr(S_WS)}, s81 offen offset:{imm}")
        return l
    for s in range(min(depth - 1, nsteps)):
        if s % 4 == 0: group()
        for l in issue_list(s): a(l)
    for s in range(nsteps):
        nxt = []
        if s + depth - 1 < nsteps:
            if (s + depth - 1) % 4 == 0: group()
            nxt = issue_list(s + depth - 1)
        if not ILV:
            for l in nxt: a(l)
            outstanding = min(depth - 1, nsteps - 1 - s)
        else:
            outstanding = min(depth - 2, nsteps - 1 - s)
        a(f"s_waitcnt vmcnt({outstanding*per})")
        slot = BUF + (s % depth) * 4 * per
        k = 0
        for at in range(na):
            for bt in range(nb):
                d = ACC + 16 * (at * nb + bt)
                c = "0" if (first and s == 0) else vr(d, 16)
                a(f"v_mfma_f32_32x32x16_bf16 {vr(d,16)}, {vr(slot+4*at,4)}, {vr(slot+4*(na+bt),4)}, {c}")
                if ILV and k < len(nxt): a(nxt[k])
                k += 1

def sigmoid(a, v):
    a(f"""
    v_mul_f32 v{v}, {f32bits(-LOG2E):#x}, v{v}
    v_exp_f32 v{v}, v{v}
    s_nop 0
    v_add_f32 v{v}, 1.0, v{v}
    v_rcp_f32 v{v}, v{v}
    s_nop 0
    """)

def gen(a):
    KN = NAME + "_kernel"
    a.raw(f".globl {KN}")
    a.raw(".p2align 8")
    a.raw(f".type {KN},@function")
    a.label(KN)
    a(f"""
    s_cmp_ge_u32 s2, 256
    s_cbranch_scc1 L_end
    s_load_dwordx16 s[8:23], s[0:1], 0
    s_load_dwordx4 s[24:27], s[0:1], 64
    v_lshrrev_b32 v2, 6, v0
    v_and_b32 v1, 63, v0
    s_mov_b32 s{S_SPIN}, 0
    v_readfirstlane_b32 s40, v2
    s_and_b32 s3, s2, 7          ; j
    s_lshr_b32 s4, s2, 3         ; i
    s_and_b32 s43, s4, 3
    s_lshl_b32 s5, s3, 2
    s_add_u32 s41, s43, s5       ; h = tau = 4j + (i&3)
    s_lshr_b32 s42, s4, 2        ; c = phi = i>>2
    """)
    if PAM == "8x4":
        a("""
        s_lshr_b32 s5, s3, 1
        s_lshl_b32 s5, s5, 3
        s_and_b32 s6, s4, 7
        s_add_u32 s86, s5, s6        ; tb = 8(j>>1) + (i&7)
        s_and_b32 s5, s3, 1
        s_lshl_b32 s87, s5, 2
        s_lshr_b32 s7, s4, 3
        s_add_u32 s87, s87, s7       ; g = 4(j&1) + (i>>3)
        s_lshl_b32 s7, s7, 1
        s_add_u32 s49, s6, s7
        s_add_u32 s49, s49, s5
        s_and_b32 s49, s49, 7        ; rot
        """)
    elif PAM == "16x2":
        a("""
        s_lshr_b32 s5, s3, 2
        s_lshl_b32 s5, s5, 4
        s_and_b32 s6, s4, 15
        s_add_u32 s86, s5, s6        ; tb = 16(j>>2) + (i&15)
        s_and_b32 s5, s3, 3
        s_lshl_b32 s87, s5, 1
        s_lshr_b32 s7, s4, 4
        s_add_u32 s87, s87, s7       ; g = 2(j&3) + (i>>4)
        s_lshl_b32 s7, s7, 2
        s_add_u32 s49, s6, s7
        s_add_u32 s49, s49, s5
        s_and_b32 s49, s49, 7        ; rot = i + 4(i>>4) + (j&3)
        """)
    else:
        a("""
        s_mov_b32 s86, s4
        s_mov_b32 s87, s3
        s_add_u32 s49, s3, s4
        s_and_b32 s49, s49, 7
        """)
    a(f"""
    v_lshlrev_b32 v2, 4, v1      ; v2 = lane*16
    s_waitcnt lgkmcnt(0)
    """)
    stamp_begin(a)
    a(f"s_load_dword s{S_EP}, s[26:27], {EPOCH}")
    if int(os.environ.get("CODEW", "1")):
        a(f"""
        s_getpc_b64 s[74:75]
        L_pc:
        s_mul_i32 s5, s4, 12
        s_add_u32 s5, s5, s40
        s_lshl_b32 s5, s5, 7
        s_min_u32 s5, s5, L_end-L_pc-64
        s_and_b32 s74, s74, -128
        s_load_dword s80, s[74:75], s5
        s_add_u32 s5, s5, 64
        s_load_dword s81, s[74:75], s5
        """)
    TLBW = int(os.environ.get("TLBW", "2"))
    if TLBW:
        a(f"""
        s_cmp_lg_u32 s40, 11
        s_cbranch_scc1 L_notlb
        s_min_u32 s5, s4, 27
        s_lshl_b32 s5, s5, 16
        s_load_dword s48, s[16:17], s5
        s_load_dword s57, s[18:19], s5
        s_and_b32 s6, s4, 7
        s_lshl_b32 s6, s6, 16
        s_load_dword s77, s[12:13], s6
        """)
        if TLBW >= 2:
            a(f"""
            s_lshl_b32 s5, s4, 20
            s_load_dword s58, s[26:27], s5
            s_lshl_b32 s6, s4, 16
            s_load_dword s59, s[22:23], s6
            """)
        a.label("L_notlb")
    srd(a, S_X, 8, 2048 * 1024)
    srd(a, S_WQKV, 10, 512 * 3072)
    srd(a, S_WS, 26, WS_BYTES)
    a(f"""
    s_cmp_ge_u32 s40, 8
    s_cbranch_scc1 L_aux
    """)
    attention_wave(a)
    a.label("L_aux")
    aux_wave(a)
    a.label("L_end")
    a("s_endpgm")

VXA = 8
VWA = 12
VMI = 13
VWA2 = 62
NSL = 4
PAM = os.environ.get('PAM', '8x4')
SCHEDS = {
 "a": ({-1: [0, 1], 0: [2, 3], 1: [4], 2: [5], 3: [6], 4: [7, "P"]}, {-1: [0, 1, 2, 3, 4, 5, 6, 7, "r0", "r1"]}, 5),
 "b": ({-1: [0], 0: [1, 2], 1: [3, 4], 2: [5], 3: [6], 4: [7, "P"]}, {-1: [0, 1, 2, 3], 0: [4, 5, 6, 7, "r0", "r1"]}, 5),
 "c": ({-1: [0], 0: [1, 2, 3], 1: [4], 2: [5], 3: [6], 4: [7, "P"]}, {-1: [0, 1, 2, 3, 4, 5, 6, 7], 0: ["r0", "r1"]}, 5),
 "e": ({-1: [0, 1], 0: [2, 3], 1: [4], 2: [5], 3: [6], 4: [7, "P"]}, {-1: [0, 1, 2, 3], 0: [4, 5, "r0"], 1: [6, 7, "r1"]}, 5),
 "f": ({-1: [0, 1, 2, 3], 1: [4], 2: [5], 3: [6], 4: [7, "P"]}, {-1: [0, 1, "r0", "r1", 2, 3, 4], 0: [5], 1: [6], 2: [7]}, 4),
 "d": ({-1: [0, 1], 0: [2, 3], 1: [4], 2: [5], 3: [6], 4: [7, "P"]}, {-1: [0, 1, 2, 3, 4, 5, 6, 7], 4: ["r0", "r1"]}, 6),
}
SCHEDS["g"] = ({-1: [0, 1], 0: [2, 3, "R"], 1: [4, "P"], 2: [5], 3: [6], 4: [7], 5: ["S"]}, {-1: [0, 1, 2, 3], 0: [4, 5, "T"], 1: [6, 7]}, 5)
SCHEDS["h"] = ({-1: [0, 1], 0: [2, 3], 1: [4, "R"], 2: [5, "P"], 3: [6], 4: [7], 6: ["S"]}, {-1: [0, 1, 2, 3], 0: [4, 5, 6, 7, "T"]}, 5)
SCHEDS["i"] = ({-1: [0, 1, "R"], 0: [2, 3, "P"], 1: [4], 2: [5, "S"], 3: [6], 4: [7]}, {-1: [0, 1, 2, 3, "T"], 0: [4, 5], 1: [6, 7]}, 5)
W0 = {-1: [0, 1], 0: [2, 3], 1: [4], 2: [5], 3: [6]}
X0 = {-1: [0, 1, 2, 3], 0: [4, 5], 1: [6, 7]}
SCHEDS["j"] = ({**W0, 4: [7, "P", "R"], 7: ["S"]}, X0, 5)
SCHEDS["k"] = ({**W0, 4: [7, "P", "R"], 8: ["S"]}, X0, 5)
SCHEDS["l"] = ({**W0, 4: [7, "P", "R"], 8: ["S"]}, {**X0, 3: ["T"]}, 5)
SCHEDS["m"] = ({**W0, 4: [7, "P", "R"], 8: ["S"]}, {**X0, 2: ["T"]}, 5)
SCHEDS["n"] = ({**W0, 4: [7, "P"], 7: ["R"], 8: ["S"]}, X0, 5)
SCHEDS["o"] = ({**W0, 4: [7, "P", "R"], 8: ["S"]}, {**X0, 4: ["T"]}, 5)
SCHEDS["x"] = ({**W0, 4: [7]}, X0, 5)
SCHEDS["y"] = ({**W0, 4: [7], 9: ["P", "R"], 10: ["S"]}, X0, 5)
WSCHED, XSCHED, RLS = SCHEDS[os.environ.get("SCHED", "x")]
F1D = int(os.environ.get("F1D", "0"))
VD0, VD1 = 14, 15
ACCA = 64
XB = 80
WB = 96

def make_tag(a):
    a(f"""
    s_waitcnt lgkmcnt(0)
    s_mul_i32 s{S_TAG}, s{S_EP}, 0x9e3779b1
    s_add_u32 s{S_TAG}, s{S_TAG}, 0x7f4a7c15
    """)

def pa_addr(a):
    a(f"""
    v_and_b32 v3, 31, v1               ; m
    v_lshrrev_b32 v4, 5, v1            ; hh
    v_bfe_u32 v5, v1, 1, 3             ; (m>>1)&7
    v_xor_b32 v5, v5, v4
    v_lshlrev_b32 v3, 7, v3
    s_and_b32 s5, s40, 1
    s_lshl_b32 s5, s5, 12              ; tt*32*128
    s_add_u32 s5, s5, {L_X}
    v_add_u32 v3, s5, v3
    """)
    for ss in range(4):
        a(f"""
        v_xor_b32 v7, {2*ss}, v5
        v_lshl_add_u32 v{VXA+ss}, v7, 4, v3
        """)
    a(f"""
    v_bfe_u32 v7, v1, 2, 2
    v_lshl_add_u32 v7, v4, 3, v7       ; + 8hh
    v_lshlrev_b32 v{VWA}, 7, v7        ; row*128
    v_bfe_u32 v5, v1, 4, 1             ; g
    v_bfe_u32 v6, v1, 1, 1             ; (i&3)>>1
    v_lshl_add_u32 v6, v5, 1, v6
    v_bfe_u32 v5, v1, 3, 1
    s_lshr_b32 s5, s40, 1
    s_and_b32 s5, s5, 1                ; half
    v_xor_b32 v5, s5, v5
    v_lshl_add_u32 v6, v5, 2, v6       ; piece
    v_lshl_add_u32 v{VWA}, v6, 4, v{VWA}
    v_and_b32 v5, 1, v1
    v_lshl_add_u32 v{VWA}, v5, 3, v{VWA}
    s_lshr_b32 s5, s40, 2              ; part
    s_lshl_b32 s5, s5, 13
    v_add_u32 v{VWA}, s5, v{VWA}
    v_add_u32 v{VWA2}, {112*1024}, v{VWA}
    v_mov_b32 v{VMI}, {L_MISC}
    """)

def pa_reads(a, sig):
    so = WSLOT[sig % 4]
    wa = VWA if so < 65536 else VWA2
    so = so if so < 65536 else so - 112 * 1024
    xb = XB + 32 * (sig % 2); wb = WB + 32 * (sig % 2)
    for ss in range(4):
        a(f"""
        ds_read_b128 {vr(xb+4*ss,4)}, v{VXA+ss} offset:{sig*8192}
        ds_read_b64_tr_b16 {vr(wb+4*ss,2)}, v{wa} offset:{so + ss*2048}
        ds_read_b64_tr_b16 {vr(wb+4*ss+2,2)}, v{wa} offset:{so + ss*2048 + 512}
        """)
def pa_mfma(a, sig, vrole):
    xb = XB + 32 * (sig % 2); wb = WB + 32 * (sig % 2)
    for ss in range(4):
        c = "0" if (sig == 0 and ss == 0) else vr(ACCA, 16)
        if vrole:
            a(f"v_mfma_f32_32x32x16_bf16 {vr(ACCA,16)}, {vr(xb+4*ss,4)}, {vr(wb+4*ss,4)}, {c}")
        else:
            a(f"v_mfma_f32_32x32x16_bf16 {vr(ACCA,16)}, {vr(wb+4*ss,4)}, {vr(xb+4*ss,4)}, {c}")
def pa_compute(a, sig, vrole):
    pa_reads(a, sig)
    if sig > 0:
        pa_mfma(a, sig - 1, vrole)
    a("s_waitcnt lgkmcnt(0)")
    if sig == 7:
        pa_mfma(a, 7, vrole)

def attention_wave(a):
    a(f"""
    v_lshrrev_b32 v3, 3, v1            ; row = l>>3
    v_mul_u32_u24 v4, 3072, v3
    v_bfe_u32 v5, v1, 4, 1             ; (row>>1)&1
    v_lshlrev_b32 v5, 2, v5
    v_and_b32 v6, 7, v1
    v_xor_b32 v6, v6, v5
    v_lshl_add_u32 v{VD0}, v6, 4, v4
    s_mul_i32 s52, s40, {8*3072}
    s_lshl_b32 s5, s87, 7
    s_add_u32 s52, s52, s5
    s_lshl_b32 s53, s40, 10
    """)
    def wdma(sig):
        a(f"""
        s_add_u32 s5, s49, {sig}
        s_and_b32 s5, s5, 7
        s_mul_i32 s50, s5, {64*3072}
        s_add_u32 s50, s50, s52
        """)
        for p in range(3):
            a(f"""
            s_add_u32 m0, s53, {WSLOT[sig%4] + p*8192}
            s_add_u32 s51, s50, {p*1024}
            buffer_load_dwordx4 v{VD0}, {sr(S_WQKV)}, s51 offen lds
            """)
    wq = []
    def wissue(items):
        for it in items:
            if it == "P":
                a(f"""
                s_lshl_b32 s5, s42, 3
                s_add_u32 s5, s5, s40
                s_lshl_b32 s5, s5, 5
                s_add_u32 s5, s5, s41
                s_lshl_b32 s5, s5, 10
                s_add_u32 s5, s5, {OF}
                v_mov_b32 v20, -1
                v_mov_b32 v21, -1
                v_mov_b32 v22, -1
                v_mov_b32 v23, -1
                buffer_store_dwordx4 v[20:23], v2, {sr(S_WS)}, s5 offen sc1
                """)
                wq.append("P")
            elif it == "R":
                a("s_add_u32 s5, s59, 8192")
                for jq in range(2):
                    for jj in range(4):
                        a(f"buffer_load_dword v{R+4*jq+jj}, v{VRL}, {sr(S_SRC)}, {'s5' if jq else 's59'} offen offset:{jj*1024}")
                wq.extend(["R"] * 8)
            elif it == "S":
                last = max(k for k, e in enumerate(wq) if e == "R")
                a(f"""
                s_mov_b32 s{S_SRC}, s{S_WS}
                s_mov_b32 s{S_SRC+1}, s{S_WS+1}
                s_cmp_lt_u32 s73, 1152
                s_cselect_b32 s{S_SRC+2}, {WS_BYTES:#x}, 0
                s_mov_b32 s80, 0x05040100
                s_mov_b32 s81, 0x07060302
                s_waitcnt vmcnt({len(wq) - 1 - last})
                """)
                for jj in range(4):
                    a(f"v_perm_b32 v{F+jj}, v{R+2*jj+1}, v{R+2*jj}, s80")
                    a(f"v_perm_b32 v{F+4+jj}, v{R+2*jj+1}, v{R+2*jj}, s81")
                a(f"""
                buffer_store_dwordx4 {vr(F,4)}, v2, {sr(S_SRC)}, s79 offen sc1
                buffer_store_dwordx4 {vr(F+4,4)}, v2, {sr(S_SRC)}, s78 offen sc1
                """)
                wq.extend(["S"] * 2)
            else:
                wdma(it); wq.extend([it] * 3)
    wissue([it for it in WSCHED[-1] if isinstance(it, int)])
    R = 144; F = 152; VRL = 63
    wissue([it for it in WSCHED[-1] if not isinstance(it, int)])
    make_tag(a)
    pa_addr(a)
    RLI = int(os.environ.get("RLI", "7"))
    for sig in range(8):
        last = max(k for k, e in enumerate(wq) if e == sig)
        a(f"s_waitcnt vmcnt({len(wq) - 1 - last})")
        if sig == 0: stamp(a, 0)
        if sig <= 6: stamp(a, sig, pa=True)
        a("s_barrier")
        for it in WSCHED.get(sig, []):
            assert isinstance(it, str) or it - NSL < sig, (it, sig)
        if sig >= 4: stamp(a, sig - 4, pa=2)
        wissue(WSCHED.get(sig, []))
        pa_compute(a, sig, False)
    stamp(a, 1)
    stamp(a, 5, pa=2)
    a(f"""
    s_lshr_b32 s5, s40, 1
    s_and_b32 s5, s5, 1
    s_lshl_b32 s5, s5, 1
    s_lshl_b32 s6, s87, 2
    s_add_u32 s5, s5, s6               ; head0
    s_lshl_b32 s5, s5, 6
    s_lshl_b32 s6, s86, 1
    s_add_u32 s5, s5, s6
    s_and_b32 s6, s40, 1
    s_add_u32 s5, s5, s6               ; head0*64 + T
    s_cmp_ge_u32 s40, 4
    s_cbranch_scc1 L_isk
    s_lshl_b32 s54, s5, 10
    s_add_u32 s54, s54, {QF}
    s_add_u32 s55, s54, {64*1024}
    s_mov_b32 s56, {f32bits(QSCALE):#x}
    s_branch L_qk
    L_isk:
    s_lshl_b32 s54, s5, 11
    s_add_u32 s54, s54, {KV}
    s_add_u32 s55, s54, {64*2048}
    s_mov_b32 s56, 1.0
    L_qk:
    s_nop 3
    """)
    for r in range(16):
        a(f"v_mul_f32 v{ACCA+r}, s56, v{ACCA+r}")
    for r in range(8):
        a(f"v_cvt_pk_bf16_f32 v{XB+r}, v{ACCA+2*r}, v{ACCA+2*r+1}")
    dual(a, 73, [f"buffer_store_dwordx4 {vr(XB,4)}, v2, {sr(S_WS)}, s54 offen",
                 f"buffer_store_dwordx4 {vr(XB+4,4)}, v2, {sr(S_WS)}, s55 offen"])
    Q = 8; KB = 16; VB = 24; P = 40; VKA = 56; VVA = 57; VG = 58; VMISC = 59; VPL = 60; VG2 = 61; VT = 160
    S = 64; NM = 96; O = 128
    def slot(t, aq):
        Sc = S + 16 * aq; Sn = S + 16 * (1 - aq)
        tn = t if aq == 0 else t + 1
        Kc = KB + 4 * (tn % 2)
        Pc = P + 8 * aq; Pp = P + 8 * (1 - aq)
        Oc = O + 16 * aq; Op = O + 16 * (1 - aq)
        tp = t if aq == 1 else t - 1
        Vc = VB + 8 * (t % 2); Vp = VB + 8 * (tp % 2)
        noff = (t + 1) * 2048 if t < 3 else 16384
        def ex(i): a(f"v_exp_f32 v{Sc+i}, v{Sc+i}")
        def cv(i): a(f"v_cvt_pk_bf16_f32 v{Pc+i}, v{Sc+2*i}, v{Sc+2*i+1}")
        if aq == 1: a("s_waitcnt lgkmcnt(0)")
        a(f"v_mfma_f32_32x32x16_bf16 {vr(Sn,16)}, {vr(Kc,4)}, {vr(Q+4*(1-aq),4)}, {vr(NM+16*(1-aq),16)}")
        if aq == 0:
            a(f"ds_read_b128 {vr(KB+4*((t+1)%2),4)}, v{VKA} offset:{noff}")
        for i in range(6): ex(i)
        a(f"v_mfma_f32_32x32x16_bf16 {vr(Op,16)}, {vr(Vp+4,4)}, {vr(Pp+4,4)}, {vr(Op,16)}")
        if aq == 0:
            Vn = VB + 8 * ((t + 1) % 2)
            a(f"""
            s_mov_b64 exec, s[74:75]
            ds_read_b128 {vr(Vn,4)}, v{VVA} offset:{noff+1024}
            ds_read_b128 {vr(Vn+4,4)}, v{VVA} offset:{noff+1536}
            s_mov_b64 exec, -1
            """)
        ex(6); ex(7); cv(0); cv(1); cv(2); cv(3); ex(8); ex(9)
        a(f"v_mfma_f32_32x32x16_bf16 {vr(Oc,16)}, {vr(Vc,4)}, {vr(Pc,4)}, {vr(Oc,16)}")
        for i in range(10, 16): ex(i)
        cv(4); cv(5); cv(6); cv(7)
    def advance():
        a(f"""
        v_add_u32 v{VKA}, 16384, v{VKA}
        v_add_u32 v{VVA}, 16384, v{VVA}
        """)
    def prog_wait(n, both=False, off=M_PROG):
        L = a.new("L_pw"); D = a.new("L_pwd")
        a.label(L)
        if both:
            a(f"""
            ds_read_b128 v[4:7], v{VMISC} offset:{off}
            s_waitcnt lgkmcnt(0)
            v_min_u32 v4, v4, v5
            v_min_u32 v6, v6, v7
            v_min_u32 v4, v4, v6
            """)
        else:
            a(f"""
            ds_read_b64 v[4:5], v{VPL} offset:{M_PROG}
            s_waitcnt lgkmcnt(0)
            v_min_u32 v4, v4, v5
            """)
        a(f"""
        s_nop 0
        v_readfirstlane_b32 s5, v4
        s_cmp_ge_u32 s5, {n}
        s_cbranch_scc1 {D}
        """)
        spin_guard(a, L, 1)
        a.label(D)
    a(f"""
    s_lshl_b32 s53, s40, 11            ; w*2048
    s_lshl_b32 s5, s40, 10
    s_add_u32 s5, s5, {L_VX}
    v_add_u32 v4, s5, v2
    s_lshr_b32 s5, s40, 2
    s_lshl_b32 s5, s5, 1
    s_lshl_b32 s6, s87, 2
    s_add_u32 s5, s5, s6
    s_lshl_b32 s5, s5, 6
    s_lshl_b32 s6, s86, 1
    s_add_u32 s5, s5, s6
    s_bfe_u32 s6, s40, 0x10001
    s_add_u32 s5, s5, s6
    s_lshl_b32 s54, s5, 11
    s_and_b32 s58, s40, 1              ; kh
    s_lshl_b32 s5, s58, 9
    s_add_u32 s54, s54, s5
    s_add_u32 s54, s54, {KV}
    v_bfe_u32 v3, v1, 4, 1
    v_lshlrev_b32 v3, 17, v3
    v_lshrrev_b32 v5, 5, v1
    v_lshl_add_u32 v3, v5, 8, v3
    v_and_b32 v5, 15, v1
    v_lshl_add_u32 v3, v5, 4, v3
    s_barrier
    ds_read_b128 {vr(XB+8,4)}, v4
    s_lshl_b32 s76, s87, 12
    s_add_u32 s76, s76, {FL1}          ; FL1[g]
    v_mov_b32 v{VMISC}, {L_MISC}
    s_lshl_b32 s5, s58, 3
    v_add_u32 v{VPL}, s5, v{VMISC}
    s_waitcnt lgkmcnt(0)
    buffer_store_dwordx4 {vr(XB+8,4)}, v3, {sr(S_WS)}, s54 offen offset:1024 sc1
    s_waitcnt vmcnt(0)
    """)
    lds_add(a, VMISC, M_C1, 3)
    a(f"""
    s_cmp_lg_u32 s40, 0
    s_cbranch_scc1 L_nofl1
    """)
    lds_wait(a, VMISC, M_C1, 8, 3, sleep=1)
    a(f"""
    s_lshl_b32 s5, s86, 7
    s_add_u32 s5, s5, s76
    """)
    store_flag(a, "s5", VT, sfast=73)
    a.label("L_nofl1")
    stamp(a, 2)
    stamp(a, 6, pa=2)
    wissue(WSCHED.get(8, []))
    a(f"""
    s_lshl_b32 s59, s58, 13            ; kh*8192
    v_add_u32 v{VKA}, s59, v2
    v_lshrrev_b32 v4, 5, v1
    v_and_b32 v5, 15, v1
    v_lshlrev_b32 v5, 4, v5
    v_lshl_add_u32 v{VVA}, v4, 8, v5
    v_add_u32 v{VVA}, s59, v{VVA}
    s_mov_b32 s74, 0x0000ffff
    s_mov_b32 s75, 0x0000ffff
    v_and_b32 v3, 31, v1
    v_cmp_eq_u32 vcc, 16, v3
    v_mov_b32 v4, 0x3f803f80
    s_lshl_b32 s5, s41, 6
    s_lshl_b32 s6, s42, 3
    s_add_u32 s5, s5, s6               ; h*64 + 8c
    s_add_u32 s6, s5, s40
    s_lshl_b32 s54, s6, 11
    s_add_u32 s54, s54, {KV}
    s_and_b32 s6, s40, 6
    s_add_u32 s6, s6, s5
    s_lshl_b32 s55, s6, 10
    s_add_u32 s55, s55, {QF}           ; Q tiles 2p, 2p+1
    """)
    for r in range(16):
        a(f"v_cndmask_b32 v{VB+r}, 0, v4, vcc")
    for r in range(32):
        a(f"v_mov_b32 v{O+r}, 0")
    for r in range(4):
        a(f"v_mov_b32 v{P+8+4+r}, 0")
    a(f"""
    s_lshl_b32 s76, s3, 12
    s_add_u32 s76, s76, {FL1}          ; FL1[j]
    s_lshl_b32 s5, s42, 2
    v_add_u32 v7, s5, v1
    v_and_b32 v7, 31, v7
    v_lshlrev_b32 v7, 7, v7
    s_add_u32 s6, s54, s53
    s_add_u32 s5, s42, 1
    s_and_b32 s5, s5, 7
    s_sub_u32 s5, s5, s42
    s_lshl_b32 s5, s5, 14
    s_add_u32 s56, s6, s5
    s_add_u32 s5, s42, 2
    s_and_b32 s5, s5, 7
    s_sub_u32 s5, s5, s42
    s_lshl_b32 s5, s5, 14
    s_add_u32 s57, s6, s5
    s_mov_b32 m0, s53
    s_cmp_lg_u32 s40, 1
    s_cbranch_scc1 L_nopoll
    """)
    lds_wait(a, VMISC, M_C1, 8, 3, sleep=1)
    a(f"""
    s_sleep {int(os.environ.get("PSL", "8"))}
    L_qp:
    s_mov_b64 exec, 0xfff
    buffer_load_dword v{VT}, v7, {sr(S_WS)}, s76 offen sc1
    s_waitcnt vmcnt(0)
    v_cmp_ne_u32 vcc, s{S_TAG}, v{VT}
    s_mov_b64 exec, -1
    s_and_b32 s5, vcc_lo, 15
    s_cbranch_scc0 L_qok
    """)
    spin_guard(a, "L_qp", 3)
    a(f"""
    L_qok:
    s_cmp_eq_u32 vcc_lo, 0
    s_cselect_b32 s5, 3, 1
    v_mov_b32 v3, s5
    ds_write_b32 v{VMISC}, v3 offset:{M_QOK}
    L_nopoll:
    L_qw:
    ds_read_b32 v3, v{VMISC} offset:{M_QOK}
    s_waitcnt lgkmcnt(0)
    v_readfirstlane_b32 s48, v3
    s_cmp_lg_u32 s48, 0
    s_cbranch_scc1 L_qwd
    """)
    spin_guard(a, "L_qw", 1)
    a.label("L_qwd")
    stamp(a, 3)
    a(f"""
    buffer_load_dwordx4 v2, {sr(S_WS)}, s54 offen lds
    buffer_load_dwordx4 v2, {sr(S_WS)}, s54 offen offset:1024 lds
    buffer_load_dwordx4 {vr(Q,4)}, v2, {sr(S_WS)}, s55 offen
    buffer_load_dwordx4 {vr(Q+4,4)}, v2, {sr(S_WS)}, s55 offen offset:1024
    s_cmp_ge_u32 s40, 4
    s_cbranch_scc1 L_young
    s_cmp_eq_u32 s48, 3
    s_cbranch_scc1 L_q3
    s_cmp_lg_u32 s40, 1
    s_cbranch_scc1 L_nop2
    s_mov_b64 exec, 0xfff
    buffer_load_dword v{VT}, v7, {sr(S_WS)}, s76 offen sc1
    s_mov_b64 exec, -1
    s_waitcnt vmcnt(3)
    """)
    lds_add(a, VMISC, M_S0, 3)
    a(f"""
    s_branch L_qp3
    L_qp2:
    s_mov_b64 exec, 0xfff
    buffer_load_dword v{VT}, v7, {sr(S_WS)}, s76 offen sc1
    L_qp3:
    s_mov_b64 exec, 0xfff
    s_waitcnt vmcnt(0)
    v_cmp_ne_u32 vcc, s{S_TAG}, v{VT}
    s_mov_b64 exec, -1
    s_cmp_eq_u32 vcc_lo, 0
    s_cbranch_scc1 L_qok2
    """)
    spin_guard(a, "L_qp2", 3)
    a(f"""
    L_qok2:
    v_mov_b32 v3, 3
    ds_write_b32 v{VMISC}, v3 offset:{M_QOK}
    s_branch L_q3
    L_nop2:
    s_waitcnt vmcnt(2)
    """)
    lds_add(a, VMISC, M_S0, 3)
    lds_wait(a, VMISC, M_QOK, 3, 3, sleep=1)
    a(f"""
    L_q3:
    s_lshl_b32 s6, s53, 1
    s_add_u32 m0, s6, 16384
    s_nop 0
    """)
    for k in range(4):
        a(f"buffer_load_dwordx4 v2, {sr(S_WS)}, s56 offen offset:{k*1024} lds")
    a(f"""
    s_add_u32 m0, s6, 32768
    s_nop 0
    """)
    for k in range(4):
        a(f"buffer_load_dwordx4 v2, {sr(S_WS)}, s57 offen offset:{k*1024} lds")
    a(f"""
    s_cmp_lg_u32 s48, 3
    s_cbranch_scc1 L_s0done
    s_waitcnt vmcnt(10)
    """)
    lds_add(a, VMISC, M_S0, 3)
    a(f"""
    L_s0done:
    s_waitcnt vmcnt(0)
    """)
    lds_add(a, VMISC, M_S1, 3)
    a(f"""
    s_branch L_go
    L_young:
    s_waitcnt vmcnt(2)
    """)
    lds_add(a, VMISC, M_S0, 3)
    a(f"""
    s_waitcnt vmcnt(0)
    L_go:
    """)
    lds_wait(a, VMISC, M_S0, 8, 3, sleep=1)
    stamp(a, 4)
    a(f"""
    ds_read_b128 {vr(KB,4)}, v2
    s_waitcnt lgkmcnt(0)
    v_mfma_f32_32x32x16_bf16 {vr(S,16)}, {vr(KB,4)}, {vr(Q,4)}, 0
    v_mfma_f32_32x32x16_bf16 {vr(S+16,16)}, {vr(KB,4)}, {vr(Q+4,4)}, 0
    s_mov_b32 s77, 0
    s_nop 7
    """)
    a(f"""
    ds_read_b128 {vr(KB,4)}, v{VKA}
    s_mov_b64 exec, s[74:75]
    ds_read_b128 {vr(VB,4)}, v{VVA} offset:1024
    ds_read_b128 {vr(VB+4,4)}, v{VVA} offset:1536
    s_mov_b64 exec, -1
    s_nop 4
    """)
    for q in range(2):
        Sq = S + 16 * q
        a(f"v_max3_f32 v{3+q}, v{Sq}, v{Sq+1}, v{Sq+2}")
        for r in range(3, 15, 2):
            a(f"v_max3_f32 v{3+q}, v{3+q}, v{Sq+r}, v{Sq+r+1}")
        a(f"v_max_f32 v{3+q}, v{3+q}, v{Sq+15}")
    a(f"""
    v_mov_b32 v5, v3
    v_mov_b32 v6, v4
    s_nop 1
    v_permlane32_swap_b32 v3, v5
    v_permlane32_swap_b32 v4, v6
    s_nop 1
    v_max_f32 v3, v3, v5
    v_max_f32 v4, v4, v6
    """)
    for q in range(2):
        for r in range(16):
            a(f"v_sub_f32 v{NM+16*q+r}, 0, v{3+q}")
    a(f"""
    s_waitcnt lgkmcnt(0)
    v_mfma_f32_32x32x16_bf16 {vr(S,16)}, {vr(KB,4)}, {vr(Q,4)}, {vr(NM,16)}
    s_nop 7
    s_nop 4
    """)
    BAL = int(os.environ.get("BAL", "6"))
    if BAL:
        a(f"""
        s_cmp_lt_u32 s40, 4
        s_cbranch_scc1 L_bal0
        s_setprio 1
        L_bal0:
        """)
    for t in range(3):
        slot(t, 0); slot(t, 1)
    lds_wait(a, VMISC, M_S1, 4, 4, sleep=1)
    slot(3, 0); slot(3, 1)
    advance()
    for t in range(4):
        slot(t, 0); slot(t, 1)
    advance()
    for t in range(3):
        slot(t, 0); slot(t, 1)
    prog_wait(8)
    stamp(a, 5)
    slot(3, 0); slot(3, 1)
    advance()
    a("s_mov_b32 s79, 3")
    a.label("L_att_loop")
    for t in range(4):
        slot(t, 0); slot(t, 1)
    advance()
    a("s_add_u32 s79, s79, 1")
    if BAL:
        a(f"""
        s_cmp_lg_u32 s79, {BAL}
        s_cbranch_scc1 L_bal1
        s_setprio 0
        L_bal1:
        """)
    a(f"""
    s_cmp_lt_u32 s79, 7
    s_cbranch_scc1 L_att_loop
    s_setprio 3
    s_lshl_b32 s5, s42, 3
    s_add_u32 s5, s5, s40              ; T
    s_lshr_b32 s6, s5, 1
    s_lshl_b32 s6, s6, 7
    s_add_u32 s76, s6, {FLG}           ; FLG[tau]
    s_lshl_b32 s57, s5, 7
    s_add_u32 s57, s57, {GBUF}
    v_mov_b32 v{VPL}, 0
    """)
    s_keep = None
    lds_wait(a, VMISC, M_E2R, 1, VT)
    a(f"""
    v_and_b32 v3, 31, v1
    v_lshlrev_b32 v3, 2, v3
    buffer_load_dword v{VG}, v3, {sr(S_WS)}, s57 offen
    s_setprio 0
    """)
    for t in range(4):
        slot(t, 0); slot(t, 1)
    a(f"""
    s_setprio 3
    s_nop 0
    v_mfma_f32_32x32x16_bf16 {vr(O+16,16)}, {vr(VB+12,4)}, {vr(P+12,4)}, {vr(O+16,16)}
    s_waitcnt lgkmcnt(0)
    """)
    stamp(a, 6)
    LS = a.new("L_noswap")
    a(f"""
    s_xor_b32 s5, s40, 1
    s_lshl_b32 s6, s5, 11
    v_add_u32 v3, s6, v2
    v_add_u32 v3, {L_OX}, v3
    v_add_u32 v4, s53, v2
    v_add_u32 v4, {L_OX}, v4
    v_lshlrev_b32 v5, 2, v1
    s_lshl_b32 s6, s5, 8
    v_add_u32 v6, s6, v5
    v_add_u32 v6, {L_LX}, v6
    s_lshl_b32 s6, s40, 8
    v_add_u32 v7, s6, v5
    v_add_u32 v7, {L_LX}, v7
    s_lshl_b32 s6, s5, 2
    v_add_u32 v{VT}, s6, v{VMISC}
    s_lshl_b32 s6, s40, 2
    v_add_u32 v{VT+1}, s6, v{VMISC}
    v_mov_b32 v{VT+2}, 1
    s_nop 4
    s_cmp_eq_u32 s58, 0
    s_cbranch_scc1 {LS}
    """)
    for r in range(9):
        a(f"v_swap_b32 v{O+r}, v{O+16+r}")
    for r in range(4):
        a(f"v_swap_b32 v{Q+r}, v{Q+4+r}")
    a(f"""
    {LS}:
    ds_write_b128 v3, {vr(O+16,4)}
    ds_write_b128 v3, {vr(O+20,4)} offset:1024
    ds_write_b32 v6, v{O+24}
    s_waitcnt lgkmcnt(0)
    ds_write_b32 v{VT}, v{VT+2} offset:{M_PAIR}
    """)
    lds_wait(a, VT + 1, M_PAIR, 1, 5)
    a(f"""
    ds_read_b128 {vr(O+16,4)}, v4
    ds_read_b128 {vr(O+20,4)}, v4 offset:1024
    ds_read_b32 v{O+24}, v7
    s_waitcnt lgkmcnt(0)
    """)
    for r in range(9):
        a(f"v_add_f32 v{O+r}, v{O+r}, v{O+16+r}")
    a.label("L_att_check")
    a(f"""
    v_mov_b32 v3, v{O+8}
    s_nop 1
    v_permlane32_swap_b32 v{O+8}, v3
    s_cmp_eq_u32 s77, 3
    s_cbranch_scc1 L_att_fin
    v_max3_f32 v3, |v{O}|, |v{O+1}|, |v{O+2}|
    v_max3_f32 v3, v3, |v{O+3}|, |v{O+4}|
    v_max3_f32 v3, v3, |v{O+5}|, |v{O+6}|
    v_max_f32 v4, |v{O+7}|, |v{O+7}|
    v_max_f32 v3, v3, v4
    v_add_f32 v4, v{O}, v{O+1}
    v_add_f32 v5, v{O+2}, v{O+3}
    v_add_f32 v4, v4, v5
    v_add_f32 v5, v{O+4}, v{O+5}
    v_add_f32 v4, v4, v5
    v_add_f32 v5, v{O+6}, v{O+7}
    v_add_f32 v4, v4, v5
    s_mov_b32 s5, 0x53800000           ; 2^40
    s_mov_b32 s6, 0x7f000000           ; 2^127
    v_cmp_nle_f32 vcc, v{O+8}, s5
    v_cmp_nle_f32 s[48:49], v3, s6
    v_cmp_u_f32 s[50:51], v4, v4
    s_or_b64 vcc, vcc, s[48:49]
    s_or_b64 vcc, vcc, s[50:51]
    s_cbranch_scc0 L_att_fin
    """)
    prog_wait(8, both=True)
    a(f"""
    s_mov_b32 s77, 3
    v_mov_b32 v{VKA}, v2
    v_mov_b32 v3, 0xff800000
    s_mov_b32 s79, 0
    L_fb_max:
    ds_read_b128 {vr(KB,4)}, v{VKA}
    s_waitcnt lgkmcnt(0)
    v_mfma_f32_32x32x16_bf16 {vr(S,16)}, {vr(KB,4)}, {vr(Q,4)}, 0
    v_add_u32 v{VKA}, 2048, v{VKA}
    s_nop 7
    s_nop 7
    """)
    for r in range(0, 16, 2):
        a(f"v_max3_f32 v3, v3, v{S+r}, v{S+r+1}")
    a(f"""
    s_add_u32 s79, s79, 1
    s_cmp_lt_u32 s79, 64
    s_cbranch_scc1 L_fb_max
    v_mov_b32 v4, v3
    s_nop 1
    v_permlane32_swap_b32 v3, v4
    s_nop 1
    v_max_f32 v3, v3, v4
    """)
    for r in range(16):
        a(f"v_sub_f32 v{NM+r}, 0, v3")
        a(f"v_mov_b32 v{O+r}, 0")
    a(f"""
    v_mov_b32 v{VKA}, v2
    v_lshrrev_b32 v4, 5, v1
    v_and_b32 v5, 15, v1
    v_lshlrev_b32 v5, 4, v5
    v_lshl_add_u32 v{VVA}, v4, 8, v5
    s_mov_b32 s79, 0
    L_fb_loop:
    ds_read_b128 {vr(KB,4)}, v{VKA}
    s_mov_b64 exec, s[74:75]
    ds_read_b128 {vr(VB,4)}, v{VVA} offset:1024
    ds_read_b128 {vr(VB+4,4)}, v{VVA} offset:1536
    s_mov_b64 exec, -1
    s_waitcnt lgkmcnt(0)
    v_mfma_f32_32x32x16_bf16 {vr(S,16)}, {vr(KB,4)}, {vr(Q,4)}, {vr(NM,16)}
    v_add_u32 v{VKA}, 2048, v{VKA}
    v_add_u32 v{VVA}, 2048, v{VVA}
    s_nop 7
    s_nop 7
    """)
    for r in range(16):
        a(f"v_exp_f32 v{S+r}, v{S+r}")
    a("s_nop 0")
    for r in range(8):
        a(f"v_cvt_pk_bf16_f32 v{P+r}, v{S+2*r}, v{S+2*r+1}")
    a(f"""
    s_nop 1
    v_mfma_f32_32x32x16_bf16 {vr(O,16)}, {vr(VB,4)}, {vr(P,4)}, {vr(O,16)}
    v_mfma_f32_32x32x16_bf16 {vr(O,16)}, {vr(VB+4,4)}, {vr(P+4,4)}, {vr(O,16)}
    s_add_u32 s79, s79, 1
    s_cmp_lt_u32 s79, 64
    s_cbranch_scc1 L_fb_loop
    s_nop 7
    s_nop 7
    s_branch L_att_check
    L_att_fin:
    v_rcp_f32 v3, v{O+8}
    s_waitcnt vmcnt(0)
    v_mul_f32 v3, v3, v{VG}
    """)
    for r in range(8):
        a(f"v_mul_f32 v{O+r}, v{O+r}, v3")
    for r in range(4):
        a(f"v_cvt_pk_bf16_f32 v{P+r}, v{O+2*r}, v{O+2*r+1}")
    a("s_mov_b32 s5, 0xfffeffff")
    for r in range(4):
        a(f"v_min_u32 v{P+r}, s5, v{P+r}")
    a(f"""
    s_lshl_b32 s5, s42, 3
    s_add_u32 s5, s5, s40              ; T
    s_lshl_b32 s5, s5, 5
    s_add_u32 s5, s5, s41              ; T*32 + h
    s_lshl_b32 s6, s5, 10
    s_add_u32 s6, s6, {OF}
    s_lshl_b32 s7, s5, 7
    s_add_u32 s7, s7, {FL3}
    buffer_store_dwordx4 {vr(P,4)}, v2, {sr(S_WS)}, s6 offen sc1
    """)
    store_flag(a, "s7", VT)
    stamp_end(a)
    a("s_endpgm")

def aux_wave(a):
    R = 144; F = 128; VRL = 167
    VWF = 160; VPOLL = 164; VFL = 165; VPG = 166
    S_W1 = S_WQKV; S_H = S_X; S_G = S_OUT
    if os.environ.get("FAKEW1"):
        a("""
        s_add_u32 s16, s26, 0x4000000
        s_addc_u32 s17, s27, 0
        """)
    a(f"""
    s_setprio 3
    s_sub_u32 s43, s40, 8              ; u
    v_lshrrev_b32 v3, 3, v1
    v_lshlrev_b32 v3, 10, v3
    v_and_b32 v4, 7, v1
    v_lshrrev_b32 v5, 4, v1
    v_xor_b32 v4, v4, v5
    v_lshl_add_u32 v{VD0}, v4, 4, v3
    v_xor_b32 v4, 4, v4
    v_lshl_add_u32 v{VD1}, v4, 4, v3
    v_add_u32 v{VD1}, 8192, v{VD1}
    s_lshl_b32 s78, s86, 16
    s_lshl_b32 s5, s43, 14
    s_add_u32 s78, s78, s5
    s_lshl_b32 s79, s43, 11
    """)
    q = []
    def xdma(sig):
        a(f"""
        s_add_u32 s5, s49, {sig}
        s_and_b32 s5, s5, 7
        s_lshl_b32 s5, s5, 7
        s_add_u32 m0, s79, {L_X+sig*8192}
        s_add_u32 s50, s5, s78
        buffer_load_dwordx4 v{VD0}, {sr(S_X)}, s50 offen lds
        s_add_u32 m0, s79, {L_X+sig*8192+1024}
        s_nop 0
        buffer_load_dwordx4 v{VD1}, {sr(S_X)}, s50 offen lds
        """)
        q.extend([("x", sig)] * 2)
    for it in XSCHED[-1]:
        if isinstance(it, int): xdma(it)
    def touch():
        srd(a, S_W1, 16, 512 * 3584)
        a(f"""
        s_mul_i32 s5, s49, {64*3584}
        s_add_u32 s5, s5, s76
        v_mul_u32_u24 v3, 3584, v1
        buffer_load_dword v{VPOLL}, v3, {sr(S_W1)}, s5 offen
        buffer_load_dword v{VPOLL}, v3, {sr(S_W1)}, s5 offen offset:64
        """)
        q.extend([("t", 0)] * 2)
    a(f"""
    s_and_b32 s5, s4, 3
    s_lshl_b32 s5, s5, 1
    s_add_u32 s73, s5, s42
    s_lshr_b32 s5, s87, 1
    s_mul_i32 s76, s5, 7
    s_add_u32 s76, s76, s43
    s_and_b32 s5, s87, 1
    s_lshl_b32 s6, s5, 2
    s_add_u32 s76, s76, s6             ; slice
    s_mov_b32 s85, 0
    s_add_u32 s6, s6, s43
    s_cmp_lg_u32 s6, 7
    s_cbranch_scc1 L_role
    s_mov_b32 s85, 2
    s_cmp_lg_u32 s87, 1
    s_cbranch_scc1 L_role
    s_mov_b32 s85, 1
    L_role:
    s_mul_i32 s54, s86, {2*112*1024}
    s_lshl_b32 s5, s76, 12
    s_add_u32 s54, s54, s5
    s_add_u32 s54, s54, {HF}
    s_add_u32 s55, s54, {112*1024}
    s_lshl_b32 s76, s76, 7
    """)
    if "T" in XSCHED[-1]: touch()
    make_tag(a)
    pa_addr(a)
    a("s_setprio 0")
    def wait_for(tagv):
        last = max(k for k, e in enumerate(q) if e == tagv)
        a(f"s_waitcnt vmcnt({len(q) - 1 - last})")
    ENT = [136, 144, 112, 120, 128][:int(os.environ.get("NE", "5"))]
    NE = len(ENT)
    def ent(n): return ENT[n % NE] * 1024
    def w1dma_list(n):
        sig, ss = n >> 2, n & 3
        l0 = ""
        if ss == 0:
            l0 = f"""
            s_add_u32 s5, s49, {sig}
            s_and_b32 s5, s5, 7
            s_mul_i32 s50, s5, {64*3584}
            s_add_u32 s50, s50, s76
            """
        l0 += f"""
        s_add_u32 m0, s79, {ent(n)}
        s_add_u32 s51, s50, {ss*16*3584}
        buffer_load_dwordx4 v{VD0}, {sr(S_W1)}, s51 offen lds
        """
        l1 = f"""
        s_add_u32 m0, s79, {ent(n)+1024}
        s_nop 0
        buffer_load_dwordx4 v{VD1}, {sr(S_W1)}, s51 offen lds
        """
        return [l0, l1]
    def w1dma(ns):
        LS = a.new("L_w1s")
        a(f"""
        s_cmp_lg_u32 s85, 0
        s_cbranch_scc1 {LS}
        """)
        for n in ns:
            for l in w1dma_list(n): a(l)
            q.extend([("w", n)] * 2)
        a.label(LS)
    for sig in range(8):
        if sig < 4: wait_for(("x", sig))
        elif sig == 4:
            wait_for(("x", 7))
            q.clear()
        if sig == 0 and not os.environ.get("TAILST"): stamp(a, 0)
        if sig <= 6: stamp(a, sig, pa=True)
        a("s_barrier")
        for it in XSCHED.get(sig, []):
            if isinstance(it, int): xdma(it)
            elif it == "T": touch()
        if sig == 4:
            srd(a, S_W1, 16, 512 * 3584)
            a(f"""
            v_lshrrev_b32 v3, 3, v1            ; row = l>>3
            v_mul_u32_u24 v4, 3584, v3
            v_bfe_u32 v5, v1, 4, 1
            v_lshlrev_b32 v5, 2, v5
            v_and_b32 v6, 7, v1
            v_xor_b32 v6, v6, v5
            v_lshl_add_u32 v{VD0}, v6, 4, v4
            v_add_u32 v{VD1}, {8*3584}, v{VD0}
            """)
        if sig >= 5: stamp(a, 2 * (sig - 5), pa=2)
        if sig == 5:
            if not F1D: w1dma([0, 1])
            srd(a, S_G, 20, 1024)
            a(f"""
            s_cmp_lg_u32 s85, 1
            s_cbranch_scc1 L_nogd
            s_lshl_b32 s5, s49, 3
            v_add_u32 v3, s5, v1
            v_and_b32 v3, 63, v3
            v_lshlrev_b32 v3, 4, v3
            s_add_u32 m0, s79, {ent(0)}
            s_nop 0
            buffer_load_dwordx4 v3, {sr(S_G)}, 0 offen lds
            L_nogd:
            v_mov_b32 v3, 0
            v_lshlrev_b32 v4, 2, v1
            v_add_u32 v4, {L_MISC}, v4
            ds_write_b32 v4, v3
            """)
        if sig == 6 and not F1D: w1dma(list(range(2, NE)))
        if sig >= 5: stamp(a, 2 * (sig - 5) + 1, pa=2)
        pa_compute(a, sig, True)
    a(f"""
    s_add_u32 s5, s79, {L_VX}
    v_add_u32 v3, s5, v2
    v_and_b32 v{VWF}, 0x7ff, v{VWA}
    s_and_b32 s5, s43, 2
    s_lshl_b32 s5, s5, 5
    v_xor_b32 v{VWF}, s5, v{VWF}
    s_add_u32 s5, s79, {112*1024}
    v_add_u32 v{VWF}, s5, v{VWF}
    v_xor_b32 v{VWF+1}, 64, v{VWF}
    s_nop 1
    s_movk_i32 s5, 0xefff
    v_and_b32 v{VXA}, s5, v{VXA}
    v_and_b32 v{VXA+1}, s5, v{VXA+1}
    v_and_b32 v{VXA+2}, s5, v{VXA+2}
    v_and_b32 v{VXA+3}, s5, v{VXA+3}
    v_and_b32 v4, 31, v1
    v_lshlrev_b32 v{VFL}, 7, v4
    s_lshl_b32 s5, s43, 2
    v_add_u32 v{VPG}, s5, v{VMI}
    s_lshl_b32 s77, s3, 12
    s_add_u32 s77, s77, {FL1}          ; FL1[j]
    s_nop 1
    """)
    for r in range(8):
        a(f"v_cvt_pk_bf16_f32 v{XB+r}, v{ACCA+2*r}, v{ACCA+2*r+1}")
    a(f"""
    ds_write_b128 v3, {vr(XB,4)}
    ds_write_b128 v3, {vr(XB+4,4)} offset:1024
    s_waitcnt lgkmcnt(0)
    s_barrier
    """)
    stamp(a, 6, pa=2)
    VM = VMI
    ACC = 16; BUF = 80
    def fprog():
        a(f"""
        v_mov_b32 v3, 1
        ds_write_b32 v{VPG}, v3 offset:{M_FP}
        """)
    def pollld():
        a(f"buffer_load_dword v{VPOLL}, v{VFL}, {sr(S_WS)}, s77 offen sc1")
    a(f"""
    s_setprio {int(os.environ.get("F1PRIO", "2"))}
    s_cmp_eq_u32 s85, 1
    s_cbranch_scc1 L_f1g
    s_cmp_eq_u32 s85, 2
    s_cbranch_scc1 L_f1n
    """)
    if F1D:
        lds_wait(a, VM, M_C1 if F1D == 1 else M_S0, 8, 3, sleep=2)
        for n in range(NE):
            for l in w1dma_list(n): a(l)
            q.extend([("w", n)] * 2)
    def reads(n):
        b = BUF + 16 * (n % 2)
        e = ent(n) - 112 * 1024
        hi = 0
        xo = (n >> 2) * 8192
        return [f"ds_read_b64_tr_b16 {vr(b,2)}, v{VWF+hi} offset:{e}",
                f"ds_read_b64_tr_b16 {vr(b+2,2)}, v{VWF+hi} offset:{e+512}",
                f"ds_read_b128 {vr(b+8,4)}, v{VXA+(n&3)} offset:{xo}",
                f"ds_read_b128 {vr(b+12,4)}, v{VXA+(n&3)} offset:{xo+4096}",
                f"ds_read_b64_tr_b16 {vr(b+4,2)}, v{VWF+hi+1} offset:{e}",
                f"ds_read_b64_tr_b16 {vr(b+6,2)}, v{VWF+hi+1} offset:{e+512}"]
    wait_for(("w", 0))
    stamp(a, 1)
    for l in reads(0): a(l)
    for n in range(32):
        b = BUF + 16 * (n % 2)
        def mf(at, bt):
            d = ACC + 16 * (2 * at + bt)
            c = "0" if n == 0 else vr(d, 16)
            a(f"v_mfma_f32_32x32x16_bf16 {vr(d,16)}, {vr(b+4*at,4)}, {vr(b+8+4*bt,4)}, {c}")
        a("s_waitcnt lgkmcnt(0)")
        mf(0, 0)
        rd = reads(n + 1) if n < 31 else []
        if rd: wait_for(("w", n + 1))
        for l in rd[:3]: a(l)
        mf(0, 1)
        for l in rd[3:]: a(l)
        dl = w1dma_list(n + NE) if n + NE < 32 else []
        mf(1, 0)
        if dl:
            a(dl[0]); q.append(("w", n + NE))
        mf(1, 1)
        if dl:
            a(dl[1]); q.append(("w", n + NE))
        if n == 27:
            pollld(); q.append(("p", 0))
    a("s_branch L_f1done")
    a.label("L_f1g")
    a(f"""
    v_lshrrev_b32 v4, 5, v1
    v_lshlrev_b32 v4, 4, v4
    s_add_u32 s5, s79, {ent(0)}
    v_add_u32 v4, s5, v4
    s_waitcnt vmcnt(0)
    """)
    for sg in range(8):
        for ss in range(4):
            n = 4 * sg + ss
            b = BUF + 12 * ss
            a(f"""
            ds_read_b128 {vr(b,4)}, v4 offset:{n*32}
            ds_read_b128 {vr(b+4,4)}, v{VXA+ss} offset:{sg*8192}
            ds_read_b128 {vr(b+8,4)}, v{VXA+ss} offset:{sg*8192+4096}
            """)
        a("s_waitcnt lgkmcnt(0)")
        for ss in range(4):
            b = BUF + 12 * ss
            for bt in range(2):
                d = ACC + 16 * bt
                c = "0" if (sg == 0 and ss == 0) else vr(d, 16)
                a(f"v_mfma_f32_32x32x16_bf16 {vr(d,16)}, {vr(b,4)}, {vr(b+4+4*bt,4)}, {c}")
    a(f"""
    v_cmp_gt_u32 vcc, 32, v1
    s_nop 7
    s_nop 7
    v_cndmask_b32 v8, v{ACC+16}, v{ACC}, vcc
    """)
    sigmoid(a, 8)
    a("s_branch L_f1w")
    a.label("L_f1n")
    a.label("L_f1w")
    lds_wait(a, VM, M_QOK, 3, 3, sleep=4)
    pollld()
    a.label("L_f1done")
    a("s_setprio 3")
    lds_add(a, VM, M_F1C, 3)
    stamp(a, 2)
    a(f"""
    s_mov_b32 s{S_H}, s{S_WS}
    s_mov_b32 s{S_H+1}, s{S_WS+1}
    s_cmp_eq_u32 s85, 0
    s_cselect_b32 s{S_H+2}, {WS_BYTES:#x}, 0
    s_mov_b32 s{S_G}, s{S_WS}
    s_mov_b32 s{S_G+1}, s{S_WS+1}
    s_cmp_eq_u32 s85, 1
    s_cselect_b32 s{S_G+2}, {WS_BYTES:#x}, 0
    s_nop 5
    s_lshl_b32 s5, s41, 17
    s_lshl_b32 s52, s43, 12
    s_add_u32 s53, s5, s52
    s_add_u32 s53, s53, {KV}
    s_lshl_b32 s58, s86, 8
    s_add_u32 s58, s58, {GBUF}
    v_lshlrev_b32 v9, 2, v1
    s_nop 3
    """)
    stores = []
    for at in range(2):
        for bt in range(2):
            d = ACC + 16 * (at * 2 + bt)
            o = BUF + 8 * (at * 2 + bt)
            for r in range(8):
                a(f"v_cvt_pk_bf16_f32 v{o+r}, v{d+2*r}, v{d+2*r+1}")
            for r in range(8):
                a(f"v_pk_max_i16 v{o+r}, v{o+r}, 0")
            for half in range(2):
                stores.append(f"buffer_store_dwordx4 {vr(o+4*half,4)}, v2, {sr(S_H)}, s{54+bt} offen offset:{(2*at+half)*1024} sc1")
    stores.append(f"buffer_store_dword v8, v9, {sr(S_G)}, s58 offen sc1")
    a("s_waitcnt vmcnt(0)")
    a(f"""
    v_cmp_ne_u32 vcc, s{S_TAG}, v{VPOLL}
    s_cmp_eq_u64 vcc, 0
    s_cbranch_scc1 L_allok
    """)
    poll_flags(a, VFL, "s77", [(1, 0)], VPOLL, sleep=3)
    a.label("L_allok")
    lds_wait(a, VM, M_C1, 8, 3, sleep=1)
    lds_wait(a, VM, M_F1C, 4, 3, sleep=1)
    AW = int(os.environ.get("AW", "2"))
    if AW == 1: lds_wait(a, VM, M_S0, 8, 3, sleep=1)
    if AW == 2: lds_wait(a, VM, M_S1, 4, 3, sleep=1)
    def kvdma(sg):
        a(f"""
        s_add_u32 s6, s42, {sg}
        s_and_b32 s6, s6, 7
        s_lshl_b32 s6, s6, 14
        s_add_u32 m0, s52, {sg*16384}
        s_add_u32 s6, s6, s53
        """)
        for k in range(4):
            a(f"buffer_load_dwordx4 v2, {sr(S_WS)}, s6 offen offset:{k*1024} lds")
    def prog(n):
        a(f"""
        v_mov_b32 v10, {n}
        ds_write_b32 v{VPG}, v10 offset:{M_PROG}
        """)
    for sg in range(3, 8):
        kvdma(sg)
    AX = int(os.environ.get("AX", "0"))
    if AX == 1: lds_wait(a, VM, M_S1, 4, 3, sleep=1)
    if AX == 2:
        a("s_waitcnt vmcnt(0)")
        prog(8)
        lds_wait(a, VM, M_S1, 4, 3, sleep=1)
    S_R2 = S_W1
    a(f"""
    s_lshl_b32 s51, s4, 2
    s_add_u32 s51, s51, s43
    s_lshl_b32 s51, s51, 3
    s_add_u32 s51, s51, s3             ; gw = (4i + u)*8 + j
    v_and_b32 v3, 31, v1               ; i
    v_lshrrev_b32 v4, 5, v1            ; hh
    v_lshlrev_b32 v4, 12, v4
    v_lshl_add_u32 v{VRL}, v3, 2, v4
    s_and_b32 s6, s51, 7               ; cb
    s_cmp_ge_u32 s51, 896
    s_cbranch_scc1 L_wo
    """)
    srd(a, S_SRC, 18, 1792 * 1024)
    srd(a, S_R2, 18, 0)
    a(f"""
    s_lshr_b32 s7, s51, 3              ; kstep
    s_mov_b32 s56, {112*1024}
    s_mov_b32 s57, {W2F}
    s_branch L_rl2
    L_wo:
    """)
    srd(a, S_SRC, 12, 512 * 1024)
    srd(a, S_R2, 12, 512 * 1024)
    a(f"""
    s_sub_u32 s5, s51, 896
    s_lshr_b32 s7, s5, 3
    s_lshl_b32 s7, s7, 1               ; kstep
    s_mov_b32 s56, {32*1024}
    s_mov_b32 s57, {WOF}
    L_rl2:
    s_lshl_b32 s59, s7, 14
    s_lshl_b32 s5, s6, 7
    s_add_u32 s59, s59, s5             ; src
    s_lshl_b32 s5, s6, 1
    s_mul_i32 s5, s5, s56
    s_add_u32 s57, s57, s5
    s_lshl_b32 s5, s7, 10
    s_add_u32 s57, s57, s5
    s_add_u32 s56, s56, s57
    """)
    for half in range(2):
        for jq in range(2):
            a(f"s_add_u32 s5, s59, {half*16384 + jq*8192}")
            for jj in range(4):
                a(f"buffer_load_dword v{R+8*half+4*jq+jj}, v{VRL}, {sr(S_R2 if half else S_SRC)}, s5 offen offset:{jj*1024}")
    for l in stores: a(l)
    a(f"""
    s_lshl_b32 s5, s42, 3
    s_lshl_b32 s6, s43, 1
    s_add_u32 s5, s5, s6
    s_lshl_b32 s5, s5, 5
    s_add_u32 s5, s5, s41
    s_lshl_b32 s5, s5, 10
    s_add_u32 s5, s5, {OF}
    s_add_u32 s6, s5, 32768
    v_mov_b32 v4, -1
    v_mov_b32 v5, -1
    v_mov_b32 v6, -1
    v_mov_b32 v7, -1
    buffer_store_dwordx4 v[4:7], v2, {sr(S_WS)}, s5 offen sc1
    buffer_store_dwordx4 v[4:7], v2, {sr(S_WS)}, s6 offen sc1
    s_mov_b32 s{S_R2}, s{S_WS}
    s_mov_b32 s{S_R2+1}, s{S_WS+1}
    s_cmp_ge_u32 s51, 896
    s_cselect_b32 s{S_R2+2}, {WS_BYTES:#x}, 0
    s_mov_b32 s80, 0x05040100
    s_mov_b32 s81, 0x07060302
    s_waitcnt vmcnt({16+len(stores)+2})
    """)
    prog(8)
    if not os.environ.get("TAILST"): stamp(a, 6)
    a(f"s_waitcnt vmcnt({len(stores)+2})")
    for half in range(2):
        for jj in range(4):
            A = R + 8 * half + 2 * jj
            a(f"v_perm_b32 v{F+8*half+jj}, v{A+1}, v{A}, s80")
            a(f"v_perm_b32 v{F+8*half+4+jj}, v{A+1}, v{A}, s81")
        sd = S_R2 if half else S_WS
        a(f"buffer_store_dwordx4 {vr(F+8*half,4)}, v2, {sr(sd)}, s57 offen offset:{half*1024} sc1")
        a(f"buffer_store_dwordx4 {vr(F+8*half+4,4)}, v2, {sr(sd)}, s56 offen offset:{half*1024} sc1")
    a(f"""
    s_waitcnt vmcnt(0)
    s_mov_b64 exec, 1
    v_mov_b32 v8, 1
    ds_add_rtn_u32 v8, v{VM}, v8 offset:{M_E2}
    s_waitcnt lgkmcnt(0)
    s_mov_b64 exec, -1
    v_readfirstlane_b32 s5, v8
    s_cmp_lg_u32 s5, 3
    s_cbranch_scc1 L_e2skip
    s_lshl_b32 s5, s86, 3
    s_add_u32 s5, s5, s87
    s_lshl_b32 s5, s5, 7
    s_add_u32 s5, s5, {FL2}
    """)
    store_flag(a, "s5", BUF)
    a(f"""
    L_e2skip:
    s_cmp_lg_u32 s4, 0
    s_cbranch_scc1 L_nosum
    s_cmp_lg_u32 s43, 1
    s_cbranch_scc1 L_nosum
    s_lshl_b32 s58, s3, 12
    s_add_u32 s58, s58, {FL2}
    """)
    poll_flags(a, VFL, "s58", [(1, 0)], BUF, sleep=4)
    a(f"""
    s_lshl_b32 s5, s3, 7
    s_add_u32 s5, s5, {FLS}
    """)
    store_flag(a, "s5", BUF)
    a(f"""
    L_nosum:
    s_cmp_lg_u32 s43, 0
    s_cbranch_scc1 L_e2w
    s_lshr_b32 s5, s42, 1
    s_lshl_b32 s5, s5, 6
    s_and_b32 s6, s42, 1
    s_lshl_b32 s6, s6, 2
    s_add_u32 s5, s5, s6               ; + 4(phi&1)
    v_and_b32 v3, 7, v1
    v_lshrrev_b32 v4, 3, v1
    v_lshl_add_u32 v7, v3, 3, v4
    v_add_u32 v7, s5, v7
    s_lshl_b32 s5, s41, 3
    v_add_u32 v4, s5, v3
    v_cmp_lt_u32 vcc, 31, v1
    v_cndmask_b32 v7, v7, v4, vcc
    s_lshl_b32 s5, s42, 5
    s_add_u32 s5, s5, 1
    v_lshlrev_b32 v4, 3, v3
    v_add_u32 v4, s5, v4
    v_cmp_lt_u32 vcc, 39, v1
    v_cndmask_b32 v7, v7, v4, vcc
    v_lshlrev_b32 v7, 7, v7
    s_mov_b32 s58, {FL2}
    """)
    lds_wait(a, VM, M_E2, 4, 6, sleep=4)
    a(f"""
    s_sleep {int(os.environ.get('ESL', '8'))}
    L_e2p:
    s_mov_b32 exec_hi, 0xfff
    buffer_load_dword v{BUF}, v7, {sr(S_WS)}, s58 offen sc1
    s_waitcnt vmcnt(0)
    v_cmp_ne_u32 vcc, s{S_TAG}, v{BUF}
    s_mov_b32 exec_hi, -1
    s_cmp_eq_u64 vcc, 0
    s_cbranch_scc1 L_e2ok
    """)
    spin_guard(a, "L_e2p", int(os.environ.get('ESL2', '10')))
    a(f"""
    L_e2ok:
    v_mov_b32 v6, 1
    ds_write_b32 v{VM}, v6 offset:{M_E2R}
    L_e2w:
    """)
    lds_wait(a, VM, M_E2R, 1, 6, sleep=4)
    if not os.environ.get("TAILST"): stamp(a, 3)
    a(f"""
    v_and_b32 v3, 31, v1
    v_lshlrev_b32 v3, 2, v3
    s_lshl_b32 s58, s41, 8
    s_add_u32 s58, s58, {GBUF}
    buffer_load_dword v10, v3, {sr(S_WS)}, s58 offen
    buffer_load_dword v11, v3, {sr(S_WS)}, s58 offen offset:128
    v_mov_b32 v4, v2
    v_add_u32 v5, {112*1024}, v2
    v_mov_b32 v6, v2
    v_add_u32 v7, 32768, v2
    s_mul_i32 s5, s43, {28*1024}
    s_mul_i32 s52, s42, {2*112*1024}
    s_add_u32 s52, s52, s5
    s_add_u32 s52, s52, {W2F}
    s_mul_i32 s53, s41, {2*112*1024}
    s_add_u32 s53, s53, s5
    s_add_u32 s53, s53, {HF}
    s_lshl_b32 s5, s43, 13
    s_lshl_b32 s54, s42, 16
    s_add_u32 s54, s54, s5
    s_add_u32 s54, s54, {WOF}
    s_lshl_b32 s55, s41, 16
    s_add_u32 s55, s55, s5
    s_add_u32 s55, s55, {OF}
    """)
    a("""
    s_sub_u32 s78, s73, 7
    s_cmp_ge_u32 s73, 7
    s_cselect_b32 s78, s78, s73
    """)
    a(f"s_setprio {FPRIO}")
    stream_gemm(a, 28, 2, 2, ACC, BUF, 5, 4, 4, 52, 53, 78)
    a("s_setprio 3")
    stamp(a, 4)
    WOB = 80; OB = 8
    for k in range(8):
        for at in range(2):
            if k == 4 and at == 0:
                a("s_add_u32 s54, s54, 4096")
            a(f"buffer_load_dwordx4 {vr(WOB+8*k+4*at,4)}, v{6+at}, {sr(S_WS)}, s54 offen offset:{(k%4)*1024}")
    a("""
    v_sub_f32 v10, 1.0, v10
    v_sub_f32 v11, 1.0, v11
    """)
    for at in range(2):
        for bt in range(2):
            d = ACC + 16 * (at * 2 + bt)
            for r in range(16):
                a(f"v_mul_f32 v{d+r}, v{d+r}, v{10+bt}")
    a(f"""
    s_cmp_lg_u32 s43, 0
    s_cbranch_scc1 L_e0skip
    v_and_b32 v3, 7, v1
    v_lshlrev_b32 v3, 7, v3
    s_mov_b32 s58, {FLS}
    """)
    poll_flags(a, 3, "s58", [(1, 0)], 8, sleep=12)
    a(f"""
    s_cmp_lg_u32 s2, 0
    s_cbranch_scc1 L_nobump
    s_mov_b64 exec, 1
    s_add_u32 s5, s{S_EP}, 1
    v_mov_b32 v8, s5
    buffer_store_dword v8, v2, {sr(S_WS)}, 0 offen offset:{EPOCH} sc1
    s_mov_b64 exec, -1
    L_nobump:
    v_mov_b32 v9, 1
    ds_write_b32 v{VM}, v9 offset:{M_E0R}
    L_e0skip:
    """)
    lds_wait(a, VM, M_E0R, 1, 9, sleep=4)
    a(f"""
    v_and_b32 v3, 7, v1
    v_bfe_u32 v4, v1, 3, 1
    v_lshlrev_b32 v3, 7, v3
    v_lshl_add_u32 v3, v4, 12, v3
    s_lshl_b32 s58, s41, 13
    s_lshl_b32 s5, s43, 10
    s_add_u32 s58, s58, s5
    s_add_u32 s58, s58, {FL3}
    """)
    poll_flags(a, 3, "s58", [(1, 0)], 8)
    stamp(a, 5)
    oslots = [144, 148, 152, 156, 160, 164, 8, 12]
    for half in range(2):
        LR = a.new("L_oret"); LD = a.new("L_ook")
        a.label(LR)
        for k in range(4):
            for bt in range(2):
                a(f"buffer_load_dwordx4 {vr(oslots[2*k+bt],4)}, v{6+bt}, {sr(S_WS)}, s55 offen offset:{k*1024} sc1")
        for k in range(8):
            a(f"s_waitcnt vmcnt({7-k})")
            o = oslots[k]
            if k == 0:
                a(f"v_max3_u32 v4, v{o}, v{o+1}, v{o+2}")
                a(f"v_max_u32 v4, v4, v{o+3}")
            else:
                a(f"v_max3_u32 v4, v4, v{o}, v{o+1}")
                a(f"v_max3_u32 v4, v4, v{o+2}, v{o+3}")
        a(f"""
        v_cmp_eq_u32 vcc, -1, v4
        s_cmp_eq_u64 vcc, 0
        s_cbranch_scc1 {LD}
        """)
        spin_guard(a, LR, 4)
        a.label(LD)
        if os.environ.get("TAILST"): stamp(a, half)
        a("s_add_u32 s55, s55, 4096")
        for k in range(4):
            kk = 4 * half + k
            for at in range(2):
                for bt in range(2):
                    d = ACC + 16 * (at * 2 + bt)
                    a(f"v_mfma_f32_32x32x16_bf16 {vr(d,16)}, {vr(WOB+8*kk+4*at,4)}, {vr(oslots[2*k+bt],4)}, {vr(d,16)}")
    srd(a, S_OUT, 22, 2048 * 1024)
    a(f"""
    s_lshl_b32 s5, s43, 14
    v_add_u32 v3, s5, v2
    s_and_b32 s5, s43, 1
    s_lshl_b32 s5, s5, 12
    s_lshr_b32 s6, s43, 1
    s_lshl_b32 s6, s6, 11
    s_add_u32 s5, s5, s6
    v_add_u32 v8, s5, v2
    s_barrier
    s_nop 7
    """)
    if os.environ.get("TAILST"): stamp(a, 2)
    for t in range(4):
        for q in range(4):
            a(f"ds_write_b128 v3, {vr(ACC+16*t+4*q,4)} offset:{t*4096+q*1024}")
    a("""
    s_waitcnt lgkmcnt(0)
    s_barrier
    """)
    if os.environ.get("TAILST"): stamp(a, 3)
    for u in range(4):
        for at in range(2):
            for q in range(2):
                a(f"ds_read_b128 {vr(ACC+16*u+8*at+4*q,4)}, v8 offset:{u*16384+at*8192+q*1024}")
        if u == 2:
            a("s_waitcnt lgkmcnt(4)")
    a("s_waitcnt lgkmcnt(0)")
    for r in range(16):
        a(f"v_add_f32 v{ACC+r}, v{ACC+r}, v{ACC+16+r}")
        a(f"v_add_f32 v{ACC+32+r}, v{ACC+32+r}, v{ACC+48+r}")
    for r in range(16):
        a(f"v_add_f32 v{ACC+r}, v{ACC+r}, v{ACC+32+r}")
    BUF = 80
    for r in range(8):
        a(f"v_cvt_pk_bf16_f32 v{BUF+r}, v{ACC+r}, v{ACC+8+r}")
    a(f"""
    s_and_b32 s5, s43, 1
    s_lshl_b32 s5, s5, 5
    s_lshl_b32 s6, s41, 6
    s_add_u32 s5, s5, s6
    s_lshl_b32 s5, s5, 10
    s_lshr_b32 s6, s43, 1
    s_lshl_b32 s6, s6, 6
    s_add_u32 s5, s5, s6
    s_lshl_b32 s6, s42, 7
    s_add_u32 s5, s5, s6
    v_and_b32 v3, 31, v1
    v_lshlrev_b32 v3, 10, v3
    v_lshrrev_b32 v4, 5, v1
    v_lshl_add_u32 v3, v4, 4, v3
    buffer_store_dwordx4 {vr(BUF,4)}, v3, {sr(S_OUT)}, s5 offen
    buffer_store_dwordx4 {vr(BUF+4,4)}, v3, {sr(S_OUT)}, s5 offen offset:32
    """)
    if os.environ.get("TAILST"): stamp(a, 6)
    stamp_end(a)

def kd(name, nv, ns=102):
    return f""".p2align 6
.amdhsa_kernel {name}
  .amdhsa_next_free_vgpr {nv}
  .amdhsa_next_free_sgpr {ns}
  .amdhsa_accum_offset {(nv+3)//4*4}
  .amdhsa_group_segment_fixed_size 0
  .amdhsa_kernarg_size 80
  .amdhsa_user_sgpr_count 2
  .amdhsa_user_sgpr_kernarg_segment_ptr 1
  .amdhsa_system_sgpr_workgroup_id_x 1
.end_amdhsa_kernel
"""

def main(out):
    hdr = open("cdna_kernels/" + NAME + ".s.ref").read().split("\n")
    hdr = [l for l in hdr if l.startswith(";") and "@launch" not in l]
    a = Asm()
    gen(a)
    txt = "\n".join(hdr) + "\n"
    txt += f"; @launch grid=(256,1,1) block=(768,1,1) lds={LDS_BYTES}\n"
    txt += '.amdgcn_target "amdgcn-amd-amdhsa--gfx950"\n.text\n'
    txt += a.text()
    txt += '.section .rodata,"a"\n'
    txt += kd(NAME + "_kernel", 168)
    open(out, "w").write(txt)

if __name__ == "__main__":
    main(sys.argv[1] if len(sys.argv) > 1 else "cdna_kernels/" + NAME + ".s")
```

```python
import math, os, struct, sys

NAME = "gated_mix__mha_block__dense_activation_relu__prompt"
STAMP = os.environ.get("STAMP")

def f32bits(x):
    return struct.unpack("<I", struct.pack("<f", x))[0]

class Asm:
    def __init__(self):
        self.l = []
        self.uid = 0
    def __call__(self, s):
        for line in s.strip("\n").split("\n"):
            line = line.strip()
            if line:
                self.l.append(("" if line.endswith(":") else "    ") + line)
    def label(self, s):
        self.l.append(s + ":")
    def raw(self, s):
        self.l.append(s)
    def new(self, p="L"):
        self.uid += 1
        return f"{p}_{self.uid}"
    def text(self):
        return "\n".join(self.l) + "\n"

EPOCH = 0x0
QF = 0x1A00000
XID = 0xD38000
KV = 0x200000
XF = 0x600000
W1F = 0x800000
W2F = 0xA00000
WOF = 0xC00000
FLS = 0xD00000
FL2 = 0xD10000
FL1 = 0xD40000
FL3 = 0xD80000
GBUF = 0xD20000
FLG = 0xD30000
HF = 0x1000000
OF = 0x1800000
STB = 0x1F00000
WS_BYTES = 0x2000000

L_X = 49152
L_W = 65536
L_OX = 131072
L_MISC = 157696
L_MISC0 = 65536
L_LX = 158720
L_GF = 160768
LDS_BYTES = 163840
M_PROG, M_QOK, M_PAIR, M_GF, M_E0R, M_E2, M_E2R, M_DMA = 0, 32, 64, 128, 136, 140, 144, 168
M_FP, M_C1, M_F1C, M_S0, M_S1, M_DEAD, M_X, M_RDY, M_W, M_DEAD2, M_Y, M_PZ, M_XP = 16, 176, 180, 184, 188, 192, 196, 200, 208, 212, 224, 216, 240
WSLOT = [136*1024, 112*1024, 24*1024, 0]
L_VX = 24 * 1024

QSCALE = 0.25 * math.log2(math.e)
LOG2E = math.log2(math.e)
SPIN_MAX = 200000
ILV = int(os.environ.get('ILV', '0'))
FPRIO = int(os.environ.get('FPRIO', '0'))

S_X, S_WQKV, S_WS, S_SRC, S_OUT = 28, 32, 36, 44, 60
S_TAG = 82
S_EP = 84
S_SPIN = 83

def vr(a, n):
    return f"v[{a}:{a+n-1}]"
def sr(a):
    return f"s[{a}:{a+3}]"

def srd(a, d, base, nbytes):
    a(f"""
    s_mov_b32 s{d}, s{base}
    s_and_b32 s{d+1}, s{base+1}, 0xffff
    s_mov_b32 s{d+2}, {nbytes:#x}
    s_mov_b32 s{d+3}, 0x20000
    """)

NST = 7
def stamp_begin(a):
    if not STAMP: return
    a("""
    s_memtime s[64:65]
    s_memrealtime s[66:67]
    s_waitcnt lgkmcnt(0)
    """)
    for i in range(NST):
        a(f"s_mov_b32 s{88+2*i}, {'s66' if os.environ.get('RT') else 's64'}")
PAST = os.environ.get("PAST")
def stamp(a, i, pa=False):
    if not STAMP: return
    if int(PAST or 0) != int(pa): return
    a(f"""
    s_waitcnt lgkmcnt(0)
    {'s_memrealtime' if os.environ.get('RT') else 's_memtime'} s[{88+2*i}:{89+2*i}]
    s_waitcnt lgkmcnt(0)
    """)
def stamp_end(a):
    if not STAMP: return
    a(f"""
    s_waitcnt vmcnt(0) lgkmcnt(0)
    s_memtime s[68:69]
    s_memrealtime s[70:71]
    s_waitcnt lgkmcnt(0)
    s_mov_b64 exec, 1
    v_mov_b32 v4, s64
    v_mov_b32 v5, s66
    v_mov_b32 v6, s68
    v_mov_b32 v7, s70
    """)
    for i in range(8):
        a(f"v_mov_b32 v{8+i}, s{88+2*min(i,NST-1)}" if i < NST else "v_mov_b32 v15, s73")
    a(f"""
    s_lshl_b32 s72, s2, 4
    s_add_u32 s72, s72, s40
    s_lshl_b32 s72, s72, 6
    s_add_u32 s72, s72, {STB}
    v_mov_b32 v3, 0
    buffer_store_dwordx4 v[4:7], v3, {sr(S_WS)}, s72 offen
    buffer_store_dwordx4 v[8:11], v3, {sr(S_WS)}, s72 offen offset:16
    buffer_store_dwordx4 v[12:15], v3, {sr(S_WS)}, s72 offen offset:32
    """)

def spin_guard(a, again, sleep=4):
    a(f"""
    s_sleep {sleep}
    s_add_u32 s{S_SPIN}, s{S_SPIN}, 1
    s_cmp_lt_u32 s{S_SPIN}, {SPIN_MAX}
    s_cbranch_scc1 {again}
    s_endpgm
    """)

def poll_flags(a, voff, soff, loads, T, sleep=8):
    L = a.new("L_poll"); D = a.new("L_pdone")
    a.label(L)
    r = T
    regs = []
    for nd, imm in loads:
        op = {1: "buffer_load_dword", 2: "buffer_load_dwordx2", 4: "buffer_load_dwordx4"}[nd]
        dst = f"v{r}" if nd == 1 else vr(r, nd)
        a(f"{op} {dst}, v{voff}, {sr(S_WS)}, {soff} offen offset:{imm} sc1")
        regs += list(range(r, r + nd)); r += nd
    a("s_waitcnt vmcnt(0)")
    a(f"v_xor_b32 v{regs[0]}, s{S_TAG}, v{regs[0]}")
    for q in regs[1:]:
        a(f"v_xor_b32 v{q}, s{S_TAG}, v{q}")
        a(f"v_or_b32 v{regs[0]}, v{regs[0]}, v{q}")
    a(f"""
    v_cmp_ne_u32 vcc, 0, v{regs[0]}
    s_cmp_eq_u64 vcc, 0
    s_cbranch_scc1 {D}
    """)
    spin_guard(a, L, sleep)
    a.label(D)

def lds_wait(a, vaddr, off, val, T, sleep=1):
    L = a.new("L_lw"); D = a.new("L_lwd")
    a.label(L)
    a(f"""
    ds_read_b32 v{T}, v{vaddr} offset:{off}
    s_waitcnt lgkmcnt(0)
    v_readfirstlane_b32 s5, v{T}
    s_cmp_eq_u32 s5, {val}
    s_cbranch_scc1 {D}
    """)
    spin_guard(a, L, sleep)
    a.label(D)

def lds_add(a, vaddr, off, T):
    a(f"""
    s_mov_b64 exec, 1
    v_mov_b32 v{T}, 1
    ds_add_u32 v{vaddr}, v{T} offset:{off}
    s_mov_b64 exec, -1
    """)

def dual(a, sfast, lines):
    for l in lines: a(l + " sc1")

def store_flag(a, soff, T, sfast=None, second=None):
    a(f"""
    s_mov_b64 exec, 0xff
    v_mov_b32 v{T}, s{S_TAG}
    v_mov_b32 v{T+1}, {second if second else 's%d' % S_TAG}
    v_mov_b32 v{T+2}, s{S_TAG}
    v_mov_b32 v{T+3}, s{S_TAG}
    """)
    line = f"buffer_store_dwordx4 {vr(T,4)}, v2, {sr(S_WS)}, {soff} offen"
    if sfast is None:
        a(line + " sc1")
    else:
        dual(a, sfast, [line])
    a("s_mov_b64 exec, -1")
    a("s_nop 1")

def stream_gemm(a, nsteps, na, nb, ACC, BUF, depth, VA, VB, SA, SB, SG, first=True, gate=None, hook=None):
    per = na + nb
    ng = nsteps // 4
    extra = []
    def group():
        a(f"""
        s_lshl_b32 s5, s{SG}, 12
        s_add_u32 s80, s{SA}, s5
        s_add_u32 s81, s{SB}, s5
        s_lshl_b32 s79, s{SG}, 7
        s_add_u32 s{SG}, s{SG}, 1
        s_cmp_eq_u32 s{SG}, {ng}
        s_cselect_b32 s{SG}, 0, s{SG}
        """)
    def issue_list(s):
        slot = BUF + (s % depth) * 4 * per
        imm = (s % 4) * 1024
        l = []
        for t in range(na):
            if gate and t == 1:
                l.append(f"buffer_load_dwordx4 {vr(slot+4*t,4)}, v{gate[1]}, {sr(gate[0])}, s79 offen offset:{(s%4)*32}")
            else:
                l.append(f"buffer_load_dwordx4 {vr(slot+4*t,4)}, v{VA+t}, {sr(S_WS)}, s80 offen offset:{imm}")
        for t in range(nb):
            l.append(f"buffer_load_dwordx4 {vr(slot+4*(na+t),4)}, v{VB+t}, {sr(S_WS)}, s81 offen offset:{imm}")
        return l
    for s in range(min(depth - 1, nsteps)):
        if s % 4 == 0: group()
        for l in issue_list(s): a(l)
    for s in range(nsteps):
        nxt = []
        if s + depth - 1 < nsteps:
            if (s + depth - 1) % 4 == 0: group()
            nxt = issue_list(s + depth - 1)
        if not ILV:
            for l in nxt: a(l)
            outstanding = min(depth - 1, nsteps - 1 - s)
        else:
            outstanding = min(depth - 2, nsteps - 1 - s)
        ex_ = sum(n for (s0, n) in extra if s <= s0 + depth - 1)
        a(f"s_waitcnt vmcnt({outstanding*per + ex_})")
        if hook:
            n = hook(s)
            if n: extra.append((s, n))
        slot = BUF + (s % depth) * 4 * per
        k = 0
        for at in range(na):
            for bt in range(nb):
                d = ACC + 16 * (at * nb + bt)
                c = "0" if (first and s == 0) else vr(d, 16)
                if not (os.environ.get("F2X") and s > 0):
                    a(f"v_mfma_f32_32x32x16_bf16 {vr(d,16)}, {vr(slot+4*at,4)}, {vr(slot+4*(na+bt),4)}, {c}")
                if os.environ.get("F2GAP") and not (at == na - 1 and bt == nb - 1): a(f"s_sleep {os.environ.get('F2GAP')}")
                if ILV and k < len(nxt): a(nxt[k])
                k += 1

def sigmoid(a, v):
    a(f"""
    v_mul_f32 v{v}, {f32bits(-LOG2E):#x}, v{v}
    v_exp_f32 v{v}, v{v}
    s_nop 0
    v_add_f32 v{v}, 1.0, v{v}
    v_rcp_f32 v{v}, v{v}
    s_nop 0
    """)

KORD = int(os.environ.get('KORD', '1'))
SEQ = int(os.environ.get('SEQ', '1'))
def gen(a):
    KN = NAME + "_kernel"
    a.raw(f".globl {KN}")
    a.raw(".p2align 8")
    a.raw(f".type {KN},@function")
    a.label(KN)
    a(f"""
    s_cmp_ge_u32 s2, 256
    s_cbranch_scc1 L_end
    s_load_dwordx16 s[8:23], s[0:1], 0
    s_load_dwordx4 s[24:27], s[0:1], 64
    v_lshrrev_b32 v2, 6, v0
    v_and_b32 v1, 63, v0
    s_mov_b32 s{S_SPIN}, 0
    v_readfirstlane_b32 s40, v2
    s_and_b32 s3, s2, 7          ; j
    s_lshr_b32 s4, s2, 3         ; i
    s_and_b32 s43, s4, 3
    s_lshl_b32 s5, s3, 2
    s_add_u32 s41, s43, s5       ; h = tau = 4j + (i&3)
    s_lshr_b32 s42, s4, 2        ; c = phi = i>>2
    {"s_and_b32 s72, s41, 7" if KORD == 1 else ("s_and_b32 s72, s42, 4" if KORD == 2 else "s_mov_b32 s72, s42")}   ; first key block
    """)
    if PAM == "8x4":
        a("""
        s_lshr_b32 s5, s3, 1
        s_lshl_b32 s5, s5, 3
        s_and_b32 s6, s4, 7
        s_add_u32 s86, s5, s6        ; tb = 8(j>>1) + (i&7)
        s_and_b32 s5, s3, 1
        s_lshl_b32 s87, s5, 2
        s_lshr_b32 s7, s4, 3
        s_add_u32 s87, s87, s7       ; g = 4(j&1) + (i>>3)
        s_lshl_b32 s7, s7, 1
        s_add_u32 s49, s6, s7
        s_add_u32 s49, s49, s5
        s_and_b32 s49, s49, 7        ; rot
        """)
    elif PAM == "16x2":
        a("""
        s_lshr_b32 s5, s3, 2
        s_lshl_b32 s5, s5, 4
        s_and_b32 s6, s4, 15
        s_add_u32 s86, s5, s6        ; tb = 16(j>>2) + (i&15)
        s_and_b32 s5, s3, 3
        s_lshl_b32 s87, s5, 1
        s_lshr_b32 s7, s4, 4
        s_add_u32 s87, s87, s7       ; g = 2(j&3) + (i>>4)
        s_lshl_b32 s7, s7, 2
        s_add_u32 s49, s6, s7
        s_add_u32 s49, s49, s5
        s_and_b32 s49, s49, 7        ; rot = i + 4(i>>4) + (j&3)
        """)
    else:
        a("""
        s_mov_b32 s86, s4
        s_mov_b32 s87, s3
        s_add_u32 s49, s3, s4
        s_and_b32 s49, s49, 7
        """)
    a(f"""
    v_lshlrev_b32 v2, 4, v1      ; v2 = lane*16
    s_waitcnt lgkmcnt(0)
    """)
    stamp_begin(a)
    a(f"s_load_dword s{S_EP}, s[26:27], {EPOCH}")
    if int(os.environ.get("CODEW", "1")):
        a(f"""
        s_getpc_b64 s[74:75]
        L_pc:
        s_mul_i32 s5, s4, 12
        s_add_u32 s5, s5, s40
        s_lshl_b32 s5, s5, 7
        s_min_u32 s5, s5, L_end-L_pc-64
        s_and_b32 s74, s74, -128
        s_load_dword s80, s[74:75], s5
        s_add_u32 s5, s5, 64
        s_load_dword s81, s[74:75], s5
        """)
    TLBW = int(os.environ.get("TLBW", "0"))
    if TLBW:
        a(f"""
        s_cmp_lg_u32 s40, 11
        s_cbranch_scc1 L_notlb
        s_min_u32 s5, s4, 27
        s_lshl_b32 s5, s5, 16
        s_load_dword s48, s[16:17], s5
        s_load_dword s57, s[18:19], s5
        s_and_b32 s6, s4, 7
        s_lshl_b32 s6, s6, 16
        s_load_dword s77, s[12:13], s6
        """)
        if TLBW >= 2:
            a(f"""
            s_lshl_b32 s5, s4, 20
            s_load_dword s58, s[26:27], s5
            s_lshl_b32 s6, s4, 16
            s_load_dword s59, s[22:23], s6
            """)
        a.label("L_notlb")
    srd(a, S_X, 8, 2048 * 1024)
    srd(a, S_WQKV, 10, 512 * 3072)
    srd(a, S_WS, 26, WS_BYTES)
    a(f"""
    s_cmp_ge_u32 s40, 8
    s_cbranch_scc1 L_aux
    """)
    attention_wave(a)
    a.label("L_aux")
    aux_wave(a)
    a.label("L_end")
    a("s_endpgm")

VXA = 8
VWA = 12
VMI = 13
VWA2 = 62
NSL = 4
PAM = os.environ.get('PAM', '8x4')
TBS = {'8x4': 3, '16x2': 4, '32x1': 5}[PAM]
SCHEDS = {
 "a": ({-1: [0, 1], 0: [2, 3], 1: [4], 2: [5], 3: [6], 4: [7, "P"]}, {-1: [0, 1, 2, 3, 4, 5, 6, 7, "r0", "r1"]}, 5),
 "b": ({-1: [0], 0: [1, 2], 1: [3, 4], 2: [5], 3: [6], 4: [7, "P"]}, {-1: [0, 1, 2, 3], 0: [4, 5, 6, 7, "r0", "r1"]}, 5),
 "c": ({-1: [0], 0: [1, 2, 3], 1: [4], 2: [5], 3: [6], 4: [7, "P"]}, {-1: [0, 1, 2, 3, 4, 5, 6, 7], 0: ["r0", "r1"]}, 5),
 "e": ({-1: [0, 1], 0: [2, 3], 1: [4], 2: [5], 3: [6], 4: [7, "P"]}, {-1: [0, 1, 2, 3], 0: [4, 5, "r0"], 1: [6, 7, "r1"]}, 5),
 "f": ({-1: [0, 1, 2, 3], 1: [4], 2: [5], 3: [6], 4: [7, "P"]}, {-1: [0, 1, "r0", "r1", 2, 3, 4], 0: [5], 1: [6], 2: [7]}, 4),
 "d": ({-1: [0, 1], 0: [2, 3], 1: [4], 2: [5], 3: [6], 4: [7, "P"]}, {-1: [0, 1, 2, 3, 4, 5, 6, 7], 4: ["r0", "r1"]}, 6),
}
SCHEDS["g"] = ({-1: [0, 1], 0: [2, 3, "R"], 1: [4, "P"], 2: [5], 3: [6], 4: [7], 5: ["S"]}, {-1: [0, 1, 2, 3], 0: [4, 5, "T"], 1: [6, 7]}, 5)
SCHEDS["h"] = ({-1: [0, 1], 0: [2, 3], 1: [4, "R"], 2: [5, "P"], 3: [6], 4: [7], 6: ["S"]}, {-1: [0, 1, 2, 3], 0: [4, 5, 6, 7, "T"]}, 5)
SCHEDS["i"] = ({-1: [0, 1, "R"], 0: [2, 3, "P"], 1: [4], 2: [5, "S"], 3: [6], 4: [7]}, {-1: [0, 1, 2, 3, "T"], 0: [4, 5], 1: [6, 7]}, 5)
W0 = {-1: [0, 1], 0: [2, 3], 1: [4], 2: [5], 3: [6]}
X0 = {-1: [0, 1, 2, 3], 0: [4, 5], 1: [6, 7]}
SCHEDS["j"] = ({**W0, 4: [7, "P", "R"], 7: ["S"]}, X0, 5)
SCHEDS["k"] = ({**W0, 4: [7, "P", "R"], 8: ["S"]}, X0, 5)
SCHEDS["l"] = ({**W0, 4: [7, "P", "R"], 8: ["S"]}, {**X0, 3: ["T"]}, 5)
SCHEDS["m"] = ({**W0, 4: [7, "P", "R"], 8: ["S"]}, {**X0, 2: ["T"]}, 5)
SCHEDS["n"] = ({**W0, 4: [7, "P"], 7: ["R"], 8: ["S"]}, X0, 5)
SCHEDS["o"] = ({**W0, 4: [7, "P", "R"], 8: ["S"]}, {**X0, 4: ["T"]}, 5)
SCHEDS["x"] = ({**W0, 4: [7]}, X0, 5)
SCHEDS["z"] = ({-1: [0, 1, 2], 0: [3], 1: [4], 2: [5], 3: [6], 4: [7]}, X0, 5)
SCHEDS["w"] = ({**W0, 4: [7]}, {-1: [0, 1, 2], 0: [3, 4], 1: [5, 6], 2: [7]}, 5)
SCHEDS["y"] = ({**W0, 4: [7], 9: ["P", "R"], 10: ["S"]}, X0, 5)
WSCHED, XSCHED, RLS = SCHEDS[os.environ.get("SCHED", "x")]
F1D = int(os.environ.get("F1D", "0"))
VD0, VD1 = 14, 15
ACCA = 64
XB = 80
WB = 96

def make_tag(a):
    a(f"""
    s_waitcnt lgkmcnt(0)
    s_mul_i32 s{S_TAG}, s{S_EP}, 0x9e3779b1
    s_add_u32 s{S_TAG}, s{S_TAG}, 0x7f4a7c15
    """)

def pa_addr(a):
    a(f"""
    v_and_b32 v3, 31, v1               ; m
    v_lshrrev_b32 v4, 5, v1            ; hh
    v_bfe_u32 v5, v1, 1, 3             ; (m>>1)&7
    v_xor_b32 v5, v5, v4
    v_lshlrev_b32 v3, 7, v3
    s_and_b32 s5, s40, 1
    s_lshl_b32 s5, s5, 12              ; tt*32*128
    s_add_u32 s5, s5, {L_X}
    v_add_u32 v3, s5, v3
    """)
    for ss in range(4):
        a(f"""
        v_xor_b32 v7, {2*ss}, v5
        v_lshl_add_u32 v{VXA+ss}, v7, 4, v3
        """)
    a(f"""
    v_bfe_u32 v7, v1, 2, 2
    v_lshl_add_u32 v7, v4, 3, v7       ; + 8hh
    v_lshlrev_b32 v{VWA}, 7, v7        ; row*128
    v_bfe_u32 v5, v1, 4, 1             ; g
    v_bfe_u32 v6, v1, 1, 1             ; (i&3)>>1
    v_lshl_add_u32 v6, v5, 1, v6
    v_bfe_u32 v5, v1, 3, 1
    s_lshr_b32 s5, s40, 1
    s_and_b32 s5, s5, 1                ; half
    v_xor_b32 v5, s5, v5
    v_lshl_add_u32 v6, v5, 2, v6       ; piece
    v_lshl_add_u32 v{VWA}, v6, 4, v{VWA}
    v_and_b32 v5, 1, v1
    v_lshl_add_u32 v{VWA}, v5, 3, v{VWA}
    s_lshr_b32 s5, s40, 2              ; part
    s_lshl_b32 s5, s5, 13
    v_add_u32 v{VWA}, s5, v{VWA}
    v_add_u32 v{VWA2}, {112*1024}, v{VWA}
    v_mov_b32 v{VMI}, {L_MISC}
    """)

def pa_reads(a, sig):
    so = WSLOT[sig % 4]
    wa = VWA if so < 65536 else VWA2
    so = so if so < 65536 else so - 112 * 1024
    xb = XB + 32 * (sig % 2); wb = WB + 32 * (sig % 2)
    for ss in range(4):
        a(f"""
        ds_read_b128 {vr(xb+4*ss,4)}, v{VXA+ss} offset:{sig*8192}
        ds_read_b64_tr_b16 {vr(wb+4*ss,2)}, v{wa} offset:{so + ss*2048}
        ds_read_b64_tr_b16 {vr(wb+4*ss+2,2)}, v{wa} offset:{so + ss*2048 + 512}
        """)
def pa_mfma(a, sig, vrole):
    xb = XB + 32 * (sig % 2); wb = WB + 32 * (sig % 2)
    for ss in range(4):
        c = "0" if (sig == 0 and ss == 0) else vr(ACCA, 16)
        if vrole:
            a(f"v_mfma_f32_32x32x16_bf16 {vr(ACCA,16)}, {vr(xb+4*ss,4)}, {vr(wb+4*ss,4)}, {c}")
        else:
            a(f"v_mfma_f32_32x32x16_bf16 {vr(ACCA,16)}, {vr(wb+4*ss,4)}, {vr(xb+4*ss,4)}, {c}")
NODEF = int(os.environ.get("NODEF", "7"))
def pa_compute(a, sig, vrole):
    pa_reads(a, sig)
    if 0 < sig <= NODEF:
        pa_mfma(a, sig - 1, vrole)
    a("s_waitcnt lgkmcnt(0)")
    if sig >= NODEF:
        pa_mfma(a, sig, vrole)

APOLL = int(os.environ.get('APOLL', '1'))
def attention_wave(a):
    a(f"""
    v_lshrrev_b32 v3, 3, v1            ; row = l>>3
    v_mul_u32_u24 v4, 3072, v3
    v_bfe_u32 v5, v1, 4, 1             ; (row>>1)&1
    v_lshlrev_b32 v5, 2, v5
    v_and_b32 v6, 7, v1
    v_xor_b32 v6, v6, v5
    v_lshl_add_u32 v{VD0}, v6, 4, v4
    s_mul_i32 s52, s40, {8*3072}
    s_lshl_b32 s5, s87, 7
    s_add_u32 s52, s52, s5
    s_lshl_b32 s53, s40, 10            ; lds base
    """)
    def wdma(sig):
        a(f"""
        s_add_u32 s5, s49, {sig}
        s_and_b32 s5, s5, 7
        s_mul_i32 s50, s5, {64*3072}
        s_add_u32 s50, s50, s52
        """)
        for p in range(3):
            a(f"""
            s_add_u32 m0, s53, {WSLOT[sig%4] + p*8192}
            s_add_u32 s51, s50, {p*1024}
            buffer_load_dwordx4 v{VD0}, {sr(S_WQKV)}, s51 offen lds
            """)
    wq = []
    def wissue(items):
        for it in items:
            if it == "P":
                a(f"""
                s_lshl_b32 s5, s42, 3
                s_add_u32 s5, s5, s40
                s_lshl_b32 s5, s5, 5
                s_add_u32 s5, s5, s41
                s_lshl_b32 s5, s5, 10
                s_add_u32 s5, s5, {OF}
                v_mov_b32 v20, -1
                v_mov_b32 v21, -1
                v_mov_b32 v22, -1
                v_mov_b32 v23, -1
                buffer_store_dwordx4 v[20:23], v2, {sr(S_WS)}, s5 offen sc1
                """)
                wq.append("P")
            elif it == "R":
                a("s_add_u32 s5, s59, 8192")
                for jq in range(2):
                    for jj in range(4):
                        a(f"buffer_load_dword v{R+4*jq+jj}, v{VRL}, {sr(S_SRC)}, {'s5' if jq else 's59'} offen offset:{jj*1024}")
                wq.extend(["R"] * 8)
            elif it == "S":
                last = max(k for k, e in enumerate(wq) if e == "R")
                a(f"""
                s_mov_b32 s{S_SRC}, s{S_WS}
                s_mov_b32 s{S_SRC+1}, s{S_WS+1}
                s_cmp_lt_u32 s73, 1152
                s_cselect_b32 s{S_SRC+2}, {WS_BYTES:#x}, 0
                s_mov_b32 s80, 0x05040100
                s_mov_b32 s81, 0x07060302
                s_waitcnt vmcnt({len(wq) - 1 - last})
                """)
                for jj in range(4):
                    a(f"v_perm_b32 v{F+jj}, v{R+2*jj+1}, v{R+2*jj}, s80")
                    a(f"v_perm_b32 v{F+4+jj}, v{R+2*jj+1}, v{R+2*jj}, s81")
                a(f"""
                buffer_store_dwordx4 {vr(F,4)}, v2, {sr(S_SRC)}, s79 offen sc1
                buffer_store_dwordx4 {vr(F+4,4)}, v2, {sr(S_SRC)}, s78 offen sc1
                """)
                wq.extend(["S"] * 2)
            else:
                wdma(it); wq.extend([it] * 3)
    XA = int(os.environ.get("XA", "0"))
    if XA:
        a(f"""
        v_lshlrev_b32 v4, 10, v3
        v_and_b32 v6, 7, v1
        v_lshrrev_b32 v5, 4, v1
        v_xor_b32 v6, v6, v5
        s_and_b32 s5, s40, 1
        s_lshl_b32 s5, s5, 2
        v_xor_b32 v6, s5, v6
        v_lshl_add_u32 v{VD1}, v6, 4, v4
        s_lshl_b32 s78, s86, 16
        s_lshl_b32 s5, s40, 13
        s_add_u32 s78, s78, s5
        """)
    for it in WSCHED[-1]:
        if isinstance(it, int):
            if it < XA:
                a(f"""
                s_add_u32 s5, s49, {it}
                s_and_b32 s5, s5, 7
                s_lshl_b32 s5, s5, 7
                s_add_u32 m0, s53, {L_X + it*8192}
                s_add_u32 s5, s5, s78
                buffer_load_dwordx4 v{VD1}, {sr(S_X)}, s5 offen lds
                """)
                wq.append(it)
            wissue([it])
    R = 144; F = 152; VRL = 63
    wissue([it for it in WSCHED[-1] if not isinstance(it, int)])
    make_tag(a)
    pa_addr(a)
    RLI = int(os.environ.get("RLI", "7"))
    for sig in range(8):
        last = max(k for k, e in enumerate(wq) if e == sig)
        a(f"s_waitcnt vmcnt({len(wq) - 1 - last})")
        if sig == 0 and not os.environ.get("TAILST"): stamp(a, 0)
        if sig <= 6: stamp(a, sig, pa=True)
        a("s_barrier")
        for it in WSCHED.get(sig, []):
            assert isinstance(it, str) or it - NSL < sig, (it, sig)
        if sig >= 4: stamp(a, sig - 4, pa=2)
        wissue(WSCHED.get(sig, []))
        pa_compute(a, sig, False)
    if not os.environ.get("TAILST"): stamp(a, 1)
    stamp(a, 5, pa=2)
    a(f"""
    s_lshr_b32 s5, s40, 1
    s_and_b32 s5, s5, 1
    s_lshl_b32 s5, s5, 1
    s_lshl_b32 s6, s87, 2
    s_add_u32 s5, s5, s6               ; head0
    s_lshl_b32 s5, s5, 6
    s_lshl_b32 s6, s86, 1
    s_add_u32 s5, s5, s6
    s_and_b32 s6, s40, 1
    s_add_u32 s5, s5, s6               ; head0*64 + T
    s_cmp_ge_u32 s40, 4
    s_cbranch_scc1 L_isk
    s_lshl_b32 s54, s5, 10
    s_add_u32 s54, s54, {QF}
    s_add_u32 s55, s54, {64*1024}
    s_mov_b32 s56, {f32bits(QSCALE):#x}
    s_branch L_qk
    L_isk:
    s_lshl_b32 s54, s5, 11
    s_add_u32 s54, s54, {KV}
    s_add_u32 s55, s54, {64*2048}
    s_mov_b32 s56, 1.0
    L_qk:
    s_nop 3
    """)
    for r in range(16):
        a(f"v_mul_f32 v{ACCA+r}, s56, v{ACCA+r}")
    for r in range(8):
        a(f"v_cvt_pk_bf16_f32 v{XB+r}, v{ACCA+2*r}, v{ACCA+2*r+1}")
    dual(a, 73, [f"buffer_store_dwordx4 {vr(XB,4)}, v2, {sr(S_WS)}, s54 offen",
                 f"buffer_store_dwordx4 {vr(XB+4,4)}, v2, {sr(S_WS)}, s55 offen"])
    Q = 8; KB = 16; VB = 24; P = 40; VKA = 56; VVA = 57; VG = 58; VMISC = 59; VPL = 60; VG2 = 61; VT = 160
    S = 64; NM = 96; O = 128; VIDX = 62
    E1, E2 = [int(x) for x in os.environ.get("EPOS", "6,11").split(",")]
    def slot(t, aq, last=False):
        Sc = S + 16 * aq; Sn = S + 16 * (1 - aq)
        tn = t if aq == 0 else t + 1
        Kc = KB + 4 * (tn % 2)
        Pc = P + 8 * aq; Pp = P + 8 * (1 - aq)
        Oc = O + 16 * aq; Op = O + 16 * (1 - aq)
        tp = t if aq == 1 else t - 1
        Vc = VB + 8 * (t % 2); Vp = VB + 8 * (tp % 2)
        noff = (t + 1) * 2048 if t < 3 else 16384
        def ex(i): a(f"v_exp_f32 v{Sc+i if i < 8 else Pc+i-8}, v{Sc+i}")
        if aq == 1: a("s_waitcnt lgkmcnt(0)")
        if not (last and aq == 1):
            a(f"v_mfma_f32_32x32x16_bf16 {vr(Sn,16)}, {vr(Kc,4)}, {vr(Q+4*(1-aq),4)}, {vr(NM+16*(1-aq),16)}")
        if aq == 0 and not last:
            a(f"ds_read_b128 {vr(KB+4*((t+1)%2),4)}, v{VKA} offset:{noff}")
        for i in range(E1): ex(i)
        a(f"v_smfmac_f32_32x32x32_bf16 {vr(Op,16)}, {vr(Vp+4,4)}, {vr(Pp,8)}, v{VIDX}")
        if aq == 0 and not last:
            Vn = VB + 8 * ((t + 1) % 2)
            a(f"""
            s_mov_b64 exec, s[74:75]
            ds_read_b128 {vr(Vn,4)}, v{VVA} offset:{noff+1024}
            ds_read_b128 {vr(Vn+4,4)}, v{VVA} offset:{noff+1536}
            s_mov_b64 exec, -1
            """)
        for i in range(E1, E2): ex(i)
        a(f"v_smfmac_f32_32x32x32_bf16 {vr(Oc,16)}, {vr(Vc,4)}, {vr(Sc,8)}, v{VIDX}")
        for i in range(E2, 16): ex(i)
    def advance():
        a(f"""
        v_add_u32 v{VKA}, 16384, v{VKA}
        v_add_u32 v{VVA}, 16384, v{VVA}
        """)
    def prog_wait(n, both=False, off=M_PROG):
        L = a.new("L_pw"); D = a.new("L_pwd")
        a.label(L)
        if both:
            a(f"""
            ds_read_b128 v[4:7], v{VMISC} offset:{off}
            s_waitcnt lgkmcnt(0)
            v_min_u32 v4, v4, v5
            v_min_u32 v6, v6, v7
            v_min_u32 v4, v4, v6
            """)
        else:
            a(f"""
            ds_read_b64 v[4:5], v{VPL} offset:{M_PROG}
            s_waitcnt lgkmcnt(0)
            v_min_u32 v4, v4, v5
            """)
        a(f"""
        s_nop 0
        v_readfirstlane_b32 s5, v4
        s_cmp_ge_u32 s5, {n}
        s_cbranch_scc1 {D}
        """)
        spin_guard(a, L, 1)
        a.label(D)
    a(f"""
    s_lshl_b32 s53, s40, 11            ; w*2048
    s_lshl_b32 s5, s40, 10
    s_add_u32 s5, s5, {L_VX}
    v_add_u32 v4, s5, v2
    s_lshr_b32 s5, s40, 2
    s_lshl_b32 s5, s5, 1
    s_lshl_b32 s6, s87, 2
    s_add_u32 s5, s5, s6
    s_lshl_b32 s5, s5, 6
    s_lshl_b32 s6, s86, 1
    s_add_u32 s5, s5, s6
    s_bfe_u32 s6, s40, 0x10001
    s_add_u32 s5, s5, s6
    s_lshl_b32 s54, s5, 11
    s_and_b32 s58, s40, 1              ; kh
    s_lshl_b32 s5, s58, 9
    s_add_u32 s54, s54, s5
    s_add_u32 s54, s54, {KV}
    v_bfe_u32 v3, v1, 4, 1
    v_lshlrev_b32 v3, 17, v3
    v_lshrrev_b32 v5, 5, v1
    v_lshl_add_u32 v3, v5, 8, v3
    v_and_b32 v5, 15, v1
    v_lshl_add_u32 v3, v5, 4, v3
    s_barrier
    ds_read_b128 {vr(XB+8,4)}, v4
    s_lshl_b32 s76, s87, 12
    s_add_u32 s76, s76, {FL1}          ; FL1[g]
    v_mov_b32 v{VMISC}, {L_MISC}
    s_lshl_b32 s5, s58, 3
    v_add_u32 v{VPL}, s5, v{VMISC}
    s_waitcnt lgkmcnt(0)
    buffer_store_dwordx4 {vr(XB+8,4)}, v3, {sr(S_WS)}, s54 offen offset:1024 sc1
    s_waitcnt vmcnt(0)
    """)
    lds_add(a, VMISC, M_C1, 3)
    a(f"""
    s_cmp_lg_u32 s40, 0
    s_cbranch_scc1 L_nofl1
    """)
    lds_wait(a, VMISC, M_C1, 8, 3, sleep=1)
    a(f"""
    s_lshl_b32 s5, s86, 7
    s_add_u32 s5, s5, s76
    """)
    store_flag(a, "s5", VT, sfast=73)
    a.label("L_nofl1")
    stamp(a, 2)
    stamp(a, 6, pa=2)
    wissue(WSCHED.get(8, []))
    a(f"""
    s_lshl_b32 s59, s58, 13            ; kh*8192
    v_add_u32 v{VKA}, s59, v2
    v_lshrrev_b32 v4, 5, v1
    v_and_b32 v5, 15, v1
    v_lshlrev_b32 v5, 4, v5
    v_lshl_add_u32 v{VVA}, v4, 8, v5
    v_add_u32 v{VVA}, s59, v{VVA}
    s_mov_b32 s74, 0x0000ffff
    s_mov_b32 s75, 0x0000ffff
    v_and_b32 v3, 31, v1
    v_cmp_eq_u32 vcc, 16, v3
    v_mov_b32 v4, 0x3f803f80
    s_lshl_b32 s5, s41, 6
    s_lshl_b32 s6, s42, 3
    s_lshl_b32 s7, s72, 3
    s_add_u32 s7, s7, s5               ; h*64 + 8 b0
    s_add_u32 s5, s5, s6               ; h*64 + 8c
    s_add_u32 s6, s7, s40
    s_lshl_b32 s54, s6, 11
    s_add_u32 s54, s54, {KV}
    s_add_u32 s6, s40, s5
    s_lshl_b32 s55, s6, 10
    s_add_u32 s55, s55, {QF}
    s_xor_b32 s59, s55, 1024
    """)
    for r in range(16):
        a(f"v_cndmask_b32 v{VB+r}, 0, v4, vcc")
    for r in range(32):
        a(f"v_mov_b32 v{O+r}, 0")
    for r in range(8):
        a(f"v_mov_b32 v{P+8+r}, 0")
    a(f"v_mov_b32 v{VIDX}, {os.environ.get('IDX', '0xdddddddd')}")
    a(f"""
    s_lshl_b32 s76, s3, 12
    s_add_u32 s76, s76, {FL1}          ; FL1[j]
    s_lshl_b32 s5, s72, 2
    s_sub_u32 s5, s5, 4
    v_add_u32 v7, s5, v1
    v_and_b32 v7, 31, v7
    s_lshl_b32 s5, s42, 2
    v_add_u32 v6, s5, v1
    v_cmp_gt_u32 vcc, 4, v1
    v_cndmask_b32 v7, v7, v6, vcc
    v_lshlrev_b32 v7, 7, v7
    s_add_u32 s6, s54, s53
    s_add_u32 s5, s72, 1
    s_and_b32 s5, s5, 7
    s_sub_u32 s5, s5, s72
    s_lshl_b32 s5, s5, 14
    s_add_u32 s56, s6, s5
    s_add_u32 s5, s72, 2
    s_and_b32 s5, s5, 7
    s_sub_u32 s5, s5, s72
    s_lshl_b32 s5, s5, 14
    s_add_u32 s57, s6, s5
    s_mov_b32 m0, s53
    s_sub_u32 s5, s40, 1
    s_cmp_ge_u32 s5, {int(os.environ.get("NPOLL", "1"))}
    s_cbranch_scc1 L_nopoll
    """)
    lds_wait(a, VMISC, M_C1, 8, 3, sleep=1)
    a(f"""
    s_sleep {int(os.environ.get("PSL", "8"))}
    s_cmp_eq_u32 s40, 1
    s_cbranch_scc1 L_qp
    s_sleep {int(os.environ.get("PSL2", "9"))}
    L_qp:
    ds_read_b32 v3, v{VMISC} offset:{M_QOK}
    s_waitcnt lgkmcnt(0)
    v_readfirstlane_b32 s5, v3
    s_cmp_lg_u32 s5, 0
    s_cbranch_scc1 L_nopoll
    s_mov_b64 exec, 0xffff
    buffer_load_dword v{VT}, v7, {sr(S_WS)}, s76 offen sc1
    s_waitcnt vmcnt(0)
    v_cmp_ne_u32 vcc, s{S_TAG}, v{VT}
    s_mov_b64 exec, -1
    s_and_b32 s5, vcc_lo, 255
    s_cbranch_scc0 L_qok
    """)
    spin_guard(a, "L_qp", 3)
    a(f"""
    L_qok:
    s_cmp_eq_u32 vcc_lo, 0
    s_cselect_b32 s5, 3, 1
    v_mov_b32 v3, s5
    ds_max_u32 v{VMISC}, v3 offset:{M_QOK}
    L_nopoll:
    L_qw:
    ds_read_b32 v3, v{VMISC} offset:{M_QOK}
    s_waitcnt lgkmcnt(0)
    v_readfirstlane_b32 s48, v3
    s_cmp_lg_u32 s48, 0
    s_cbranch_scc1 L_qwd
    """)
    spin_guard(a, "L_qw", 1)
    a.label("L_qwd")
    stamp(a, 3)
    a(f"""
    buffer_load_dwordx4 v2, {sr(S_WS)}, s54 offen lds
    buffer_load_dwordx4 v2, {sr(S_WS)}, s54 offen offset:1024 lds
    buffer_load_dwordx4 {vr(Q+4,4)}, v2, {sr(S_WS)}, s55 offen
    buffer_load_dwordx4 {vr(Q,4)}, v2, {sr(S_WS)}, s59 offen
    s_cmp_ge_u32 s40, 4
    s_cbranch_scc1 L_young
    s_cmp_eq_u32 s48, 3
    s_cbranch_scc1 {"L_nop2" if SEQ else "L_q3"}
    s_cmp_lg_u32 s40, 1
    s_cbranch_scc1 L_nop2
    s_mov_b64 exec, 0xffff
    buffer_load_dword v{VT}, v7, {sr(S_WS)}, s76 offen sc1
    s_mov_b64 exec, -1
    s_waitcnt vmcnt(3)
    """)
    lds_add(a, VMISC, M_S0, 3)
    a(f"""
    s_branch L_qp3
    L_qp2:
    s_mov_b64 exec, 0xffff
    buffer_load_dword v{VT}, v7, {sr(S_WS)}, s76 offen sc1
    L_qp3:
    s_mov_b64 exec, 0xffff
    s_waitcnt vmcnt(0)
    v_cmp_ne_u32 vcc, s{S_TAG}, v{VT}
    s_mov_b64 exec, -1
    s_cmp_eq_u32 vcc_lo, 0
    s_cbranch_scc1 L_qok2
    """)
    spin_guard(a, "L_qp2", 3)
    a(f"""
    L_qok2:
    v_mov_b32 v3, 3
    ds_write_b32 v{VMISC}, v3 offset:{M_QOK}
    s_branch L_q3
    L_nop2:
    s_waitcnt vmcnt(2)
    """)
    lds_add(a, VMISC, M_S0, 3)
    lds_wait(a, VMISC, M_QOK, 3, 3, sleep=1)
    a(f"""
    L_q3:
    s_lshl_b32 s6, s53, 1
    s_add_u32 m0, s6, 16384
    s_nop 0
    """)
    for k in range(4):
        a(f"buffer_load_dwordx4 v2, {sr(S_WS)}, s56 offen offset:{k*1024} lds")
    a(f"""
    s_add_u32 m0, s6, 32768
    s_nop 0
    """)
    for k in range(4):
        a(f"buffer_load_dwordx4 v2, {sr(S_WS)}, s57 offen offset:{k*1024} lds")
    a(f"""
    s_cmp_lg_u32 s48, {7 if SEQ else 3}
    s_cbranch_scc1 L_s0done
    s_waitcnt vmcnt(10)
    """)
    lds_add(a, VMISC, M_S0, 3)
    a(f"""
    L_s0done:
    s_waitcnt vmcnt(0)
    """)
    lds_add(a, VMISC, M_S1, 3)
    a(f"""
    s_branch L_go
    L_young:
    s_waitcnt vmcnt(2)
    """)
    lds_add(a, VMISC, M_S0, 3)
    a(f"""
    s_waitcnt vmcnt(0)
    L_go:
    """)
    lds_wait(a, VMISC, M_S0, 8, 3, sleep=1)
    stamp(a, 4)
    a(f"""
    ds_read_b128 {vr(KB,4)}, v2
    s_waitcnt lgkmcnt(0)
    v_mfma_f32_32x32x16_bf16 {vr(S,16)}, {vr(KB,4)}, {vr(Q,4)}, 0
    v_mfma_f32_32x32x16_bf16 {vr(S+16,16)}, {vr(KB,4)}, {vr(Q+4,4)}, 0
    s_mov_b32 s77, 0
    s_nop 7
    """)
    a(f"""
    ds_read_b128 {vr(KB,4)}, v{VKA}
    s_mov_b64 exec, s[74:75]
    ds_read_b128 {vr(VB,4)}, v{VVA} offset:1024
    ds_read_b128 {vr(VB+4,4)}, v{VVA} offset:1536
    s_mov_b64 exec, -1
    s_nop 4
    """)
    for q in range(2):
        Sq = S + 16 * q
        a(f"v_max3_f32 v{3+q}, v{Sq}, v{Sq+1}, v{Sq+2}")
        for r in range(3, 15, 2):
            a(f"v_max3_f32 v{3+q}, v{3+q}, v{Sq+r}, v{Sq+r+1}")
        a(f"v_max_f32 v{3+q}, v{3+q}, v{Sq+15}")
    a(f"""
    v_mov_b32 v5, v3
    v_mov_b32 v6, v4
    s_nop 1
    v_permlane32_swap_b32 v3, v5
    v_permlane32_swap_b32 v4, v6
    s_nop 1
    v_max_f32 v3, v3, v5
    v_max_f32 v4, v4, v6
    """)
    for q in range(2):
        for r in range(16):
            a(f"v_sub_f32 v{NM+16*q+r}, 0, v{3+q}")
    a(f"""
    s_waitcnt lgkmcnt(0)
    v_mfma_f32_32x32x16_bf16 {vr(S,16)}, {vr(KB,4)}, {vr(Q,4)}, {vr(NM,16)}
    s_nop 7
    s_nop 4
    """)
    BAL = int(os.environ.get("BAL", "6"))
    BALT = int(os.environ.get("BALT", "22"))
    if BAL:
        a(f"""
        s_cmp_lt_u32 s40, 4
        s_cbranch_scc1 L_bal0
        s_setprio 1
        L_bal0:
        """)
    for t in range(3):
        slot(t, 0); slot(t, 1)
    lds_wait(a, VMISC, M_S1, 4, 4, sleep=1)
    slot(3, 0); slot(3, 1)
    advance()
    for t in range(4):
        slot(t, 0); slot(t, 1)
    advance()
    for t in range(3):
        slot(t, 0); slot(t, 1)
    KSP = int(os.environ.get("KSP", "5"))
    prog_wait(KSP)
    stamp(a, 5)
    slot(3, 0); slot(3, 1)
    advance()
    a("s_mov_b32 s79, 3")
    a.label("L_att_loop")
    for t in range(4):
        if t == 3 and KSP < 8:
            a(f"""
            s_cmp_lg_u32 s79, {KSP-1}
            s_cbranch_scc1 L_nokw
            """)
            prog_wait(8)
            a.label("L_nokw")
        if BALT and t == BALT % 4:
            a(f"""
            s_cmp_lg_u32 s79, {BALT // 4}
            s_cbranch_scc1 L_balt
            s_setprio 0
            L_balt:
            """)
        slot(t, 0); slot(t, 1)
    advance()
    a("""
    s_add_u32 s79, s79, 1
    s_cmp_lg_u32 s79, 4
    s_cbranch_scc1 L_nodead
    """)
    lds_add(a, VMISC, M_DEAD, 4)
    a("""
    L_nodead:
    s_cmp_lg_u32 s79, 6
    s_cbranch_scc1 L_nodead2
    """)
    lds_add(a, VMISC, M_DEAD2, 4)
    a.label("L_nodead2")
    if BAL:
        a(f"""
        s_cmp_lg_u32 s79, {BAL}
        s_cbranch_scc1 L_bal1
        s_setprio 0
        L_bal1:
        """)
    a(f"""
    s_cmp_lt_u32 s79, 7
    s_cbranch_scc1 L_att_loop
    s_setprio 3
    s_lshl_b32 s5, s42, 3
    s_add_u32 s5, s5, s40              ; T
    s_lshr_b32 s6, s5, 1
    s_lshl_b32 s6, s6, 7
    s_add_u32 s76, s6, {FLG}           ; FLG[tau]
    s_lshl_b32 s57, s5, 7
    s_add_u32 s57, s57, {GBUF}
    v_mov_b32 v{VPL}, 0
    """)
    s_keep = None
    lds_wait(a, VMISC, M_PZ, 4, VT)
    a(f"""
    v_and_b32 v3, 31, v1
    v_lshlrev_b32 v3, 2, v3
    buffer_load_dword v{VG}, v3, {sr(S_WS)}, s57 offen
    v_add_u32 v4, s53, v2
    v_add_u32 v4, {L_OX}, v4
    v_xor_b32 v5, 2048, v4
    v_lshlrev_b32 v7, 2, v1
    s_lshl_b32 s6, s40, 8
    s_add_u32 s6, s6, {L_LX}
    v_add_u32 v7, s6, v7
    v_xor_b32 v6, 256, v7
    s_lshl_b32 s6, s40, 2
    v_add_u32 v{VT+5}, s6, v{VMISC}
    v_xor_b32 v{VT+4}, 4, v{VT+5}
    v_mov_b32 v{VT+6}, 1
    v_mov_b32 v{VT}, s{S_TAG}
    v_mov_b32 v{VT+1}, s{S_TAG}
    v_mov_b32 v{VT+2}, s{S_TAG}
    v_mov_b32 v{VT+3}, s{S_TAG}
    s_lshl_b32 s5, s42, 3
    s_add_u32 s5, s5, s40              ; T
    s_lshl_b32 s5, s5, 5
    s_add_u32 s5, s5, s41              ; T*32 + h
    s_lshl_b32 s76, s5, 10
    s_add_u32 s76, s76, {OF}
    s_lshl_b32 s78, s5, 7
    s_add_u32 s78, s78, {FL3}
    s_mov_b32 s80, 0x53800000          ; 2^40
    s_mov_b32 s81, 0x7f000000          ; 2^127
    s_mov_b32 s57, 0xfffeffff
    s_setprio 0
    """)
    for t in range(4):
        if t == 3: a("s_setprio 3")
        slot(t, 0, t == 3); slot(t, 1, t == 3)
    a(f"""
    s_nop 1
    v_smfmac_f32_32x32x32_bf16 {vr(O+16,16)}, {vr(VB+12,4)}, {vr(P+8,8)}, v{VIDX}
    ds_write_b128 v5, {vr(O,4)}
    ds_write_b128 v5, {vr(O+4,4)} offset:1024
    ds_write_b32 v6, v{O+8}
    ds_write_b32 v{VT+4}, v{VT+6} offset:{M_PAIR}
    """)
    stamp(a, 6)
    a(f"""
    L_pw:
    ds_read_b32 v3, v{VT+5} offset:{M_PAIR}
    ds_read_b128 {vr(O,4)}, v4
    ds_read_b128 {vr(O+4,4)}, v4 offset:1024
    ds_read_b32 v{O+8}, v7
    s_waitcnt lgkmcnt(0)
    v_readfirstlane_b32 s5, v3
    s_cmp_eq_u32 s5, 1
    s_cbranch_scc1 L_pwd
    """)
    spin_guard(a, "L_pw", 0)
    a.label("L_pwd")
    if os.environ.get("TAILST"): stamp(a, 0)
    a(f"v_add_f32 v{O+8}, v{O+8}, v{O+24}")
    for r in range(8):
        a(f"v_add_f32 v{O+r}, v{O+r}, v{O+16+r}")
    a.label("L_att_check")
    a(f"""
    v_mov_b32 v3, v{O+8}
    v_add_f32 v4, |v{O}|, |v{O+1}|
    v_add_f32 v5, |v{O+2}|, |v{O+3}|
    v_permlane32_swap_b32 v{O+8}, v3
    v_add_f32 v6, |v{O+4}|, |v{O+5}|
    v_add_f32 v7, |v{O+6}|, |v{O+7}|
    v_rcp_f32 v3, v{O+8}
    v_add_f32 v4, v4, v5
    v_add_f32 v6, v6, v7
    v_add_f32 v4, v4, v6
    v_cmp_nle_f32 vcc, v{O+8}, s80
    v_cmp_nle_f32 s[48:49], v4, s81
    s_cmp_eq_u32 s77, 3
    s_cbranch_scc1 L_att_fin
    s_or_b64 vcc, vcc, s[48:49]
    s_cbranch_scc0 L_att_fin
    """)
    a(f"""
    s_mov_b32 s77, 3
    s_lshl_b32 s56, s41, 17
    s_add_u32 s56, s56, {KV}
    v_mov_b32 v{VKA}, v2
    v_mov_b32 v3, 0xff800000
    s_mov_b32 s79, 0
    L_fb_max:
    buffer_load_dwordx4 {vr(KB,4)}, v{VKA}, {sr(S_WS)}, s56 offen
    s_waitcnt vmcnt(0)
    v_mfma_f32_32x32x16_bf16 {vr(S,16)}, {vr(KB,4)}, {vr(Q+4,4)}, 0
    v_add_u32 v{VKA}, 2048, v{VKA}
    s_nop 7
    s_nop 7
    s_nop 3
    """)
    for r in range(0, 16, 2):
        a(f"v_max3_f32 v3, v3, v{S+r}, v{S+r+1}")
    a(f"""
    s_add_u32 s79, s79, 1
    s_cmp_lt_u32 s79, 64
    s_cbranch_scc1 L_fb_max
    v_mov_b32 v4, v3
    s_nop 1
    v_permlane32_swap_b32 v3, v4
    s_nop 1
    v_max_f32 v3, v3, v4
    """)
    for r in range(16):
        a(f"v_sub_f32 v{NM+r}, 0, v3")
        a(f"v_mov_b32 v{O+r}, 0")
    a(f"""
    v_mov_b32 v{VKA}, v2
    v_lshrrev_b32 v4, 5, v1
    v_and_b32 v5, 15, v1
    v_lshlrev_b32 v5, 4, v5
    v_lshl_add_u32 v{VVA}, v4, 8, v5
    s_mov_b32 s79, 0
    L_fb_loop:
    buffer_load_dwordx4 {vr(KB,4)}, v{VKA}, {sr(S_WS)}, s56 offen
    s_mov_b64 exec, s[74:75]
    buffer_load_dwordx4 {vr(VB,4)}, v{VVA}, {sr(S_WS)}, s56 offen offset:1024
    buffer_load_dwordx4 {vr(VB+4,4)}, v{VVA}, {sr(S_WS)}, s56 offen offset:1536
    s_mov_b64 exec, -1
    s_waitcnt vmcnt(0)
    v_mfma_f32_32x32x16_bf16 {vr(S,16)}, {vr(KB,4)}, {vr(Q+4,4)}, {vr(NM,16)}
    v_add_u32 v{VKA}, 2048, v{VKA}
    v_add_u32 v{VVA}, 2048, v{VVA}
    s_nop 7
    s_nop 7
    """)
    for r in range(16):
        a(f"v_exp_f32 v{S+r}, v{S+r}")
    a(f"""
    s_nop 3
    v_smfmac_f32_32x32x32_bf16 {vr(O,16)}, {vr(VB,4)}, {vr(S,8)}, v{VIDX}
    v_smfmac_f32_32x32x32_bf16 {vr(O,16)}, {vr(VB+4,4)}, {vr(S+8,8)}, v{VIDX}
    s_add_u32 s79, s79, 1
    s_cmp_lt_u32 s79, 64
    s_cbranch_scc1 L_fb_loop
    s_nop 7
    s_nop 7
    s_branch L_att_check
    L_att_fin:
    s_waitcnt vmcnt(0)
    v_mul_f32 v3, v3, v{VG}
    """)
    for r in range(8):
        a(f"v_mul_f32 v{O+r}, v{O+r}, v3")
    for r in range(4):
        a(f"v_cvt_pk_bf16_f32 v{P+r}, v{O+2*r}, v{O+2*r+1}")
    for r in range(4):
        a(f"v_min_u32 v{P+r}, s57, v{P+r}")
    a(f"""
    buffer_store_dwordx4 {vr(P,4)}, v2, {sr(S_WS)}, s76 offen sc1
    s_cmp_lg_u32 s58, 0
    s_cbranch_scc1 L_nofl3
    s_mov_b64 exec, 0xff
    buffer_store_dwordx4 {vr(VT,4)}, v2, {sr(S_WS)}, s78 offen sc1
    s_mov_b64 exec, -1
    """)
    a.label("L_nofl3")
    if os.environ.get("TAILST"): stamp(a, 1)
    a(f"""
    s_or_b32 s5, s2, s40
    s_cmp_lg_u32 s5, 0
    s_cbranch_scc1 L_nobump
    v_lshlrev_b32 v3, 7, v1
    """)
    for k in range(4):
        a(f"s_mov_b32 s58, {FL2 + k*8192}")
        poll_flags(a, 3, "s58", [(1, 0)], 9, sleep=12)
    a(f"""
    s_mov_b64 exec, 1
    s_add_u32 s5, s{S_EP}, 1
    v_mov_b32 v9, s5
    buffer_store_dword v9, v2, {sr(S_WS)}, 0 offen offset:{EPOCH} sc1
    s_mov_b64 exec, -1
    L_nobump:
    """)
    if APOLL:
        a(f"""
        s_andn2_b32 s5, s40, 2
        s_cmp_lg_u32 s5, 1
        s_cbranch_scc1 L_noap
        s_lshl_b32 s56, s41, 13
        s_lshr_b32 s5, s40, 1
        s_lshl_b32 s6, s5, 11
        s_add_u32 s56, s56, s6
        s_add_u32 s56, s56, {FL3}
        s_lshl_b32 s5, s5, 2
        v_add_u32 v14, s5, v{VMISC}
        v_lshlrev_b32 v7, 7, v1
        s_mov_b32 s59, 0
        L_ap:
        s_andn2_b32 s5, 0x1111, s59
        s_mul_i32 s58, s5, 15
        s_mov_b32 exec_lo, s58
        s_mov_b32 exec_hi, 0
        buffer_load_dword v3, v7, {sr(S_WS)}, s56 offen sc1
        s_waitcnt vmcnt(0)
        v_cmp_ne_u32 vcc, s{S_TAG}, v3
        s_mov_b64 exec, -1
        s_lshr_b32 s5, vcc_lo, 1
        s_or_b32 s5, s5, vcc_lo
        s_lshr_b32 s6, s5, 2
        s_or_b32 s5, s5, s6
        s_andn2_b32 s59, 0x1111, s5
        s_or_b32 s5, s59, 2
        v_mov_b32 v4, s5
        s_mov_b64 exec, 1
        ds_or_b32 v14, v4 offset:{M_RDY}
        s_mov_b64 exec, -1
        s_cmp_eq_u32 s59, 0x1111
        s_cbranch_scc1 L_noap
        """)
        spin_guard(a, "L_ap", int(os.environ.get("ASL", "1")))
        a.label("L_noap")
        a("s_waitcnt lgkmcnt(0)")
    stamp_end(a)
    a("s_endpgm")

def aux_wave(a):
    R = 144; F = 128; VRL = 167
    VWF = 160; VPOLL = 164; VFL = 165; VPG = 166
    S_W1 = S_WQKV; S_H = S_WQKV; S_G = S_OUT
    if os.environ.get("FAKEW1"):
        a("""
        s_add_u32 s16, s26, 0x4000000
        s_addc_u32 s17, s27, 0
        """)
    a(f"""
    s_setprio 3
    s_sub_u32 s43, s40, 8              ; u
    v_lshrrev_b32 v3, 3, v1
    v_lshlrev_b32 v3, 10, v3
    v_and_b32 v4, 7, v1
    v_lshrrev_b32 v5, 4, v1
    v_xor_b32 v4, v4, v5
    v_lshl_add_u32 v{VD0}, v4, 4, v3
    v_xor_b32 v4, 4, v4
    v_lshl_add_u32 v{VD1}, v4, 4, v3
    v_add_u32 v{VD1}, 8192, v{VD1}
    s_lshl_b32 s78, s86, 16
    s_lshl_b32 s5, s43, 14
    s_add_u32 s78, s78, s5
    s_lshl_b32 s79, s43, 11            ; lds rows 16u  (= u*2048)
    """)
    q = []
    def xdma(sig):
        a(f"""
        s_add_u32 s5, s49, {sig}
        s_and_b32 s5, s5, 7
        s_lshl_b32 s5, s5, 7
        s_add_u32 m0, s79, {L_X+sig*8192}
        s_add_u32 s50, s5, s78
        buffer_load_dwordx4 v{VD0}, {sr(S_X)}, s50 offen lds
        s_add_u32 m0, s79, {L_X+sig*8192+1024}
        s_nop 0
        buffer_load_dwordx4 v{VD1}, {sr(S_X)}, s50 offen lds
        """)
        q.extend([("x", sig)] * 2)
    XA = int(os.environ.get("XA", "0"))
    for it in XSCHED[-1]:
        if isinstance(it, int) and it >= XA: xdma(it)
    RE = int(os.environ.get("RE", "0"))
    VRS = 163; S_R2 = S_X
    def rl_loads():
        a(f"""
        s_lshl_b32 s74, s4, 2
        s_add_u32 s74, s74, s43
        s_lshl_b32 s74, s74, 3
        s_add_u32 s74, s74, s3             ; gw = (4i + u)*8 + j
        v_and_b32 v3, 31, v1               ; i
        v_lshrrev_b32 v4, 5, v1            ; hh
        v_lshlrev_b32 v4, 12, v4
        v_lshl_add_u32 v{VRL}, v3, 2, v4
        s_and_b32 s6, s74, 7               ; cb
        s_cmp_ge_u32 s74, 896
        s_cbranch_scc1 L_wo
        """)
        srd(a, S_SRC, 18, 1792 * 1024)
        srd(a, S_R2, 18, 0)
        a(f"""
        s_lshr_b32 s7, s74, 3              ; kstep
        s_mov_b32 s56, {112*1024}
        s_mov_b32 s57, {W2F}
        s_branch L_rl2
        L_wo:
        """)
        srd(a, S_SRC, 12, 512 * 1024)
        srd(a, S_R2, 12, 512 * 1024)
        a(f"""
        s_sub_u32 s5, s74, 896
        s_lshr_b32 s7, s5, 3
        s_lshl_b32 s7, s7, 1               ; kstep
        s_mov_b32 s56, {32*1024}
        s_mov_b32 s57, {WOF}
        L_rl2:
        s_lshl_b32 s59, s7, 14
        s_lshl_b32 s5, s6, 7
        s_add_u32 s59, s59, s5             ; src
        s_lshl_b32 s5, s6, 1
        s_mul_i32 s5, s5, s56
        s_add_u32 s57, s57, s5
        s_lshl_b32 s5, s7, 10
        s_add_u32 s57, s57, s5
        v_bfe_u32 v3, v1, 4, 1
        v_mul_lo_u32 v3, v3, s56
        v_lshrrev_b32 v4, 5, v1
        v_lshl_add_u32 v3, v4, 9, v3
        v_and_b32 v4, 15, v1
        v_lshl_add_u32 v{VRS}, v4, 4, v3
        """)
        for half in range(2):
            for jq in range(2):
                a(f"s_add_u32 s5, s59, {half*16384 + jq*8192}")
                for jj in range(4):
                    a(f"buffer_load_dword v{R+8*half+4*jq+jj}, v{VRL}, {sr(S_R2 if half else S_SRC)}, s5 offen offset:{jj*1024}")
    def touch():
        srd(a, S_W1, 16, 512 * 3584)
        a(f"""
        s_mul_i32 s5, s49, {64*3584}
        s_add_u32 s5, s5, s76
        v_mul_u32_u24 v3, 3584, v1
        buffer_load_dword v{VPOLL}, v3, {sr(S_W1)}, s5 offen
        buffer_load_dword v{VPOLL}, v3, {sr(S_W1)}, s5 offen offset:64
        """)
        q.extend([("t", 0)] * 2)
    a(f"""
    s_and_b32 s5, s4, 3
    s_lshl_b32 s5, s5, 1
    s_add_u32 s73, s5, s42
    s_lshr_b32 s5, s87, 1
    s_mul_i32 s76, s5, 7
    s_add_u32 s76, s76, s43
    s_and_b32 s5, s87, 1
    s_lshl_b32 s6, s5, 2
    s_add_u32 s76, s76, s6             ; slice
    s_mov_b32 s85, 0
    s_add_u32 s6, s6, s43
    s_cmp_lg_u32 s6, 7
    s_cbranch_scc1 L_role
    s_mov_b32 s85, 2
    s_cmp_lg_u32 s87, 1
    s_cbranch_scc1 L_role
    s_mov_b32 s85, 1
    L_role:
    s_mul_i32 s54, s86, {2*112*1024}
    s_lshl_b32 s5, s76, 12
    s_add_u32 s54, s54, s5
    s_add_u32 s54, s54, {HF}
    s_add_u32 s55, s54, {112*1024}
    s_lshl_b32 s76, s76, 7
    """)
    if "T" in XSCHED[-1]: touch()
    make_tag(a)
    pa_addr(a)
    a("s_setprio 0")
    def wait_for(tagv):
        last = max(k for k, e in enumerate(q) if e == tagv)
        a(f"s_waitcnt vmcnt({len(q) - 1 - last})")
    ENT = [136, 144, 112, 120, 128][:int(os.environ.get("NE", "5"))]
    NE = len(ENT)
    def ent(n): return ENT[n % NE] * 1024
    def w1dma_list(n):
        sig, ss = n >> 2, n & 3
        l0 = ""
        if ss == 0:
            l0 = f"""
            s_add_u32 s5, s49, {sig}
            s_and_b32 s5, s5, 7
            s_mul_i32 s50, s5, {64*3584}
            s_add_u32 s50, s50, s76
            """
        l0 += f"""
        s_add_u32 m0, s79, {ent(n)}
        s_add_u32 s51, s50, {ss*16*3584}
        buffer_load_dwordx4 v{VD0}, {sr(S_W1)}, s51 offen lds
        """
        l1 = f"""
        s_add_u32 m0, s79, {ent(n)+1024}
        s_nop 0
        buffer_load_dwordx4 v{VD1}, {sr(S_W1)}, s51 offen lds
        """
        return [l0, l1]
    def w1dma(ns):
        LS = a.new("L_w1s")
        a(f"""
        s_cmp_lg_u32 s85, 0
        s_cbranch_scc1 {LS}
        """)
        for n in ns:
            for l in w1dma_list(n): a(l)
            q.extend([("w", n)] * 2)
        a.label(LS)
    for sig in range(8):
        if sig < XA: pass
        elif sig < 4: wait_for(("x", sig))
        elif sig == 4:
            wait_for(("x", 7))
            q.clear()
        if sig == 0 and not os.environ.get("TAILST"): stamp(a, 0)
        if sig <= 6: stamp(a, sig, pa=True)
        a("s_barrier")
        for it in XSCHED.get(sig, []):
            if isinstance(it, int): xdma(it)
            elif it == "T": touch()
        if RE and sig == RE: rl_loads()
        if sig == 4:
            srd(a, S_W1, 16, 512 * 3584)
            a(f"""
            v_lshrrev_b32 v3, 3, v1            ; row = l>>3
            v_mul_u32_u24 v4, 3584, v3
            v_bfe_u32 v5, v1, 4, 1
            v_lshlrev_b32 v5, 2, v5
            v_and_b32 v6, 7, v1
            v_xor_b32 v6, v6, v5
            v_lshl_add_u32 v{VD0}, v6, 4, v4
            v_add_u32 v{VD1}, {8*3584}, v{VD0}
            """)
        if sig >= 5: stamp(a, 2 * (sig - 5), pa=2)
        if sig == 5:
            if not F1D: w1dma([0, 1])
            srd(a, S_G, 20, 1024)
            a(f"""
            s_cmp_lg_u32 s85, 1
            s_cbranch_scc1 L_nogd
            s_lshl_b32 s5, s49, 3
            v_add_u32 v3, s5, v1
            v_and_b32 v3, 63, v3
            v_lshlrev_b32 v3, 4, v3
            s_add_u32 m0, s79, {ent(0)}
            s_nop 0
            buffer_load_dwordx4 v3, {sr(S_G)}, 0 offen lds
            L_nogd:
            v_mov_b32 v3, 0
            v_lshlrev_b32 v4, 2, v1
            v_add_u32 v4, {L_MISC}, v4
            ds_write_b32 v4, v3
            """)
        if sig == 6 and not F1D: w1dma(list(range(2, NE)))
        if sig == 6:
            a(f"""
            s_add_u32 s5, s79, {L_VX}
            v_add_u32 v3, s5, v2
            v_and_b32 v{VWF}, 0x7ff, v{VWA}
            s_and_b32 s5, s43, 2
            s_lshl_b32 s5, s5, 5
            v_xor_b32 v{VWF}, s5, v{VWF}
            s_add_u32 s5, s79, {112*1024}
            v_add_u32 v{VWF}, s5, v{VWF}
            v_xor_b32 v{VWF+1}, 64, v{VWF}
            v_and_b32 v4, 31, v1
            v_lshlrev_b32 v{VFL}, 7, v4
            s_lshl_b32 s5, s43, 2
            v_add_u32 v{VPG}, s5, v{VMI}
            s_lshl_b32 s77, s3, 12
            s_add_u32 s77, s77, {FL1}          ; FL1[j]
            """)
        if sig == 7: a(f"s_setprio {int(os.environ.get('VPRIO', '0'))}")
        if sig >= 5: stamp(a, 2 * (sig - 5) + 1, pa=2)
        pa_compute(a, sig, True)
    a(f"""
    s_movk_i32 s5, 0xefff
    v_and_b32 v{VXA}, s5, v{VXA}
    v_and_b32 v{VXA+1}, s5, v{VXA+1}
    v_and_b32 v{VXA+2}, s5, v{VXA+2}
    v_and_b32 v{VXA+3}, s5, v{VXA+3}
    s_nop 7
    s_nop 5
    """)
    for r in range(8):
        a(f"v_cvt_pk_bf16_f32 v{XB+r}, v{ACCA+2*r}, v{ACCA+2*r+1}")
    a(f"""
    s_nop 1
    v_permlane32_swap_b32 v{XB}, v{XB+2}
    v_permlane32_swap_b32 v{XB+1}, v{XB+3}
    v_permlane32_swap_b32 v{XB+4}, v{XB+6}
    v_permlane32_swap_b32 v{XB+5}, v{XB+7}
    s_nop 1
    ds_write_b128 v3, {vr(XB,4)}
    ds_write_b128 v3, {vr(XB+4,4)} offset:1024
    s_waitcnt lgkmcnt(0)
    s_barrier
    """)
    stamp(a, 6, pa=2)
    VM = VMI
    ACC = 16; BUF = 80
    def fprog():
        a(f"""
        v_mov_b32 v3, 1
        ds_write_b32 v{VPG}, v3 offset:{M_FP}
        """)
    def pollld():
        a(f"buffer_load_dword v{VPOLL}, v{VFL}, {sr(S_WS)}, s77 offen sc1")
    a(f"""
    s_setprio {int(os.environ.get("F1PRIO", "2"))}
    s_cmp_eq_u32 s85, 1
    s_cbranch_scc1 L_f1g
    s_cmp_eq_u32 s85, 2
    s_cbranch_scc1 L_f1n
    """)
    if F1D:
        lds_wait(a, VM, M_C1 if F1D == 1 else M_S0, 8, 3, sleep=2)
        for n in range(NE):
            for l in w1dma_list(n): a(l)
            q.extend([("w", n)] * 2)
    def reads(n):
        b = BUF + 16 * (n % 2)
        e = ent(n) - 112 * 1024
        hi = 0
        xo = (n >> 2) * 8192
        return [f"ds_read_b64_tr_b16 {vr(b,2)}, v{VWF+hi} offset:{e}",
                f"ds_read_b64_tr_b16 {vr(b+2,2)}, v{VWF+hi} offset:{e+512}",
                f"ds_read_b128 {vr(b+8,4)}, v{VXA+(n&3)} offset:{xo}",
                f"ds_read_b128 {vr(b+12,4)}, v{VXA+(n&3)} offset:{xo+4096}",
                f"ds_read_b64_tr_b16 {vr(b+4,2)}, v{VWF+hi+1} offset:{e}",
                f"ds_read_b64_tr_b16 {vr(b+6,2)}, v{VWF+hi+1} offset:{e+512}"]
    wait_for(("w", 0))
    if not os.environ.get("TAILST"): stamp(a, 1)
    for l in reads(0): a(l)
    for n in range(32):
        b = BUF + 16 * (n % 2)
        def mf(at, bt):
            d = ACC + 16 * (2 * at + bt)
            c = "0" if n == 0 else vr(d, 16)
            a(f"v_mfma_f32_32x32x16_bf16 {vr(d,16)}, {vr(b+4*at,4)}, {vr(b+8+4*bt,4)}, {c}")
        a("s_waitcnt lgkmcnt(0)")
        mf(0, 0)
        rd = reads(n + 1) if n < 31 else []
        if rd: wait_for(("w", n + 1))
        for l in rd[:3]: a(l)
        mf(0, 1)
        for l in rd[3:]: a(l)
        dl = w1dma_list(n + NE) if n + NE < 32 else []
        mf(1, 0)
        if dl:
            a(dl[0]); q.append(("w", n + NE))
        mf(1, 1)
        if dl:
            a(dl[1]); q.append(("w", n + NE))
        if n == 27:
            pollld(); q.append(("p", 0))
    a("s_branch L_f1done")
    a.label("L_f1g")
    a(f"""
    v_lshrrev_b32 v4, 5, v1
    v_lshlrev_b32 v4, 4, v4
    s_add_u32 s5, s79, {ent(0)}
    v_add_u32 v4, s5, v4
    s_waitcnt vmcnt(0)
    """)
    for sg in range(8):
        for ss in range(4):
            n = 4 * sg + ss
            b = BUF + 12 * ss
            a(f"""
            ds_read_b128 {vr(b,4)}, v4 offset:{n*32}
            ds_read_b128 {vr(b+4,4)}, v{VXA+ss} offset:{sg*8192}
            ds_read_b128 {vr(b+8,4)}, v{VXA+ss} offset:{sg*8192+4096}
            """)
        a("s_waitcnt lgkmcnt(0)")
        for ss in range(4):
            b = BUF + 12 * ss
            for bt in range(2):
                d = ACC + 16 * bt
                c = "0" if (sg == 0 and ss == 0) else vr(d, 16)
                a(f"v_mfma_f32_32x32x16_bf16 {vr(d,16)}, {vr(b,4)}, {vr(b+4+4*bt,4)}, {c}")
    a(f"""
    v_cmp_gt_u32 vcc, 32, v1
    s_nop 7
    s_nop 7
    v_cndmask_b32 v8, v{ACC+16}, v{ACC}, vcc
    """)
    sigmoid(a, 8)
    a("s_branch L_f1w")
    a.label("L_f1n")
    a.label("L_f1w")
    lds_wait(a, VM, M_QOK, 3, 3, sleep=4)
    pollld()
    a.label("L_f1done")
    a("s_setprio 3")
    lds_add(a, VM, M_F1C, 3)
    if not os.environ.get("TAILST"): stamp(a, 2)
    stamp(a, 0, pa=3)
    a(f"""
    s_mov_b32 s{S_H}, s{S_WS}
    s_mov_b32 s{S_H+1}, s{S_WS+1}
    s_cmp_eq_u32 s85, 0
    s_cselect_b32 s{S_H+2}, {WS_BYTES:#x}, 0
    s_mov_b32 s{S_G}, s{S_WS}
    s_mov_b32 s{S_G+1}, s{S_WS+1}
    s_cmp_eq_u32 s85, 1
    s_cselect_b32 s{S_G+2}, {WS_BYTES:#x}, 0
    s_nop 5
    s_lshl_b32 s5, s41, 17
    s_lshl_b32 s52, s43, 12
    s_add_u32 s53, s5, s52
    s_add_u32 s53, s53, {KV}
    s_lshl_b32 s58, s86, 8
    s_add_u32 s58, s58, {GBUF}
    v_lshlrev_b32 v9, 2, v1
    s_nop 3
    """)
    stores = []
    for at in range(2):
        for bt in range(2):
            d = ACC + 16 * (at * 2 + bt)
            o = BUF + 8 * (at * 2 + bt)
            for r in range(8):
                a(f"v_cvt_pk_bf16_f32 v{o+r}, v{d+2*r}, v{d+2*r+1}")
            for r in range(8):
                a(f"v_pk_max_i16 v{o+r}, v{o+r}, 0")
            for half in range(2):
                stores.append(f"buffer_store_dwordx4 {vr(o+4*half,4)}, v2, {sr(S_H)}, s{54+bt} offen offset:{(2*at+half)*1024} sc1")
    stores.append(f"buffer_store_dword v8, v9, {sr(S_G)}, s58 offen sc1")
    a("s_waitcnt vmcnt(0)")
    a(f"""
    v_cmp_ne_u32 vcc, s{S_TAG}, v{VPOLL}
    s_cmp_eq_u64 vcc, 0
    s_cbranch_scc1 L_allok
    """)
    poll_flags(a, VFL, "s77", [(1, 0)], VPOLL, sleep=3)
    a.label("L_allok")
    lds_wait(a, VM, M_C1, 8, 3, sleep=1)
    lds_wait(a, VM, M_F1C, 4, 3, sleep=1)
    AW = int(os.environ.get("AW", "2"))
    if AW == 1: lds_wait(a, VM, M_S0, 8, 3, sleep=1)
    if AW == 2: lds_wait(a, VM, M_S1, 4, 3, sleep=1)
    def kvdma(sg):
        a(f"""
        s_add_u32 s6, s72, {sg}
        s_and_b32 s6, s6, 7
        s_lshl_b32 s6, s6, 14
        s_add_u32 m0, s52, {sg*16384}
        s_add_u32 s6, s6, s53
        """)
        for k in range(4):
            a(f"buffer_load_dwordx4 v2, {sr(S_WS)}, s6 offen offset:{k*1024} lds")
    def prog(n):
        a(f"""
        v_mov_b32 v10, {n}
        ds_write_b32 v{VPG}, v10 offset:{M_PROG}
        """)
    stamp(a, 1, pa=3)
    KSP = int(os.environ.get("KSP", "5"))
    for sg in range(3, KSP):
        kvdma(sg)
    AX = int(os.environ.get("AX", "0"))
    if AX == 1: lds_wait(a, VM, M_S1, 4, 3, sleep=1)
    if AX == 2:
        a("s_waitcnt vmcnt(0)")
        prog(8)
        lds_wait(a, VM, M_S1, 4, 3, sleep=1)
    if not RE: rl_loads()
    for l in stores: a(l)
    a(f"""
    s_mov_b32 s{S_R2}, s{S_WS}
    s_mov_b32 s{S_R2+1}, s{S_WS+1}
    s_cmp_ge_u32 s74, 896
    s_cselect_b32 s{S_R2+2}, {WS_BYTES:#x}, 0
    s_mov_b32 s80, 0x05040100
    s_mov_b32 s81, 0x07060302
    """)
    stamp(a, 2, pa=3)
    a(f"s_waitcnt vmcnt({(0 if RE else 16)+len(stores)})")
    prog(KSP)
    if not os.environ.get("TAILST"): stamp(a, 6)
    stamp(a, 3, pa=3)
    a(f"s_waitcnt vmcnt({len(stores)})")
    stamp(a, 4, pa=3)
    for half in range(2):
        for jj in range(4):
            A = R + 8 * half + 2 * jj
            a(f"v_perm_b32 v{F+8*half+jj}, v{A+1}, v{A}, s80")
            a(f"v_perm_b32 v{F+8*half+4+jj}, v{A+1}, v{A}, s81")
        sd = S_R2 if half else S_WS
        a(f"buffer_store_dwordx4 {vr(F+8*half,4)}, v{VRS}, {sr(sd)}, s57 offen offset:{half*1024} sc1")
        a(f"buffer_store_dwordx4 {vr(F+8*half+4,4)}, v{VRS}, {sr(sd)}, s57 offen offset:{half*1024+256} sc1")
    for sg in range(KSP, 8):
        kvdma(sg)
    a(f"""
    s_waitcnt vmcnt({4*(8-KSP)})
    s_mov_b64 exec, 1
    v_mov_b32 v8, 1
    ds_add_rtn_u32 v8, v{VM}, v8 offset:{M_E2}
    s_waitcnt lgkmcnt(0)
    s_mov_b64 exec, -1
    v_readfirstlane_b32 s5, v8
    s_cmp_lg_u32 s5, 3
    s_cbranch_scc1 L_e2skip
    s_lshl_b32 s5, s2, 7
    s_add_u32 s5, s5, {FL2}
    """)
    store_flag(a, "s5", BUF)
    a.label("L_e2skip")
    stamp(a, 5, pa=3)
    if KSP < 8:
        a("s_waitcnt vmcnt(0)")
        prog(8)
    a(f"""
    """)
    a(f"""
    s_mul_i32 s5, s43, 7
    s_lshl_b32 s50, 0x7f, s5
    s_lshl_b32 s5, 0x10000000, s43
    s_or_b32 s50, s50, s5
    s_lshl_b32 s5, s43, 1
    s_lshl_b32 s51, 3, s5
    s_lshl_b32 s5, 0x100, s43
    s_or_b32 s51, s51, s5
    v_and_b32 v3, 7, v1
    s_lshl_b32 s5, s42, 2
    v_add_u32 v4, s5, v3               ; 4c + k
    v_mov_b32 v5, s41
    v_cmp_lt_u32 vcc, 39, v1
    v_cndmask_b32 v4, v5, v4, vcc      ; tb
    v_cndmask_b32 v3, v3, 1, vcc       ; g
    v_lshrrev_b32 v5, {TBS}, v4
    v_lshlrev_b32 v5, {TBS-2}, v5
    v_lshrrev_b32 v6, {5-TBS}, v3
    v_add_u32 v5, v5, v6               ; j
    v_and_b32 v6, {(1<<(5-TBS))-1}, v3
    v_lshlrev_b32 v6, {TBS}, v6
    v_and_b32 v4, {(1<<TBS)-1}, v4
    v_add_u32 v6, v6, v4               ; i
    v_lshl_add_u32 v4, v6, 3, v5
    v_lshlrev_b32 v7, 3, v1
    v_add_u32 v7, s42, v7
    v_cmp_lt_u32 vcc, 31, v1
    v_cndmask_b32 v7, v7, v4, vcc
    v_lshlrev_b32 v7, 7, v7
    s_mov_b32 s58, {FL2}
    """)
    lds_wait(a, VM, M_E2, 4, 6, sleep=4)
    a(f"""
    s_sleep {int(os.environ.get('ESL', '8'))}
    L_e2p:
    s_mov_b64 exec, s[50:51]
    buffer_load_dword v{BUF}, v7, {sr(S_WS)}, s58 offen sc1
    s_waitcnt vmcnt(0)
    v_cmp_ne_u32 vcc, s{S_TAG}, v{BUF}
    s_mov_b64 exec, -1
    s_cmp_eq_u64 vcc, 0
    s_cbranch_scc1 L_e2ok
    """)
    spin_guard(a, "L_e2p", int(os.environ.get('ESL2', '10')))
    a.label("L_e2ok")
    if not os.environ.get("TAILST"): stamp(a, 3)
    stamp(a, 6, pa=3)
    a(f"""
    v_and_b32 v3, 31, v1
    v_lshlrev_b32 v3, 2, v3
    s_lshl_b32 s58, s41, 8
    s_and_b32 s5, s43, 1
    s_lshl_b32 s5, s5, 7
    s_add_u32 s58, s58, s5
    s_add_u32 s58, s58, {GBUF}
    v_mov_b32 v10, v3
    s_lshl_b32 s5, s42, 3
    s_lshl_b32 s6, s43, 1
    s_add_u32 s5, s5, s6
    s_lshl_b32 s5, s5, 5
    s_add_u32 s5, s5, s41
    s_lshl_b32 s5, s5, 10
    s_add_u32 s5, s5, {OF}
    s_add_u32 s6, s5, 32768
    v_mov_b32 v160, -1
    v_mov_b32 v161, -1
    v_mov_b32 v162, -1
    v_mov_b32 v163, -1
    buffer_store_dwordx4 v[160:163], v2, {sr(S_WS)}, s5 offen sc1
    buffer_store_dwordx4 v[160:163], v2, {sr(S_WS)}, s6 offen sc1
    s_lshr_b32 s50, s43, 1             ; kh
    s_and_b32 s51, s43, 1              ; bt
    s_mul_i32 s5, s50, {112*1024}
    v_add_u32 v4, s5, v2
    s_sub_u32 s5, {112*1024}, s5
    v_add_u32 v5, s5, v2
    s_mul_i32 s5, s51, {112*1024}
    v_add_u32 v6, s5, v2
    s_sub_u32 s5, {112*1024}, s5
    v_add_u32 v7, s5, v2
    s_mul_i32 s5, s43, {28*1024}
    s_mul_i32 s52, s42, {2*112*1024}
    s_add_u32 s52, s52, s5
    s_add_u32 s52, s52, {W2F}
    s_mul_i32 s53, s41, {2*112*1024}
    s_add_u32 s53, s53, s5
    s_add_u32 s53, s53, {HF}
    s_lshl_b32 s54, s42, 1
    s_lshr_b32 s5, s43, 1
    s_add_u32 s54, s54, s5             ; c tile
    s_lshl_b32 s54, s54, 15
    s_add_u32 s54, s54, {WOF}
    s_lshl_b32 s55, s41, 1
    s_and_b32 s5, s43, 1
    s_add_u32 s55, s55, s5
    s_lshl_b32 s56, s55, 12
    s_add_u32 s56, s56, {FL3}
    s_lshl_b32 s55, s55, 15
    s_add_u32 s55, s55, {OF}
    s_sub_u32 s78, s73, 7
    s_cmp_ge_u32 s73, 7
    s_cselect_b32 s78, s78, s73
    """)
    a(f"s_setprio {FPRIO}")
    WOS = int(os.environ.get("WOS", "20"))
    def wo_stage():
        a(f"""
        s_lshl_b32 s6, s43, 14
        s_lshl_b32 s7, s42, 16
        s_add_u32 s7, s7, s6
        s_add_u32 s7, s7, {WOF}
        """)
        lds_wait(a, VM, M_PZ, 4, 9, sleep=4)
        a(f"buffer_load_dword v10, v10, {sr(S_WS)}, s58 offen")
        lds_wait(a, VM, M_DEAD, 8, 9, sleep=4)
        for sg in range(4):
            a(f"""
            s_add_u32 m0, s6, {sg*4096}
            s_add_u32 s5, s7, {sg*4096}
            """)
            for q in range(4):
                a(f"buffer_load_dwordx4 v2, {sr(S_WS)}, s5 offen offset:{q*1024} lds")
        return 17
    def f2hook(st):
        if st == 1: lds_add(a, VM, M_PZ, 9)
        if st == WOS: return wo_stage()
    stream_gemm(a, 28, 2, 2, ACC, BUF, 5, 4, 6, 52, 53, 78, hook=f2hook)
    a("s_setprio 3")
    stamp(a, 4)
    stamp(a, 0, pa=4)
    X = ACC; Y = ACC + 32
    a(f"""
    s_lshl_b32 s52, s43, 14
    s_lshl_b32 s7, s42, 16
    s_add_u32 s7, s7, s52
    s_add_u32 s7, s7, {WOF}
    s_lshl_b32 s5, s43, 13
    s_add_u32 s5, s5, 65536
    v_add_u32 v15, s5, v2
    v_xor_b32 v3, 8192, v15
    v_xor_b32 v12, 16384, v15
    s_lshl_b32 s5, s43, 2
    v_add_u32 v11, s5, v{VM}
    v_xor_b32 v8, 4, v11
    """)
    if WOS >= 28: wo_stage()
    stamp(a, 1, pa=4)
    lds_wait(a, VM, M_DEAD2, 8, 9, sleep=2)
    stamp(a, 2, pa=4)
    for t in range(2):
        for q in range(4):
            a(f"ds_write_b128 v3, {vr(ACC+16+32*t+4*q,4)} offset:{t*4096+q*1024}")
    a(f"""
    v_mov_b32 v9, 1
    s_waitcnt lgkmcnt(0)
    ds_write_b32 v8, v9 offset:{M_XP}
    """)
    stamp(a, 3, pa=4)
    lds_wait(a, 11, M_XP, 1, 9, sleep=1)
    for t in range(2):
        for q in range(4):
            a(f"ds_read_b128 {vr(ACC+16+32*t+4*q,4)}, v15 offset:{t*4096+q*1024}")
    a("s_waitcnt lgkmcnt(0)")
    stamp(a, 4, pa=4)
    for t in range(2):
        for r in range(16):
            a(f"v_add_f32 v{ACC+32*t+r}, v{ACC+32*t+r}, v{ACC+16+32*t+r}")
    a("""
    s_waitcnt vmcnt(16)
    v_sub_f32 v10, 1.0, v10
    """)
    for t in range(2):
        for r in range(16):
            a(f"v_mul_f32 v{ACC+32*t+r}, v{ACC+32*t+r}, v10")
    srd(a, S_OUT, 22, 2048 * 1024)
    a(f"""
    s_sub_u32 s57, s55, {OF}           ; T*32768 = 32 tokens * 1024
    s_sub_u32 s5, s54, {WOF}
    s_lshr_b32 s5, s5, 9               ; ct*64
    s_add_u32 s57, s57, s5
    v_and_b32 v3, 31, v1
    v_lshlrev_b32 v6, 10, v3
    v_lshrrev_b32 v4, 5, v1
    v_lshl_add_u32 v6, v4, 4, v6
    v_lshlrev_b32 v7, 7, v3
    s_lshl_b32 s5, s50, 11
    s_add_u32 s56, s56, s5
    s_lshl_b32 s5, s50, 14
    s_add_u32 s55, s55, s5
    s_mul_i32 s5, s50, {32768+16384}
    v_add_u32 v5, s5, v2
    s_lshl_b32 s5, s50, 2
    v_add_u32 v14, s5, v{VM}
    v_xor_b32 v10, 8, v11
    s_mov_b32 s48, 0x1111
    s_mov_b32 s59, 0
    s_mov_b32 s75, 0
    s_waitcnt vmcnt(0)
    """)
    stamp(a, 5, pa=4)
    lds_add(a, VM, M_W, 9)
    lds_wait(a, VM, M_W, 4, 9, sleep=2)
    if os.environ.get("TAILST"): stamp(a, 0)
    stamp(a, 6, pa=4)
    SET = 64
    HB = [128, 144]
    def setaddr(sb):
        a(f"""
        s_lshl_b32 s5, {sb}, 10
        v_add_u32 v8, s5, v5
        v_xor_b32 v9, 32768, v8
        """)
    def rd(h):
        b = HB[h]
        a(f"ds_read_b128 {vr(b,4)}, v8 offset:{h*2048}")
        a(f"ds_read_b128 {vr(b+4,4)}, v9 offset:{h*2048}")
        a(f"ds_read_b128 {vr(b+8,4)}, v8 offset:{h*2048+1024}")
        a(f"ds_read_b128 {vr(b+12,4)}, v9 offset:{h*2048+1024}")
    a(f"""
    s_mov_b32 s49, 0
    s_mov_b32 s53, -1
    L_op:
    ds_read_b32 v3, v14 offset:{M_RDY}
    s_or_b32 s6, s49, s75
    s_waitcnt lgkmcnt(0)
    v_readfirstlane_b32 s59, v3
    s_and_b32 s58, s59, s48
    s_andn2_b32 s58, s58, s6           ; new
    s_cbranch_scc0 L_noiss
    """)
    if os.environ.get("TAILST"): stamp(a, 1)
    for j in range(4):
        o = SET + 16 * j
        a(f"""
        s_bitcmp1_b32 s58, {4*j}
        s_cbranch_scc0 L_oi{j}
        s_add_u32 s6, s55, {j*4096}
        """)
        for q in range(4):
            a(f"buffer_load_dwordx4 {vr(o+4*q,4)}, v2, {sr(S_WS)}, s6 offen offset:{q*1024} sc1")
        a.label(f"L_oi{j}")
    a(f"""
    s_or_b32 s49, s49, s58
    L_noiss:
    s_cmp_lg_u32 s75, 0
    s_cbranch_scc1 L_proc
    s_cmp_lg_u32 s49, 0
    s_cbranch_scc1 L_owait
    s_andn2_b32 s5, s59, 0x1111
    s_or_b32 s5, s5, s51
    s_cbranch_scc1 L_oidle
    s_andn2_b32 s5, 0x1111, s59
    s_mul_i32 s5, s5, 15
    s_or_b32 exec_lo, s5, 1
    s_mov_b32 exec_hi, 0
    buffer_load_dword v3, v7, {sr(S_WS)}, s56 offen sc1
    s_waitcnt vmcnt(0)
    v_cmp_ne_u32 vcc, s{S_TAG}, v3
    s_lshr_b32 s5, vcc_lo, 1
    s_or_b32 s5, s5, vcc_lo
    s_lshr_b32 s6, s5, 2
    s_or_b32 s5, s5, s6
    s_andn2_b32 s5, 0x1111, s5
    v_mov_b32 v4, s5
    s_mov_b64 exec, 1
    ds_or_b32 v14, v4 offset:{M_RDY}
    s_mov_b64 exec, -1
    s_cmp_lg_u32 s5, s59
    s_cbranch_scc1 L_op
    s_sleep {int(os.environ.get("OSL", "4"))}
    L_oidle:
    """)
    spin_guard(a, "L_op", 1)
    a(f"""
    L_owait:
    s_mov_b32 s75, s49
    s_mov_b32 s49, 0
    s_ff1_i32_b32 s52, s75
    s_cmp_eq_u32 s52, s53
    s_cbranch_scc1 L_ow2
    s_mov_b32 s53, s52
    """)
    setaddr("s53"); rd(0); rd(1)
    a(f"""
    L_ow2:
    s_waitcnt vmcnt(0)
    L_proc:
    """)
    if os.environ.get("TAILST"): stamp(a, 2)
    a(f"""
    s_ff1_i32_b32 s52, s75
    s_bitset0_b32 s75, s52
    s_cmp_eq_u32 s52, s53
    s_cbranch_scc1 L_pr2
    s_mov_b32 s53, s52
    """)
    setaddr("s53"); rd(0); rd(1)
    a(f"""
    L_pr2:
    s_cmp_lg_u32 s75, 0
    s_cselect_b32 s5, s75, s49
    s_ff1_i32_b32 s74, s5
    s_max_i32 s74, s74, 0
    """)
    setaddr("s74")
    for j in range(4):
        o = SET + 16 * j
        if j < 3:
            a(f"""
            s_cmp_lg_u32 s52, {4*j}
            s_cbranch_scc1 L_om{j}
            """)
        a(f"v_max3_u32 v4, v{o}, v{o+1}, v{o+2}")
        for r in range(3, 15, 2):
            a(f"v_max3_u32 v4, v4, v{o+r}, v{o+r+1}")
        a(f"""
        v_max_u32 v4, v4, v{o+15}
        v_cmp_eq_u32 vcc, -1, v4
        s_cmp_eq_u64 vcc, 0
        s_cbranch_scc0 L_ofail
        s_bitset0_b32 s48, {4*j}
        s_mov_b32 s53, s74
        """)
        for h in range(2):
            b = HB[h]
            a("s_waitcnt lgkmcnt(4)" if h == 0 else "s_waitcnt lgkmcnt(4)")
            for qq in range(2):
                a(f"v_mfma_f32_32x32x16_bf16 {vr(Y,16)}, {vr(b+8*qq+4,4)}, {vr(o+8*h+4*qq,4)}, {vr(Y,16)}")
                a(f"v_mfma_f32_32x32x16_bf16 {vr(X,16)}, {vr(b+8*qq,4)}, {vr(o+8*h+4*qq,4)}, {vr(X,16)}")
            rd(h)
        a(f"""
        s_cmp_eq_u32 s48, 0
        s_cbranch_scc0 L_op
        s_branch L_odone
        """)
        if j < 3: a.label(f"L_om{j}")
    a.label("L_ofail")
    spin_guard(a, "L_op", 1)
    a("""
    L_odone:
    s_nop 7
    s_nop 7
    """)
    stamp(a, 5)
    for q in range(4):
        a(f"ds_write_b128 v12, {vr(Y+4*q,4)} offset:{q*1024}")
    a(f"""
    v_mov_b32 v4, 1
    s_waitcnt lgkmcnt(0)
    ds_write_b32 v10, v4 offset:{M_Y}
    """)
    lds_wait(a, 11, M_Y, 1, 9, sleep=0)
    if os.environ.get("TAILST"): stamp(a, 3)
    for q in range(4):
        a(f"ds_read_b128 {vr(Y+4*q,4)}, v15 offset:{q*1024}")
    a("s_waitcnt lgkmcnt(0)")
    for r in range(16):
        a(f"v_add_f32 v{X+r}, v{X+r}, v{Y+r}")
    for r in range(8):
        a(f"v_cvt_pk_bf16_f32 v{SET+r}, v{X+r}, v{X+8+r}")
    OST = os.environ.get("OST", "")
    a(f"""
    buffer_store_dwordx4 {vr(SET,4)}, v6, {sr(S_OUT)}, s57 offen {OST}
    buffer_store_dwordx4 {vr(SET+4,4)}, v6, {sr(S_OUT)}, s57 offen offset:32 {OST}
    """)
    if os.environ.get("TAILST"): stamp(a, 6)
    stamp_end(a)

def kd(name, nv, ns=102):
    return f""".p2align 6
.amdhsa_kernel {name}
  .amdhsa_next_free_vgpr {nv}
  .amdhsa_next_free_sgpr {ns}
  .amdhsa_accum_offset {(nv+3)//4*4}
  .amdhsa_group_segment_fixed_size 0
  .amdhsa_kernarg_size 80
  .amdhsa_user_sgpr_count 2
  .amdhsa_user_sgpr_kernarg_segment_ptr 1
  .amdhsa_system_sgpr_workgroup_id_x 1
.end_amdhsa_kernel
"""

def main(out):
    hdr = open("cdna_kernels/" + NAME + ".s.ref").read().split("\n")
    hdr = [l for l in hdr if l.startswith(";") and "@launch" not in l]
    a = Asm()
    gen(a)
    txt = "\n".join(hdr) + "\n"
    txt += f"; @launch grid=(256,1,1) block=(768,1,1) lds={LDS_BYTES}\n"
    txt += '.amdgcn_target "amdgcn-amd-amdhsa--gfx950"\n.text\n'
    body = a.text()
    if int(os.environ.get("ALLSC1", "1")):
        ol = []
        for l in body.split("\n"):
            if l.strip().startswith("buffer_load") and sr(S_WS) in l and "sc1" not in l:
                l = l.replace(" lds", " sc1 lds") if l.rstrip().endswith(" lds") else l + " sc1"
            ol.append(l)
        body = "\n".join(ol)
    txt += body
    txt += '.section .rodata,"a"\n'
    txt += kd(NAME + "_kernel", 168)
    open(out, "w").write(txt)

if __name__ == "__main__":
    main(sys.argv[1] if len(sys.argv) > 1 else "cdna_kernels/" + NAME + ".s")
```

```python
import math, os, struct, sys

NAME = "gated_mix__mha_block__dense_activation_relu__prompt"
STAMP = os.environ.get("STAMP")

def f32bits(x):
    return struct.unpack("<I", struct.pack("<f", x))[0]

class Asm:
    def __init__(self):
        self.l = []
        self.uid = 0
    def __call__(self, s):
        for line in s.strip("\n").split("\n"):
            line = line.strip()
            if line:
                self.l.append(("" if line.endswith(":") else "    ") + line)
    def label(self, s):
        self.l.append(s + ":")
    def raw(self, s):
        self.l.append(s)
    def new(self, p="L"):
        self.uid += 1
        return f"{p}_{self.uid}"
    def text(self):
        return "\n".join(self.l) + "\n"

EPOCH = 0x0
QF = 0x1A00000
XID = 0xD38000
KV = 0x200000
XF = 0x600000
W1F = 0x800000
W2F = 0xA00000
WOF = 0xC00000
FLS = 0xD00000
FL2 = 0xD10000
FL1 = 0xD40000
FL3 = 0xD80000
GBUF = 0xD20000
FLG = 0xD30000
HF = 0x1000000
OF = 0x1800000
STB = 0x1F00000
WS_BYTES = 0x2000000

L_X = 49152
L_W = 65536
L_OX = 131072
L_MISC = 157696
L_MISC0 = 65536
L_LX = 158720
L_GF = 160768
LDS_BYTES = 163840
M_PROG, M_QOK, M_PAIR, M_GF, M_E0R, M_E2, M_E2R, M_DMA = 0, 32, 64, 128, 136, 140, 144, 168
M_FP, M_C1, M_F1C, M_S0, M_S1, M_DEAD, M_X, M_RDY, M_W, M_DEAD2, M_Y, M_PZ, M_XP = 16, 176, 180, 184, 188, 192, 196, 200, 208, 212, 224, 216, 240
WSLOT = [136*1024, 112*1024, 24*1024, 0]
L_VX = 24 * 1024

QSCALE = 0.25 * math.log2(math.e)
LOG2E = math.log2(math.e)
SPIN_MAX = 200000
ILV = int(os.environ.get('ILV', '0'))
FPRIO = int(os.environ.get('FPRIO', '0'))

S_X, S_WQKV, S_WS, S_SRC, S_OUT = 28, 32, 36, 44, 60
S_TAG = 82
S_EP = 84
S_SPIN = 83

def vr(a, n):
    return f"v[{a}:{a+n-1}]"
def sr(a):
    return f"s[{a}:{a+3}]"

def srd(a, d, base, nbytes):
    a(f"""
    s_mov_b32 s{d}, s{base}
    s_and_b32 s{d+1}, s{base+1}, 0xffff
    s_mov_b32 s{d+2}, {nbytes:#x}
    s_mov_b32 s{d+3}, 0x20000
    """)

NST = 7
def stamp_begin(a):
    if not STAMP: return
    a("""
    s_memtime s[64:65]
    s_memrealtime s[66:67]
    s_waitcnt lgkmcnt(0)
    """)
    for i in range(NST):
        a(f"s_mov_b32 s{88+2*i}, {'s66' if os.environ.get('RT') else 's64'}")
PAST = os.environ.get("PAST")
def stamp(a, i, pa=False):
    if not STAMP: return
    if int(PAST or 0) != int(pa): return
    a(f"""
    s_waitcnt lgkmcnt(0)
    {'s_memrealtime' if os.environ.get('RT') else 's_memtime'} s[{88+2*i}:{89+2*i}]
    s_waitcnt lgkmcnt(0)
    """)
def stamp_end(a):
    if not STAMP: return
    a(f"""
    s_waitcnt vmcnt(0) lgkmcnt(0)
    s_memtime s[68:69]
    s_memrealtime s[70:71]
    s_waitcnt lgkmcnt(0)
    s_mov_b64 exec, 1
    v_mov_b32 v4, s64
    v_mov_b32 v5, s66
    v_mov_b32 v6, s68
    v_mov_b32 v7, s70
    """)
    for i in range(8):
        a(f"v_mov_b32 v{8+i}, s{88+2*min(i,NST-1)}" if i < NST else "v_mov_b32 v15, s73")
    a(f"""
    s_lshl_b32 s72, s2, 4
    s_add_u32 s72, s72, s40
    s_lshl_b32 s72, s72, 6
    s_add_u32 s72, s72, {STB}
    v_mov_b32 v3, 0
    buffer_store_dwordx4 v[4:7], v3, {sr(S_WS)}, s72 offen
    buffer_store_dwordx4 v[8:11], v3, {sr(S_WS)}, s72 offen offset:16
    buffer_store_dwordx4 v[12:15], v3, {sr(S_WS)}, s72 offen offset:32
    """)

def spin_guard(a, again, sleep=4):
    a(f"""
    s_sleep {sleep}
    s_add_u32 s{S_SPIN}, s{S_SPIN}, 1
    s_cmp_lt_u32 s{S_SPIN}, {SPIN_MAX}
    s_cbranch_scc1 {again}
    s_endpgm
    """)

def poll_flags(a, voff, soff, loads, T, sleep=8):
    L = a.new("L_poll"); D = a.new("L_pdone")
    a.label(L)
    r = T
    regs = []
    for nd, imm in loads:
        op = {1: "buffer_load_dword", 2: "buffer_load_dwordx2", 4: "buffer_load_dwordx4"}[nd]
        dst = f"v{r}" if nd == 1 else vr(r, nd)
        a(f"{op} {dst}, v{voff}, {sr(S_WS)}, {soff} offen offset:{imm} sc1")
        regs += list(range(r, r + nd)); r += nd
    a("s_waitcnt vmcnt(0)")
    a(f"v_xor_b32 v{regs[0]}, s{S_TAG}, v{regs[0]}")
    for q in regs[1:]:
        a(f"v_xor_b32 v{q}, s{S_TAG}, v{q}")
        a(f"v_or_b32 v{regs[0]}, v{regs[0]}, v{q}")
    a(f"""
    v_cmp_ne_u32 vcc, 0, v{regs[0]}
    s_cmp_eq_u64 vcc, 0
    s_cbranch_scc1 {D}
    """)
    spin_guard(a, L, sleep)
    a.label(D)

def lds_wait(a, vaddr, off, val, T, sleep=1):
    L = a.new("L_lw"); D = a.new("L_lwd")
    a.label(L)
    a(f"""
    ds_read_b32 v{T}, v{vaddr} offset:{off}
    s_waitcnt lgkmcnt(0)
    v_readfirstlane_b32 s5, v{T}
    s_cmp_eq_u32 s5, {val}
    s_cbranch_scc1 {D}
    """)
    spin_guard(a, L, sleep)
    a.label(D)

def lds_add(a, vaddr, off, T):
    a(f"""
    s_mov_b64 exec, 1
    v_mov_b32 v{T}, 1
    ds_add_u32 v{vaddr}, v{T} offset:{off}
    s_mov_b64 exec, -1
    """)

def dual(a, sfast, lines):
    for l in lines: a(l + " sc1")

def store_flag(a, soff, T, sfast=None, second=None):
    a(f"""
    s_mov_b64 exec, 0xff
    v_mov_b32 v{T}, s{S_TAG}
    v_mov_b32 v{T+1}, {second if second else 's%d' % S_TAG}
    v_mov_b32 v{T+2}, s{S_TAG}
    v_mov_b32 v{T+3}, s{S_TAG}
    """)
    line = f"buffer_store_dwordx4 {vr(T,4)}, v2, {sr(S_WS)}, {soff} offen"
    if sfast is None:
        a(line + " sc1")
    else:
        dual(a, sfast, [line])
    a("s_mov_b64 exec, -1")
    a("s_nop 1")

def stream_gemm(a, nsteps, na, nb, ACC, BUF, depth, VA, VB, SA, SB, SG, first=True, gate=None, hook=None):
    per = na + nb
    ng = nsteps // 4
    extra = []
    def group():
        a(f"""
        s_lshl_b32 s5, s{SG}, 12
        s_add_u32 s80, s{SA}, s5
        s_add_u32 s81, s{SB}, s5
        s_lshl_b32 s79, s{SG}, 7
        s_add_u32 s{SG}, s{SG}, 1
        s_cmp_eq_u32 s{SG}, {ng}
        s_cselect_b32 s{SG}, 0, s{SG}
        """)
    def issue_list(s):
        slot = BUF + (s % depth) * 4 * per
        imm = (s % 4) * 1024
        l = []
        for t in range(na):
            if gate and t == 1:
                l.append(f"buffer_load_dwordx4 {vr(slot+4*t,4)}, v{gate[1]}, {sr(gate[0])}, s79 offen offset:{(s%4)*32}")
            else:
                l.append(f"buffer_load_dwordx4 {vr(slot+4*t,4)}, v{VA+t}, {sr(S_WS)}, s80 offen offset:{imm}")
        for t in range(nb):
            l.append(f"buffer_load_dwordx4 {vr(slot+4*(na+t),4)}, v{VB+t}, {sr(S_WS)}, s81 offen offset:{imm}")
        return l
    for s in range(min(depth - 1, nsteps)):
        if s % 4 == 0: group()
        for l in issue_list(s): a(l)
    for s in range(nsteps):
        nxt = []
        if s + depth - 1 < nsteps:
            if (s + depth - 1) % 4 == 0: group()
            nxt = issue_list(s + depth - 1)
        if not ILV:
            for l in nxt: a(l)
            outstanding = min(depth - 1, nsteps - 1 - s)
        else:
            outstanding = min(depth - 2, nsteps - 1 - s)
        ex_ = sum(n for (s0, n) in extra if s <= s0 + depth - 1)
        a(f"s_waitcnt vmcnt({outstanding*per + ex_})")
        if hook:
            n = hook(s)
            if n: extra.append((s, n))
        slot = BUF + (s % depth) * 4 * per
        k = 0
        for at in range(na):
            for bt in range(nb):
                d = ACC + 16 * (at * nb + bt)
                c = "0" if (first and s == 0) else vr(d, 16)
                if not (os.environ.get("F2X") and s > 0):
                    a(f"v_mfma_f32_32x32x16_bf16 {vr(d,16)}, {vr(slot+4*at,4)}, {vr(slot+4*(na+bt),4)}, {c}")
                if os.environ.get("F2GAP") and not (at == na - 1 and bt == nb - 1): a(f"s_sleep {os.environ.get('F2GAP')}")
                if ILV and k < len(nxt): a(nxt[k])
                k += 1

def sigmoid(a, v):
    a(f"""
    v_mul_f32 v{v}, {f32bits(-LOG2E):#x}, v{v}
    v_exp_f32 v{v}, v{v}
    s_nop 0
    v_add_f32 v{v}, 1.0, v{v}
    v_rcp_f32 v{v}, v{v}
    s_nop 0
    """)

KORD = int(os.environ.get('KORD', '1'))
SEQ = int(os.environ.get('SEQ', '1'))
GPAR = int(os.environ.get('GPAR', '1'))
NEG = int(os.environ.get('NE', '7'))
ES = 3 if NEG <= 5 else 2
def gen(a):
    KN = NAME + "_kernel"
    a.raw(f".globl {KN}")
    a.raw(".p2align 8")
    a.raw(f".type {KN},@function")
    a.label(KN)
    a(f"""
    s_cmp_ge_u32 s2, 256
    s_cbranch_scc1 L_end
    s_load_dwordx16 s[8:23], s[0:1], 0
    s_load_dwordx4 s[24:27], s[0:1], 64
    v_lshrrev_b32 v2, 6, v0
    v_and_b32 v1, 63, v0
    s_mov_b32 s{S_SPIN}, 0
    v_readfirstlane_b32 s40, v2
    s_and_b32 s3, s2, 7          ; j
    s_lshr_b32 s4, s2, 3         ; i
    s_and_b32 s43, s4, 3
    s_lshl_b32 s5, s3, 2
    s_add_u32 s41, s43, s5       ; h = tau = 4j + (i&3)
    s_lshr_b32 s42, s4, 2        ; c = phi = i>>2
    {"s_and_b32 s72, s41, 7" if KORD == 1 else ("s_and_b32 s72, s42, 4" if KORD == 2 else "s_mov_b32 s72, s42")}   ; first key block
    """)
    if PAM == "8x4":
        a("""
        s_lshr_b32 s5, s3, 1
        s_lshl_b32 s5, s5, 3
        s_and_b32 s6, s4, 7
        s_add_u32 s86, s5, s6        ; tb = 8(j>>1) + (i&7)
        s_and_b32 s5, s3, 1
        s_lshl_b32 s87, s5, 2
        s_lshr_b32 s7, s4, 3
        s_add_u32 s87, s87, s7       ; g = 4(j&1) + (i>>3)
        s_lshl_b32 s7, s7, 1
        """ + ("s_add_u32 s87, s7, s5" if GPAR == 1 else "s_xor_b32 s87, s5, 1\ns_add_u32 s87, s87, s7" if GPAR == 2 else "") + """
        s_add_u32 s49, s6, s7
        s_add_u32 s49, s49, s5
        s_and_b32 s49, s49, 7        ; rot
        """)
    elif PAM == "16x2":
        a("""
        s_lshr_b32 s5, s3, 2
        s_lshl_b32 s5, s5, 4
        s_and_b32 s6, s4, 15
        s_add_u32 s86, s5, s6        ; tb = 16(j>>2) + (i&15)
        s_and_b32 s5, s3, 3
        s_lshl_b32 s87, s5, 1
        s_lshr_b32 s7, s4, 4
        s_add_u32 s87, s87, s7       ; g = 2(j&3) + (i>>4)
        s_lshl_b32 s7, s7, 2
        s_add_u32 s49, s6, s7
        s_add_u32 s49, s49, s5
        s_and_b32 s49, s49, 7        ; rot = i + 4(i>>4) + (j&3)
        """)
    else:
        a("""
        s_mov_b32 s86, s4
        s_mov_b32 s87, s3
        s_add_u32 s49, s3, s4
        s_and_b32 s49, s49, 7
        """)
    a(f"""
    v_lshlrev_b32 v2, 4, v1      ; v2 = lane*16
    s_waitcnt lgkmcnt(0)
    """)
    stamp_begin(a)
    a(f"s_load_dword s{S_EP}, s[26:27], {EPOCH}")
    if int(os.environ.get("CODEW", "1")):
        a(f"""
        s_getpc_b64 s[74:75]
        L_pc:
        s_mul_i32 s5, s4, 12
        s_add_u32 s5, s5, s40
        s_lshl_b32 s5, s5, 7
        s_min_u32 s5, s5, L_end-L_pc-64
        s_and_b32 s74, s74, -128
        s_load_dword s80, s[74:75], s5
        s_add_u32 s5, s5, 64
        s_load_dword s81, s[74:75], s5
        """)
    TLBW = int(os.environ.get("TLBW", "0"))
    if TLBW:
        a(f"""
        s_cmp_lg_u32 s40, 11
        s_cbranch_scc1 L_notlb
        s_min_u32 s5, s4, 27
        s_lshl_b32 s5, s5, 16
        s_load_dword s48, s[16:17], s5
        s_load_dword s57, s[18:19], s5
        s_and_b32 s6, s4, 7
        s_lshl_b32 s6, s6, 16
        s_load_dword s77, s[12:13], s6
        """)
        if TLBW >= 2:
            a(f"""
            s_lshl_b32 s5, s4, 20
            s_load_dword s58, s[26:27], s5
            s_lshl_b32 s6, s4, 16
            s_load_dword s59, s[22:23], s6
            """)
        a.label("L_notlb")
    srd(a, S_X, 8, 2048 * 1024)
    srd(a, S_WQKV, 10, 512 * 3072)
    srd(a, S_WS, 26, WS_BYTES)
    a(f"""
    s_cmp_ge_u32 s40, 8
    s_cbranch_scc1 L_aux
    """)
    attention_wave(a)
    a.label("L_aux")
    aux_wave(a)
    a.label("L_end")
    a("s_endpgm")

VXA = 8
VWA = 12
VMI = 13
VWA2 = 62
NSL = 4
PAM = os.environ.get('PAM', '8x4')
TBS = {'8x4': 3, '16x2': 4, '32x1': 5}[PAM]
SCHEDS = {
 "a": ({-1: [0, 1], 0: [2, 3], 1: [4], 2: [5], 3: [6], 4: [7, "P"]}, {-1: [0, 1, 2, 3, 4, 5, 6, 7, "r0", "r1"]}, 5),
 "b": ({-1: [0], 0: [1, 2], 1: [3, 4], 2: [5], 3: [6], 4: [7, "P"]}, {-1: [0, 1, 2, 3], 0: [4, 5, 6, 7, "r0", "r1"]}, 5),
 "c": ({-1: [0], 0: [1, 2, 3], 1: [4], 2: [5], 3: [6], 4: [7, "P"]}, {-1: [0, 1, 2, 3, 4, 5, 6, 7], 0: ["r0", "r1"]}, 5),
 "e": ({-1: [0, 1], 0: [2, 3], 1: [4], 2: [5], 3: [6], 4: [7, "P"]}, {-1: [0, 1, 2, 3], 0: [4, 5, "r0"], 1: [6, 7, "r1"]}, 5),
 "f": ({-1: [0, 1, 2, 3], 1: [4], 2: [5], 3: [6], 4: [7, "P"]}, {-1: [0, 1, "r0", "r1", 2, 3, 4], 0: [5], 1: [6], 2: [7]}, 4),
 "d": ({-1: [0, 1], 0: [2, 3], 1: [4], 2: [5], 3: [6], 4: [7, "P"]}, {-1: [0, 1, 2, 3, 4, 5, 6, 7], 4: ["r0", "r1"]}, 6),
}
SCHEDS["g"] = ({-1: [0, 1], 0: [2, 3, "R"], 1: [4, "P"], 2: [5], 3: [6], 4: [7], 5: ["S"]}, {-1: [0, 1, 2, 3], 0: [4, 5, "T"], 1: [6, 7]}, 5)
SCHEDS["h"] = ({-1: [0, 1], 0: [2, 3], 1: [4, "R"], 2: [5, "P"], 3: [6], 4: [7], 6: ["S"]}, {-1: [0, 1, 2, 3], 0: [4, 5, 6, 7, "T"]}, 5)
SCHEDS["i"] = ({-1: [0, 1, "R"], 0: [2, 3, "P"], 1: [4], 2: [5, "S"], 3: [6], 4: [7]}, {-1: [0, 1, 2, 3, "T"], 0: [4, 5], 1: [6, 7]}, 5)
W0 = {-1: [0, 1], 0: [2, 3], 1: [4], 2: [5], 3: [6]}
X0 = {-1: [0, 1, 2, 3], 0: [4, 5], 1: [6, 7]}
SCHEDS["j"] = ({**W0, 4: [7, "P", "R"], 7: ["S"]}, X0, 5)
SCHEDS["k"] = ({**W0, 4: [7, "P", "R"], 8: ["S"]}, X0, 5)
SCHEDS["l"] = ({**W0, 4: [7, "P", "R"], 8: ["S"]}, {**X0, 3: ["T"]}, 5)
SCHEDS["m"] = ({**W0, 4: [7, "P", "R"], 8: ["S"]}, {**X0, 2: ["T"]}, 5)
SCHEDS["n"] = ({**W0, 4: [7, "P"], 7: ["R"], 8: ["S"]}, X0, 5)
SCHEDS["o"] = ({**W0, 4: [7, "P", "R"], 8: ["S"]}, {**X0, 4: ["T"]}, 5)
SCHEDS["x"] = ({**W0, 4: [7]}, X0, 5)
SCHEDS["z"] = ({-1: [0, 1, 2], 0: [3], 1: [4], 2: [5], 3: [6], 4: [7]}, X0, 5)
SCHEDS["w"] = ({**W0, 4: [7]}, {-1: [0, 1, 2], 0: [3, 4], 1: [5, 6], 2: [7]}, 5)
SCHEDS["y"] = ({**W0, 4: [7], 9: ["P", "R"], 10: ["S"]}, X0, 5)
WSCHED, XSCHED, RLS = SCHEDS[os.environ.get("SCHED", "x")]
F1D = int(os.environ.get("F1D", "0"))
VD0, VD1 = 14, 15
ACCA = 64
XB = 80
WB = 96

def make_tag(a):
    a(f"""
    s_waitcnt lgkmcnt(0)
    s_mul_i32 s{S_TAG}, s{S_EP}, 0x9e3779b1
    s_add_u32 s{S_TAG}, s{S_TAG}, 0x7f4a7c15
    """)

def pa_addr(a):
    a(f"""
    v_and_b32 v3, 31, v1               ; m
    v_lshrrev_b32 v4, 5, v1            ; hh
    v_bfe_u32 v5, v1, 1, 3             ; (m>>1)&7
    v_xor_b32 v5, v5, v4
    v_lshlrev_b32 v3, 7, v3
    s_and_b32 s5, s40, 1
    s_lshl_b32 s5, s5, 12              ; tt*32*128
    s_add_u32 s5, s5, {L_X}
    v_add_u32 v3, s5, v3
    """)
    for ss in range(4):
        a(f"""
        v_xor_b32 v7, {2*ss}, v5
        v_lshl_add_u32 v{VXA+ss}, v7, 4, v3
        """)
    a(f"""
    v_bfe_u32 v7, v1, 2, 2
    v_lshl_add_u32 v7, v4, 3, v7       ; + 8hh
    v_lshlrev_b32 v{VWA}, 7, v7        ; row*128
    v_bfe_u32 v5, v1, 4, 1             ; g
    v_bfe_u32 v6, v1, 1, 1             ; (i&3)>>1
    v_lshl_add_u32 v6, v5, 1, v6
    v_bfe_u32 v5, v1, 3, 1
    s_lshr_b32 s5, s40, 1
    s_and_b32 s5, s5, 1                ; half
    v_xor_b32 v5, s5, v5
    v_lshl_add_u32 v6, v5, 2, v6       ; piece
    v_lshl_add_u32 v{VWA}, v6, 4, v{VWA}
    v_and_b32 v5, 1, v1
    v_lshl_add_u32 v{VWA}, v5, 3, v{VWA}
    s_lshr_b32 s5, s40, 2              ; part
    s_lshl_b32 s5, s5, 13
    v_add_u32 v{VWA}, s5, v{VWA}
    v_add_u32 v{VWA2}, {112*1024}, v{VWA}
    v_mov_b32 v{VMI}, {L_MISC}
    """)

def pa_reads(a, sig):
    so = WSLOT[sig % 4]
    wa = VWA if so < 65536 else VWA2
    so = so if so < 65536 else so - 112 * 1024
    xb = XB + 32 * (sig % 2); wb = WB + 32 * (sig % 2)
    for ss in range(4):
        a(f"""
        ds_read_b128 {vr(xb+4*ss,4)}, v{VXA+ss} offset:{sig*8192}
        ds_read_b64_tr_b16 {vr(wb+4*ss,2)}, v{wa} offset:{so + ss*2048}
        ds_read_b64_tr_b16 {vr(wb+4*ss+2,2)}, v{wa} offset:{so + ss*2048 + 512}
        """)
def pa_mfma(a, sig, vrole):
    xb = XB + 32 * (sig % 2); wb = WB + 32 * (sig % 2)
    for ss in range(4):
        c = "0" if (sig == 0 and ss == 0) else vr(ACCA, 16)
        if vrole:
            a(f"v_mfma_f32_32x32x16_bf16 {vr(ACCA,16)}, {vr(xb+4*ss,4)}, {vr(wb+4*ss,4)}, {c}")
        else:
            a(f"v_mfma_f32_32x32x16_bf16 {vr(ACCA,16)}, {vr(wb+4*ss,4)}, {vr(xb+4*ss,4)}, {c}")
NODEF = int(os.environ.get("NODEF", "7"))
def pa_compute(a, sig, vrole):
    pa_reads(a, sig)
    if 0 < sig <= NODEF:
        pa_mfma(a, sig - 1, vrole)
    a("s_waitcnt lgkmcnt(0)")
    if sig >= NODEF:
        pa_mfma(a, sig, vrole)

APOLL = int(os.environ.get('APOLL', '1'))
def attention_wave(a):
    a(f"""
    v_lshrrev_b32 v3, 3, v1            ; row = l>>3
    v_mul_u32_u24 v4, 3072, v3
    v_bfe_u32 v5, v1, 4, 1             ; (row>>1)&1
    v_lshlrev_b32 v5, 2, v5
    v_and_b32 v6, 7, v1
    v_xor_b32 v6, v6, v5
    v_lshl_add_u32 v{VD0}, v6, 4, v4
    s_mul_i32 s52, s40, {8*3072}
    s_lshl_b32 s5, s87, 7
    s_add_u32 s52, s52, s5
    s_lshl_b32 s53, s40, 10            ; lds base
    """)
    def wdma(sig):
        a(f"""
        s_add_u32 s5, s49, {sig}
        s_and_b32 s5, s5, 7
        s_mul_i32 s50, s5, {64*3072}
        s_add_u32 s50, s50, s52
        """)
        for p in range(3):
            a(f"""
            s_add_u32 m0, s53, {WSLOT[sig%4] + p*8192}
            s_add_u32 s51, s50, {p*1024}
            buffer_load_dwordx4 v{VD0}, {sr(S_WQKV)}, s51 offen lds
            """)
    wq = []
    def wissue(items):
        for it in items:
            if it == "P":
                a(f"""
                s_lshl_b32 s5, s42, 3
                s_add_u32 s5, s5, s40
                s_lshl_b32 s5, s5, 5
                s_add_u32 s5, s5, s41
                s_lshl_b32 s5, s5, 10
                s_add_u32 s5, s5, {OF}
                v_mov_b32 v20, -1
                v_mov_b32 v21, -1
                v_mov_b32 v22, -1
                v_mov_b32 v23, -1
                buffer_store_dwordx4 v[20:23], v2, {sr(S_WS)}, s5 offen sc1
                """)
                wq.append("P")
            elif it == "R":
                a("s_add_u32 s5, s59, 8192")
                for jq in range(2):
                    for jj in range(4):
                        a(f"buffer_load_dword v{R+4*jq+jj}, v{VRL}, {sr(S_SRC)}, {'s5' if jq else 's59'} offen offset:{jj*1024}")
                wq.extend(["R"] * 8)
            elif it == "S":
                last = max(k for k, e in enumerate(wq) if e == "R")
                a(f"""
                s_mov_b32 s{S_SRC}, s{S_WS}
                s_mov_b32 s{S_SRC+1}, s{S_WS+1}
                s_cmp_lt_u32 s73, 1152
                s_cselect_b32 s{S_SRC+2}, {WS_BYTES:#x}, 0
                s_mov_b32 s80, 0x05040100
                s_mov_b32 s81, 0x07060302
                s_waitcnt vmcnt({len(wq) - 1 - last})
                """)
                for jj in range(4):
                    a(f"v_perm_b32 v{F+jj}, v{R+2*jj+1}, v{R+2*jj}, s80")
                    a(f"v_perm_b32 v{F+4+jj}, v{R+2*jj+1}, v{R+2*jj}, s81")
                a(f"""
                buffer_store_dwordx4 {vr(F,4)}, v2, {sr(S_SRC)}, s79 offen sc1
                buffer_store_dwordx4 {vr(F+4,4)}, v2, {sr(S_SRC)}, s78 offen sc1
                """)
                wq.extend(["S"] * 2)
            else:
                wdma(it); wq.extend([it] * 3)
    XA = int(os.environ.get("XA", "0"))
    if XA:
        a(f"""
        v_lshlrev_b32 v4, 10, v3
        v_and_b32 v6, 7, v1
        v_lshrrev_b32 v5, 4, v1
        v_xor_b32 v6, v6, v5
        s_and_b32 s5, s40, 1
        s_lshl_b32 s5, s5, 2
        v_xor_b32 v6, s5, v6
        v_lshl_add_u32 v{VD1}, v6, 4, v4
        s_lshl_b32 s78, s86, 16
        s_lshl_b32 s5, s40, 13
        s_add_u32 s78, s78, s5
        """)
    for it in WSCHED[-1]:
        if isinstance(it, int):
            if it < XA:
                a(f"""
                s_add_u32 s5, s49, {it}
                s_and_b32 s5, s5, 7
                s_lshl_b32 s5, s5, 7
                s_add_u32 m0, s53, {L_X + it*8192}
                s_add_u32 s5, s5, s78
                buffer_load_dwordx4 v{VD1}, {sr(S_X)}, s5 offen lds
                """)
                wq.append(it)
            wissue([it])
    R = 144; F = 152; VRL = 63
    wissue([it for it in WSCHED[-1] if not isinstance(it, int)])
    make_tag(a)
    pa_addr(a)
    RLI = int(os.environ.get("RLI", "7"))
    for sig in range(8):
        last = max(k for k, e in enumerate(wq) if e == sig)
        a(f"s_waitcnt vmcnt({len(wq) - 1 - last})")
        if sig == 0 and not os.environ.get("TAILST"): stamp(a, 0)
        if sig <= 6: stamp(a, sig, pa=True)
        a("s_barrier")
        for it in WSCHED.get(sig, []):
            assert isinstance(it, str) or it - NSL < sig, (it, sig)
        if sig >= 4: stamp(a, sig - 4, pa=2)
        wissue(WSCHED.get(sig, []))
        pa_compute(a, sig, False)
    if not os.environ.get("TAILST"): stamp(a, 1)
    stamp(a, 5, pa=2)
    a(f"""
    s_lshr_b32 s5, s40, 1
    s_and_b32 s5, s5, 1
    s_lshl_b32 s5, s5, 1
    s_lshl_b32 s6, s87, 2
    s_add_u32 s5, s5, s6               ; head0
    s_lshl_b32 s5, s5, 6
    s_lshl_b32 s6, s86, 1
    s_add_u32 s5, s5, s6
    s_and_b32 s6, s40, 1
    s_add_u32 s5, s5, s6               ; head0*64 + T
    s_cmp_ge_u32 s40, 4
    s_cbranch_scc1 L_isk
    s_lshl_b32 s54, s5, 10
    s_add_u32 s54, s54, {QF}
    s_add_u32 s55, s54, {64*1024}
    s_mov_b32 s56, {f32bits(QSCALE):#x}
    s_branch L_qk
    L_isk:
    s_lshl_b32 s54, s5, 11
    s_add_u32 s54, s54, {KV}
    s_add_u32 s55, s54, {64*2048}
    s_mov_b32 s56, 1.0
    L_qk:
    s_nop 3
    """)
    for r in range(16):
        a(f"v_mul_f32 v{ACCA+r}, s56, v{ACCA+r}")
    for r in range(8):
        a(f"v_cvt_pk_bf16_f32 v{XB+r}, v{ACCA+2*r}, v{ACCA+2*r+1}")
    dual(a, 73, [f"buffer_store_dwordx4 {vr(XB,4)}, v2, {sr(S_WS)}, s54 offen",
                 f"buffer_store_dwordx4 {vr(XB+4,4)}, v2, {sr(S_WS)}, s55 offen"])
    Q = 8; KB = 16; VB = 24; P = 40; VKA = 56; VVA = 57; VG = 58; VMISC = 59; VPL = 60; VG2 = 61; VT = 160
    S = 64; NM = 96; O = 128; VIDX = 62
    E1, E2 = [int(x) for x in os.environ.get("EPOS", "6,11").split(",")]
    def slot(t, aq, last=False):
        Sc = S + 16 * aq; Sn = S + 16 * (1 - aq)
        tn = t if aq == 0 else t + 1
        Kc = KB + 4 * (tn % 2)
        Pc = P + 8 * aq; Pp = P + 8 * (1 - aq)
        Oc = O + 16 * aq; Op = O + 16 * (1 - aq)
        tp = t if aq == 1 else t - 1
        Vc = VB + 8 * (t % 2); Vp = VB + 8 * (tp % 2)
        noff = (t + 1) * 2048 if t < 3 else 16384
        def ex(i): a(f"v_exp_f32 v{Sc+i if i < 8 else Pc+i-8}, v{Sc+i}")
        if aq == 1: a("s_waitcnt lgkmcnt(0)")
        if not (last and aq == 1):
            a(f"v_mfma_f32_32x32x16_bf16 {vr(Sn,16)}, {vr(Kc,4)}, {vr(Q+4*(1-aq),4)}, {vr(NM+16*(1-aq),16)}")
        if aq == 0 and not last:
            a(f"ds_read_b128 {vr(KB+4*((t+1)%2),4)}, v{VKA} offset:{noff}")
        for i in range(E1): ex(i)
        a(f"v_smfmac_f32_32x32x32_bf16 {vr(Op,16)}, {vr(Vp+4,4)}, {vr(Pp,8)}, v{VIDX}")
        if aq == 0 and not last:
            Vn = VB + 8 * ((t + 1) % 2)
            a(f"""
            s_mov_b64 exec, s[74:75]
            ds_read_b128 {vr(Vn,4)}, v{VVA} offset:{noff+1024}
            ds_read_b128 {vr(Vn+4,4)}, v{VVA} offset:{noff+1536}
            s_mov_b64 exec, -1
            """)
        for i in range(E1, E2): ex(i)
        a(f"v_smfmac_f32_32x32x32_bf16 {vr(Oc,16)}, {vr(Vc,4)}, {vr(Sc,8)}, v{VIDX}")
        for i in range(E2, 16): ex(i)
    def advance():
        a(f"""
        v_add_u32 v{VKA}, 16384, v{VKA}
        v_add_u32 v{VVA}, 16384, v{VVA}
        """)
    def prog_wait(n, both=False, off=M_PROG):
        L = a.new("L_pw"); D = a.new("L_pwd")
        a.label(L)
        if both:
            a(f"""
            ds_read_b128 v[4:7], v{VMISC} offset:{off}
            s_waitcnt lgkmcnt(0)
            v_min_u32 v4, v4, v5
            v_min_u32 v6, v6, v7
            v_min_u32 v4, v4, v6
            """)
        else:
            a(f"""
            ds_read_b64 v[4:5], v{VPL} offset:{M_PROG}
            s_waitcnt lgkmcnt(0)
            v_min_u32 v4, v4, v5
            """)
        a(f"""
        s_nop 0
        v_readfirstlane_b32 s5, v4
        s_cmp_ge_u32 s5, {n}
        s_cbranch_scc1 {D}
        """)
        spin_guard(a, L, 1)
        a.label(D)
    a(f"""
    s_lshl_b32 s53, s40, 11            ; w*2048
    s_lshl_b32 s5, s40, 10
    s_add_u32 s5, s5, {L_VX}
    v_add_u32 v4, s5, v2
    s_lshr_b32 s5, s40, 2
    s_lshl_b32 s5, s5, 1
    s_lshl_b32 s6, s87, 2
    s_add_u32 s5, s5, s6
    s_lshl_b32 s5, s5, 6
    s_lshl_b32 s6, s86, 1
    s_add_u32 s5, s5, s6
    s_bfe_u32 s6, s40, 0x10001
    s_add_u32 s5, s5, s6
    s_lshl_b32 s54, s5, 11
    s_and_b32 s58, s40, 1              ; kh
    s_lshl_b32 s5, s58, 9
    s_add_u32 s54, s54, s5
    s_add_u32 s54, s54, {KV}
    v_bfe_u32 v3, v1, 4, 1
    v_lshlrev_b32 v3, 17, v3
    v_lshrrev_b32 v5, 5, v1
    v_lshl_add_u32 v3, v5, 8, v3
    v_and_b32 v5, 15, v1
    v_lshl_add_u32 v3, v5, 4, v3
    s_barrier
    ds_read_b128 {vr(XB+8,4)}, v4
    s_lshl_b32 s76, s87, 12
    s_add_u32 s76, s76, {FL1}          ; FL1[g]
    v_mov_b32 v{VMISC}, {L_MISC}
    s_lshl_b32 s5, s58, 3
    v_add_u32 v{VPL}, s5, v{VMISC}
    s_waitcnt lgkmcnt(0)
    buffer_store_dwordx4 {vr(XB+8,4)}, v3, {sr(S_WS)}, s54 offen offset:1024 sc1
    s_waitcnt vmcnt(0)
    """)
    lds_add(a, VMISC, M_C1, 3)
    a(f"""
    s_cmp_lg_u32 s40, 0
    s_cbranch_scc1 L_nofl1
    """)
    lds_wait(a, VMISC, M_C1, 8, 3, sleep=1)
    a(f"""
    s_lshl_b32 s5, s86, 7
    s_add_u32 s5, s5, s76
    """)
    store_flag(a, "s5", VT, sfast=73)
    a.label("L_nofl1")
    stamp(a, 2)
    stamp(a, 6, pa=2)
    wissue(WSCHED.get(8, []))
    a(f"""
    s_lshl_b32 s59, s58, 13            ; kh*8192
    v_add_u32 v{VKA}, s59, v2
    v_lshrrev_b32 v4, 5, v1
    v_and_b32 v5, 15, v1
    v_lshlrev_b32 v5, 4, v5
    v_lshl_add_u32 v{VVA}, v4, 8, v5
    v_add_u32 v{VVA}, s59, v{VVA}
    s_mov_b32 s74, 0x0000ffff
    s_mov_b32 s75, 0x0000ffff
    v_and_b32 v3, 31, v1
    v_cmp_eq_u32 vcc, 16, v3
    v_mov_b32 v4, 0x3f803f80
    s_lshl_b32 s5, s41, 6
    s_lshl_b32 s6, s42, 3
    s_lshl_b32 s7, s72, 3
    s_add_u32 s7, s7, s5               ; h*64 + 8 b0
    s_add_u32 s5, s5, s6               ; h*64 + 8c
    s_add_u32 s6, s7, s40
    s_lshl_b32 s54, s6, 11
    s_add_u32 s54, s54, {KV}
    s_add_u32 s6, s40, s5
    s_lshl_b32 s55, s6, 10
    s_add_u32 s55, s55, {QF}
    s_xor_b32 s59, s55, 1024
    """)
    for r in range(16):
        a(f"v_cndmask_b32 v{VB+r}, 0, v4, vcc")
    for r in range(32):
        a(f"v_mov_b32 v{O+r}, 0")
    for r in range(8):
        a(f"v_mov_b32 v{P+8+r}, 0")
    a(f"v_mov_b32 v{VIDX}, {os.environ.get('IDX', '0xdddddddd')}")
    a(f"""
    s_lshl_b32 s76, s3, 12
    s_add_u32 s76, s76, {FL1}          ; FL1[j]
    s_lshl_b32 s5, s72, 2
    s_sub_u32 s5, s5, 4
    v_add_u32 v7, s5, v1
    v_and_b32 v7, 31, v7
    s_lshl_b32 s5, s42, 2
    v_add_u32 v6, s5, v1
    v_cmp_gt_u32 vcc, 4, v1
    v_cndmask_b32 v7, v7, v6, vcc
    v_lshlrev_b32 v7, 7, v7
    s_add_u32 s6, s54, s53
    s_add_u32 s5, s72, 1
    s_and_b32 s5, s5, 7
    s_sub_u32 s5, s5, s72
    s_lshl_b32 s5, s5, 14
    s_add_u32 s56, s6, s5
    s_add_u32 s5, s72, 2
    s_and_b32 s5, s5, 7
    s_sub_u32 s5, s5, s72
    s_lshl_b32 s5, s5, 14
    s_add_u32 s57, s6, s5
    s_mov_b32 m0, s53
    s_sub_u32 s5, s40, 1
    s_cmp_ge_u32 s5, {int(os.environ.get("NPOLL", "1"))}
    s_cbranch_scc1 L_nopoll
    """)
    lds_wait(a, VMISC, M_C1, 8, 3, sleep=1)
    a(f"""
    s_sleep {int(os.environ.get("PSL", "8"))}
    s_cmp_eq_u32 s40, 1
    s_cbranch_scc1 L_qp
    s_sleep {int(os.environ.get("PSL2", "9"))}
    L_qp:
    ds_read_b32 v3, v{VMISC} offset:{M_QOK}
    s_waitcnt lgkmcnt(0)
    v_readfirstlane_b32 s5, v3
    s_cmp_lg_u32 s5, 0
    s_cbranch_scc1 L_nopoll
    s_mov_b64 exec, {0xffff if ES == 3 else 0xfff:#x}
    buffer_load_dword v{VT}, v7, {sr(S_WS)}, s76 offen sc1
    s_waitcnt vmcnt(0)
    v_cmp_ne_u32 vcc, s{S_TAG}, v{VT}
    s_mov_b64 exec, -1
    s_and_b32 s5, vcc_lo, 255
    s_cbranch_scc0 L_qok
    """)
    spin_guard(a, "L_qp", 3)
    a(f"""
    L_qok:
    s_cmp_eq_u32 vcc_lo, 0
    s_cselect_b32 s5, 3, 1
    v_mov_b32 v3, s5
    ds_max_u32 v{VMISC}, v3 offset:{M_QOK}
    L_nopoll:
    L_qw:
    ds_read_b32 v3, v{VMISC} offset:{M_QOK}
    s_waitcnt lgkmcnt(0)
    v_readfirstlane_b32 s48, v3
    s_cmp_lg_u32 s48, 0
    s_cbranch_scc1 L_qwd
    """)
    spin_guard(a, "L_qw", 1)
    a.label("L_qwd")
    stamp(a, 3)
    a(f"""
    buffer_load_dwordx4 v2, {sr(S_WS)}, s54 offen lds
    buffer_load_dwordx4 v2, {sr(S_WS)}, s54 offen offset:1024 lds
    buffer_load_dwordx4 {vr(Q+4,4)}, v2, {sr(S_WS)}, s55 offen
    buffer_load_dwordx4 {vr(Q,4)}, v2, {sr(S_WS)}, s59 offen
    s_cmp_ge_u32 s40, 4
    s_cbranch_scc1 L_young
    s_cmp_eq_u32 s48, 3
    s_cbranch_scc1 {"L_nop2" if SEQ else "L_q3"}
    s_cmp_lg_u32 s40, 1
    s_cbranch_scc1 L_nop2
    s_mov_b64 exec, {0xffff if ES == 3 else 0xfff:#x}
    buffer_load_dword v{VT}, v7, {sr(S_WS)}, s76 offen sc1
    s_mov_b64 exec, -1
    s_waitcnt vmcnt(3)
    """)
    lds_add(a, VMISC, M_S0, 3)
    a(f"""
    s_branch L_qp3
    L_qp2:
    s_mov_b64 exec, {0xffff if ES == 3 else 0xfff:#x}
    buffer_load_dword v{VT}, v7, {sr(S_WS)}, s76 offen sc1
    L_qp3:
    s_mov_b64 exec, {0xffff if ES == 3 else 0xfff:#x}
    s_waitcnt vmcnt(0)
    v_cmp_ne_u32 vcc, s{S_TAG}, v{VT}
    s_mov_b64 exec, -1
    s_cmp_eq_u32 vcc_lo, 0
    s_cbranch_scc1 L_qok2
    """)
    spin_guard(a, "L_qp2", 3)
    a(f"""
    L_qok2:
    v_mov_b32 v3, 3
    ds_write_b32 v{VMISC}, v3 offset:{M_QOK}
    s_branch L_q3
    L_nop2:
    s_waitcnt vmcnt(2)
    """)
    lds_add(a, VMISC, M_S0, 3)
    lds_wait(a, VMISC, M_QOK, 3, 3, sleep=1)
    a(f"""
    L_q3:
    s_lshl_b32 s6, s53, 1
    s_add_u32 m0, s6, 16384
    s_nop 0
    """)
    for k in range(4):
        a(f"buffer_load_dwordx4 v2, {sr(S_WS)}, s56 offen offset:{k*1024} lds")
    if ES == 3:
        a(f"""
        s_add_u32 m0, s6, 32768
        s_nop 0
        """)
        for k in range(4):
            a(f"buffer_load_dwordx4 v2, {sr(S_WS)}, s57 offen offset:{k*1024} lds")
    a(f"""
    s_cmp_lg_u32 s48, {7 if SEQ else 3}
    s_cbranch_scc1 L_s0done
    s_waitcnt vmcnt(10)
    """)
    lds_add(a, VMISC, M_S0, 3)
    a(f"""
    L_s0done:
    s_waitcnt vmcnt(0)
    """)
    lds_add(a, VMISC, M_S1, 3)
    a(f"""
    s_branch L_go
    L_young:
    s_waitcnt vmcnt(2)
    """)
    lds_add(a, VMISC, M_S0, 3)
    a(f"""
    s_waitcnt vmcnt(0)
    L_go:
    """)
    lds_wait(a, VMISC, M_S0, 8, 3, sleep=1)
    stamp(a, 4)
    a(f"""
    ds_read_b128 {vr(KB,4)}, v2
    s_waitcnt lgkmcnt(0)
    v_mfma_f32_32x32x16_bf16 {vr(S,16)}, {vr(KB,4)}, {vr(Q,4)}, 0
    v_mfma_f32_32x32x16_bf16 {vr(S+16,16)}, {vr(KB,4)}, {vr(Q+4,4)}, 0
    s_mov_b32 s77, 0
    s_nop 7
    """)
    a(f"""
    ds_read_b128 {vr(KB,4)}, v{VKA}
    s_mov_b64 exec, s[74:75]
    ds_read_b128 {vr(VB,4)}, v{VVA} offset:1024
    ds_read_b128 {vr(VB+4,4)}, v{VVA} offset:1536
    s_mov_b64 exec, -1
    s_nop 4
    """)
    for q in range(2):
        Sq = S + 16 * q
        a(f"v_max3_f32 v{3+q}, v{Sq}, v{Sq+1}, v{Sq+2}")
        for r in range(3, 15, 2):
            a(f"v_max3_f32 v{3+q}, v{3+q}, v{Sq+r}, v{Sq+r+1}")
        a(f"v_max_f32 v{3+q}, v{3+q}, v{Sq+15}")
    a(f"""
    v_mov_b32 v5, v3
    v_mov_b32 v6, v4
    s_nop 1
    v_permlane32_swap_b32 v3, v5
    v_permlane32_swap_b32 v4, v6
    s_nop 1
    v_max_f32 v3, v3, v5
    v_max_f32 v4, v4, v6
    """)
    for q in range(2):
        for r in range(16):
            a(f"v_sub_f32 v{NM+16*q+r}, 0, v{3+q}")
    a(f"""
    s_waitcnt lgkmcnt(0)
    v_mfma_f32_32x32x16_bf16 {vr(S,16)}, {vr(KB,4)}, {vr(Q,4)}, {vr(NM,16)}
    s_nop 7
    s_nop 4
    """)
    BAL = int(os.environ.get("BAL", "6"))
    BALT = int(os.environ.get("BALT", "22"))
    if BAL:
        a(f"""
        s_cmp_lt_u32 s40, 4
        s_cbranch_scc1 L_bal0
        s_setprio 1
        L_bal0:
        """)
    for t in range(3):
        slot(t, 0); slot(t, 1)
    lds_wait(a, VMISC, M_S1, 4, 4, sleep=1)
    slot(3, 0); slot(3, 1)
    advance()
    for t in range(4):
        if t == 3 and ES == 2: prog_wait(int(os.environ.get("KSP", "5")))
        slot(t, 0); slot(t, 1)
    advance()
    for t in range(3):
        slot(t, 0); slot(t, 1)
    KSP = int(os.environ.get("KSP", "5"))
    prog_wait(KSP)
    stamp(a, 5)
    slot(3, 0); slot(3, 1)
    advance()
    a("s_mov_b32 s79, 3")
    a.label("L_att_loop")
    for t in range(4):
        if t == 3 and KSP < 8:
            a(f"""
            s_cmp_lg_u32 s79, {KSP-1}
            s_cbranch_scc1 L_nokw
            """)
            prog_wait(8)
            a.label("L_nokw")
        if BALT and t == BALT % 4:
            a(f"""
            s_cmp_lg_u32 s79, {BALT // 4}
            s_cbranch_scc1 L_balt
            s_setprio 0
            L_balt:
            """)
        slot(t, 0); slot(t, 1)
    advance()
    a("""
    s_add_u32 s79, s79, 1
    s_cmp_lg_u32 s79, 4
    s_cbranch_scc1 L_nodead
    """)
    lds_add(a, VMISC, M_DEAD, 4)
    a("""
    L_nodead:
    s_cmp_lg_u32 s79, 6
    s_cbranch_scc1 L_nodead2
    """)
    lds_add(a, VMISC, M_DEAD2, 4)
    a.label("L_nodead2")
    if BAL:
        a(f"""
        s_cmp_lg_u32 s79, {BAL}
        s_cbranch_scc1 L_bal1
        s_setprio 0
        L_bal1:
        """)
    a(f"""
    s_cmp_lt_u32 s79, 7
    s_cbranch_scc1 L_att_loop
    s_setprio 3
    s_lshl_b32 s5, s42, 3
    s_add_u32 s5, s5, s40              ; T
    s_lshr_b32 s6, s5, 1
    s_lshl_b32 s6, s6, 7
    s_add_u32 s76, s6, {FLG}           ; FLG[tau]
    s_lshl_b32 s57, s5, 7
    s_add_u32 s57, s57, {GBUF}
    v_mov_b32 v{VPL}, 0
    """)
    s_keep = None
    lds_wait(a, VMISC, M_PZ, 4, VT)
    a(f"""
    v_and_b32 v3, 31, v1
    v_lshlrev_b32 v3, 2, v3
    buffer_load_dword v{VG}, v3, {sr(S_WS)}, s57 offen
    v_add_u32 v4, s53, v2
    v_add_u32 v4, {L_OX}, v4
    v_xor_b32 v5, 2048, v4
    v_lshlrev_b32 v7, 2, v1
    s_lshl_b32 s6, s40, 8
    s_add_u32 s6, s6, {L_LX}
    v_add_u32 v7, s6, v7
    v_xor_b32 v6, 256, v7
    s_lshl_b32 s6, s40, 2
    v_add_u32 v{VT+5}, s6, v{VMISC}
    v_xor_b32 v{VT+4}, 4, v{VT+5}
    v_mov_b32 v{VT+6}, 1
    v_mov_b32 v{VT}, s{S_TAG}
    v_mov_b32 v{VT+1}, s{S_TAG}
    v_mov_b32 v{VT+2}, s{S_TAG}
    v_mov_b32 v{VT+3}, s{S_TAG}
    s_lshl_b32 s5, s42, 3
    s_add_u32 s5, s5, s40              ; T
    s_lshl_b32 s5, s5, 5
    s_add_u32 s5, s5, s41              ; T*32 + h
    s_lshl_b32 s76, s5, 10
    s_add_u32 s76, s76, {OF}
    s_lshl_b32 s78, s5, 7
    s_add_u32 s78, s78, {FL3}
    s_mov_b32 s80, 0x53800000          ; 2^40
    s_mov_b32 s81, 0x7f000000          ; 2^127
    s_mov_b32 s57, 0xfffeffff
    s_setprio 0
    """)
    for t in range(4):
        if t == 3: a("s_setprio 3")
        slot(t, 0, t == 3); slot(t, 1, t == 3)
    a(f"""
    s_nop 1
    v_smfmac_f32_32x32x32_bf16 {vr(O+16,16)}, {vr(VB+12,4)}, {vr(P+8,8)}, v{VIDX}
    ds_write_b128 v5, {vr(O,4)}
    ds_write_b128 v5, {vr(O+4,4)} offset:1024
    ds_write_b32 v6, v{O+8}
    ds_write_b32 v{VT+4}, v{VT+6} offset:{M_PAIR}
    """)
    stamp(a, 6)
    a(f"""
    L_pw:
    ds_read_b32 v3, v{VT+5} offset:{M_PAIR}
    ds_read_b128 {vr(O,4)}, v4
    ds_read_b128 {vr(O+4,4)}, v4 offset:1024
    ds_read_b32 v{O+8}, v7
    s_waitcnt lgkmcnt(0)
    v_readfirstlane_b32 s5, v3
    s_cmp_eq_u32 s5, 1
    s_cbranch_scc1 L_pwd
    """)
    spin_guard(a, "L_pw", 0)
    a.label("L_pwd")
    if os.environ.get("TAILST"): stamp(a, 0)
    a(f"v_add_f32 v{O+8}, v{O+8}, v{O+24}")
    for r in range(8):
        a(f"v_add_f32 v{O+r}, v{O+r}, v{O+16+r}")
    a.label("L_att_check")
    a(f"""
    v_mov_b32 v3, v{O+8}
    v_add_f32 v4, |v{O}|, |v{O+1}|
    v_add_f32 v5, |v{O+2}|, |v{O+3}|
    v_permlane32_swap_b32 v{O+8}, v3
    v_add_f32 v6, |v{O+4}|, |v{O+5}|
    v_add_f32 v7, |v{O+6}|, |v{O+7}|
    v_rcp_f32 v3, v{O+8}
    v_add_f32 v4, v4, v5
    v_add_f32 v6, v6, v7
    v_add_f32 v4, v4, v6
    v_cmp_nle_f32 vcc, v{O+8}, s80
    v_cmp_nle_f32 s[48:49], v4, s81
    s_cmp_eq_u32 s77, 3
    s_cbranch_scc1 L_att_fin
    s_or_b64 vcc, vcc, s[48:49]
    s_cbranch_scc0 L_att_fin
    """)
    a(f"""
    s_mov_b32 s77, 3
    s_lshl_b32 s56, s41, 17
    s_add_u32 s56, s56, {KV}
    v_mov_b32 v{VKA}, v2
    v_mov_b32 v3, 0xff800000
    s_mov_b32 s79, 0
    L_fb_max:
    buffer_load_dwordx4 {vr(KB,4)}, v{VKA}, {sr(S_WS)}, s56 offen
    s_waitcnt vmcnt(0)
    v_mfma_f32_32x32x16_bf16 {vr(S,16)}, {vr(KB,4)}, {vr(Q+4,4)}, 0
    v_add_u32 v{VKA}, 2048, v{VKA}
    s_nop 7
    s_nop 7
    s_nop 3
    """)
    for r in range(0, 16, 2):
        a(f"v_max3_f32 v3, v3, v{S+r}, v{S+r+1}")
    a(f"""
    s_add_u32 s79, s79, 1
    s_cmp_lt_u32 s79, 64
    s_cbranch_scc1 L_fb_max
    v_mov_b32 v4, v3
    s_nop 1
    v_permlane32_swap_b32 v3, v4
    s_nop 1
    v_max_f32 v3, v3, v4
    """)
    for r in range(16):
        a(f"v_sub_f32 v{NM+r}, 0, v3")
        a(f"v_mov_b32 v{O+r}, 0")
    a(f"""
    v_mov_b32 v{VKA}, v2
    v_lshrrev_b32 v4, 5, v1
    v_and_b32 v5, 15, v1
    v_lshlrev_b32 v5, 4, v5
    v_lshl_add_u32 v{VVA}, v4, 8, v5
    s_mov_b32 s79, 0
    L_fb_loop:
    buffer_load_dwordx4 {vr(KB,4)}, v{VKA}, {sr(S_WS)}, s56 offen
    s_mov_b64 exec, s[74:75]
    buffer_load_dwordx4 {vr(VB,4)}, v{VVA}, {sr(S_WS)}, s56 offen offset:1024
    buffer_load_dwordx4 {vr(VB+4,4)}, v{VVA}, {sr(S_WS)}, s56 offen offset:1536
    s_mov_b64 exec, -1
    s_waitcnt vmcnt(0)
    v_mfma_f32_32x32x16_bf16 {vr(S,16)}, {vr(KB,4)}, {vr(Q+4,4)}, {vr(NM,16)}
    v_add_u32 v{VKA}, 2048, v{VKA}
    v_add_u32 v{VVA}, 2048, v{VVA}
    s_nop 7
    s_nop 7
    """)
    for r in range(16):
        a(f"v_exp_f32 v{S+r}, v{S+r}")
    a(f"""
    s_nop 3
    v_smfmac_f32_32x32x32_bf16 {vr(O,16)}, {vr(VB,4)}, {vr(S,8)}, v{VIDX}
    v_smfmac_f32_32x32x32_bf16 {vr(O,16)}, {vr(VB+4,4)}, {vr(S+8,8)}, v{VIDX}
    s_add_u32 s79, s79, 1
    s_cmp_lt_u32 s79, 64
    s_cbranch_scc1 L_fb_loop
    s_nop 7
    s_nop 7
    s_branch L_att_check
    L_att_fin:
    s_waitcnt vmcnt(0)
    v_mul_f32 v3, v3, v{VG}
    """)
    for r in range(8):
        a(f"v_mul_f32 v{O+r}, v{O+r}, v3")
    for r in range(4):
        a(f"v_cvt_pk_bf16_f32 v{P+r}, v{O+2*r}, v{O+2*r+1}")
    for r in range(4):
        a(f"v_min_u32 v{P+r}, s57, v{P+r}")
    a(f"""
    buffer_store_dwordx4 {vr(P,4)}, v2, {sr(S_WS)}, s76 offen sc1
    s_cmp_lg_u32 s58, 0
    s_cbranch_scc1 L_nofl3
    s_mov_b64 exec, 0xff
    buffer_store_dwordx4 {vr(VT,4)}, v2, {sr(S_WS)}, s78 offen sc1
    s_mov_b64 exec, -1
    """)
    a.label("L_nofl3")
    if os.environ.get("TAILST"): stamp(a, 1)
    a(f"""
    s_or_b32 s5, s2, s40
    s_cmp_lg_u32 s5, 0
    s_cbranch_scc1 L_nobump
    v_lshlrev_b32 v3, 7, v1
    """)
    for k in range(4):
        a(f"s_mov_b32 s58, {FL2 + k*8192}")
        poll_flags(a, 3, "s58", [(1, 0)], 9, sleep=12)
    a(f"""
    s_mov_b64 exec, 1
    s_add_u32 s5, s{S_EP}, 1
    v_mov_b32 v9, s5
    buffer_store_dword v9, v2, {sr(S_WS)}, 0 offen offset:{EPOCH} sc1
    s_mov_b64 exec, -1
    L_nobump:
    """)
    if APOLL:
        a(f"""
        s_andn2_b32 s5, s40, 2
        s_cmp_lg_u32 s5, 1
        s_cbranch_scc1 L_noap
        s_lshl_b32 s56, s41, 13
        s_lshr_b32 s5, s40, 1
        s_lshl_b32 s6, s5, 11
        s_add_u32 s56, s56, s6
        s_add_u32 s56, s56, {FL3}
        s_lshl_b32 s5, s5, 2
        v_add_u32 v14, s5, v{VMISC}
        v_lshlrev_b32 v7, 7, v1
        s_mov_b32 s59, 0
        L_ap:
        s_andn2_b32 s5, 0x1111, s59
        s_mul_i32 s58, s5, 15
        s_mov_b32 exec_lo, s58
        s_mov_b32 exec_hi, 0
        buffer_load_dword v3, v7, {sr(S_WS)}, s56 offen sc1
        s_waitcnt vmcnt(0)
        v_cmp_ne_u32 vcc, s{S_TAG}, v3
        s_mov_b64 exec, -1
        s_lshr_b32 s5, vcc_lo, 1
        s_or_b32 s5, s5, vcc_lo
        s_lshr_b32 s6, s5, 2
        s_or_b32 s5, s5, s6
        s_andn2_b32 s59, 0x1111, s5
        s_or_b32 s5, s59, 2
        v_mov_b32 v4, s5
        s_mov_b64 exec, 1
        ds_or_b32 v14, v4 offset:{M_RDY}
        s_mov_b64 exec, -1
        s_cmp_eq_u32 s59, 0x1111
        s_cbranch_scc1 L_noap
        """)
        spin_guard(a, "L_ap", int(os.environ.get("ASL", "1")))
        a.label("L_noap")
        a("s_waitcnt lgkmcnt(0)")
    stamp_end(a)
    a("s_endpgm")

def aux_wave(a):
    R = 144; F = 128; VRL = 167
    VWF = 160; VPOLL = 164; VFL = 165; VPG = 166
    S_W1 = S_WQKV; S_H = S_WQKV; S_G = S_OUT
    if os.environ.get("FAKEW1"):
        a("""
        s_add_u32 s16, s26, 0x4000000
        s_addc_u32 s17, s27, 0
        """)
    a(f"""
    s_setprio 3
    s_sub_u32 s43, s40, 8              ; u
    v_lshrrev_b32 v3, 3, v1
    v_lshlrev_b32 v3, 10, v3
    v_and_b32 v4, 7, v1
    v_lshrrev_b32 v5, 4, v1
    v_xor_b32 v4, v4, v5
    v_lshl_add_u32 v{VD0}, v4, 4, v3
    v_xor_b32 v4, 4, v4
    v_lshl_add_u32 v{VD1}, v4, 4, v3
    v_add_u32 v{VD1}, 8192, v{VD1}
    s_lshl_b32 s78, s86, 16
    s_lshl_b32 s5, s43, 14
    s_add_u32 s78, s78, s5
    s_lshl_b32 s79, s43, 11            ; lds rows 16u  (= u*2048)
    """)
    q = []
    def xdma(sig):
        a(f"""
        s_add_u32 s5, s49, {sig}
        s_and_b32 s5, s5, 7
        s_lshl_b32 s5, s5, 7
        s_add_u32 m0, s79, {L_X+sig*8192}
        s_add_u32 s50, s5, s78
        buffer_load_dwordx4 v{VD0}, {sr(S_X)}, s50 offen lds
        s_add_u32 m0, s79, {L_X+sig*8192+1024}
        s_nop 0
        buffer_load_dwordx4 v{VD1}, {sr(S_X)}, s50 offen lds
        """)
        q.extend([("x", sig)] * 2)
    XA = int(os.environ.get("XA", "0"))
    for it in XSCHED[-1]:
        if isinstance(it, int) and it >= XA: xdma(it)
    RE = int(os.environ.get("RE", "0"))
    VRS = 127; S_R2 = S_X
    E7 = int(os.environ.get("E7", "1"))
    def rl_loads():
        a(f"""
        s_lshl_b32 s74, s4, 2
        s_add_u32 s74, s74, s43
        s_lshl_b32 s74, s74, 3
        s_add_u32 s74, s74, s3             ; gw = (4i + u)*8 + j
        v_and_b32 v3, 31, v1               ; i
        v_lshrrev_b32 v4, 5, v1            ; hh
        v_lshlrev_b32 v4, 12, v4
        v_lshl_add_u32 v{VRL}, v3, 2, v4
        s_and_b32 s6, s74, 7               ; cb
        s_cmp_ge_u32 s74, 896
        s_cbranch_scc1 L_wo
        """)
        srd(a, S_SRC, 18, 1792 * 1024)
        srd(a, S_R2, 18, 0)
        a(f"""
        s_lshr_b32 s7, s74, 3              ; kstep
        s_mov_b32 s56, {112*1024}
        s_mov_b32 s57, {W2F}
        s_branch L_rl2
        L_wo:
        """)
        srd(a, S_SRC, 12, 512 * 1024)
        srd(a, S_R2, 12, 512 * 1024)
        a(f"""
        s_sub_u32 s5, s74, 896
        s_lshr_b32 s7, s5, 3
        s_lshl_b32 s7, s7, 1               ; kstep
        s_mov_b32 s56, {32*1024}
        s_mov_b32 s57, {WOF}
        L_rl2:
        s_lshl_b32 s59, s7, 14
        s_lshl_b32 s5, s6, 7
        s_add_u32 s59, s59, s5             ; src
        s_lshl_b32 s5, s6, 1
        s_mul_i32 s5, s5, s56
        s_add_u32 s57, s57, s5
        s_lshl_b32 s5, s7, 10
        s_add_u32 s57, s57, s5
        v_bfe_u32 v3, v1, 4, 1
        v_mul_lo_u32 v3, v3, s56
        v_lshrrev_b32 v4, 5, v1
        v_lshl_add_u32 v3, v4, 9, v3
        v_and_b32 v4, 15, v1
        v_lshl_add_u32 v{VRS}, v4, 4, v3
        """)
        for half in range(2):
            for jq in range(2):
                a(f"s_add_u32 s5, s59, {half*16384 + jq*8192}")
                for jj in range(4):
                    a(f"buffer_load_dword v{R+8*half+4*jq+jj}, v{VRL}, {sr(S_R2 if half else S_SRC)}, s5 offen offset:{jj*1024}")
    def touch():
        srd(a, S_W1, 16, 512 * 3584)
        a(f"""
        s_mul_i32 s5, s49, {64*3584}
        s_add_u32 s5, s5, s76
        v_mul_u32_u24 v3, 3584, v1
        buffer_load_dword v{VPOLL}, v3, {sr(S_W1)}, s5 offen
        buffer_load_dword v{VPOLL}, v3, {sr(S_W1)}, s5 offen offset:64
        """)
        q.extend([("t", 0)] * 2)
    a(f"""
    s_and_b32 s5, s4, 3
    s_lshl_b32 s5, s5, 1
    s_add_u32 s73, s5, s42
    s_lshr_b32 s5, s87, 1
    s_mul_i32 s76, s5, 7
    s_add_u32 s76, s76, s43
    s_and_b32 s5, s87, 1
    s_lshl_b32 s6, s5, 2
    s_add_u32 s76, s76, s6             ; slice
    s_mov_b32 s85, 0
    s_add_u32 s6, s6, s43
    s_cmp_lg_u32 s6, 7
    s_cbranch_scc1 L_role
    s_mov_b32 s85, 2
    s_cmp_lg_u32 s87, 1
    s_cbranch_scc1 L_role
    s_mov_b32 s85, 1
    L_role:
    s_mul_i32 s54, s86, {2*112*1024}
    s_lshl_b32 s5, s76, 12
    s_add_u32 s54, s54, s5
    s_add_u32 s54, s54, {HF}
    s_add_u32 s55, s54, {112*1024}
    s_lshl_b32 s76, s76, 7
    """)
    if "T" in XSCHED[-1]: touch()
    make_tag(a)
    pa_addr(a)
    a("s_setprio 0")
    def wait_for(tagv):
        last = max(k for k, e in enumerate(q) if e == tagv)
        a(f"s_waitcnt vmcnt({len(q) - 1 - last})")
    ENT = [136, 144, 112, 120, 128, 32, 40][:NEG]
    NE = len(ENT)
    def ent(n): return ENT[n % NE] * 1024
    def w1dma_list(n):
        sig, ss = n >> 2, n & 3
        l0 = ""
        if ss == 0:
            l0 = f"""
            s_add_u32 s5, s49, {sig}
            s_and_b32 s5, s5, 7
            s_mul_i32 s50, s5, {64*3584}
            s_add_u32 s50, s50, s76
            """
        l0 += f"""
        s_add_u32 m0, s79, {ent(n)}
        s_add_u32 s51, s50, {ss*16*3584}
        buffer_load_dwordx4 v{VD0}, {sr(S_W1)}, s51 offen lds
        """
        l1 = f"""
        s_add_u32 m0, s79, {ent(n)+1024}
        s_nop 0
        buffer_load_dwordx4 v{VD1}, {sr(S_W1)}, s51 offen lds
        """
        return [l0, l1]
    def w1dma(ns):
        LS = a.new("L_w1s")
        a(f"""
        s_cmp_lg_u32 s85, 0
        s_cbranch_scc1 {LS}
        """)
        for n in ns:
            for l in w1dma_list(n): a(l)
            q.extend([("w", n)] * 2)
        a.label(LS)
    for sig in range(8):
        if sig < XA: pass
        elif sig < 4: wait_for(("x", sig))
        elif sig == 4:
            wait_for(("x", 7))
            q.clear()
        if sig == 0 and not os.environ.get("TAILST"): stamp(a, 0)
        if sig <= 6: stamp(a, sig, pa=True)
        a("s_barrier")
        for it in XSCHED.get(sig, []):
            if isinstance(it, int): xdma(it)
            elif it == "T": touch()
        if RE and sig == RE: rl_loads()
        if sig == 4:
            srd(a, S_W1, 16, 512 * 3584)
            a(f"""
            v_lshrrev_b32 v3, 3, v1            ; row = l>>3
            v_mul_u32_u24 v4, 3584, v3
            v_bfe_u32 v5, v1, 4, 1
            v_lshlrev_b32 v5, 2, v5
            v_and_b32 v6, 7, v1
            v_xor_b32 v6, v6, v5
            v_lshl_add_u32 v{VD0}, v6, 4, v4
            v_add_u32 v{VD1}, {8*3584}, v{VD0}
            """)
        if sig >= 5: stamp(a, 2 * (sig - 5), pa=2)
        if sig == 5:
            if not F1D: w1dma([0, 1])
            srd(a, S_G, 20, 1024)
            a(f"""
            s_cmp_lg_u32 s85, 1
            s_cbranch_scc1 L_nogd
            s_lshl_b32 s5, s49, 3
            v_add_u32 v3, s5, v1
            v_and_b32 v3, 63, v3
            v_lshlrev_b32 v3, 4, v3
            s_add_u32 m0, s79, {ent(0)}
            s_nop 0
            buffer_load_dwordx4 v3, {sr(S_G)}, 0 offen lds
            L_nogd:
            v_mov_b32 v3, 0
            v_lshlrev_b32 v4, 2, v1
            v_add_u32 v4, {L_MISC}, v4
            ds_write_b32 v4, v3
            """)
        if sig == 6 and not F1D: w1dma(list(range(2, min(NE, 5))))
        if sig == 7 and NE > 5 and E7: w1dma(list(range(5, NE)))
        if sig == 6:
            a(f"""
            s_add_u32 s5, s79, {L_VX}
            v_add_u32 v3, s5, v2
            v_and_b32 v{VWF}, 0x7ff, v{VWA}
            s_and_b32 s5, s43, 2
            s_lshl_b32 s5, s5, 5
            v_xor_b32 v{VWF}, s5, v{VWF}
            s_add_u32 s5, s79, {112*1024}
            v_add_u32 v{VWF}, s5, v{VWF}
            v_xor_b32 v{VWF+1}, 64, v{VWF}
            v_subrev_u32 v{VWF+2}, {112*1024}, v{VWF}
            v_subrev_u32 v{VWF+3}, {112*1024}, v{VWF+1}
            v_and_b32 v4, 31, v1
            v_lshlrev_b32 v{VFL}, 7, v4
            s_lshl_b32 s5, s43, 2
            v_add_u32 v{VPG}, s5, v{VMI}
            s_lshl_b32 s77, s3, 12
            s_add_u32 s77, s77, {FL1}          ; FL1[j]
            """)
        if sig == 7: a(f"s_setprio {int(os.environ.get('VPRIO', '0'))}")
        if sig >= 5: stamp(a, 2 * (sig - 5) + 1, pa=2)
        pa_compute(a, sig, True)
    a(f"""
    s_movk_i32 s5, 0xefff
    v_and_b32 v{VXA}, s5, v{VXA}
    v_and_b32 v{VXA+1}, s5, v{VXA+1}
    v_and_b32 v{VXA+2}, s5, v{VXA+2}
    v_and_b32 v{VXA+3}, s5, v{VXA+3}
    s_nop 7
    s_nop 5
    """)
    for r in range(8):
        a(f"v_cvt_pk_bf16_f32 v{XB+r}, v{ACCA+2*r}, v{ACCA+2*r+1}")
    a(f"""
    s_nop 1
    v_permlane32_swap_b32 v{XB}, v{XB+2}
    v_permlane32_swap_b32 v{XB+1}, v{XB+3}
    v_permlane32_swap_b32 v{XB+4}, v{XB+6}
    v_permlane32_swap_b32 v{XB+5}, v{XB+7}
    s_nop 1
    ds_write_b128 v3, {vr(XB,4)}
    ds_write_b128 v3, {vr(XB+4,4)} offset:1024
    s_waitcnt lgkmcnt(0)
    s_barrier
    """)
    stamp(a, 6, pa=2)
    VM = VMI
    ACC = 16; BUF = 80
    def fprog():
        a(f"""
        v_mov_b32 v3, 1
        ds_write_b32 v{VPG}, v3 offset:{M_FP}
        """)
    def pollld():
        a(f"buffer_load_dword v{VPOLL}, v{VFL}, {sr(S_WS)}, s77 offen sc1")
    a(f"""
    s_setprio {int(os.environ.get("F1PRIO", "2"))}
    s_cmp_eq_u32 s85, 1
    s_cbranch_scc1 L_f1g
    s_cmp_eq_u32 s85, 2
    s_cbranch_scc1 L_f1n
    """)
    if not E7:
        for n in range(5, NE):
            for l in w1dma_list(n): a(l)
            q.extend([("w", n)] * 2)
    if F1D:
        lds_wait(a, VM, M_C1 if F1D == 1 else M_S0, 8, 3, sleep=2)
        for n in range(NE):
            for l in w1dma_list(n): a(l)
            q.extend([("w", n)] * 2)
    def reads(n):
        b = BUF + 16 * (n % 2)
        e = ent(n) - 112 * 1024
        hi = 0
        if e < 0: e, hi = ent(n), 2
        xo = (n >> 2) * 8192
        return [f"ds_read_b64_tr_b16 {vr(b,2)}, v{VWF+hi} offset:{e}",
                f"ds_read_b64_tr_b16 {vr(b+2,2)}, v{VWF+hi} offset:{e+512}",
                f"ds_read_b128 {vr(b+8,4)}, v{VXA+(n&3)} offset:{xo}",
                f"ds_read_b128 {vr(b+12,4)}, v{VXA+(n&3)} offset:{xo+4096}",
                f"ds_read_b64_tr_b16 {vr(b+4,2)}, v{VWF+hi+1} offset:{e}",
                f"ds_read_b64_tr_b16 {vr(b+6,2)}, v{VWF+hi+1} offset:{e+512}"]
    wait_for(("w", 0))
    if not os.environ.get("TAILST"): stamp(a, 1)
    for l in reads(0): a(l)
    for n in range(32):
        b = BUF + 16 * (n % 2)
        def mf(at, bt):
            d = ACC + 16 * (2 * at + bt)
            c = "0" if n == 0 else vr(d, 16)
            a(f"v_mfma_f32_32x32x16_bf16 {vr(d,16)}, {vr(b+4*at,4)}, {vr(b+8+4*bt,4)}, {c}")
        a("s_waitcnt lgkmcnt(0)")
        mf(0, 0)
        rd = reads(n + 1) if n < 31 else []
        if rd: wait_for(("w", n + 1))
        for l in rd[:3]: a(l)
        mf(0, 1)
        for l in rd[3:]: a(l)
        dl = w1dma_list(n + NE) if n + NE < 32 else []
        mf(1, 0)
        if dl:
            a(dl[0]); q.append(("w", n + NE))
        mf(1, 1)
        if dl:
            a(dl[1]); q.append(("w", n + NE))
        if n == 27:
            pollld(); q.append(("p", 0))
    a("s_branch L_f1done")
    a.label("L_f1g")
    a(f"""
    v_lshrrev_b32 v4, 5, v1
    v_lshlrev_b32 v4, 4, v4
    s_add_u32 s5, s79, {ent(0)}
    v_add_u32 v4, s5, v4
    s_waitcnt vmcnt(0)
    """)
    for sg in range(8):
        for ss in range(4):
            n = 4 * sg + ss
            b = BUF + 12 * ss
            a(f"""
            ds_read_b128 {vr(b,4)}, v4 offset:{n*32}
            ds_read_b128 {vr(b+4,4)}, v{VXA+ss} offset:{sg*8192}
            ds_read_b128 {vr(b+8,4)}, v{VXA+ss} offset:{sg*8192+4096}
            """)
        a("s_waitcnt lgkmcnt(0)")
        for ss in range(4):
            b = BUF + 12 * ss
            for bt in range(2):
                d = ACC + 16 * bt
                c = "0" if (sg == 0 and ss == 0) else vr(d, 16)
                a(f"v_mfma_f32_32x32x16_bf16 {vr(d,16)}, {vr(b,4)}, {vr(b+4+4*bt,4)}, {c}")
    a(f"""
    v_cmp_gt_u32 vcc, 32, v1
    s_nop 7
    s_nop 7
    v_cndmask_b32 v8, v{ACC+16}, v{ACC}, vcc
    """)
    sigmoid(a, 8)
    a("s_branch L_f1w")
    a.label("L_f1n")
    a.label("L_f1w")
    lds_wait(a, VM, M_QOK, 3, 3, sleep=4)
    pollld()
    a.label("L_f1done")
    a("s_setprio 3")
    lds_add(a, VM, M_F1C, 3)
    if not os.environ.get("TAILST"): stamp(a, 2)
    stamp(a, 0, pa=3)
    a(f"""
    s_mov_b32 s{S_H}, s{S_WS}
    s_mov_b32 s{S_H+1}, s{S_WS+1}
    s_cmp_eq_u32 s85, 0
    s_cselect_b32 s{S_H+2}, {WS_BYTES:#x}, 0
    s_mov_b32 s{S_G}, s{S_WS}
    s_mov_b32 s{S_G+1}, s{S_WS+1}
    s_cmp_eq_u32 s85, 1
    s_cselect_b32 s{S_G+2}, {WS_BYTES:#x}, 0
    s_nop 5
    s_lshl_b32 s5, s41, 17
    s_lshl_b32 s52, s43, 12
    s_add_u32 s53, s5, s52
    s_add_u32 s53, s53, {KV}
    s_lshl_b32 s58, s86, 8
    s_add_u32 s58, s58, {GBUF}
    v_lshlrev_b32 v9, 2, v1
    s_nop 3
    """)
    stores = []
    for at in range(2):
        for bt in range(2):
            d = ACC + 16 * (at * 2 + bt)
            o = BUF + 8 * (at * 2 + bt)
            for r in range(8):
                a(f"v_cvt_pk_bf16_f32 v{o+r}, v{d+2*r}, v{d+2*r+1}")
            for r in range(8):
                a(f"v_pk_max_i16 v{o+r}, v{o+r}, 0")
            for half in range(2):
                stores.append(f"buffer_store_dwordx4 {vr(o+4*half,4)}, v2, {sr(S_H)}, s{54+bt} offen offset:{(2*at+half)*1024} sc1")
    stores.append(f"buffer_store_dword v8, v9, {sr(S_G)}, s58 offen sc1")
    a("s_waitcnt vmcnt(0)")
    a(f"""
    v_cmp_ne_u32 vcc, s{S_TAG}, v{VPOLL}
    s_cmp_eq_u64 vcc, 0
    s_cbranch_scc1 L_allok
    """)
    poll_flags(a, VFL, "s77", [(1, 0)], VPOLL, sleep=3)
    a.label("L_allok")
    lds_wait(a, VM, M_C1, 8, 3, sleep=1)
    lds_wait(a, VM, M_F1C, 4, 3, sleep=1)
    AW = int(os.environ.get("AW", "2"))
    if AW == 1: lds_wait(a, VM, M_S0, 8, 3, sleep=1)
    if AW == 2: lds_wait(a, VM, M_S1, 4, 3, sleep=1)
    def kvdma(sg):
        a(f"""
        s_add_u32 s6, s72, {sg}
        s_and_b32 s6, s6, 7
        s_lshl_b32 s6, s6, 14
        s_add_u32 m0, s52, {sg*16384}
        s_add_u32 s6, s6, s53
        """)
        for k in range(4):
            a(f"buffer_load_dwordx4 v2, {sr(S_WS)}, s6 offen offset:{k*1024} lds")
    def prog(n):
        a(f"""
        v_mov_b32 v10, {n}
        ds_write_b32 v{VPG}, v10 offset:{M_PROG}
        """)
    stamp(a, 1, pa=3)
    KSP = int(os.environ.get("KSP", "5"))
    for sg in range(ES, KSP):
        kvdma(sg)
    AX = int(os.environ.get("AX", "0"))
    if AX == 1: lds_wait(a, VM, M_S1, 4, 3, sleep=1)
    if AX == 2:
        a("s_waitcnt vmcnt(0)")
        prog(KSP)
    if not RE: rl_loads()
    if AX == 3:
        a("s_waitcnt vmcnt(16)")
        prog(KSP)
    for l in stores: a(l)
    a(f"""
    s_mov_b32 s{S_R2}, s{S_WS}
    s_mov_b32 s{S_R2+1}, s{S_WS+1}
    s_cmp_ge_u32 s74, 896
    s_cselect_b32 s{S_R2+2}, {WS_BYTES:#x}, 0
    s_mov_b32 s80, 0x05040100
    s_mov_b32 s81, 0x07060302
    """)
    stamp(a, 2, pa=3)
    a(f"s_waitcnt vmcnt({(0 if RE else 16)+len(stores)})")
    prog(KSP)
    if not os.environ.get("TAILST"): stamp(a, 6)
    stamp(a, 3, pa=3)
    a(f"s_waitcnt vmcnt({len(stores)})")
    stamp(a, 4, pa=3)
    for half in range(2):
        for jj in range(4):
            A = R + 8 * half + 2 * jj
            a(f"v_perm_b32 v{F+8*half+jj}, v{A+1}, v{A}, s80")
            a(f"v_perm_b32 v{F+8*half+4+jj}, v{A+1}, v{A}, s81")
        sd = S_R2 if half else S_WS
        a(f"buffer_store_dwordx4 {vr(F+8*half,4)}, v{VRS}, {sr(sd)}, s57 offen offset:{half*1024} sc1")
        a(f"buffer_store_dwordx4 {vr(F+8*half+4,4)}, v{VRS}, {sr(sd)}, s57 offen offset:{half*1024+256} sc1")
    for sg in range(KSP, 8):
        kvdma(sg)
    a(f"""
    s_waitcnt vmcnt({4*(8-KSP)})
    s_mov_b64 exec, 1
    v_mov_b32 v8, 1
    ds_add_rtn_u32 v8, v{VM}, v8 offset:{M_E2}
    s_waitcnt lgkmcnt(0)
    s_mov_b64 exec, -1
    v_readfirstlane_b32 s5, v8
    s_cmp_lg_u32 s5, 3
    s_cbranch_scc1 L_e2skip
    s_lshl_b32 s5, s2, 7
    s_add_u32 s5, s5, {FL2}
    """)
    store_flag(a, "s5", BUF)
    a.label("L_e2skip")
    stamp(a, 5, pa=3)
    if KSP < 8:
        a("s_waitcnt vmcnt(0)")
        prog(8)
    a(f"""
    """)
    a(f"""
    s_mul_i32 s5, s43, 7
    s_lshl_b32 s50, 0x7f, s5
    s_lshl_b32 s5, 0x10000000, s43
    s_or_b32 s50, s50, s5
    s_lshl_b32 s5, s43, 1
    s_lshl_b32 s51, 3, s5
    s_lshl_b32 s5, 0x100, s43
    s_or_b32 s51, s51, s5
    v_and_b32 v3, 7, v1
    s_lshl_b32 s5, s42, 2
    v_add_u32 v4, s5, v3               ; 4c + k
    v_mov_b32 v5, s41
    v_cmp_lt_u32 vcc, 39, v1
    v_cndmask_b32 v4, v5, v4, vcc      ; tb
    v_cndmask_b32 v3, v3, 1, vcc       ; g
    v_lshrrev_b32 v5, {TBS}, v4
    v_lshlrev_b32 v5, {TBS-2}, v5
    {"v_and_b32 v6, 1, v3" if GPAR else "v_lshrrev_b32 v6, %d, v3" % (5-TBS)}
    {"v_xor_b32 v6, 1, v6" if GPAR == 2 else ""}
    v_add_u32 v5, v5, v6               ; j
    {"v_lshrrev_b32 v6, 1, v3" if GPAR else "v_and_b32 v6, %d, v3" % ((1<<(5-TBS))-1)}
    v_lshlrev_b32 v6, {TBS}, v6
    v_and_b32 v4, {(1<<TBS)-1}, v4
    v_add_u32 v6, v6, v4               ; i
    v_lshl_add_u32 v4, v6, 3, v5
    v_lshlrev_b32 v7, 3, v1
    v_add_u32 v7, s42, v7
    v_cmp_lt_u32 vcc, 31, v1
    v_cndmask_b32 v7, v7, v4, vcc
    v_lshlrev_b32 v7, 7, v7
    s_mov_b32 s58, {FL2}
    """)
    lds_wait(a, VM, M_E2, 4, 6, sleep=4)
    a(f"""
    s_sleep {int(os.environ.get('ESL', '8'))}
    L_e2p:
    s_mov_b64 exec, s[50:51]
    buffer_load_dword v{BUF}, v7, {sr(S_WS)}, s58 offen sc1
    s_waitcnt vmcnt(0)
    v_cmp_ne_u32 vcc, s{S_TAG}, v{BUF}
    s_mov_b64 exec, -1
    s_cmp_eq_u64 vcc, 0
    s_cbranch_scc1 L_e2ok
    """)
    spin_guard(a, "L_e2p", int(os.environ.get('ESL2', '10')))
    a.label("L_e2ok")
    if not os.environ.get("TAILST"): stamp(a, 3)
    stamp(a, 6, pa=3)
    a(f"""
    v_and_b32 v3, 31, v1
    v_lshlrev_b32 v3, 2, v3
    s_lshl_b32 s58, s41, 8
    s_and_b32 s5, s43, 1
    s_lshl_b32 s5, s5, 7
    s_add_u32 s58, s58, s5
    s_add_u32 s58, s58, {GBUF}
    v_mov_b32 v10, v3
    s_lshl_b32 s5, s42, 3
    s_lshl_b32 s6, s43, 1
    s_add_u32 s5, s5, s6
    s_lshl_b32 s5, s5, 5
    s_add_u32 s5, s5, s41
    s_lshl_b32 s5, s5, 10
    s_add_u32 s5, s5, {OF}
    s_add_u32 s6, s5, 32768
    v_mov_b32 v160, -1
    v_mov_b32 v161, -1
    v_mov_b32 v162, -1
    v_mov_b32 v163, -1
    buffer_store_dwordx4 v[160:163], v2, {sr(S_WS)}, s5 offen sc1
    buffer_store_dwordx4 v[160:163], v2, {sr(S_WS)}, s6 offen sc1
    s_lshr_b32 s50, s43, 1             ; kh
    s_and_b32 s51, s43, 1              ; bt
    s_mul_i32 s5, s50, {112*1024}
    v_add_u32 v4, s5, v2
    s_sub_u32 s5, {112*1024}, s5
    v_add_u32 v5, s5, v2
    s_mul_i32 s5, s51, {112*1024}
    v_add_u32 v6, s5, v2
    s_sub_u32 s5, {112*1024}, s5
    v_add_u32 v7, s5, v2
    s_mul_i32 s5, s43, {28*1024}
    s_mul_i32 s52, s42, {2*112*1024}
    s_add_u32 s52, s52, s5
    s_add_u32 s52, s52, {W2F}
    s_mul_i32 s53, s41, {2*112*1024}
    s_add_u32 s53, s53, s5
    s_add_u32 s53, s53, {HF}
    s_lshl_b32 s54, s42, 1
    s_lshr_b32 s5, s43, 1
    s_add_u32 s54, s54, s5             ; c tile
    s_lshl_b32 s54, s54, 15
    s_add_u32 s54, s54, {WOF}
    s_lshl_b32 s55, s41, 1
    s_and_b32 s5, s43, 1
    s_add_u32 s55, s55, s5
    s_lshl_b32 s56, s55, 12
    s_add_u32 s56, s56, {FL3}
    s_lshl_b32 s55, s55, 15
    s_add_u32 s55, s55, {OF}
    s_sub_u32 s78, s73, 7
    s_cmp_ge_u32 s73, 7
    s_cselect_b32 s78, s78, s73
    """)
    a(f"s_setprio {FPRIO}")
    WOS = int(os.environ.get("WOS", "20"))
    def wo_stage():
        a(f"""
        s_lshl_b32 s6, s43, 14
        s_lshl_b32 s7, s42, 16
        s_add_u32 s7, s7, s6
        s_add_u32 s7, s7, {WOF}
        """)
        lds_wait(a, VM, M_PZ, 4, 9, sleep=4)
        a(f"buffer_load_dword v10, v10, {sr(S_WS)}, s58 offen")
        lds_wait(a, VM, M_DEAD, 8, 9, sleep=4)
        for sg in range(4):
            a(f"""
            s_add_u32 m0, s6, {sg*4096}
            s_add_u32 s5, s7, {sg*4096}
            """)
            for q in range(4):
                a(f"buffer_load_dwordx4 v2, {sr(S_WS)}, s5 offen offset:{q*1024} lds")
        return 17
    def f2hook(st):
        if st == 1: lds_add(a, VM, M_PZ, 9)
        if st == WOS + 5: lds_add(a, VM, M_W, 9)
        if st == WOS: return wo_stage()
    stream_gemm(a, 28, 2, 2, ACC, BUF, 5, 4, 6, 52, 53, 78, hook=f2hook)
    a("s_setprio 3")
    stamp(a, 4)
    stamp(a, 0, pa=4)
    X = ACC; Y = ACC + 32
    SET = 80
    HB = [ACC + 16, ACC + 48]
    MG = 144
    assert WOS + 5 < 28
    srd(a, S_OUT, 22, 2048 * 1024)
    a(f"""
    s_lshl_b32 s5, s50, 2
    v_add_u32 v14, s5, v{VM}
    ds_read_b32 v160, v14 offset:{M_RDY}
    s_lshl_b32 s5, s43, 13
    s_add_u32 s5, s5, 65536
    v_add_u32 v15, s5, v2
    v_xor_b32 v161, 8192, v15
    v_xor_b32 v12, 16384, v15
    s_lshl_b32 s5, s43, 2
    v_add_u32 v11, s5, v{VM}
    v_xor_b32 v8, 4, v11
    v_xor_b32 v162, 8, v11
    s_sub_u32 s57, s55, {OF}           ; T*32768 = 32 tokens * 1024
    s_sub_u32 s5, s54, {WOF}
    s_lshr_b32 s5, s5, 9               ; ct*64
    s_add_u32 s57, s57, s5
    v_and_b32 v3, 31, v1
    v_lshlrev_b32 v6, 10, v3
    v_lshrrev_b32 v4, 5, v1
    v_lshl_add_u32 v6, v4, 4, v6
    v_lshlrev_b32 v7, 7, v3
    s_lshl_b32 s5, s50, 11
    s_add_u32 s56, s56, s5
    s_lshl_b32 s5, s50, 14
    s_add_u32 s55, s55, s5
    s_mul_i32 s5, s50, {32768+16384}
    v_add_u32 v5, s5, v2
    s_mov_b32 s48, 0x1111
    s_mov_b32 s75, 0                   ; landed
    s_mov_b32 s77, 0
    v_sub_f32 v10, 1.0, v10
    s_waitcnt lgkmcnt(0)
    v_readfirstlane_b32 s49, v160
    s_and_b32 s49, s49, s48
    """)
    def oissue(sm, tag):
        for j in range(4):
            o = SET + 16 * j
            a(f"""
            s_bitcmp1_b32 {sm}, {4*j}
            s_cbranch_scc0 L_oi{tag}{j}
            s_add_u32 s6, s55, {j*4096}
            """)
            for q in range(4):
                a(f"buffer_load_dwordx4 {vr(o+4*q,4)}, v2, {sr(S_WS)}, s6 offen offset:{q*1024} sc1")
            a.label(f"L_oi{tag}{j}")
    oissue("s49", "a")
    stamp(a, 1, pa=4)
    lds_wait(a, VM, M_DEAD2, 8, 9, sleep=2)
    stamp(a, 2, pa=4)
    for t in range(2):
        for q in range(4):
            a(f"ds_write_b128 v161, {vr(ACC+16+32*t+4*q,4)} offset:{t*4096+q*1024}")
    a(f"""
    v_mov_b32 v9, 1
    ds_write_b32 v8, v9 offset:{M_XP}
    """)
    stamp(a, 3, pa=4)
    for t in range(2):
        for r in range(16):
            a(f"v_mul_f32 v{ACC+32*t+r}, v{ACC+32*t+r}, v10")
    stamp(a, 5, pa=4)
    lds_wait(a, VM, M_W, 4, 9, sleep=2)
    if os.environ.get("TAILST"): stamp(a, 0)
    stamp(a, 6, pa=4)
    def merge(block):
        L = a.new("L_mg"); D = a.new("L_mgd"); G = a.new("L_mgo")
        a(f"""
        s_cmp_lg_u32 s77, 0
        s_cbranch_scc1 {D}
        {L}:
        ds_read_b32 v3, v11 offset:{M_XP}
        """)
        for q in range(4):
            a(f"ds_read_b128 {vr(MG+4*q,4)}, v15 offset:{q*1024}")
        a(f"""
        s_waitcnt lgkmcnt(0)
        v_readfirstlane_b32 s77, v3
        s_cmp_lg_u32 s77, 0
        s_cbranch_scc1 {G}
        """)
        if block: spin_guard(a, L, 1)
        else: a(f"s_branch {D}")
        a.label(G)
        for r in range(16):
            a(f"v_fmac_f32 v{X+r}, v{MG+r}, v10")
        for q in range(4):
            a(f"ds_read_b128 {vr(MG+4*q,4)}, v15 offset:{4096+q*1024}")
        a("s_waitcnt lgkmcnt(0)")
        for r in range(16):
            a(f"v_fmac_f32 v{Y+r}, v{MG+r}, v10")
        a.label(D)
    def setaddr(sb):
        a(f"""
        s_lshl_b32 s5, {sb}, 10
        v_add_u32 v8, s5, v5
        v_xor_b32 v9, 32768, v8
        """)
    def rd(h):
        b = HB[h]
        a(f"ds_read_b128 {vr(b,4)}, v8 offset:{h*2048}")
        a(f"ds_read_b128 {vr(b+4,4)}, v9 offset:{h*2048}")
        a(f"ds_read_b128 {vr(b+8,4)}, v8 offset:{h*2048+1024}")
        a(f"ds_read_b128 {vr(b+12,4)}, v9 offset:{h*2048+1024}")
    a(f"""
    s_mov_b32 s53, -1
    L_op:
    ds_read_b32 v3, v14 offset:{M_RDY}
    s_or_b32 s6, s49, s75
    s_waitcnt lgkmcnt(0)
    v_readfirstlane_b32 s59, v3
    s_and_b32 s58, s59, s48
    s_andn2_b32 s58, s58, s6           ; new
    s_cbranch_scc0 L_noiss
    """)
    if os.environ.get("TAILST"): stamp(a, 1)
    oissue("s58", "b")
    a(f"""
    s_or_b32 s49, s49, s58
    L_noiss:
    s_cmp_lg_u32 s75, 0
    s_cbranch_scc1 L_proc
    """)
    merge(False)
    a(f"""
    s_cmp_lg_u32 s49, 0
    s_cbranch_scc1 L_owait
    s_andn2_b32 s5, s59, 0x1111
    s_or_b32 s5, s5, s51
    s_cbranch_scc1 L_oidle
    s_andn2_b32 s5, 0x1111, s59
    s_mul_i32 s5, s5, 15
    s_or_b32 exec_lo, s5, 1
    s_mov_b32 exec_hi, 0
    buffer_load_dword v3, v7, {sr(S_WS)}, s56 offen sc1
    s_waitcnt vmcnt(0)
    v_cmp_ne_u32 vcc, s{S_TAG}, v3
    s_lshr_b32 s5, vcc_lo, 1
    s_or_b32 s5, s5, vcc_lo
    s_lshr_b32 s6, s5, 2
    s_or_b32 s5, s5, s6
    s_andn2_b32 s5, 0x1111, s5
    v_mov_b32 v4, s5
    s_mov_b64 exec, 1
    ds_or_b32 v14, v4 offset:{M_RDY}
    s_mov_b64 exec, -1
    s_cmp_lg_u32 s5, s59
    s_cbranch_scc1 L_op
    s_sleep {int(os.environ.get("OSL", "4"))}
    L_oidle:
    """)
    spin_guard(a, "L_op", 1)
    a(f"""
    L_owait:
    s_mov_b32 s75, s49
    s_mov_b32 s49, 0
    s_ff1_i32_b32 s52, s75
    s_cmp_eq_u32 s52, s53
    s_cbranch_scc1 L_ow2
    s_mov_b32 s53, s52
    """)
    setaddr("s53"); rd(0); rd(1)
    a(f"""
    L_ow2:
    s_waitcnt vmcnt(0)
    L_proc:
    """)
    if os.environ.get("TAILST"): stamp(a, 2)
    a(f"""
    s_ff1_i32_b32 s52, s75
    s_bitset0_b32 s75, s52
    s_cmp_eq_u32 s52, s53
    s_cbranch_scc1 L_pr2
    s_mov_b32 s53, s52
    """)
    setaddr("s53"); rd(0); rd(1)
    a(f"""
    L_pr2:
    s_cmp_lg_u32 s75, 0
    s_cselect_b32 s5, s75, s49
    s_ff1_i32_b32 s74, s5
    s_max_i32 s74, s74, 0
    """)
    setaddr("s74")
    for j in range(4):
        o = SET + 16 * j
        if j < 3:
            a(f"""
            s_cmp_lg_u32 s52, {4*j}
            s_cbranch_scc1 L_om{j}
            """)
        a(f"v_max3_u32 v4, v{o}, v{o+1}, v{o+2}")
        for r in range(3, 15, 2):
            a(f"v_max3_u32 v4, v4, v{o+r}, v{o+r+1}")
        a(f"""
        v_max_u32 v4, v4, v{o+15}
        v_cmp_eq_u32 vcc, -1, v4
        s_cmp_eq_u64 vcc, 0
        s_cbranch_scc0 L_ofail
        s_bitset0_b32 s48, {4*j}
        s_mov_b32 s53, s74
        """)
        for h in range(2):
            b = HB[h]
            a("s_waitcnt lgkmcnt(4)" if h == 0 else "s_waitcnt lgkmcnt(4)")
            for qq in range(2):
                a(f"v_mfma_f32_32x32x16_bf16 {vr(Y,16)}, {vr(b+8*qq+4,4)}, {vr(o+8*h+4*qq,4)}, {vr(Y,16)}")
                a(f"v_mfma_f32_32x32x16_bf16 {vr(X,16)}, {vr(b+8*qq,4)}, {vr(o+8*h+4*qq,4)}, {vr(X,16)}")
            rd(h)
        a(f"""
        s_cmp_eq_u32 s48, 0
        s_cbranch_scc0 L_op
        s_branch L_odone
        """)
        if j < 3: a.label(f"L_om{j}")
    a.label("L_ofail")
    spin_guard(a, "L_op", 1)
    a("""
    L_odone:
    s_nop 7
    """)
    merge(True)
    stamp(a, 5)
    for q in range(4):
        a(f"ds_write_b128 v15, {vr(Y+4*q,4)} offset:{q*1024}")
    a(f"""
    v_mov_b32 v4, 1
    ds_write_b32 v162, v4 offset:{M_Y}
    L_yw:
    ds_read_b32 v3, v11 offset:{M_Y}
    """)
    for q in range(4):
        a(f"ds_read_b128 {vr(Y+4*q,4)}, v12 offset:{q*1024}")
    a(f"""
    s_waitcnt lgkmcnt(0)
    v_readfirstlane_b32 s5, v3
    s_cmp_lg_u32 s5, 0
    s_cbranch_scc1 L_ywd
    """)
    spin_guard(a, "L_yw", 0)
    a.label("L_ywd")
    if os.environ.get("TAILST"): stamp(a, 3)
    for r in range(16):
        a(f"v_add_f32 v{X+r}, v{X+r}, v{Y+r}")
    for r in range(8):
        a(f"v_cvt_pk_bf16_f32 v{SET+r}, v{X+r}, v{X+8+r}")
    OST = os.environ.get("OST", "")
    a(f"""
    buffer_store_dwordx4 {vr(SET,4)}, v6, {sr(S_OUT)}, s57 offen {OST}
    buffer_store_dwordx4 {vr(SET+4,4)}, v6, {sr(S_OUT)}, s57 offen offset:32 {OST}
    """)
    if os.environ.get("TAILST"): stamp(a, 6)
    stamp_end(a)

def kd(name, nv, ns=102):
    return f""".p2align 6
.amdhsa_kernel {name}
  .amdhsa_next_free_vgpr {nv}
  .amdhsa_next_free_sgpr {ns}
  .amdhsa_accum_offset {(nv+3)//4*4}
  .amdhsa_group_segment_fixed_size 0
  .amdhsa_kernarg_size 80
  .amdhsa_user_sgpr_count 2
  .amdhsa_user_sgpr_kernarg_segment_ptr 1
  .amdhsa_system_sgpr_workgroup_id_x 1
.end_amdhsa_kernel
"""

def main(out):
    hdr = open("cdna_kernels/" + NAME + ".s.ref").read().split("\n")
    hdr = [l for l in hdr if l.startswith(";") and "@launch" not in l]
    a = Asm()
    gen(a)
    txt = "\n".join(hdr) + "\n"
    txt += f"; @launch grid=(256,1,1) block=(768,1,1) lds={LDS_BYTES}\n"
    txt += '.amdgcn_target "amdgcn-amd-amdhsa--gfx950"\n.text\n'
    body = a.text()
    if int(os.environ.get("ALLSC1", "1")):
        ol = []
        for l in body.split("\n"):
            if l.strip().startswith("buffer_load") and sr(S_WS) in l and "sc1" not in l:
                l = l.replace(" lds", " sc1 lds") if l.rstrip().endswith(" lds") else l + " sc1"
            ol.append(l)
        body = "\n".join(ol)
    txt += body
    txt += '.section .rodata,"a"\n'
    txt += kd(NAME + "_kernel", 168)
    open(out, "w").write(txt)

if __name__ == "__main__":
    main(sys.argv[1] if len(sys.argv) > 1 else "cdna_kernels/" + NAME + ".s")
```

```python
import math, os, struct, sys

NAME = "gated_mix__mha_block__dense_activation_relu__prompt"
STAMP = os.environ.get("STAMP")

def f32bits(x):
    return struct.unpack("<I", struct.pack("<f", x))[0]

class Asm:
    def __init__(self):
        self.l = []
        self.uid = 0
    def __call__(self, s):
        for line in s.strip("\n").split("\n"):
            line = line.strip()
            if line:
                self.l.append(("" if line.endswith(":") else "    ") + line)
    def label(self, s):
        self.l.append(s + ":")
    def raw(self, s):
        self.l.append(s)
    def new(self, p="L"):
        self.uid += 1
        return f"{p}_{self.uid}"
    def text(self):
        return "\n".join(self.l) + "\n"

EPOCH = 0x0
QF = 0x1A00000
XID = 0xD38000
KV = 0x200000
XF = 0x600000
W1F = 0x800000
W2F = 0xA00000
WOF = 0xC00000
FLS = 0xD00000
FL2 = 0xD10000
FL1 = 0xD40000
FL3 = 0xD80000
GBUF = 0xD20000
FLG = 0xD30000
HF = 0x1000000
OF = 0x1800000
STB = 0x1F00000
WS_BYTES = 0x2000000

L_X = 49152
L_W = 65536
L_OX = 131072
L_MISC = 157696
L_MISC0 = 65536
L_LX = 158720
L_GF = 160768
LDS_BYTES = 163840
M_PROG, M_QOK, M_PAIR, M_GF, M_E0R, M_E2, M_E2R, M_DMA = 0, 32, 64, 128, 136, 140, 144, 168
M_FP, M_C1, M_F1C, M_S0, M_S1, M_DEAD, M_X, M_RDY, M_W, M_DEAD2, M_Y, M_PZ, M_XP = 16, 176, 180, 184, 188, 192, 196, 200, 208, 212, 224, 216, 240
WSLOT = [136*1024, 112*1024, 24*1024, 0]
L_VX = 24 * 1024

QSCALE = 0.25 * math.log2(math.e)
LOG2E = math.log2(math.e)
SPIN_MAX = 200000
ILV = int(os.environ.get('ILV', '0'))
FPRIO = int(os.environ.get('FPRIO', '0'))

S_X, S_WQKV, S_WS, S_SRC, S_OUT = 28, 32, 36, 44, 60
S_TAG = 82
S_EP = 84
S_SPIN = 83

def vr(a, n):
    return f"v[{a}:{a+n-1}]"
def sr(a):
    return f"s[{a}:{a+3}]"

def srd(a, d, base, nbytes):
    a(f"""
    s_mov_b32 s{d}, s{base}
    s_and_b32 s{d+1}, s{base+1}, 0xffff
    s_mov_b32 s{d+2}, {nbytes:#x}
    s_mov_b32 s{d+3}, 0x20000
    """)

NST = 7
def stamp_begin(a):
    if not STAMP: return
    a("""
    s_memtime s[64:65]
    s_memrealtime s[66:67]
    s_waitcnt lgkmcnt(0)
    """)
    for i in range(NST):
        a(f"s_mov_b32 s{88+2*i}, {'s66' if os.environ.get('RT') else 's64'}")
PAST = os.environ.get("PAST")
def stamp(a, i, pa=False):
    if not STAMP: return
    if int(PAST or 0) != int(pa): return
    a(f"""
    s_waitcnt lgkmcnt(0)
    {'s_memrealtime' if os.environ.get('RT') else 's_memtime'} s[{88+2*i}:{89+2*i}]
    s_waitcnt lgkmcnt(0)
    """)
def stamp_end(a):
    if not STAMP: return
    a(f"""
    s_waitcnt vmcnt(0) lgkmcnt(0)
    s_memtime s[68:69]
    s_memrealtime s[70:71]
    s_waitcnt lgkmcnt(0)
    s_mov_b64 exec, 1
    v_mov_b32 v4, s64
    v_mov_b32 v5, s66
    v_mov_b32 v6, s68
    v_mov_b32 v7, s70
    """)
    for i in range(8):
        a(f"v_mov_b32 v{8+i}, s{88+2*min(i,NST-1)}" if i < NST else "v_mov_b32 v15, s73")
    a(f"""
    s_lshl_b32 s72, s2, 4
    s_add_u32 s72, s72, s40
    s_lshl_b32 s72, s72, 6
    s_add_u32 s72, s72, {STB}
    v_mov_b32 v3, 0
    buffer_store_dwordx4 v[4:7], v3, {sr(S_WS)}, s72 offen
    buffer_store_dwordx4 v[8:11], v3, {sr(S_WS)}, s72 offen offset:16
    buffer_store_dwordx4 v[12:15], v3, {sr(S_WS)}, s72 offen offset:32
    """)

def spin_guard(a, again, sleep=4):
    a(f"""
    s_sleep {sleep}
    s_add_u32 s{S_SPIN}, s{S_SPIN}, 1
    s_cmp_lt_u32 s{S_SPIN}, {SPIN_MAX}
    s_cbranch_scc1 {again}
    s_endpgm
    """)

def poll_flags(a, voff, soff, loads, T, sleep=8):
    L = a.new("L_poll"); D = a.new("L_pdone")
    a.label(L)
    r = T
    regs = []
    for nd, imm in loads:
        op = {1: "buffer_load_dword", 2: "buffer_load_dwordx2", 4: "buffer_load_dwordx4"}[nd]
        dst = f"v{r}" if nd == 1 else vr(r, nd)
        a(f"{op} {dst}, v{voff}, {sr(S_WS)}, {soff} offen offset:{imm} sc1")
        regs += list(range(r, r + nd)); r += nd
    a("s_waitcnt vmcnt(0)")
    a(f"v_xor_b32 v{regs[0]}, s{S_TAG}, v{regs[0]}")
    for q in regs[1:]:
        a(f"v_xor_b32 v{q}, s{S_TAG}, v{q}")
        a(f"v_or_b32 v{regs[0]}, v{regs[0]}, v{q}")
    a(f"""
    v_cmp_ne_u32 vcc, 0, v{regs[0]}
    s_cmp_eq_u64 vcc, 0
    s_cbranch_scc1 {D}
    """)
    spin_guard(a, L, sleep)
    a.label(D)

def lds_wait(a, vaddr, off, val, T, sleep=1):
    L = a.new("L_lw"); D = a.new("L_lwd")
    a.label(L)
    a(f"""
    ds_read_b32 v{T}, v{vaddr} offset:{off}
    s_waitcnt lgkmcnt(0)
    v_readfirstlane_b32 s5, v{T}
    s_cmp_eq_u32 s5, {val}
    s_cbranch_scc1 {D}
    """)
    spin_guard(a, L, sleep)
    a.label(D)

def lds_add(a, vaddr, off, T):
    a(f"""
    s_mov_b64 exec, 1
    v_mov_b32 v{T}, 1
    ds_add_u32 v{vaddr}, v{T} offset:{off}
    s_mov_b64 exec, -1
    """)

def dual(a, sfast, lines):
    for l in lines: a(l + " sc1")

def store_flag(a, soff, T, sfast=None, second=None):
    a(f"""
    s_mov_b64 exec, 0xff
    v_mov_b32 v{T}, s{S_TAG}
    v_mov_b32 v{T+1}, {second if second else 's%d' % S_TAG}
    v_mov_b32 v{T+2}, s{S_TAG}
    v_mov_b32 v{T+3}, s{S_TAG}
    """)
    line = f"buffer_store_dwordx4 {vr(T,4)}, v2, {sr(S_WS)}, {soff} offen"
    if sfast is None:
        a(line + " sc1")
    else:
        dual(a, sfast, [line])
    a("s_mov_b64 exec, -1")
    a("s_nop 1")

def stream_gemm(a, nsteps, na, nb, ACC, BUF, depth, VA, VB, SA, SB, SG, first=True, gate=None, hook=None):
    per = na + nb
    ng = nsteps // 4
    extra = []
    def group():
        a(f"""
        s_lshl_b32 s5, s{SG}, 12
        s_add_u32 s80, s{SA}, s5
        s_add_u32 s81, s{SB}, s5
        s_lshl_b32 s79, s{SG}, 7
        s_add_u32 s{SG}, s{SG}, 1
        s_cmp_eq_u32 s{SG}, {ng}
        s_cselect_b32 s{SG}, 0, s{SG}
        """)
    def issue_list(s):
        slot = BUF + (s % depth) * 4 * per
        imm = (s % 4) * 1024
        l = []
        for t in range(na):
            if gate and t == 1:
                l.append(f"buffer_load_dwordx4 {vr(slot+4*t,4)}, v{gate[1]}, {sr(gate[0])}, s79 offen offset:{(s%4)*32}")
            else:
                l.append(f"buffer_load_dwordx4 {vr(slot+4*t,4)}, v{VA+t}, {sr(S_WS)}, s80 offen offset:{imm}")
        for t in range(nb):
            l.append(f"buffer_load_dwordx4 {vr(slot+4*(na+t),4)}, v{VB+t}, {sr(S_WS)}, s81 offen offset:{imm}")
        return l
    for s in range(min(depth - 1, nsteps)):
        if s % 4 == 0: group()
        for l in issue_list(s): a(l)
    for s in range(nsteps):
        nxt = []
        if s + depth - 1 < nsteps:
            if (s + depth - 1) % 4 == 0: group()
            nxt = issue_list(s + depth - 1)
        if not ILV:
            for l in nxt: a(l)
            outstanding = min(depth - 1, nsteps - 1 - s)
        else:
            outstanding = min(depth - 2, nsteps - 1 - s)
        ex_ = sum(n for (s0, n) in extra if s <= s0 + depth - 1)
        a(f"s_waitcnt vmcnt({outstanding*per + ex_})")
        if hook:
            n = hook(s)
            if n: extra.append((s, n))
        slot = BUF + (s % depth) * 4 * per
        k = 0
        for at in range(na):
            for bt in range(nb):
                d = ACC + 16 * (at * nb + bt)
                c = "0" if (first and s == 0) else vr(d, 16)
                if not (os.environ.get("F2X") and s > 0):
                    a(f"v_mfma_f32_32x32x16_bf16 {vr(d,16)}, {vr(slot+4*at,4)}, {vr(slot+4*(na+bt),4)}, {c}")
                if os.environ.get("F2GAP") and not (at == na - 1 and bt == nb - 1): a(f"s_sleep {os.environ.get('F2GAP')}")
                if ILV and k < len(nxt): a(nxt[k])
                k += 1

def sigmoid(a, v):
    a(f"""
    v_mul_f32 v{v}, {f32bits(-LOG2E):#x}, v{v}
    v_exp_f32 v{v}, v{v}
    s_nop 0
    v_add_f32 v{v}, 1.0, v{v}
    v_rcp_f32 v{v}, v{v}
    s_nop 0
    """)

KORD = int(os.environ.get('KORD', '1'))
SEQ = int(os.environ.get('SEQ', '1'))
GPAR = int(os.environ.get('GPAR', '1'))
NEG = int(os.environ.get('NE', '7'))
ES = 3 if NEG <= 5 else 2
def gen(a):
    KN = NAME + "_kernel"
    a.raw(f".globl {KN}")
    a.raw(".p2align 8")
    a.raw(f".type {KN},@function")
    a.label(KN)
    a(f"""
    s_cmp_ge_u32 s2, 256
    s_cbranch_scc1 L_end
    s_load_dwordx16 s[8:23], s[0:1], 0
    s_load_dwordx4 s[24:27], s[0:1], 64
    v_lshrrev_b32 v2, 6, v0
    v_and_b32 v1, 63, v0
    s_mov_b32 s{S_SPIN}, 0
    v_readfirstlane_b32 s40, v2
    s_and_b32 s3, s2, 7          ; j
    s_lshr_b32 s4, s2, 3         ; i
    s_and_b32 s43, s4, 3
    s_lshl_b32 s5, s3, 2
    s_add_u32 s41, s43, s5       ; h = tau = 4j + (i&3)
    s_lshr_b32 s42, s4, 2        ; c = phi = i>>2
    {"s_and_b32 s72, s41, 7" if KORD == 1 else ("s_and_b32 s72, s42, 4" if KORD == 2 else "s_mov_b32 s72, s42")}   ; first key block
    """)
    if PAM == "8x4":
        a("""
        s_lshr_b32 s5, s3, 1
        s_lshl_b32 s5, s5, 3
        s_and_b32 s6, s4, 7
        s_add_u32 s86, s5, s6        ; tb = 8(j>>1) + (i&7)
        s_and_b32 s5, s3, 1
        s_lshl_b32 s87, s5, 2
        s_lshr_b32 s7, s4, 3
        s_add_u32 s87, s87, s7       ; g = 4(j&1) + (i>>3)
        s_lshl_b32 s7, s7, 1
        """ + ("s_add_u32 s87, s7, s5" if GPAR == 1 else "s_xor_b32 s87, s5, 1\ns_add_u32 s87, s87, s7" if GPAR == 2 else "") + """
        s_add_u32 s49, s6, s7
        s_add_u32 s49, s49, s5
        s_and_b32 s49, s49, 7        ; rot
        """)
    elif PAM == "16x2":
        a("""
        s_lshr_b32 s5, s3, 2
        s_lshl_b32 s5, s5, 4
        s_and_b32 s6, s4, 15
        s_add_u32 s86, s5, s6        ; tb = 16(j>>2) + (i&15)
        s_and_b32 s5, s3, 3
        s_lshl_b32 s87, s5, 1
        s_lshr_b32 s7, s4, 4
        s_add_u32 s87, s87, s7       ; g = 2(j&3) + (i>>4)
        s_lshl_b32 s7, s7, 2
        s_add_u32 s49, s6, s7
        s_add_u32 s49, s49, s5
        s_and_b32 s49, s49, 7        ; rot = i + 4(i>>4) + (j&3)
        """)
    else:
        a("""
        s_mov_b32 s86, s4
        s_mov_b32 s87, s3
        s_add_u32 s49, s3, s4
        s_and_b32 s49, s49, 7
        """)
    a(f"""
    v_lshlrev_b32 v2, 4, v1      ; v2 = lane*16
    s_waitcnt lgkmcnt(0)
    """)
    stamp_begin(a)
    a(f"s_load_dword s{S_EP}, s[26:27], {EPOCH}")
    if int(os.environ.get("CODEW", "1")):
        a(f"""
        s_getpc_b64 s[74:75]
        L_pc:
        s_mul_i32 s5, s4, 12
        s_add_u32 s5, s5, s40
        s_lshl_b32 s5, s5, 7
        s_min_u32 s5, s5, L_end-L_pc-64
        s_and_b32 s74, s74, -128
        s_load_dword s80, s[74:75], s5
        s_add_u32 s5, s5, 64
        s_load_dword s81, s[74:75], s5
        """)
    TLBW = int(os.environ.get("TLBW", "0"))
    if TLBW:
        a(f"""
        s_cmp_lg_u32 s40, 11
        s_cbranch_scc1 L_notlb
        s_min_u32 s5, s4, 27
        s_lshl_b32 s5, s5, 16
        s_load_dword s48, s[16:17], s5
        s_load_dword s57, s[18:19], s5
        s_and_b32 s6, s4, 7
        s_lshl_b32 s6, s6, 16
        s_load_dword s77, s[12:13], s6
        """)
        if TLBW >= 2:
            a(f"""
            s_lshl_b32 s5, s4, 20
            s_load_dword s58, s[26:27], s5
            s_lshl_b32 s6, s4, 16
            s_load_dword s59, s[22:23], s6
            """)
        a.label("L_notlb")
    srd(a, S_X, 8, 2048 * 1024)
    srd(a, S_WQKV, 10, 512 * 3072)
    srd(a, S_WS, 26, WS_BYTES)
    a(f"""
    s_cmp_ge_u32 s40, 8
    s_cbranch_scc1 L_aux
    """)
    attention_wave(a)
    a.label("L_aux")
    aux_wave(a)
    a.label("L_end")
    a("s_endpgm")

VXA = 8
VWA = 12
VMI = 13
VWA2 = 62
NSL = 4
PAM = os.environ.get('PAM', '8x4')
TBS = {'8x4': 3, '16x2': 4, '32x1': 5}[PAM]
SCHEDS = {
 "a": ({-1: [0, 1], 0: [2, 3], 1: [4], 2: [5], 3: [6], 4: [7, "P"]}, {-1: [0, 1, 2, 3, 4, 5, 6, 7, "r0", "r1"]}, 5),
 "b": ({-1: [0], 0: [1, 2], 1: [3, 4], 2: [5], 3: [6], 4: [7, "P"]}, {-1: [0, 1, 2, 3], 0: [4, 5, 6, 7, "r0", "r1"]}, 5),
 "c": ({-1: [0], 0: [1, 2, 3], 1: [4], 2: [5], 3: [6], 4: [7, "P"]}, {-1: [0, 1, 2, 3, 4, 5, 6, 7], 0: ["r0", "r1"]}, 5),
 "e": ({-1: [0, 1], 0: [2, 3], 1: [4], 2: [5], 3: [6], 4: [7, "P"]}, {-1: [0, 1, 2, 3], 0: [4, 5, "r0"], 1: [6, 7, "r1"]}, 5),
 "f": ({-1: [0, 1, 2, 3], 1: [4], 2: [5], 3: [6], 4: [7, "P"]}, {-1: [0, 1, "r0", "r1", 2, 3, 4], 0: [5], 1: [6], 2: [7]}, 4),
 "d": ({-1: [0, 1], 0: [2, 3], 1: [4], 2: [5], 3: [6], 4: [7, "P"]}, {-1: [0, 1, 2, 3, 4, 5, 6, 7], 4: ["r0", "r1"]}, 6),
}
SCHEDS["g"] = ({-1: [0, 1], 0: [2, 3, "R"], 1: [4, "P"], 2: [5], 3: [6], 4: [7], 5: ["S"]}, {-1: [0, 1, 2, 3], 0: [4, 5, "T"], 1: [6, 7]}, 5)
SCHEDS["h"] = ({-1: [0, 1], 0: [2, 3], 1: [4, "R"], 2: [5, "P"], 3: [6], 4: [7], 6: ["S"]}, {-1: [0, 1, 2, 3], 0: [4, 5, 6, 7, "T"]}, 5)
SCHEDS["i"] = ({-1: [0, 1, "R"], 0: [2, 3, "P"], 1: [4], 2: [5, "S"], 3: [6], 4: [7]}, {-1: [0, 1, 2, 3, "T"], 0: [4, 5], 1: [6, 7]}, 5)
W0 = {-1: [0, 1], 0: [2, 3], 1: [4], 2: [5], 3: [6]}
X0 = {-1: [0, 1, 2, 3], 0: [4, 5], 1: [6, 7]}
SCHEDS["j"] = ({**W0, 4: [7, "P", "R"], 7: ["S"]}, X0, 5)
SCHEDS["k"] = ({**W0, 4: [7, "P", "R"], 8: ["S"]}, X0, 5)
SCHEDS["l"] = ({**W0, 4: [7, "P", "R"], 8: ["S"]}, {**X0, 3: ["T"]}, 5)
SCHEDS["m"] = ({**W0, 4: [7, "P", "R"], 8: ["S"]}, {**X0, 2: ["T"]}, 5)
SCHEDS["n"] = ({**W0, 4: [7, "P"], 7: ["R"], 8: ["S"]}, X0, 5)
SCHEDS["o"] = ({**W0, 4: [7, "P", "R"], 8: ["S"]}, {**X0, 4: ["T"]}, 5)
SCHEDS["x"] = ({**W0, 4: [7]}, X0, 5)
SCHEDS["z"] = ({-1: [0, 1, 2], 0: [3], 1: [4], 2: [5], 3: [6], 4: [7]}, X0, 5)
SCHEDS["w"] = ({**W0, 4: [7]}, {-1: [0, 1, 2], 0: [3, 4], 1: [5, 6], 2: [7]}, 5)
SCHEDS["y"] = ({**W0, 4: [7], 9: ["P", "R"], 10: ["S"]}, X0, 5)
WSCHED, XSCHED, RLS = SCHEDS[os.environ.get("SCHED", "x")]
F1D = int(os.environ.get("F1D", "0"))
VD0, VD1 = 14, 15
ACCA = 64
XB = 80
WB = 96

def make_tag(a):
    a(f"""
    s_waitcnt lgkmcnt(0)
    s_mul_i32 s{S_TAG}, s{S_EP}, 0x9e3779b1
    s_add_u32 s{S_TAG}, s{S_TAG}, 0x7f4a7c15
    """)

def pa_addr(a):
    a(f"""
    v_and_b32 v3, 31, v1               ; m
    v_lshrrev_b32 v4, 5, v1            ; hh
    v_bfe_u32 v5, v1, 1, 3             ; (m>>1)&7
    v_xor_b32 v5, v5, v4
    v_lshlrev_b32 v3, 7, v3
    s_and_b32 s5, s40, 1
    s_lshl_b32 s5, s5, 12              ; tt*32*128
    s_add_u32 s5, s5, {L_X}
    v_add_u32 v3, s5, v3
    """)
    for ss in range(4):
        a(f"""
        v_xor_b32 v7, {2*ss}, v5
        v_lshl_add_u32 v{VXA+ss}, v7, 4, v3
        """)
    a(f"""
    v_bfe_u32 v7, v1, 2, 2
    v_lshl_add_u32 v7, v4, 3, v7       ; + 8hh
    v_lshlrev_b32 v{VWA}, 7, v7        ; row*128
    v_bfe_u32 v5, v1, 4, 1             ; g
    v_bfe_u32 v6, v1, 1, 1             ; (i&3)>>1
    v_lshl_add_u32 v6, v5, 1, v6
    v_bfe_u32 v5, v1, 3, 1
    s_lshr_b32 s5, s40, 1
    s_and_b32 s5, s5, 1                ; half
    v_xor_b32 v5, s5, v5
    v_lshl_add_u32 v6, v5, 2, v6       ; piece
    v_lshl_add_u32 v{VWA}, v6, 4, v{VWA}
    v_and_b32 v5, 1, v1
    v_lshl_add_u32 v{VWA}, v5, 3, v{VWA}
    s_lshr_b32 s5, s40, 2              ; part
    s_lshl_b32 s5, s5, 13
    v_add_u32 v{VWA}, s5, v{VWA}
    v_add_u32 v{VWA2}, {112*1024}, v{VWA}
    v_mov_b32 v{VMI}, {L_MISC}
    """)

def pa_reads(a, sig):
    so = WSLOT[sig % 4]
    wa = VWA if so < 65536 else VWA2
    so = so if so < 65536 else so - 112 * 1024
    xb = XB + 32 * (sig % 2); wb = WB + 32 * (sig % 2)
    for ss in range(4):
        a(f"""
        ds_read_b128 {vr(xb+4*ss,4)}, v{VXA+ss} offset:{sig*8192}
        ds_read_b64_tr_b16 {vr(wb+4*ss,2)}, v{wa} offset:{so + ss*2048}
        ds_read_b64_tr_b16 {vr(wb+4*ss+2,2)}, v{wa} offset:{so + ss*2048 + 512}
        """)
def pa_mfma(a, sig, vrole):
    xb = XB + 32 * (sig % 2); wb = WB + 32 * (sig % 2)
    for ss in range(4):
        c = "0" if (sig == 0 and ss == 0) else vr(ACCA, 16)
        if vrole:
            a(f"v_mfma_f32_32x32x16_bf16 {vr(ACCA,16)}, {vr(xb+4*ss,4)}, {vr(wb+4*ss,4)}, {c}")
        else:
            a(f"v_mfma_f32_32x32x16_bf16 {vr(ACCA,16)}, {vr(wb+4*ss,4)}, {vr(xb+4*ss,4)}, {c}")
NODEF = int(os.environ.get("NODEF", "7"))
def pa_compute(a, sig, vrole):
    pa_reads(a, sig)
    if 0 < sig <= NODEF:
        pa_mfma(a, sig - 1, vrole)
    a("s_waitcnt lgkmcnt(0)")
    if sig >= NODEF:
        pa_mfma(a, sig, vrole)

APOLL = int(os.environ.get('APOLL', '1'))
def attention_wave(a):
    a(f"""
    v_lshrrev_b32 v3, 3, v1            ; row = l>>3
    v_mul_u32_u24 v4, 3072, v3
    v_bfe_u32 v5, v1, 4, 1             ; (row>>1)&1
    v_lshlrev_b32 v5, 2, v5
    v_and_b32 v6, 7, v1
    v_xor_b32 v6, v6, v5
    v_lshl_add_u32 v{VD0}, v6, 4, v4
    s_mul_i32 s52, s40, {8*3072}
    s_lshl_b32 s5, s87, 7
    s_add_u32 s52, s52, s5
    s_lshl_b32 s53, s40, 10            ; lds base
    """)
    def wdma(sig):
        a(f"""
        s_add_u32 s5, s49, {sig}
        s_and_b32 s5, s5, 7
        s_mul_i32 s50, s5, {64*3072}
        s_add_u32 s50, s50, s52
        """)
        for p in range(3):
            a(f"""
            s_add_u32 m0, s53, {WSLOT[sig%4] + p*8192}
            s_add_u32 s51, s50, {p*1024}
            buffer_load_dwordx4 v{VD0}, {sr(S_WQKV)}, s51 offen lds
            """)
    wq = []
    def wissue(items):
        for it in items:
            if it == "P":
                a(f"""
                s_lshl_b32 s5, s42, 3
                s_add_u32 s5, s5, s40
                s_lshl_b32 s5, s5, 5
                s_add_u32 s5, s5, s41
                s_lshl_b32 s5, s5, 10
                s_add_u32 s5, s5, {OF}
                v_mov_b32 v20, -1
                v_mov_b32 v21, -1
                v_mov_b32 v22, -1
                v_mov_b32 v23, -1
                buffer_store_dwordx4 v[20:23], v2, {sr(S_WS)}, s5 offen sc1
                """)
                wq.append("P")
            elif it == "R":
                a("s_add_u32 s5, s59, 8192")
                for jq in range(2):
                    for jj in range(4):
                        a(f"buffer_load_dword v{R+4*jq+jj}, v{VRL}, {sr(S_SRC)}, {'s5' if jq else 's59'} offen offset:{jj*1024}")
                wq.extend(["R"] * 8)
            elif it == "S":
                last = max(k for k, e in enumerate(wq) if e == "R")
                a(f"""
                s_mov_b32 s{S_SRC}, s{S_WS}
                s_mov_b32 s{S_SRC+1}, s{S_WS+1}
                s_cmp_lt_u32 s73, 1152
                s_cselect_b32 s{S_SRC+2}, {WS_BYTES:#x}, 0
                s_mov_b32 s80, 0x05040100
                s_mov_b32 s81, 0x07060302
                s_waitcnt vmcnt({len(wq) - 1 - last})
                """)
                for jj in range(4):
                    a(f"v_perm_b32 v{F+jj}, v{R+2*jj+1}, v{R+2*jj}, s80")
                    a(f"v_perm_b32 v{F+4+jj}, v{R+2*jj+1}, v{R+2*jj}, s81")
                a(f"""
                buffer_store_dwordx4 {vr(F,4)}, v2, {sr(S_SRC)}, s79 offen sc1
                buffer_store_dwordx4 {vr(F+4,4)}, v2, {sr(S_SRC)}, s78 offen sc1
                """)
                wq.extend(["S"] * 2)
            else:
                wdma(it); wq.extend([it] * 3)
    XA = int(os.environ.get("XA", "0"))
    if XA:
        a(f"""
        v_lshlrev_b32 v4, 10, v3
        v_and_b32 v6, 7, v1
        v_lshrrev_b32 v5, 4, v1
        v_xor_b32 v6, v6, v5
        s_and_b32 s5, s40, 1
        s_lshl_b32 s5, s5, 2
        v_xor_b32 v6, s5, v6
        v_lshl_add_u32 v{VD1}, v6, 4, v4
        s_lshl_b32 s78, s86, 16
        s_lshl_b32 s5, s40, 13
        s_add_u32 s78, s78, s5
        """)
    for it in WSCHED[-1]:
        if isinstance(it, int):
            if it < XA:
                a(f"""
                s_add_u32 s5, s49, {it}
                s_and_b32 s5, s5, 7
                s_lshl_b32 s5, s5, 7
                s_add_u32 m0, s53, {L_X + it*8192}
                s_add_u32 s5, s5, s78
                buffer_load_dwordx4 v{VD1}, {sr(S_X)}, s5 offen lds
                """)
                wq.append(it)
            wissue([it])
    R = 144; F = 152; VRL = 63
    wissue([it for it in WSCHED[-1] if not isinstance(it, int)])
    make_tag(a)
    pa_addr(a)
    RLI = int(os.environ.get("RLI", "7"))
    for sig in range(8):
        last = max(k for k, e in enumerate(wq) if e == sig)
        a(f"s_waitcnt vmcnt({len(wq) - 1 - last})")
        if sig == 0 and not os.environ.get("TAILST"): stamp(a, 0)
        if sig <= 6: stamp(a, sig, pa=True)
        a("s_barrier")
        for it in WSCHED.get(sig, []):
            assert isinstance(it, str) or it - NSL < sig, (it, sig)
        if sig >= 4: stamp(a, sig - 4, pa=2)
        wissue(WSCHED.get(sig, []))
        pa_compute(a, sig, False)
    if not os.environ.get("TAILST"): stamp(a, 1)
    stamp(a, 5, pa=2)
    a(f"""
    s_lshr_b32 s5, s40, 1
    s_and_b32 s5, s5, 1
    s_lshl_b32 s5, s5, 1
    s_lshl_b32 s6, s87, 2
    s_add_u32 s5, s5, s6               ; head0
    s_lshl_b32 s5, s5, 6
    s_lshl_b32 s6, s86, 1
    s_add_u32 s5, s5, s6
    s_and_b32 s6, s40, 1
    s_add_u32 s5, s5, s6               ; head0*64 + T
    s_cmp_ge_u32 s40, 4
    s_cbranch_scc1 L_isk
    s_lshl_b32 s54, s5, 10
    s_add_u32 s54, s54, {QF}
    s_add_u32 s55, s54, {64*1024}
    s_mov_b32 s56, {f32bits(QSCALE):#x}
    s_branch L_qk
    L_isk:
    s_lshl_b32 s54, s5, 11
    s_add_u32 s54, s54, {KV}
    s_add_u32 s55, s54, {64*2048}
    s_mov_b32 s56, 1.0
    L_qk:
    s_nop 3
    """)
    for r in range(16):
        a(f"v_mul_f32 v{ACCA+r}, s56, v{ACCA+r}")
    for r in range(8):
        a(f"v_cvt_pk_bf16_f32 v{XB+r}, v{ACCA+2*r}, v{ACCA+2*r+1}")
    dual(a, 73, [f"buffer_store_dwordx4 {vr(XB,4)}, v2, {sr(S_WS)}, s54 offen",
                 f"buffer_store_dwordx4 {vr(XB+4,4)}, v2, {sr(S_WS)}, s55 offen"])
    Q = 8; KB = 16; VB = 24; P = 40; VKA = 56; VVA = 57; VG = 58; VMISC = 59; VPL = 60; VG2 = 61; VT = 160
    S = 64; NM = 96; O = 128; VIDX = 62
    E1, E2 = [int(x) for x in os.environ.get("EPOS", "6,11").split(",")]
    def slot(t, aq, last=False):
        Sc = S + 16 * aq; Sn = S + 16 * (1 - aq)
        tn = t if aq == 0 else t + 1
        Kc = KB + 4 * (tn % 2)
        Pc = P + 8 * aq; Pp = P + 8 * (1 - aq)
        Oc = O + 16 * aq; Op = O + 16 * (1 - aq)
        tp = t if aq == 1 else t - 1
        Vc = VB + 8 * (t % 2); Vp = VB + 8 * (tp % 2)
        noff = (t + 1) * 2048 if t < 3 else 16384
        def ex(i): a(f"v_exp_f32 v{Sc+i if i < 8 else Pc+i-8}, v{Sc+i}")
        if aq == 1: a("s_waitcnt lgkmcnt(0)")
        if not (last and aq == 1):
            a(f"v_mfma_f32_32x32x16_bf16 {vr(Sn,16)}, {vr(Kc,4)}, {vr(Q+4*(1-aq),4)}, {vr(NM+16*(1-aq),16)}")
        if aq == 0 and not last:
            a(f"ds_read_b128 {vr(KB+4*((t+1)%2),4)}, v{VKA} offset:{noff}")
        for i in range(E1): ex(i)
        a(f"v_smfmac_f32_32x32x32_bf16 {vr(Op,16)}, {vr(Vp+4,4)}, {vr(Pp,8)}, v{VIDX}")
        if aq == 0 and not last:
            Vn = VB + 8 * ((t + 1) % 2)
            a(f"""
            s_mov_b64 exec, s[74:75]
            ds_read_b128 {vr(Vn,4)}, v{VVA} offset:{noff+1024}
            ds_read_b128 {vr(Vn+4,4)}, v{VVA} offset:{noff+1536}
            s_mov_b64 exec, -1
            """)
        for i in range(E1, E2): ex(i)
        a(f"v_smfmac_f32_32x32x32_bf16 {vr(Oc,16)}, {vr(Vc,4)}, {vr(Sc,8)}, v{VIDX}")
        for i in range(E2, 16): ex(i)
    def advance():
        a(f"""
        v_add_u32 v{VKA}, 16384, v{VKA}
        v_add_u32 v{VVA}, 16384, v{VVA}
        """)
    def prog_wait(n, both=False, off=M_PROG):
        L = a.new("L_pw"); D = a.new("L_pwd")
        a.label(L)
        if both:
            a(f"""
            ds_read_b128 v[4:7], v{VMISC} offset:{off}
            s_waitcnt lgkmcnt(0)
            v_min_u32 v4, v4, v5
            v_min_u32 v6, v6, v7
            v_min_u32 v4, v4, v6
            """)
        else:
            a(f"""
            ds_read_b64 v[4:5], v{VPL} offset:{M_PROG}
            s_waitcnt lgkmcnt(0)
            v_min_u32 v4, v4, v5
            """)
        a(f"""
        s_nop 0
        v_readfirstlane_b32 s5, v4
        s_cmp_ge_u32 s5, {n}
        s_cbranch_scc1 {D}
        """)
        spin_guard(a, L, 1)
        a.label(D)
    a(f"""
    s_lshl_b32 s53, s40, 11            ; w*2048
    s_lshl_b32 s5, s40, 10
    s_add_u32 s5, s5, {L_VX}
    v_add_u32 v4, s5, v2
    s_lshr_b32 s5, s40, 2
    s_lshl_b32 s5, s5, 1
    s_lshl_b32 s6, s87, 2
    s_add_u32 s5, s5, s6
    s_lshl_b32 s5, s5, 6
    s_lshl_b32 s6, s86, 1
    s_add_u32 s5, s5, s6
    s_bfe_u32 s6, s40, 0x10001
    s_add_u32 s5, s5, s6
    s_lshl_b32 s54, s5, 11
    s_and_b32 s58, s40, 1              ; kh
    s_lshl_b32 s5, s58, 9
    s_add_u32 s54, s54, s5
    s_add_u32 s54, s54, {KV}
    v_bfe_u32 v3, v1, 4, 1
    v_lshlrev_b32 v3, 17, v3
    v_lshrrev_b32 v5, 5, v1
    v_lshl_add_u32 v3, v5, 8, v3
    v_and_b32 v5, 15, v1
    v_lshl_add_u32 v3, v5, 4, v3
    s_barrier
    ds_read_b128 {vr(XB+8,4)}, v4
    s_lshl_b32 s76, s87, 12
    s_add_u32 s76, s76, {FL1}          ; FL1[g]
    v_mov_b32 v{VMISC}, {L_MISC}
    s_lshl_b32 s5, s58, 3
    v_add_u32 v{VPL}, s5, v{VMISC}
    s_waitcnt lgkmcnt(0)
    buffer_store_dwordx4 {vr(XB+8,4)}, v3, {sr(S_WS)}, s54 offen offset:1024 sc1
    s_waitcnt vmcnt(0)
    """)
    lds_add(a, VMISC, M_C1, 3)
    a(f"""
    s_cmp_lg_u32 s40, 0
    s_cbranch_scc1 L_nofl1
    """)
    lds_wait(a, VMISC, M_C1, 8, 3, sleep=1)
    a(f"""
    s_lshl_b32 s5, s86, 7
    s_add_u32 s5, s5, s76
    """)
    store_flag(a, "s5", VT, sfast=73)
    a.label("L_nofl1")
    stamp(a, 2)
    stamp(a, 6, pa=2)
    wissue(WSCHED.get(8, []))
    a(f"""
    s_lshl_b32 s59, s58, 13            ; kh*8192
    v_add_u32 v{VKA}, s59, v2
    v_lshrrev_b32 v4, 5, v1
    v_and_b32 v5, 15, v1
    v_lshlrev_b32 v5, 4, v5
    v_lshl_add_u32 v{VVA}, v4, 8, v5
    v_add_u32 v{VVA}, s59, v{VVA}
    s_mov_b32 s74, 0x0000ffff
    s_mov_b32 s75, 0x0000ffff
    v_and_b32 v3, 31, v1
    v_cmp_eq_u32 vcc, 16, v3
    v_mov_b32 v4, 0x3f803f80
    s_lshl_b32 s5, s41, 6
    s_lshl_b32 s6, s42, 3
    s_lshl_b32 s7, s72, 3
    s_add_u32 s7, s7, s5               ; h*64 + 8 b0
    s_add_u32 s5, s5, s6               ; h*64 + 8c
    s_add_u32 s6, s7, s40
    s_lshl_b32 s54, s6, 11
    s_add_u32 s54, s54, {KV}
    s_add_u32 s6, s40, s5
    s_lshl_b32 s55, s6, 10
    s_add_u32 s55, s55, {QF}
    s_xor_b32 s59, s55, 1024
    """)
    for r in range(16):
        a(f"v_cndmask_b32 v{VB+r}, 0, v4, vcc")
    for r in range(32):
        a(f"v_mov_b32 v{O+r}, 0")
    for r in range(8):
        a(f"v_mov_b32 v{P+8+r}, 0")
    a(f"v_mov_b32 v{VIDX}, {os.environ.get('IDX', '0xdddddddd')}")
    a(f"""
    s_lshl_b32 s76, s3, 12
    s_add_u32 s76, s76, {FL1}          ; FL1[j]
    s_lshl_b32 s5, s72, 2
    s_sub_u32 s5, s5, 4
    v_add_u32 v7, s5, v1
    v_and_b32 v7, 31, v7
    s_lshl_b32 s5, s42, 2
    v_add_u32 v6, s5, v1
    v_cmp_gt_u32 vcc, 4, v1
    v_cndmask_b32 v7, v7, v6, vcc
    v_lshlrev_b32 v7, 7, v7
    s_add_u32 s6, s54, s53
    s_add_u32 s5, s72, 1
    s_and_b32 s5, s5, 7
    s_sub_u32 s5, s5, s72
    s_lshl_b32 s5, s5, 14
    s_add_u32 s56, s6, s5
    s_add_u32 s5, s72, 2
    s_and_b32 s5, s5, 7
    s_sub_u32 s5, s5, s72
    s_lshl_b32 s5, s5, 14
    s_add_u32 s57, s6, s5
    s_mov_b32 m0, s53
    s_sub_u32 s5, s40, 1
    s_cmp_ge_u32 s5, {int(os.environ.get("NPOLL", "1"))}
    s_cbranch_scc1 L_nopoll
    """)
    lds_wait(a, VMISC, M_C1, 8, 3, sleep=1)
    a(f"""
    s_sleep {int(os.environ.get("PSL", "8"))}
    s_cmp_eq_u32 s40, 1
    s_cbranch_scc1 L_qp
    s_sleep {int(os.environ.get("PSL2", "9"))}
    L_qp:
    ds_read_b32 v3, v{VMISC} offset:{M_QOK}
    s_waitcnt lgkmcnt(0)
    v_readfirstlane_b32 s5, v3
    s_cmp_lg_u32 s5, 0
    s_cbranch_scc1 L_nopoll
    s_mov_b64 exec, {0xffff if ES == 3 else 0xfff:#x}
    buffer_load_dword v{VT}, v7, {sr(S_WS)}, s76 offen sc1
    s_waitcnt vmcnt(0)
    v_cmp_ne_u32 vcc, s{S_TAG}, v{VT}
    s_mov_b64 exec, -1
    s_and_b32 s5, vcc_lo, 255
    s_cbranch_scc0 L_qok
    """)
    spin_guard(a, "L_qp", 3)
    a(f"""
    L_qok:
    s_cmp_eq_u32 vcc_lo, 0
    s_cselect_b32 s5, 3, 1
    v_mov_b32 v3, s5
    ds_max_u32 v{VMISC}, v3 offset:{M_QOK}
    L_nopoll:
    L_qw:
    ds_read_b32 v3, v{VMISC} offset:{M_QOK}
    s_waitcnt lgkmcnt(0)
    v_readfirstlane_b32 s48, v3
    s_cmp_lg_u32 s48, 0
    s_cbranch_scc1 L_qwd
    """)
    spin_guard(a, "L_qw", 1)
    a.label("L_qwd")
    stamp(a, 3)
    a(f"""
    buffer_load_dwordx4 v2, {sr(S_WS)}, s54 offen lds
    buffer_load_dwordx4 v2, {sr(S_WS)}, s54 offen offset:1024 lds
    buffer_load_dwordx4 {vr(Q+4,4)}, v2, {sr(S_WS)}, s55 offen
    buffer_load_dwordx4 {vr(Q,4)}, v2, {sr(S_WS)}, s59 offen
    s_cmp_ge_u32 s40, 4
    s_cbranch_scc1 L_young
    s_cmp_eq_u32 s48, 3
    s_cbranch_scc1 {"L_nop2" if SEQ else "L_q3"}
    s_cmp_lg_u32 s40, 1
    s_cbranch_scc1 L_nop2
    s_mov_b64 exec, {0xffff if ES == 3 else 0xfff:#x}
    buffer_load_dword v{VT}, v7, {sr(S_WS)}, s76 offen sc1
    s_mov_b64 exec, -1
    s_waitcnt vmcnt(3)
    """)
    lds_add(a, VMISC, M_S0, 3)
    a(f"""
    s_branch L_qp3
    L_qp2:
    s_mov_b64 exec, {0xffff if ES == 3 else 0xfff:#x}
    buffer_load_dword v{VT}, v7, {sr(S_WS)}, s76 offen sc1
    L_qp3:
    s_mov_b64 exec, {0xffff if ES == 3 else 0xfff:#x}
    s_waitcnt vmcnt(0)
    v_cmp_ne_u32 vcc, s{S_TAG}, v{VT}
    s_mov_b64 exec, -1
    s_cmp_eq_u32 vcc_lo, 0
    s_cbranch_scc1 L_qok2
    """)
    spin_guard(a, "L_qp2", 3)
    a(f"""
    L_qok2:
    v_mov_b32 v3, 3
    ds_write_b32 v{VMISC}, v3 offset:{M_QOK}
    s_branch L_q3
    L_nop2:
    s_waitcnt vmcnt(2)
    """)
    lds_add(a, VMISC, M_S0, 3)
    lds_wait(a, VMISC, M_QOK, 3, 3, sleep=1)
    a(f"""
    L_q3:
    s_lshl_b32 s6, s53, 1
    s_add_u32 m0, s6, 16384
    s_nop 0
    """)
    for k in range(4):
        a(f"buffer_load_dwordx4 v2, {sr(S_WS)}, s56 offen offset:{k*1024} lds")
    if ES == 3:
        a(f"""
        s_add_u32 m0, s6, 32768
        s_nop 0
        """)
        for k in range(4):
            a(f"buffer_load_dwordx4 v2, {sr(S_WS)}, s57 offen offset:{k*1024} lds")
    a(f"""
    s_cmp_lg_u32 s48, {7 if SEQ else 3}
    s_cbranch_scc1 L_s0done
    s_waitcnt vmcnt(10)
    """)
    lds_add(a, VMISC, M_S0, 3)
    a(f"""
    L_s0done:
    s_waitcnt vmcnt(0)
    """)
    lds_add(a, VMISC, M_S1, 3)
    a(f"""
    s_branch L_go
    L_young:
    s_waitcnt vmcnt(2)
    """)
    lds_add(a, VMISC, M_S0, 3)
    a(f"""
    s_waitcnt vmcnt(0)
    L_go:
    """)
    lds_wait(a, VMISC, M_S0, 8, 3, sleep=1)
    stamp(a, 4)
    a(f"""
    ds_read_b128 {vr(KB,4)}, v2
    s_waitcnt lgkmcnt(0)
    v_mfma_f32_32x32x16_bf16 {vr(S,16)}, {vr(KB,4)}, {vr(Q,4)}, 0
    v_mfma_f32_32x32x16_bf16 {vr(S+16,16)}, {vr(KB,4)}, {vr(Q+4,4)}, 0
    s_mov_b32 s77, 0
    s_nop 7
    """)
    a(f"""
    ds_read_b128 {vr(KB,4)}, v{VKA}
    s_mov_b64 exec, s[74:75]
    ds_read_b128 {vr(VB,4)}, v{VVA} offset:1024
    ds_read_b128 {vr(VB+4,4)}, v{VVA} offset:1536
    s_mov_b64 exec, -1
    s_nop 4
    """)
    for q in range(2):
        Sq = S + 16 * q
        a(f"v_max3_f32 v{3+q}, v{Sq}, v{Sq+1}, v{Sq+2}")
        for r in range(3, 15, 2):
            a(f"v_max3_f32 v{3+q}, v{3+q}, v{Sq+r}, v{Sq+r+1}")
        a(f"v_max_f32 v{3+q}, v{3+q}, v{Sq+15}")
    a(f"""
    v_mov_b32 v5, v3
    v_mov_b32 v6, v4
    s_nop 1
    v_permlane32_swap_b32 v3, v5
    v_permlane32_swap_b32 v4, v6
    s_nop 1
    v_max_f32 v3, v3, v5
    v_max_f32 v4, v4, v6
    """)
    for q in range(2):
        for r in range(16):
            a(f"v_sub_f32 v{NM+16*q+r}, 0, v{3+q}")
    a(f"""
    s_waitcnt lgkmcnt(0)
    v_mfma_f32_32x32x16_bf16 {vr(S,16)}, {vr(KB,4)}, {vr(Q,4)}, {vr(NM,16)}
    s_nop 7
    s_nop 4
    """)
    BAL = int(os.environ.get("BAL", "6"))
    BALT = int(os.environ.get("BALT", "22"))
    if BAL:
        a(f"""
        s_cmp_lt_u32 s40, 4
        s_cbranch_scc1 L_bal0
        s_setprio 1
        L_bal0:
        """)
    for t in range(3):
        slot(t, 0); slot(t, 1)
    lds_wait(a, VMISC, M_S1, 4, 4, sleep=1)
    slot(3, 0); slot(3, 1)
    advance()
    for t in range(4):
        if t == 3 and ES == 2: prog_wait(int(os.environ.get("KSP", "5")))
        slot(t, 0); slot(t, 1)
    advance()
    for t in range(3):
        slot(t, 0); slot(t, 1)
    KSP = int(os.environ.get("KSP", "5"))
    prog_wait(KSP)
    stamp(a, 5)
    slot(3, 0); slot(3, 1)
    advance()
    a("s_mov_b32 s79, 3")
    a.label("L_att_loop")
    for t in range(4):
        if t == 3 and KSP < 8:
            a(f"""
            s_cmp_lg_u32 s79, {KSP-1}
            s_cbranch_scc1 L_nokw
            """)
            prog_wait(8)
            a.label("L_nokw")
        if BALT and t == BALT % 4:
            a(f"""
            s_cmp_lg_u32 s79, {BALT // 4}
            s_cbranch_scc1 L_balt
            s_setprio 0
            L_balt:
            """)
        slot(t, 0); slot(t, 1)
    advance()
    a("""
    s_add_u32 s79, s79, 1
    s_cmp_lg_u32 s79, 4
    s_cbranch_scc1 L_nodead
    """)
    lds_add(a, VMISC, M_DEAD, 4)
    a("""
    L_nodead:
    s_cmp_lg_u32 s79, 6
    s_cbranch_scc1 L_nodead2
    """)
    lds_add(a, VMISC, M_DEAD2, 4)
    a.label("L_nodead2")
    if BAL:
        a(f"""
        s_cmp_lg_u32 s79, {BAL}
        s_cbranch_scc1 L_bal1
        s_setprio 0
        L_bal1:
        """)
    a(f"""
    s_cmp_lt_u32 s79, 7
    s_cbranch_scc1 L_att_loop
    s_setprio 3
    s_lshl_b32 s5, s42, 3
    s_add_u32 s5, s5, s40              ; T
    s_lshr_b32 s6, s5, 1
    s_lshl_b32 s6, s6, 7
    s_add_u32 s76, s6, {FLG}           ; FLG[tau]
    s_lshl_b32 s57, s5, 7
    s_add_u32 s57, s57, {GBUF}
    v_mov_b32 v{VPL}, 0
    """)
    s_keep = None
    lds_wait(a, VMISC, M_PZ, 4, VT)
    a(f"""
    v_and_b32 v3, 31, v1
    v_lshlrev_b32 v3, 2, v3
    buffer_load_dword v{VG}, v3, {sr(S_WS)}, s57 offen
    v_add_u32 v4, s53, v2
    v_add_u32 v4, {L_OX}, v4
    v_xor_b32 v5, 2048, v4
    v_lshlrev_b32 v7, 2, v1
    s_lshl_b32 s6, s40, 8
    s_add_u32 s6, s6, {L_LX}
    v_add_u32 v7, s6, v7
    v_xor_b32 v6, 256, v7
    s_lshl_b32 s6, s40, 2
    v_add_u32 v{VT+5}, s6, v{VMISC}
    v_xor_b32 v{VT+4}, 4, v{VT+5}
    v_mov_b32 v{VT+6}, 1
    v_mov_b32 v{VT}, s{S_TAG}
    v_mov_b32 v{VT+1}, s{S_TAG}
    v_mov_b32 v{VT+2}, s{S_TAG}
    v_mov_b32 v{VT+3}, s{S_TAG}
    s_lshl_b32 s5, s42, 3
    s_add_u32 s5, s5, s40              ; T
    s_lshl_b32 s5, s5, 5
    s_add_u32 s5, s5, s41              ; T*32 + h
    s_lshl_b32 s76, s5, 10
    s_add_u32 s76, s76, {OF}
    s_lshl_b32 s78, s5, 7
    s_add_u32 s78, s78, {FL3}
    s_mov_b32 s80, 0x53800000          ; 2^40
    s_mov_b32 s81, 0x7f000000          ; 2^127
    s_mov_b32 s57, 0xfffeffff
    s_setprio 0
    """)
    for t in range(4):
        if t == 3: a("s_setprio 3")
        slot(t, 0, t == 3); slot(t, 1, t == 3)
    a(f"""
    s_nop 1
    v_smfmac_f32_32x32x32_bf16 {vr(O+16,16)}, {vr(VB+12,4)}, {vr(P+8,8)}, v{VIDX}
    ds_write_b128 v5, {vr(O,4)}
    ds_write_b128 v5, {vr(O+4,4)} offset:1024
    ds_write_b32 v6, v{O+8}
    ds_write_b32 v{VT+4}, v{VT+6} offset:{M_PAIR}
    """)
    stamp(a, 6)
    a(f"""
    L_pw:
    ds_read_b32 v3, v{VT+5} offset:{M_PAIR}
    ds_read_b128 {vr(O,4)}, v4
    ds_read_b128 {vr(O+4,4)}, v4 offset:1024
    ds_read_b32 v{O+8}, v7
    s_waitcnt lgkmcnt(0)
    v_readfirstlane_b32 s5, v3
    s_cmp_eq_u32 s5, 1
    s_cbranch_scc1 L_pwd
    """)
    spin_guard(a, "L_pw", 0)
    a.label("L_pwd")
    if os.environ.get("TAILST"): stamp(a, 0)
    a(f"v_add_f32 v{O+8}, v{O+8}, v{O+24}")
    for r in range(8):
        a(f"v_add_f32 v{O+r}, v{O+r}, v{O+16+r}")
    a.label("L_att_check")
    a(f"""
    v_mov_b32 v3, v{O+8}
    v_add_f32 v4, |v{O}|, |v{O+1}|
    v_add_f32 v5, |v{O+2}|, |v{O+3}|
    v_permlane32_swap_b32 v{O+8}, v3
    v_add_f32 v6, |v{O+4}|, |v{O+5}|
    v_add_f32 v7, |v{O+6}|, |v{O+7}|
    v_rcp_f32 v3, v{O+8}
    v_add_f32 v4, v4, v5
    v_add_f32 v6, v6, v7
    v_add_f32 v4, v4, v6
    v_cmp_nle_f32 vcc, v{O+8}, s80
    v_cmp_nle_f32 s[48:49], v4, s81
    s_cmp_eq_u32 s77, 3
    s_cbranch_scc1 L_att_fin
    s_or_b64 vcc, vcc, s[48:49]
    s_cbranch_scc0 L_att_fin
    """)
    a(f"""
    s_mov_b32 s77, 3
    s_lshl_b32 s56, s41, 17
    s_add_u32 s56, s56, {KV}
    v_mov_b32 v{VKA}, v2
    v_mov_b32 v3, 0xff800000
    s_mov_b32 s79, 0
    L_fb_max:
    buffer_load_dwordx4 {vr(KB,4)}, v{VKA}, {sr(S_WS)}, s56 offen
    s_waitcnt vmcnt(0)
    v_mfma_f32_32x32x16_bf16 {vr(S,16)}, {vr(KB,4)}, {vr(Q+4,4)}, 0
    v_add_u32 v{VKA}, 2048, v{VKA}
    s_nop 7
    s_nop 7
    s_nop 3
    """)
    for r in range(0, 16, 2):
        a(f"v_max3_f32 v3, v3, v{S+r}, v{S+r+1}")
    a(f"""
    s_add_u32 s79, s79, 1
    s_cmp_lt_u32 s79, 64
    s_cbranch_scc1 L_fb_max
    v_mov_b32 v4, v3
    s_nop 1
    v_permlane32_swap_b32 v3, v4
    s_nop 1
    v_max_f32 v3, v3, v4
    """)
    for r in range(16):
        a(f"v_sub_f32 v{NM+r}, 0, v3")
        a(f"v_mov_b32 v{O+r}, 0")
    a(f"""
    v_mov_b32 v{VKA}, v2
    v_lshrrev_b32 v4, 5, v1
    v_and_b32 v5, 15, v1
    v_lshlrev_b32 v5, 4, v5
    v_lshl_add_u32 v{VVA}, v4, 8, v5
    s_mov_b32 s79, 0
    L_fb_loop:
    buffer_load_dwordx4 {vr(KB,4)}, v{VKA}, {sr(S_WS)}, s56 offen
    s_mov_b64 exec, s[74:75]
    buffer_load_dwordx4 {vr(VB,4)}, v{VVA}, {sr(S_WS)}, s56 offen offset:1024
    buffer_load_dwordx4 {vr(VB+4,4)}, v{VVA}, {sr(S_WS)}, s56 offen offset:1536
    s_mov_b64 exec, -1
    s_waitcnt vmcnt(0)
    v_mfma_f32_32x32x16_bf16 {vr(S,16)}, {vr(KB,4)}, {vr(Q+4,4)}, {vr(NM,16)}
    v_add_u32 v{VKA}, 2048, v{VKA}
    v_add_u32 v{VVA}, 2048, v{VVA}
    s_nop 7
    s_nop 7
    """)
    for r in range(16):
        a(f"v_exp_f32 v{S+r}, v{S+r}")
    a(f"""
    s_nop 3
    v_smfmac_f32_32x32x32_bf16 {vr(O,16)}, {vr(VB,4)}, {vr(S,8)}, v{VIDX}
    v_smfmac_f32_32x32x32_bf16 {vr(O,16)}, {vr(VB+4,4)}, {vr(S+8,8)}, v{VIDX}
    s_add_u32 s79, s79, 1
    s_cmp_lt_u32 s79, 64
    s_cbranch_scc1 L_fb_loop
    s_nop 7
    s_nop 7
    s_branch L_att_check
    L_att_fin:
    s_waitcnt vmcnt(0)
    v_mul_f32 v3, v3, v{VG}
    """)
    for r in range(8):
        a(f"v_mul_f32 v{O+r}, v{O+r}, v3")
    for r in range(4):
        a(f"v_cvt_pk_bf16_f32 v{P+r}, v{O+2*r}, v{O+2*r+1}")
    for r in range(4):
        a(f"v_min_u32 v{P+r}, s57, v{P+r}")
    a(f"""
    buffer_store_dwordx4 {vr(P,4)}, v2, {sr(S_WS)}, s76 offen sc1
    s_cmp_lg_u32 s58, 0
    s_cbranch_scc1 L_nofl3
    s_mov_b64 exec, 0xff
    buffer_store_dwordx4 {vr(VT,4)}, v2, {sr(S_WS)}, s78 offen sc1
    s_mov_b64 exec, -1
    """)
    a.label("L_nofl3")
    if os.environ.get("TAILST"): stamp(a, 1)
    a(f"""
    s_or_b32 s5, s2, s40
    s_cmp_lg_u32 s5, 0
    s_cbranch_scc1 L_nobump
    v_lshlrev_b32 v3, 7, v1
    """)
    for k in range(4):
        a(f"s_mov_b32 s58, {FL2 + k*8192}")
        poll_flags(a, 3, "s58", [(1, 0)], 9, sleep=12)
    a(f"""
    s_mov_b64 exec, 1
    s_add_u32 s5, s{S_EP}, 1
    v_mov_b32 v9, s5
    buffer_store_dword v9, v2, {sr(S_WS)}, 0 offen offset:{EPOCH} sc1
    s_mov_b64 exec, -1
    L_nobump:
    """)
    if APOLL:
        a(f"""
        s_andn2_b32 s5, s40, 2
        s_cmp_lg_u32 s5, 1
        s_cbranch_scc1 L_noap
        s_lshl_b32 s56, s41, 13
        s_lshr_b32 s5, s40, 1
        s_lshl_b32 s6, s5, 11
        s_add_u32 s56, s56, s6
        s_add_u32 s56, s56, {FL3}
        s_lshl_b32 s5, s5, 2
        v_add_u32 v14, s5, v{VMISC}
        v_lshlrev_b32 v7, 7, v1
        s_mov_b32 s59, 0
        L_ap:
        s_andn2_b32 s5, 0x1111, s59
        s_mul_i32 s58, s5, 15
        s_mov_b32 exec_lo, s58
        s_mov_b32 exec_hi, 0
        buffer_load_dword v3, v7, {sr(S_WS)}, s56 offen sc1
        s_waitcnt vmcnt(0)
        v_cmp_ne_u32 vcc, s{S_TAG}, v3
        s_mov_b64 exec, -1
        s_lshr_b32 s5, vcc_lo, 1
        s_or_b32 s5, s5, vcc_lo
        s_lshr_b32 s6, s5, 2
        s_or_b32 s5, s5, s6
        s_andn2_b32 s59, 0x1111, s5
        s_or_b32 s5, s59, 2
        v_mov_b32 v4, s5
        s_mov_b64 exec, 1
        ds_or_b32 v14, v4 offset:{M_RDY}
        s_mov_b64 exec, -1
        s_cmp_eq_u32 s59, 0x1111
        s_cbranch_scc1 L_noap
        """)
        spin_guard(a, "L_ap", int(os.environ.get("ASL", "1")))
        a.label("L_noap")
        a("s_waitcnt lgkmcnt(0)")
    stamp_end(a)
    a("s_endpgm")

def aux_wave(a):
    R = 144; F = 128; VRL = 167
    VWF = 160; VPOLL = 164; VFL = 165; VPG = 166
    S_W1 = S_WQKV; S_H = S_WQKV; S_G = S_OUT
    if os.environ.get("FAKEW1"):
        a("""
        s_add_u32 s16, s26, 0x4000000
        s_addc_u32 s17, s27, 0
        """)
    a(f"""
    s_setprio 3
    s_sub_u32 s43, s40, 8              ; u
    v_lshrrev_b32 v3, 3, v1
    v_lshlrev_b32 v3, 10, v3
    v_and_b32 v4, 7, v1
    v_lshrrev_b32 v5, 4, v1
    v_xor_b32 v4, v4, v5
    v_lshl_add_u32 v{VD0}, v4, 4, v3
    v_xor_b32 v4, 4, v4
    v_lshl_add_u32 v{VD1}, v4, 4, v3
    v_add_u32 v{VD1}, 8192, v{VD1}
    s_lshl_b32 s78, s86, 16
    s_lshl_b32 s5, s43, 14
    s_add_u32 s78, s78, s5
    s_lshl_b32 s79, s43, 11            ; lds rows 16u  (= u*2048)
    """)
    q = []
    def xdma(sig):
        a(f"""
        s_add_u32 s5, s49, {sig}
        s_and_b32 s5, s5, 7
        s_lshl_b32 s5, s5, 7
        s_add_u32 m0, s79, {L_X+sig*8192}
        s_add_u32 s50, s5, s78
        buffer_load_dwordx4 v{VD0}, {sr(S_X)}, s50 offen lds
        s_add_u32 m0, s79, {L_X+sig*8192+1024}
        s_nop 0
        buffer_load_dwordx4 v{VD1}, {sr(S_X)}, s50 offen lds
        """)
        q.extend([("x", sig)] * 2)
    XA = int(os.environ.get("XA", "0"))
    for it in XSCHED[-1]:
        if isinstance(it, int) and it >= XA: xdma(it)
    RE = int(os.environ.get("RE", "0"))
    VRS = 127; S_R2 = S_X
    E7 = int(os.environ.get("E7", "1"))
    def rl_loads():
        a(f"""
        s_lshl_b32 s74, s4, 2
        s_add_u32 s74, s74, s43
        s_lshl_b32 s74, s74, 3
        s_add_u32 s74, s74, s3             ; gw = (4i + u)*8 + j
        v_and_b32 v3, 31, v1               ; i
        v_lshrrev_b32 v4, 5, v1            ; hh
        v_lshlrev_b32 v4, 12, v4
        v_lshl_add_u32 v{VRL}, v3, 2, v4
        s_and_b32 s6, s74, 7               ; cb
        s_cmp_ge_u32 s74, 896
        s_cbranch_scc1 L_wo
        """)
        srd(a, S_SRC, 18, 1792 * 1024)
        srd(a, S_R2, 18, 0)
        a(f"""
        s_lshr_b32 s7, s74, 3              ; kstep
        s_mov_b32 s56, {112*1024}
        s_mov_b32 s57, {W2F}
        s_branch L_rl2
        L_wo:
        """)
        srd(a, S_SRC, 12, 512 * 1024)
        srd(a, S_R2, 12, 512 * 1024)
        a(f"""
        s_sub_u32 s5, s74, 896
        s_lshr_b32 s7, s5, 3
        s_lshl_b32 s7, s7, 1               ; kstep
        s_mov_b32 s56, {32*1024}
        s_mov_b32 s57, {WOF}
        L_rl2:
        s_lshl_b32 s59, s7, 14
        s_lshl_b32 s5, s6, 7
        s_add_u32 s59, s59, s5             ; src
        s_lshl_b32 s5, s6, 1
        s_mul_i32 s5, s5, s56
        s_add_u32 s57, s57, s5
        s_lshl_b32 s5, s7, 10
        s_add_u32 s57, s57, s5
        v_bfe_u32 v3, v1, 4, 1
        v_mul_lo_u32 v3, v3, s56
        v_lshrrev_b32 v4, 5, v1
        v_lshl_add_u32 v3, v4, 9, v3
        v_and_b32 v4, 15, v1
        v_lshl_add_u32 v{VRS}, v4, 4, v3
        """)
        for half in range(2):
            for jq in range(2):
                a(f"s_add_u32 s5, s59, {half*16384 + jq*8192}")
                for jj in range(4):
                    a(f"buffer_load_dword v{R+8*half+4*jq+jj}, v{VRL}, {sr(S_R2 if half else S_SRC)}, s5 offen offset:{jj*1024}")
    def touch():
        srd(a, S_W1, 16, 512 * 3584)
        a(f"""
        s_mul_i32 s5, s49, {64*3584}
        s_add_u32 s5, s5, s76
        v_mul_u32_u24 v3, 3584, v1
        buffer_load_dword v{VPOLL}, v3, {sr(S_W1)}, s5 offen
        buffer_load_dword v{VPOLL}, v3, {sr(S_W1)}, s5 offen offset:64
        """)
        q.extend([("t", 0)] * 2)
    a(f"""
    s_and_b32 s5, s4, 3
    s_lshl_b32 s5, s5, 1
    s_add_u32 s73, s5, s42
    s_lshr_b32 s5, s87, 1
    s_mul_i32 s76, s5, 7
    s_add_u32 s76, s76, s43
    s_and_b32 s5, s87, 1
    s_lshl_b32 s6, s5, 2
    s_add_u32 s76, s76, s6             ; slice
    s_mov_b32 s85, 0
    s_add_u32 s6, s6, s43
    s_cmp_lg_u32 s6, 7
    s_cbranch_scc1 L_role
    s_mov_b32 s85, 2
    s_cmp_lg_u32 s87, 1
    s_cbranch_scc1 L_role
    s_mov_b32 s85, 1
    L_role:
    s_mul_i32 s54, s86, {2*112*1024}
    s_lshl_b32 s5, s76, 12
    s_add_u32 s54, s54, s5
    s_add_u32 s54, s54, {HF}
    s_add_u32 s55, s54, {112*1024}
    s_lshl_b32 s76, s76, 7
    """)
    if "T" in XSCHED[-1]: touch()
    make_tag(a)
    pa_addr(a)
    a("s_setprio 0")
    def wait_for(tagv):
        last = max(k for k, e in enumerate(q) if e == tagv)
        a(f"s_waitcnt vmcnt({len(q) - 1 - last})")
    ENT = [136, 144, 112, 120, 128, 32, 40][:NEG]
    NE = len(ENT)
    def ent(n): return ENT[n % NE] * 1024
    def w1dma_list(n):
        sig, ss = n >> 2, n & 3
        l0 = ""
        if ss == 0:
            l0 = f"""
            s_add_u32 s5, s49, {sig}
            s_and_b32 s5, s5, 7
            s_mul_i32 s50, s5, {64*3584}
            s_add_u32 s50, s50, s76
            """
        l0 += f"""
        s_add_u32 m0, s79, {ent(n)}
        s_add_u32 s51, s50, {ss*16*3584}
        buffer_load_dwordx4 v{VD0}, {sr(S_W1)}, s51 offen lds
        """
        l1 = f"""
        s_add_u32 m0, s79, {ent(n)+1024}
        s_nop 0
        buffer_load_dwordx4 v{VD1}, {sr(S_W1)}, s51 offen lds
        """
        return [l0, l1]
    def w1dma(ns):
        LS = a.new("L_w1s")
        a(f"""
        s_cmp_lg_u32 s85, 0
        s_cbranch_scc1 {LS}
        """)
        for n in ns:
            for l in w1dma_list(n): a(l)
            q.extend([("w", n)] * 2)
        a.label(LS)
    for sig in range(8):
        if sig < XA: pass
        elif sig < 4: wait_for(("x", sig))
        elif sig == 4:
            wait_for(("x", 7))
            q.clear()
        if sig == 0 and not os.environ.get("TAILST"): stamp(a, 0)
        if sig <= 6: stamp(a, sig, pa=True)
        a("s_barrier")
        for it in XSCHED.get(sig, []):
            if isinstance(it, int): xdma(it)
            elif it == "T": touch()
        if RE and sig == RE: rl_loads()
        if sig == 4:
            srd(a, S_W1, 16, 512 * 3584)
            a(f"""
            v_lshrrev_b32 v3, 3, v1            ; row = l>>3
            v_mul_u32_u24 v4, 3584, v3
            v_bfe_u32 v5, v1, 4, 1
            v_lshlrev_b32 v5, 2, v5
            v_and_b32 v6, 7, v1
            v_xor_b32 v6, v6, v5
            v_lshl_add_u32 v{VD0}, v6, 4, v4
            v_add_u32 v{VD1}, {8*3584}, v{VD0}
            """)
        if sig >= 5: stamp(a, 2 * (sig - 5), pa=2)
        if sig == 5:
            if not F1D: w1dma([0, 1])
            srd(a, S_G, 20, 1024)
            a(f"""
            s_cmp_lg_u32 s85, 1
            s_cbranch_scc1 L_nogd
            s_lshl_b32 s5, s49, 3
            v_add_u32 v3, s5, v1
            v_and_b32 v3, 63, v3
            v_lshlrev_b32 v3, 4, v3
            s_add_u32 m0, s79, {ent(0)}
            s_nop 0
            buffer_load_dwordx4 v3, {sr(S_G)}, 0 offen lds
            L_nogd:
            v_mov_b32 v3, 0
            v_lshlrev_b32 v4, 2, v1
            v_add_u32 v4, {L_MISC}, v4
            ds_write_b32 v4, v3
            """)
        if sig == 6 and not F1D: w1dma(list(range(2, min(NE, 5))))
        if sig == 7 and NE > 5 and E7: w1dma(list(range(5, NE)))
        if sig == 6:
            a(f"""
            s_add_u32 s5, s79, {L_VX}
            v_add_u32 v3, s5, v2
            v_and_b32 v{VWF}, 0x7ff, v{VWA}
            s_and_b32 s5, s43, 2
            s_lshl_b32 s5, s5, 5
            v_xor_b32 v{VWF}, s5, v{VWF}
            s_add_u32 s5, s79, {112*1024}
            v_add_u32 v{VWF}, s5, v{VWF}
            v_xor_b32 v{VWF+1}, 64, v{VWF}
            v_subrev_u32 v{VWF+2}, {112*1024}, v{VWF}
            v_subrev_u32 v{VWF+3}, {112*1024}, v{VWF+1}
            v_and_b32 v4, 31, v1
            v_lshlrev_b32 v{VFL}, 7, v4
            s_lshl_b32 s5, s43, 2
            v_add_u32 v{VPG}, s5, v{VMI}
            s_lshl_b32 s77, s3, 12
            s_add_u32 s77, s77, {FL1}          ; FL1[j]
            """)
        if sig == 7: a(f"s_setprio {int(os.environ.get('VPRIO', '0'))}")
        if sig >= 5: stamp(a, 2 * (sig - 5) + 1, pa=2)
        pa_compute(a, sig, True)
    a(f"""
    s_movk_i32 s5, 0xefff
    v_and_b32 v{VXA}, s5, v{VXA}
    v_and_b32 v{VXA+1}, s5, v{VXA+1}
    v_and_b32 v{VXA+2}, s5, v{VXA+2}
    v_and_b32 v{VXA+3}, s5, v{VXA+3}
    s_nop 7
    s_nop 5
    """)
    for r in range(8):
        a(f"v_cvt_pk_bf16_f32 v{XB+r}, v{ACCA+2*r}, v{ACCA+2*r+1}")
    a(f"""
    s_nop 1
    v_permlane32_swap_b32 v{XB}, v{XB+2}
    v_permlane32_swap_b32 v{XB+1}, v{XB+3}
    v_permlane32_swap_b32 v{XB+4}, v{XB+6}
    v_permlane32_swap_b32 v{XB+5}, v{XB+7}
    s_nop 1
    ds_write_b128 v3, {vr(XB,4)}
    ds_write_b128 v3, {vr(XB+4,4)} offset:1024
    s_waitcnt lgkmcnt(0)
    s_barrier
    """)
    stamp(a, 6, pa=2)
    VM = VMI
    ACC = 16; BUF = 80
    def fprog():
        a(f"""
        v_mov_b32 v3, 1
        ds_write_b32 v{VPG}, v3 offset:{M_FP}
        """)
    def pollld():
        a(f"buffer_load_dword v{VPOLL}, v{VFL}, {sr(S_WS)}, s77 offen sc1")
    a(f"""
    s_setprio {int(os.environ.get("F1PRIO", "2"))}
    s_cmp_eq_u32 s85, 1
    s_cbranch_scc1 L_f1g
    s_cmp_eq_u32 s85, 2
    s_cbranch_scc1 L_f1n
    """)
    if not E7:
        for n in range(5, NE):
            for l in w1dma_list(n): a(l)
            q.extend([("w", n)] * 2)
    if F1D:
        lds_wait(a, VM, M_C1 if F1D == 1 else M_S0, 8, 3, sleep=2)
        for n in range(NE):
            for l in w1dma_list(n): a(l)
            q.extend([("w", n)] * 2)
    def reads(n):
        b = BUF + 16 * (n % 2)
        e = ent(n) - 112 * 1024
        hi = 0
        if e < 0: e, hi = ent(n), 2
        xo = (n >> 2) * 8192
        return [f"ds_read_b64_tr_b16 {vr(b,2)}, v{VWF+hi} offset:{e}",
                f"ds_read_b64_tr_b16 {vr(b+2,2)}, v{VWF+hi} offset:{e+512}",
                f"ds_read_b128 {vr(b+8,4)}, v{VXA+(n&3)} offset:{xo}",
                f"ds_read_b128 {vr(b+12,4)}, v{VXA+(n&3)} offset:{xo+4096}",
                f"ds_read_b64_tr_b16 {vr(b+4,2)}, v{VWF+hi+1} offset:{e}",
                f"ds_read_b64_tr_b16 {vr(b+6,2)}, v{VWF+hi+1} offset:{e+512}"]
    wait_for(("w", 0))
    if not os.environ.get("TAILST"): stamp(a, 1)
    for l in reads(0): a(l)
    for n in range(32):
        b = BUF + 16 * (n % 2)
        def mf(at, bt):
            d = ACC + 16 * (2 * at + bt)
            c = "0" if n == 0 else vr(d, 16)
            a(f"v_mfma_f32_32x32x16_bf16 {vr(d,16)}, {vr(b+4*at,4)}, {vr(b+8+4*bt,4)}, {c}")
        a("s_waitcnt lgkmcnt(0)")
        mf(0, 0)
        rd = reads(n + 1) if n < 31 else []
        if rd: wait_for(("w", n + 1))
        for l in rd[:3]: a(l)
        mf(0, 1)
        for l in rd[3:]: a(l)
        dl = w1dma_list(n + NE) if n + NE < 32 else []
        mf(1, 0)
        if dl:
            a(dl[0]); q.append(("w", n + NE))
        mf(1, 1)
        if dl:
            a(dl[1]); q.append(("w", n + NE))
        if n == 27:
            pollld(); q.append(("p", 0))
    a("s_branch L_f1done")
    a.label("L_f1g")
    a(f"""
    v_lshrrev_b32 v4, 5, v1
    v_lshlrev_b32 v4, 4, v4
    s_add_u32 s5, s79, {ent(0)}
    v_add_u32 v4, s5, v4
    s_waitcnt vmcnt(0)
    """)
    for sg in range(8):
        for ss in range(4):
            n = 4 * sg + ss
            b = BUF + 12 * ss
            a(f"""
            ds_read_b128 {vr(b,4)}, v4 offset:{n*32}
            ds_read_b128 {vr(b+4,4)}, v{VXA+ss} offset:{sg*8192}
            ds_read_b128 {vr(b+8,4)}, v{VXA+ss} offset:{sg*8192+4096}
            """)
        a("s_waitcnt lgkmcnt(0)")
        for ss in range(4):
            b = BUF + 12 * ss
            for bt in range(2):
                d = ACC + 16 * bt
                c = "0" if (sg == 0 and ss == 0) else vr(d, 16)
                a(f"v_mfma_f32_32x32x16_bf16 {vr(d,16)}, {vr(b,4)}, {vr(b+4+4*bt,4)}, {c}")
    a(f"""
    v_cmp_gt_u32 vcc, 32, v1
    s_nop 7
    s_nop 7
    v_cndmask_b32 v8, v{ACC+16}, v{ACC}, vcc
    """)
    sigmoid(a, 8)
    a("s_branch L_f1w")
    a.label("L_f1n")
    a.label("L_f1w")
    lds_wait(a, VM, M_QOK, 3, 3, sleep=4)
    pollld()
    a.label("L_f1done")
    a("s_setprio 3")
    lds_add(a, VM, M_F1C, 3)
    if not os.environ.get("TAILST"): stamp(a, 2)
    stamp(a, 0, pa=3)
    a(f"""
    s_mov_b32 s{S_H}, s{S_WS}
    s_mov_b32 s{S_H+1}, s{S_WS+1}
    s_cmp_eq_u32 s85, 0
    s_cselect_b32 s{S_H+2}, {WS_BYTES:#x}, 0
    s_mov_b32 s{S_G}, s{S_WS}
    s_mov_b32 s{S_G+1}, s{S_WS+1}
    s_cmp_eq_u32 s85, 1
    s_cselect_b32 s{S_G+2}, {WS_BYTES:#x}, 0
    s_nop 5
    s_lshl_b32 s5, s41, 17
    s_lshl_b32 s52, s43, 12
    s_add_u32 s53, s5, s52
    s_add_u32 s53, s53, {KV}
    s_lshl_b32 s58, s86, 8
    s_add_u32 s58, s58, {GBUF}
    v_lshlrev_b32 v9, 2, v1
    s_nop 3
    """)
    stores = []
    for at in range(2):
        for bt in range(2):
            d = ACC + 16 * (at * 2 + bt)
            o = BUF + 8 * (at * 2 + bt)
            for r in range(8):
                a(f"v_cvt_pk_bf16_f32 v{o+r}, v{d+2*r}, v{d+2*r+1}")
            for r in range(8):
                a(f"v_pk_max_i16 v{o+r}, v{o+r}, 0")
            for half in range(2):
                stores.append(f"buffer_store_dwordx4 {vr(o+4*half,4)}, v2, {sr(S_H)}, s{54+bt} offen offset:{(2*at+half)*1024} sc1")
    stores.append(f"buffer_store_dword v8, v9, {sr(S_G)}, s58 offen sc1")
    a("s_waitcnt vmcnt(0)")
    a(f"""
    v_cmp_ne_u32 vcc, s{S_TAG}, v{VPOLL}
    s_cmp_eq_u64 vcc, 0
    s_cbranch_scc1 L_allok
    """)
    poll_flags(a, VFL, "s77", [(1, 0)], VPOLL, sleep=3)
    a.label("L_allok")
    lds_wait(a, VM, M_C1, 8, 3, sleep=1)
    lds_wait(a, VM, M_F1C, 4, 3, sleep=1)
    AW = int(os.environ.get("AW", "2"))
    if AW == 1: lds_wait(a, VM, M_S0, 8, 3, sleep=1)
    if AW == 2: lds_wait(a, VM, M_S1, 4, 3, sleep=1)
    def kvdma(sg):
        a(f"""
        s_add_u32 s6, s72, {sg}
        s_and_b32 s6, s6, 7
        s_lshl_b32 s6, s6, 14
        s_add_u32 m0, s52, {sg*16384}
        s_add_u32 s6, s6, s53
        """)
        for k in range(4):
            a(f"buffer_load_dwordx4 v2, {sr(S_WS)}, s6 offen offset:{k*1024} lds")
    def prog(n):
        a(f"""
        v_mov_b32 v10, {n}
        ds_write_b32 v{VPG}, v10 offset:{M_PROG}
        """)
    stamp(a, 1, pa=3)
    KSP = int(os.environ.get("KSP", "5"))
    for sg in range(ES, KSP):
        kvdma(sg)
    AX = int(os.environ.get("AX", "0"))
    if AX == 1: lds_wait(a, VM, M_S1, 4, 3, sleep=1)
    if AX == 2:
        a("s_waitcnt vmcnt(0)")
        prog(KSP)
    if not RE: rl_loads()
    if AX == 3:
        a("s_waitcnt vmcnt(16)")
        prog(KSP)
    for l in stores: a(l)
    a(f"""
    s_mov_b32 s{S_R2}, s{S_WS}
    s_mov_b32 s{S_R2+1}, s{S_WS+1}
    s_cmp_ge_u32 s74, 896
    s_cselect_b32 s{S_R2+2}, {WS_BYTES:#x}, 0
    s_mov_b32 s80, 0x05040100
    s_mov_b32 s81, 0x07060302
    """)
    stamp(a, 2, pa=3)
    a(f"s_waitcnt vmcnt({(0 if RE else 16)+len(stores)})")
    prog(KSP)
    if not os.environ.get("TAILST"): stamp(a, 6)
    stamp(a, 3, pa=3)
    a(f"s_waitcnt vmcnt({len(stores)})")
    stamp(a, 4, pa=3)
    for half in range(2):
        for jj in range(4):
            A = R + 8 * half + 2 * jj
            a(f"v_perm_b32 v{F+8*half+jj}, v{A+1}, v{A}, s80")
            a(f"v_perm_b32 v{F+8*half+4+jj}, v{A+1}, v{A}, s81")
        sd = S_R2 if half else S_WS
        a(f"buffer_store_dwordx4 {vr(F+8*half,4)}, v{VRS}, {sr(sd)}, s57 offen offset:{half*1024} sc1")
        a(f"buffer_store_dwordx4 {vr(F+8*half+4,4)}, v{VRS}, {sr(sd)}, s57 offen offset:{half*1024+256} sc1")
    for sg in range(KSP, 8):
        kvdma(sg)
    a(f"""
    s_waitcnt vmcnt({4*(8-KSP)})
    s_mov_b64 exec, 1
    v_mov_b32 v8, 1
    ds_add_rtn_u32 v8, v{VM}, v8 offset:{M_E2}
    s_waitcnt lgkmcnt(0)
    s_mov_b64 exec, -1
    v_readfirstlane_b32 s5, v8
    s_cmp_lg_u32 s5, 3
    s_cbranch_scc1 L_e2skip
    s_lshl_b32 s5, s2, 7
    s_add_u32 s5, s5, {FL2}
    """)
    store_flag(a, "s5", BUF)
    a.label("L_e2skip")
    stamp(a, 5, pa=3)
    if KSP < 8:
        a("s_waitcnt vmcnt(0)")
        prog(8)
    a(f"""
    """)
    a(f"""
    s_mul_i32 s5, s43, 7
    s_lshl_b32 s50, 0x7f, s5
    s_lshl_b32 s5, 0x10000000, s43
    s_or_b32 s50, s50, s5
    s_lshl_b32 s5, s43, 1
    s_lshl_b32 s51, 3, s5
    s_lshl_b32 s5, 0x100, s43
    s_or_b32 s51, s51, s5
    v_and_b32 v3, 7, v1
    s_lshl_b32 s5, s42, 2
    v_add_u32 v4, s5, v3               ; 4c + k
    v_mov_b32 v5, s41
    v_cmp_lt_u32 vcc, 39, v1
    v_cndmask_b32 v4, v5, v4, vcc      ; tb
    v_cndmask_b32 v3, v3, 1, vcc       ; g
    v_lshrrev_b32 v5, {TBS}, v4
    v_lshlrev_b32 v5, {TBS-2}, v5
    {"v_and_b32 v6, 1, v3" if GPAR else "v_lshrrev_b32 v6, %d, v3" % (5-TBS)}
    {"v_xor_b32 v6, 1, v6" if GPAR == 2 else ""}
    v_add_u32 v5, v5, v6               ; j
    {"v_lshrrev_b32 v6, 1, v3" if GPAR else "v_and_b32 v6, %d, v3" % ((1<<(5-TBS))-1)}
    v_lshlrev_b32 v6, {TBS}, v6
    v_and_b32 v4, {(1<<TBS)-1}, v4
    v_add_u32 v6, v6, v4               ; i
    v_lshl_add_u32 v4, v6, 3, v5
    v_lshlrev_b32 v7, 3, v1
    v_add_u32 v7, s42, v7
    v_cmp_lt_u32 vcc, 31, v1
    v_cndmask_b32 v7, v7, v4, vcc
    v_lshlrev_b32 v7, 7, v7
    s_mov_b32 s58, {FL2}
    """)
    lds_wait(a, VM, M_E2, 4, 6, sleep=4)
    a(f"""
    s_sleep {int(os.environ.get('ESL', '8'))}
    L_e2p:
    s_mov_b64 exec, s[50:51]
    buffer_load_dword v{BUF}, v7, {sr(S_WS)}, s58 offen sc1
    s_waitcnt vmcnt(0)
    v_cmp_ne_u32 vcc, s{S_TAG}, v{BUF}
    s_mov_b64 exec, -1
    s_cmp_eq_u64 vcc, 0
    s_cbranch_scc1 L_e2ok
    """)
    spin_guard(a, "L_e2p", int(os.environ.get('ESL2', '10')))
    a.label("L_e2ok")
    if not os.environ.get("TAILST"): stamp(a, 3)
    stamp(a, 6, pa=3)
    a(f"""
    v_and_b32 v3, 31, v1
    v_lshlrev_b32 v3, 2, v3
    s_lshl_b32 s58, s41, 8
    s_and_b32 s5, s43, 1
    s_lshl_b32 s5, s5, 7
    s_add_u32 s58, s58, s5
    s_add_u32 s58, s58, {GBUF}
    v_mov_b32 v10, v3
    s_lshl_b32 s5, s42, 3
    s_lshl_b32 s6, s43, 1
    s_add_u32 s5, s5, s6
    s_lshl_b32 s5, s5, 5
    s_add_u32 s5, s5, s41
    s_lshl_b32 s5, s5, 10
    s_add_u32 s5, s5, {OF}
    s_add_u32 s6, s5, 32768
    v_mov_b32 v160, -1
    v_mov_b32 v161, -1
    v_mov_b32 v162, -1
    v_mov_b32 v163, -1
    buffer_store_dwordx4 v[160:163], v2, {sr(S_WS)}, s5 offen sc1
    buffer_store_dwordx4 v[160:163], v2, {sr(S_WS)}, s6 offen sc1
    s_lshr_b32 s50, s43, 1             ; kh
    s_and_b32 s51, s43, 1              ; bt
    s_mul_i32 s5, s50, {112*1024}
    v_add_u32 v4, s5, v2
    s_sub_u32 s5, {112*1024}, s5
    v_add_u32 v5, s5, v2
    s_mul_i32 s5, s51, {112*1024}
    v_add_u32 v6, s5, v2
    s_sub_u32 s5, {112*1024}, s5
    v_add_u32 v7, s5, v2
    s_mul_i32 s5, s43, {28*1024}
    s_mul_i32 s52, s42, {2*112*1024}
    s_add_u32 s52, s52, s5
    s_add_u32 s52, s52, {W2F}
    s_mul_i32 s53, s41, {2*112*1024}
    s_add_u32 s53, s53, s5
    s_add_u32 s53, s53, {HF}
    s_lshl_b32 s54, s42, 1
    s_lshr_b32 s5, s43, 1
    s_add_u32 s54, s54, s5             ; c tile
    s_lshl_b32 s54, s54, 15
    s_add_u32 s54, s54, {WOF}
    s_lshl_b32 s55, s41, 1
    s_and_b32 s5, s43, 1
    s_add_u32 s55, s55, s5
    s_lshl_b32 s56, s55, 12
    s_add_u32 s56, s56, {FL3}
    s_lshl_b32 s55, s55, 15
    s_add_u32 s55, s55, {OF}
    s_sub_u32 s78, s73, 7
    s_cmp_ge_u32 s73, 7
    s_cselect_b32 s78, s78, s73
    """)
    a(f"s_setprio {FPRIO}")
    WOS = int(os.environ.get("WOS", "20"))
    def wo_stage():
        a(f"""
        s_lshl_b32 s6, s43, 14
        s_lshl_b32 s7, s42, 16
        s_add_u32 s7, s7, s6
        s_add_u32 s7, s7, {WOF}
        """)
        lds_wait(a, VM, M_PZ, 4, 9, sleep=4)
        a(f"buffer_load_dword v10, v10, {sr(S_WS)}, s58 offen")
        lds_wait(a, VM, M_DEAD, 8, 9, sleep=4)
        for sg in range(4):
            a(f"""
            s_add_u32 m0, s6, {sg*4096}
            s_add_u32 s5, s7, {sg*4096}
            """)
            for q in range(4):
                a(f"buffer_load_dwordx4 v2, {sr(S_WS)}, s5 offen offset:{q*1024} lds")
        return 17
    def f2hook(st):
        if st == 1: lds_add(a, VM, M_PZ, 9)
        if st == WOS + 5: lds_add(a, VM, M_W, 9)
        if st == WOS: return wo_stage()
    stream_gemm(a, 28, 2, 2, ACC, BUF, 5, 4, 6, 52, 53, 78, hook=f2hook)
    a("s_setprio 3")
    stamp(a, 4)
    stamp(a, 0, pa=4)
    X = ACC; Y = ACC + 32
    SET = 80
    HB = [ACC + 16, ACC + 48]
    MG = 144
    assert WOS + 5 < 28
    srd(a, S_OUT, 22, 2048 * 1024)
    a(f"""
    s_lshl_b32 s5, s50, 2
    v_add_u32 v14, s5, v{VM}
    ds_read_b32 v160, v14 offset:{M_RDY}
    s_lshl_b32 s5, s43, 13
    s_add_u32 s5, s5, 65536
    v_add_u32 v15, s5, v2
    v_xor_b32 v161, 8192, v15
    v_xor_b32 v12, 16384, v15
    s_lshl_b32 s5, s43, 2
    v_add_u32 v11, s5, v{VM}
    v_xor_b32 v8, 4, v11
    v_xor_b32 v162, 8, v11
    s_sub_u32 s57, s55, {OF}           ; T*32768 = 32 tokens * 1024
    s_sub_u32 s5, s54, {WOF}
    s_lshr_b32 s5, s5, 9               ; ct*64
    s_add_u32 s57, s57, s5
    v_and_b32 v3, 31, v1
    v_lshlrev_b32 v6, 10, v3
    v_lshrrev_b32 v4, 5, v1
    v_lshl_add_u32 v6, v4, 4, v6
    v_lshlrev_b32 v7, 7, v3
    s_lshl_b32 s5, s50, 11
    s_add_u32 s56, s56, s5
    s_lshl_b32 s5, s50, 14
    s_add_u32 s55, s55, s5
    s_mul_i32 s5, s50, {32768+16384}
    v_add_u32 v5, s5, v2
    s_mov_b32 s48, 0x1111
    s_mov_b32 s75, 0                   ; landed
    s_mov_b32 s77, 0
    v_sub_f32 v10, 1.0, v10
    s_waitcnt lgkmcnt(0)
    v_readfirstlane_b32 s49, v160
    s_and_b32 s49, s49, s48
    """)
    def oissue(sm, tag):
        for j in range(4):
            o = SET + 16 * j
            a(f"""
            s_bitcmp1_b32 {sm}, {4*j}
            s_cbranch_scc0 L_oi{tag}{j}
            s_add_u32 s6, s55, {j*4096}
            """)
            for q in range(4):
                a(f"buffer_load_dwordx4 {vr(o+4*q,4)}, v2, {sr(S_WS)}, s6 offen offset:{q*1024} sc1")
            a.label(f"L_oi{tag}{j}")
    oissue("s49", "a")
    stamp(a, 1, pa=4)
    lds_wait(a, VM, M_DEAD2, 8, 9, sleep=2)
    stamp(a, 2, pa=4)
    for t in range(2):
        for q in range(4):
            a(f"ds_write_b128 v161, {vr(ACC+16+32*t+4*q,4)} offset:{t*4096+q*1024}")
    a(f"""
    v_mov_b32 v9, 1
    ds_write_b32 v8, v9 offset:{M_XP}
    """)
    stamp(a, 3, pa=4)
    for t in range(2):
        for r in range(16):
            a(f"v_mul_f32 v{ACC+32*t+r}, v{ACC+32*t+r}, v10")
    stamp(a, 5, pa=4)
    lds_wait(a, VM, M_W, 4, 9, sleep=2)
    if os.environ.get("TAILST"): stamp(a, 0)
    stamp(a, 6, pa=4)
    def merge(block):
        L = a.new("L_mg"); D = a.new("L_mgd"); G = a.new("L_mgo")
        a(f"""
        s_cmp_lg_u32 s77, 0
        s_cbranch_scc1 {D}
        {L}:
        ds_read_b32 v3, v11 offset:{M_XP}
        """)
        for q in range(4):
            a(f"ds_read_b128 {vr(MG+4*q,4)}, v15 offset:{q*1024}")
        a(f"""
        s_waitcnt lgkmcnt(0)
        v_readfirstlane_b32 s77, v3
        s_cmp_lg_u32 s77, 0
        s_cbranch_scc1 {G}
        """)
        if block: spin_guard(a, L, 1)
        else: a(f"s_branch {D}")
        a.label(G)
        for r in range(16):
            a(f"v_fmac_f32 v{X+r}, v{MG+r}, v10")
        for q in range(4):
            a(f"ds_read_b128 {vr(MG+4*q,4)}, v15 offset:{4096+q*1024}")
        a("s_waitcnt lgkmcnt(0)")
        for r in range(16):
            a(f"v_fmac_f32 v{Y+r}, v{MG+r}, v10")
        a.label(D)
    def setaddr(sb):
        a(f"""
        s_lshl_b32 s5, {sb}, 10
        v_add_u32 v8, s5, v5
        v_xor_b32 v9, 32768, v8
        """)
    def rd(h):
        b = HB[h]
        a(f"ds_read_b128 {vr(b,4)}, v8 offset:{h*2048}")
        a(f"ds_read_b128 {vr(b+4,4)}, v9 offset:{h*2048}")
        a(f"ds_read_b128 {vr(b+8,4)}, v8 offset:{h*2048+1024}")
        a(f"ds_read_b128 {vr(b+12,4)}, v9 offset:{h*2048+1024}")
    a(f"""
    s_mov_b32 s53, -1
    L_op:
    ds_read_b32 v3, v14 offset:{M_RDY}
    s_or_b32 s6, s49, s75
    s_waitcnt lgkmcnt(0)
    v_readfirstlane_b32 s59, v3
    s_and_b32 s58, s59, s48
    s_bcnt1_i32_b32 s5, s48
    s_cmp_le_u32 s5, {int(os.environ.get("DP", "0"))}
    s_cselect_b32 s58, s48, s58
    s_andn2_b32 s58, s58, s6           ; new
    s_cbranch_scc0 L_noiss
    """)
    if os.environ.get("TAILST"): stamp(a, 1)
    oissue("s58", "b")
    a(f"""
    s_or_b32 s49, s49, s58
    L_noiss:
    s_cmp_lg_u32 s75, 0
    s_cbranch_scc1 L_proc
    """)
    merge(False)
    a(f"""
    s_cmp_lg_u32 s49, 0
    s_cbranch_scc1 L_owait
    s_andn2_b32 s5, s59, 0x1111
    s_or_b32 s5, s5, s51
    s_cbranch_scc1 L_oidle
    s_andn2_b32 s5, 0x1111, s59
    s_mul_i32 s5, s5, 15
    s_or_b32 exec_lo, s5, 1
    s_mov_b32 exec_hi, 0
    buffer_load_dword v3, v7, {sr(S_WS)}, s56 offen sc1
    s_waitcnt vmcnt(0)
    v_cmp_ne_u32 vcc, s{S_TAG}, v3
    s_lshr_b32 s5, vcc_lo, 1
    s_or_b32 s5, s5, vcc_lo
    s_lshr_b32 s6, s5, 2
    s_or_b32 s5, s5, s6
    s_andn2_b32 s5, 0x1111, s5
    v_mov_b32 v4, s5
    s_mov_b64 exec, 1
    ds_or_b32 v14, v4 offset:{M_RDY}
    s_mov_b64 exec, -1
    s_cmp_lg_u32 s5, s59
    s_cbranch_scc1 L_op
    s_sleep {int(os.environ.get("OSL", "4"))}
    L_oidle:
    """)
    spin_guard(a, "L_op", 1)
    a(f"""
    L_owait:
    s_mov_b32 s75, s49
    s_mov_b32 s49, 0
    s_ff1_i32_b32 s52, s75
    s_cmp_eq_u32 s52, s53
    s_cbranch_scc1 L_ow2
    s_mov_b32 s53, s52
    """)
    setaddr("s53"); rd(0); rd(1)
    a(f"""
    L_ow2:
    s_waitcnt vmcnt(0)
    L_proc:
    """)
    if os.environ.get("TAILST"): stamp(a, 2)
    a(f"""
    s_ff1_i32_b32 s52, s75
    s_bitset0_b32 s75, s52
    s_cmp_eq_u32 s52, s53
    s_cbranch_scc1 L_pr2
    s_mov_b32 s53, s52
    """)
    setaddr("s53"); rd(0); rd(1)
    a(f"""
    L_pr2:
    s_cmp_lg_u32 s75, 0
    s_cselect_b32 s5, s75, s49
    s_ff1_i32_b32 s74, s5
    s_max_i32 s74, s74, 0
    s_or_b32 s6, s75, s49
    s_bitset1_b32 s6, s52
    s_andn2_b32 s76, s48, s6
    s_cmp_eq_u32 s75, 0
    s_cselect_b32 s76, 1, s76
    """)
    setaddr("s74")
    for j in range(4):
        o = SET + 16 * j
        if j < 3:
            a(f"""
            s_cmp_lg_u32 s52, {4*j}
            s_cbranch_scc1 L_om{j}
            """)
        a(f"v_max3_u32 v4, v{o}, v{o+1}, v{o+2}")
        for r in range(3, 15, 2):
            a(f"v_max3_u32 v4, v4, v{o+r}, v{o+r+1}")
        a(f"""
        v_max_u32 v4, v4, v{o+15}
        v_cmp_eq_u32 vcc, -1, v4
        s_cmp_eq_u64 vcc, 0
        s_cbranch_scc0 L_ofail
        s_bitset0_b32 s48, {4*j}
        s_mov_b32 s53, s74
        """)
        for h in range(2):
            b = HB[h]
            a("s_waitcnt lgkmcnt(4)" if h == 0 else "s_waitcnt lgkmcnt(4)")
            for qq in range(2):
                a(f"v_mfma_f32_32x32x16_bf16 {vr(Y,16)}, {vr(b+8*qq+4,4)}, {vr(o+8*h+4*qq,4)}, {vr(Y,16)}")
                a(f"v_mfma_f32_32x32x16_bf16 {vr(X,16)}, {vr(b+8*qq,4)}, {vr(o+8*h+4*qq,4)}, {vr(X,16)}")
            rd(h)
        a(f"""
        s_cmp_eq_u32 s76, 0
        s_cbranch_scc1 L_proc
        s_cmp_eq_u32 s48, 0
        s_cbranch_scc0 L_op
        s_branch L_odone
        """)
        if j < 3: a.label(f"L_om{j}")
    a.label("L_ofail")
    spin_guard(a, "L_op", int(os.environ.get("FSL", "1")))
    a("""
    L_odone:
    s_nop 7
    """)
    merge(True)
    stamp(a, 5)
    for q in range(4):
        a(f"ds_write_b128 v15, {vr(Y+4*q,4)} offset:{q*1024}")
    a(f"""
    v_mov_b32 v4, 1
    ds_write_b32 v162, v4 offset:{M_Y}
    L_yw:
    ds_read_b32 v3, v11 offset:{M_Y}
    """)
    for q in range(4):
        a(f"ds_read_b128 {vr(Y+4*q,4)}, v12 offset:{q*1024}")
    a(f"""
    s_waitcnt lgkmcnt(0)
    v_readfirstlane_b32 s5, v3
    s_cmp_lg_u32 s5, 0
    s_cbranch_scc1 L_ywd
    """)
    spin_guard(a, "L_yw", 0)
    a.label("L_ywd")
    if os.environ.get("TAILST"): stamp(a, 3)
    for r in range(16):
        a(f"v_add_f32 v{X+r}, v{X+r}, v{Y+r}")
    for r in range(8):
        a(f"v_cvt_pk_bf16_f32 v{SET+r}, v{X+r}, v{X+8+r}")
    OST = os.environ.get("OST", "")
    a(f"""
    buffer_store_dwordx4 {vr(SET,4)}, v6, {sr(S_OUT)}, s57 offen {OST}
    buffer_store_dwordx4 {vr(SET+4,4)}, v6, {sr(S_OUT)}, s57 offen offset:32 {OST}
    """)
    if os.environ.get("TAILST"): stamp(a, 6)
    stamp_end(a)

def kd(name, nv, ns=102):
    return f""".p2align 6
.amdhsa_kernel {name}
  .amdhsa_next_free_vgpr {nv}
  .amdhsa_next_free_sgpr {ns}
  .amdhsa_accum_offset {(nv+3)//4*4}
  .amdhsa_group_segment_fixed_size 0
  .amdhsa_kernarg_size 80
  .amdhsa_user_sgpr_count 2
  .amdhsa_user_sgpr_kernarg_segment_ptr 1
  .amdhsa_system_sgpr_workgroup_id_x 1
.end_amdhsa_kernel
"""

def main(out):
    hdr = open("cdna_kernels/" + NAME + ".s.ref").read().split("\n")
    hdr = [l for l in hdr if l.startswith(";") and "@launch" not in l]
    a = Asm()
    gen(a)
    txt = "\n".join(hdr) + "\n"
    txt += f"; @launch grid=(256,1,1) block=(768,1,1) lds={LDS_BYTES}\n"
    txt += '.amdgcn_target "amdgcn-amd-amdhsa--gfx950"\n.text\n'
    body = a.text()
    if int(os.environ.get("ALLSC1", "1")):
        ol = []
        for l in body.split("\n"):
            if l.strip().startswith("buffer_load") and sr(S_WS) in l and "sc1" not in l:
                l = l.replace(" lds", " sc1 lds") if l.rstrip().endswith(" lds") else l + " sc1"
            ol.append(l)
        body = "\n".join(ol)
    txt += body
    txt += '.section .rodata,"a"\n'
    txt += kd(NAME + "_kernel", 168)
    open(out, "w").write(txt)

if __name__ == "__main__":
    main(sys.argv[1] if len(sys.argv) > 1 else "cdna_kernels/" + NAME + ".s")
```

```python
import math, os, struct, sys

NAME = "gated_mix__mha_block__dense_activation_relu__prompt"
STAMP = os.environ.get("STAMP")

def f32bits(x):
    return struct.unpack("<I", struct.pack("<f", x))[0]

class Asm:
    def __init__(self):
        self.l = []
        self.uid = 0
    def __call__(self, s):
        for line in s.strip("\n").split("\n"):
            line = line.strip()
            if line:
                self.l.append(("" if line.endswith(":") else "    ") + line)
    def label(self, s):
        self.l.append(s + ":")
    def raw(self, s):
        self.l.append(s)
    def new(self, p="L"):
        self.uid += 1
        return f"{p}_{self.uid}"
    def text(self):
        return "\n".join(self.l) + "\n"

EPOCH = 0x0
QF = 0x1A00000
XID = 0xD38000
KV = 0x200000
XF = 0x600000
W1F = 0x800000
W2F = 0xA00000
WOF = 0xC00000
FLS = 0xD00000
FL2 = 0xD10000
FL1 = 0xD40000
FL3 = 0xD80000
GBUF = 0xD20000
FLG = 0xD30000
HF = 0x1000000
OF = 0x1800000
STB = 0x1F00000
WS_BYTES = 0x2000000

L_X = 49152
L_W = 65536
L_OX = 131072
L_MISC = 157696
L_MISC0 = 65536
L_LX = 158720
L_GF = 160768
LDS_BYTES = 163840
M_PROG, M_QOK, M_PAIR, M_GF, M_E0R, M_E2, M_E2R, M_DMA = 0, 32, 64, 128, 136, 140, 144, 168
M_FP, M_C1, M_F1C, M_S0, M_S1, M_DEAD, M_X, M_RDY, M_W, M_DEAD2, M_Y, M_PZ, M_XP = 16, 176, 180, 184, 188, 192, 196, 200, 208, 212, 224, 216, 240
WSLOT = [136*1024, 112*1024, 24*1024, 0]
L_DRY = 158720
L_VX = 24 * 1024

QSCALE = 0.25 * math.log2(math.e)
LOG2E = math.log2(math.e)
SPIN_MAX = 200000
ILV = int(os.environ.get('ILV', '0'))
FPRIO = int(os.environ.get('FPRIO', '0'))

S_X, S_WQKV, S_WS, S_SRC, S_OUT = 28, 32, 36, 44, 60
S_TAG = 82
S_EP = 84
S_SPIN = 83

def vr(a, n):
    return f"v[{a}:{a+n-1}]"
def sr(a):
    return f"s[{a}:{a+3}]"

def srd(a, d, base, nbytes):
    a(f"""
    s_mov_b32 s{d}, s{base}
    s_and_b32 s{d+1}, s{base+1}, 0xffff
    s_mov_b32 s{d+2}, {nbytes:#x}
    s_mov_b32 s{d+3}, 0x20000
    """)

NST = 7
def stamp_begin(a):
    if not STAMP: return
    a("""
    s_memtime s[64:65]
    s_memrealtime s[66:67]
    s_waitcnt lgkmcnt(0)
    """)
    for i in range(NST):
        a(f"s_mov_b32 s{88+2*i}, {'s66' if os.environ.get('RT') else 's64'}")
PAST = os.environ.get("PAST")
def stamp(a, i, pa=False):
    if not STAMP: return
    if int(PAST or 0) != int(pa): return
    a(f"""
    s_waitcnt lgkmcnt(0)
    {'s_memrealtime' if os.environ.get('RT') else 's_memtime'} s[{88+2*i}:{89+2*i}]
    s_waitcnt lgkmcnt(0)
    """)
def stamp_end(a):
    if not STAMP: return
    a(f"""
    s_waitcnt vmcnt(0) lgkmcnt(0)
    s_memtime s[68:69]
    s_memrealtime s[70:71]
    s_waitcnt lgkmcnt(0)
    s_mov_b64 exec, 1
    v_mov_b32 v4, s64
    v_mov_b32 v5, s66
    v_mov_b32 v6, s68
    v_mov_b32 v7, s70
    """)
    for i in range(8):
        a(f"v_mov_b32 v{8+i}, s{88+2*min(i,NST-1)}" if i < NST else "v_mov_b32 v15, s73")
    a(f"""
    s_lshl_b32 s72, s2, 4
    s_add_u32 s72, s72, s40
    s_lshl_b32 s72, s72, 6
    s_add_u32 s72, s72, {STB}
    v_mov_b32 v3, 0
    buffer_store_dwordx4 v[4:7], v3, {sr(S_WS)}, s72 offen
    buffer_store_dwordx4 v[8:11], v3, {sr(S_WS)}, s72 offen offset:16
    buffer_store_dwordx4 v[12:15], v3, {sr(S_WS)}, s72 offen offset:32
    """)

def spin_guard(a, again, sleep=4):
    a(f"""
    s_sleep {sleep}
    s_add_u32 s{S_SPIN}, s{S_SPIN}, 1
    s_cmp_lt_u32 s{S_SPIN}, {SPIN_MAX}
    s_cbranch_scc1 {again}
    s_endpgm
    """)

def poll_flags(a, voff, soff, loads, T, sleep=8):
    L = a.new("L_poll"); D = a.new("L_pdone")
    a.label(L)
    r = T
    regs = []
    for nd, imm in loads:
        op = {1: "buffer_load_dword", 2: "buffer_load_dwordx2", 4: "buffer_load_dwordx4"}[nd]
        dst = f"v{r}" if nd == 1 else vr(r, nd)
        a(f"{op} {dst}, v{voff}, {sr(S_WS)}, {soff} offen offset:{imm} sc1")
        regs += list(range(r, r + nd)); r += nd
    a("s_waitcnt vmcnt(0)")
    a(f"v_xor_b32 v{regs[0]}, s{S_TAG}, v{regs[0]}")
    for q in regs[1:]:
        a(f"v_xor_b32 v{q}, s{S_TAG}, v{q}")
        a(f"v_or_b32 v{regs[0]}, v{regs[0]}, v{q}")
    a(f"""
    v_cmp_ne_u32 vcc, 0, v{regs[0]}
    s_cmp_eq_u64 vcc, 0
    s_cbranch_scc1 {D}
    """)
    spin_guard(a, L, sleep)
    a.label(D)

def lds_wait(a, vaddr, off, val, T, sleep=1):
    L = a.new("L_lw"); D = a.new("L_lwd")
    a.label(L)
    a(f"""
    ds_read_b32 v{T}, v{vaddr} offset:{off}
    s_waitcnt lgkmcnt(0)
    v_readfirstlane_b32 s5, v{T}
    s_cmp_eq_u32 s5, {val}
    s_cbranch_scc1 {D}
    """)
    spin_guard(a, L, sleep)
    a.label(D)

def lds_add(a, vaddr, off, T):
    a(f"""
    s_mov_b64 exec, 1
    v_mov_b32 v{T}, 1
    ds_add_u32 v{vaddr}, v{T} offset:{off}
    s_mov_b64 exec, -1
    """)

def dual(a, sfast, lines):
    for l in lines: a(l + " sc1")

def store_flag(a, soff, T, sfast=None, second=None):
    a(f"""
    s_mov_b64 exec, 0xff
    v_mov_b32 v{T}, s{S_TAG}
    v_mov_b32 v{T+1}, {second if second else 's%d' % S_TAG}
    v_mov_b32 v{T+2}, s{S_TAG}
    v_mov_b32 v{T+3}, s{S_TAG}
    """)
    line = f"buffer_store_dwordx4 {vr(T,4)}, v2, {sr(S_WS)}, {soff} offen"
    if sfast is None:
        a(line + " sc1")
    else:
        dual(a, sfast, [line])
    a("s_mov_b64 exec, -1")
    a("s_nop 1")

def stream_gemm(a, nsteps, na, nb, ACC, BUF, depth, VA, VB, SA, SB, SG, first=True, gate=None, hook=None):
    per = na + nb
    ng = nsteps // 4
    extra = []
    def group():
        a(f"""
        s_lshl_b32 s5, s{SG}, 12
        s_add_u32 s80, s{SA}, s5
        s_add_u32 s81, s{SB}, s5
        s_lshl_b32 s79, s{SG}, 7
        s_add_u32 s{SG}, s{SG}, 1
        s_cmp_eq_u32 s{SG}, {ng}
        s_cselect_b32 s{SG}, 0, s{SG}
        """)
    def issue_list(s):
        slot = BUF + (s % depth) * 4 * per
        imm = (s % 4) * 1024
        l = []
        for t in range(na):
            if gate and t == 1:
                l.append(f"buffer_load_dwordx4 {vr(slot+4*t,4)}, v{gate[1]}, {sr(gate[0])}, s79 offen offset:{(s%4)*32}")
            else:
                l.append(f"buffer_load_dwordx4 {vr(slot+4*t,4)}, v{VA+t}, {sr(S_WS)}, s80 offen offset:{imm}")
        for t in range(nb):
            l.append(f"buffer_load_dwordx4 {vr(slot+4*(na+t),4)}, v{VB+t}, {sr(S_WS)}, s81 offen offset:{imm}")
        return l
    for s in range(min(depth - 1, nsteps)):
        if s % 4 == 0: group()
        for l in issue_list(s): a(l)
    for s in range(nsteps):
        nxt = []
        if s + depth - 1 < nsteps:
            if (s + depth - 1) % 4 == 0: group()
            nxt = issue_list(s + depth - 1)
        if not ILV:
            for l in nxt: a(l)
            outstanding = min(depth - 1, nsteps - 1 - s)
        else:
            outstanding = min(depth - 2, nsteps - 1 - s)
        ex_ = sum(n for (s0, n) in extra if s <= s0 + depth - 1)
        a(f"s_waitcnt vmcnt({outstanding*per + ex_})")
        if hook:
            n = hook(s)
            if n: extra.append((s, n))
        slot = BUF + (s % depth) * 4 * per
        k = 0
        for at in range(na):
            for bt in range(nb):
                d = ACC + 16 * (at * nb + bt)
                c = "0" if (first and s == 0) else vr(d, 16)
                if not (os.environ.get("F2X") and s > 0):
                    a(f"v_mfma_f32_32x32x16_bf16 {vr(d,16)}, {vr(slot+4*at,4)}, {vr(slot+4*(na+bt),4)}, {c}")
                if os.environ.get("F2GAP") and not (at == na - 1 and bt == nb - 1): a(f"s_sleep {os.environ.get('F2GAP')}")
                if ILV and k < len(nxt): a(nxt[k])
                k += 1

def sigmoid(a, v):
    a(f"""
    v_mul_f32 v{v}, {f32bits(-LOG2E):#x}, v{v}
    v_exp_f32 v{v}, v{v}
    s_nop 0
    v_add_f32 v{v}, 1.0, v{v}
    v_rcp_f32 v{v}, v{v}
    s_nop 0
    """)

KORD = int(os.environ.get('KORD', '1'))
SEQ = int(os.environ.get('SEQ', '1'))
GPAR = int(os.environ.get('GPAR', '1'))
NEG = int(os.environ.get('NE', '7'))
ES = 3 if NEG <= 5 else 2
def gen(a):
    KN = NAME + "_kernel"
    a.raw(f".globl {KN}")
    a.raw(f".p2align {os.environ.get('KAL', '8')}")
    a.raw(f".type {KN},@function")
    a.label(KN)
    a(f"""
    s_cmp_ge_u32 s2, 256
    s_cbranch_scc1 L_end
    s_load_dwordx16 s[8:23], s[0:1], 0
    s_load_dwordx4 s[24:27], s[0:1], 64
    v_lshrrev_b32 v2, 6, v0
    v_and_b32 v1, 63, v0
    s_mov_b32 s{S_SPIN}, 0
    v_readfirstlane_b32 s40, v2
    s_and_b32 s3, s2, 7          ; j
    s_lshr_b32 s4, s2, 3         ; i
    s_and_b32 s43, s4, 3
    s_lshl_b32 s5, s3, 2
    s_add_u32 s41, s43, s5       ; h = tau = 4j + (i&3)
    s_lshr_b32 s42, s4, 2        ; c = phi = i>>2
    {"s_and_b32 s72, s41, 7" if KORD == 1 else ("s_and_b32 s72, s42, 4" if KORD == 2 else "s_mov_b32 s72, s42")}   ; first key block
    """)
    if PAM == "8x4":
        a("""
        s_lshr_b32 s5, s3, 1
        s_lshl_b32 s5, s5, 3
        s_and_b32 s6, s4, 7
        s_add_u32 s86, s5, s6        ; tb = 8(j>>1) + (i&7)
        s_and_b32 s5, s3, 1
        s_lshl_b32 s87, s5, 2
        s_lshr_b32 s7, s4, 3
        s_add_u32 s87, s87, s7       ; g = 4(j&1) + (i>>3)
        s_lshl_b32 s7, s7, 1
        """ + ("s_add_u32 s87, s7, s5" if GPAR == 1 else "s_xor_b32 s87, s5, 1\ns_add_u32 s87, s87, s7" if GPAR == 2 else "") + """
        s_add_u32 s49, s6, s7
        s_add_u32 s49, s49, s5
        s_and_b32 s49, s49, 7        ; rot
        """)
    elif PAM == "16x2":
        a("""
        s_lshr_b32 s5, s3, 2
        s_lshl_b32 s5, s5, 4
        s_and_b32 s6, s4, 15
        s_add_u32 s86, s5, s6        ; tb = 16(j>>2) + (i&15)
        s_and_b32 s5, s3, 3
        s_lshl_b32 s87, s5, 1
        s_lshr_b32 s7, s4, 4
        s_add_u32 s87, s87, s7       ; g = 2(j&3) + (i>>4)
        s_lshl_b32 s7, s7, 2
        s_add_u32 s49, s6, s7
        s_add_u32 s49, s49, s5
        s_and_b32 s49, s49, 7        ; rot = i + 4(i>>4) + (j&3)
        """)
    else:
        a("""
        s_mov_b32 s86, s4
        s_mov_b32 s87, s3
        s_add_u32 s49, s3, s4
        s_and_b32 s49, s49, 7
        """)
    a("v_lshlrev_b32 v2, 4, v1      ; v2 = lane*16")
    CODEW = int(os.environ.get("CODEW", "2"))
    if CODEW == 2:
        a(f"""
        s_getpc_b64 s[74:75]
        L_pc:
        s_mul_i32 s5, s4, 12
        s_add_u32 s5, s5, s40
        s_lshl_b32 s5, s5, 7
        s_min_u32 s5, s5, L_end-L_pc-64
        s_and_b32 s74, s74, -128
        v_lshl_add_u32 v3, v1, 6, s5
        s_mov_b64 exec, 3
        global_load_dword v63, v3, s[74:75]
        s_mov_b64 exec, -1
        """)
    a(f"""
    s_cmp_ge_u32 s40, 8
    s_cbranch_scc1 L_aux
    """)
    att = Asm(); att.uid = 10000
    attention_wave(att)
    aux = Asm(); aux.uid = 20000
    aux_wave(aux)
    ka = att.l.index("@SPLIT"); kx = aux.l.index("@SPLIT")
    a.l += att.l[:ka]
    a("s_branch L_att1")
    a.label("L_aux")
    a.l += aux.l[:kx]
    a("s_branch L_aux1")
    a.label("L_att1")
    a.l += att.l[ka+1:]
    a.label("L_aux1")
    a.l += aux.l[kx+1:]
    a.label("L_end")
    a("s_endpgm")

def late_start(a):
    stamp_begin(a)
    a(f"s_load_dword s{S_EP}, s[26:27], {EPOCH}")
    if int(os.environ.get("CODEW", "2")) == 1:
        L = a.new("L_pc")
        a(f"""
        s_getpc_b64 s[74:75]
        {L}:
        s_mul_i32 s5, s4, 12
        s_add_u32 s5, s5, s40
        s_lshl_b32 s5, s5, 7
        s_min_u32 s5, s5, L_end-{L}-64
        s_and_b32 s74, s74, -128
        s_load_dword s80, s[74:75], s5
        s_add_u32 s5, s5, 64
        s_load_dword s81, s[74:75], s5
        """)
    srd(a, S_WS, 26, WS_BYTES)
    a.raw("@SPLIT")

VXA = 8
VWA = 12
VMI = 13
VWA2 = 62
NSL = 4
PAM = os.environ.get('PAM', '8x4')
TBS = {'8x4': 3, '16x2': 4, '32x1': 5}[PAM]
SCHEDS = {
 "a": ({-1: [0, 1], 0: [2, 3], 1: [4], 2: [5], 3: [6], 4: [7, "P"]}, {-1: [0, 1, 2, 3, 4, 5, 6, 7, "r0", "r1"]}, 5),
 "b": ({-1: [0], 0: [1, 2], 1: [3, 4], 2: [5], 3: [6], 4: [7, "P"]}, {-1: [0, 1, 2, 3], 0: [4, 5, 6, 7, "r0", "r1"]}, 5),
 "c": ({-1: [0], 0: [1, 2, 3], 1: [4], 2: [5], 3: [6], 4: [7, "P"]}, {-1: [0, 1, 2, 3, 4, 5, 6, 7], 0: ["r0", "r1"]}, 5),
 "e": ({-1: [0, 1], 0: [2, 3], 1: [4], 2: [5], 3: [6], 4: [7, "P"]}, {-1: [0, 1, 2, 3], 0: [4, 5, "r0"], 1: [6, 7, "r1"]}, 5),
 "f": ({-1: [0, 1, 2, 3], 1: [4], 2: [5], 3: [6], 4: [7, "P"]}, {-1: [0, 1, "r0", "r1", 2, 3, 4], 0: [5], 1: [6], 2: [7]}, 4),
 "d": ({-1: [0, 1], 0: [2, 3], 1: [4], 2: [5], 3: [6], 4: [7, "P"]}, {-1: [0, 1, 2, 3, 4, 5, 6, 7], 4: ["r0", "r1"]}, 6),
}
SCHEDS["g"] = ({-1: [0, 1], 0: [2, 3, "R"], 1: [4, "P"], 2: [5], 3: [6], 4: [7], 5: ["S"]}, {-1: [0, 1, 2, 3], 0: [4, 5, "T"], 1: [6, 7]}, 5)
SCHEDS["h"] = ({-1: [0, 1], 0: [2, 3], 1: [4, "R"], 2: [5, "P"], 3: [6], 4: [7], 6: ["S"]}, {-1: [0, 1, 2, 3], 0: [4, 5, 6, 7, "T"]}, 5)
SCHEDS["i"] = ({-1: [0, 1, "R"], 0: [2, 3, "P"], 1: [4], 2: [5, "S"], 3: [6], 4: [7]}, {-1: [0, 1, 2, 3, "T"], 0: [4, 5], 1: [6, 7]}, 5)
W0 = {-1: [0, 1], 0: [2, 3], 1: [4], 2: [5], 3: [6]}
X0 = {-1: [0, 1, 2, 3], 0: [4, 5], 1: [6, 7]}
SCHEDS["j"] = ({**W0, 4: [7, "P", "R"], 7: ["S"]}, X0, 5)
SCHEDS["k"] = ({**W0, 4: [7, "P", "R"], 8: ["S"]}, X0, 5)
SCHEDS["l"] = ({**W0, 4: [7, "P", "R"], 8: ["S"]}, {**X0, 3: ["T"]}, 5)
SCHEDS["m"] = ({**W0, 4: [7, "P", "R"], 8: ["S"]}, {**X0, 2: ["T"]}, 5)
SCHEDS["n"] = ({**W0, 4: [7, "P"], 7: ["R"], 8: ["S"]}, X0, 5)
SCHEDS["o"] = ({**W0, 4: [7, "P", "R"], 8: ["S"]}, {**X0, 4: ["T"]}, 5)
SCHEDS["x"] = ({**W0, 4: [7]}, X0, 5)
SCHEDS["z"] = ({-1: [0, 1, 2], 0: [3], 1: [4], 2: [5], 3: [6], 4: [7]}, X0, 5)
SCHEDS["w"] = ({**W0, 4: [7]}, {-1: [0, 1, 2], 0: [3, 4], 1: [5, 6], 2: [7]}, 5)
SCHEDS["y"] = ({**W0, 4: [7], 9: ["P", "R"], 10: ["S"]}, X0, 5)
WSCHED, XSCHED, RLS = SCHEDS[os.environ.get("SCHED", "x")]
F1D = int(os.environ.get("F1D", "0"))
VD0, VD1 = 14, 15
ACCA = 64
XB = 80
WB = 96

def make_tag(a):
    a(f"""
    s_waitcnt lgkmcnt(0)
    s_mul_i32 s{S_TAG}, s{S_EP}, 0x9e3779b1
    s_add_u32 s{S_TAG}, s{S_TAG}, 0x7f4a7c15
    """)

def pa_addr(a):
    a(f"""
    v_and_b32 v3, 31, v1               ; m
    v_lshrrev_b32 v4, 5, v1            ; hh
    v_bfe_u32 v5, v1, 1, 3             ; (m>>1)&7
    v_xor_b32 v5, v5, v4
    v_lshlrev_b32 v3, 7, v3
    s_and_b32 s5, s40, 1
    s_lshl_b32 s5, s5, 12              ; tt*32*128
    s_add_u32 s5, s5, {L_X}
    v_add_u32 v3, s5, v3
    """)
    for ss in range(4):
        a(f"""
        v_xor_b32 v7, {2*ss}, v5
        v_lshl_add_u32 v{VXA+ss}, v7, 4, v3
        """)
    a(f"""
    v_bfe_u32 v7, v1, 2, 2
    v_lshl_add_u32 v7, v4, 3, v7       ; + 8hh
    v_lshlrev_b32 v{VWA}, 7, v7        ; row*128
    v_bfe_u32 v5, v1, 4, 1             ; g
    v_bfe_u32 v6, v1, 1, 1             ; (i&3)>>1
    v_lshl_add_u32 v6, v5, 1, v6
    v_bfe_u32 v5, v1, 3, 1
    s_lshr_b32 s5, s40, 1
    s_and_b32 s5, s5, 1                ; half
    v_xor_b32 v5, s5, v5
    v_lshl_add_u32 v6, v5, 2, v6       ; piece
    v_lshl_add_u32 v{VWA}, v6, 4, v{VWA}
    v_and_b32 v5, 1, v1
    v_lshl_add_u32 v{VWA}, v5, 3, v{VWA}
    s_lshr_b32 s5, s40, 2              ; part
    s_lshl_b32 s5, s5, 13
    v_add_u32 v{VWA}, s5, v{VWA}
    v_add_u32 v{VWA2}, {112*1024}, v{VWA}
    v_mov_b32 v{VMI}, {L_MISC}
    """)

def pa_reads(a, sig):
    so = WSLOT[sig % 4]
    wa = VWA if so < 65536 else VWA2
    so = so if so < 65536 else so - 112 * 1024
    xb = XB + 32 * (sig % 2); wb = WB + 32 * (sig % 2)
    for ss in range(4):
        a(f"""
        ds_read_b128 {vr(xb+4*ss,4)}, v{VXA+ss} offset:{sig*8192}
        ds_read_b64_tr_b16 {vr(wb+4*ss,2)}, v{wa} offset:{so + ss*2048}
        ds_read_b64_tr_b16 {vr(wb+4*ss+2,2)}, v{wa} offset:{so + ss*2048 + 512}
        """)
def pa_mfma(a, sig, vrole):
    xb = XB + 32 * (sig % 2); wb = WB + 32 * (sig % 2)
    for ss in range(4):
        c = "0" if (sig == 0 and ss == 0) else vr(ACCA, 16)
        if vrole:
            a(f"v_mfma_f32_32x32x16_bf16 {vr(ACCA,16)}, {vr(xb+4*ss,4)}, {vr(wb+4*ss,4)}, {c}")
        else:
            a(f"v_mfma_f32_32x32x16_bf16 {vr(ACCA,16)}, {vr(wb+4*ss,4)}, {vr(xb+4*ss,4)}, {c}")
NODEF = int(os.environ.get("NODEF", "7"))
def pa_compute(a, sig, vrole):
    pa_reads(a, sig)
    if 0 < sig <= NODEF:
        pa_mfma(a, sig - 1, vrole)
    a("s_waitcnt lgkmcnt(0)")
    if sig >= NODEF:
        pa_mfma(a, sig, vrole)

APOLL = int(os.environ.get('APOLL', '1'))
def attention_wave(a):
    a(f"""
    v_lshrrev_b32 v3, 3, v1            ; row = l>>3
    v_mul_u32_u24 v4, 3072, v3
    v_bfe_u32 v5, v1, 4, 1             ; (row>>1)&1
    v_lshlrev_b32 v5, 2, v5
    v_and_b32 v6, 7, v1
    v_xor_b32 v6, v6, v5
    v_lshl_add_u32 v{VD0}, v6, 4, v4
    s_mul_i32 s52, s40, {8*3072}
    s_lshl_b32 s5, s87, 7
    s_add_u32 s52, s52, s5
    s_lshl_b32 s53, s40, 10            ; lds base
    s_waitcnt lgkmcnt(0)
    """)
    srd(a, S_WQKV, 10, 512 * 3072)
    def wdma(sig):
        a(f"""
        s_add_u32 s5, s49, {sig}
        s_and_b32 s5, s5, 7
        s_mul_i32 s50, s5, {64*3072}
        s_add_u32 s50, s50, s52
        """)
        for p in range(3):
            a(f"""
            s_add_u32 m0, s53, {WSLOT[sig%4] + p*8192}
            s_add_u32 s51, s50, {p*1024}
            buffer_load_dwordx4 v{VD0}, {sr(S_WQKV)}, s51 offen lds
            """)
    wq = []
    def wissue(items):
        for it in items:
            if it == "P":
                a(f"""
                s_lshl_b32 s5, s42, 3
                s_add_u32 s5, s5, s40
                s_lshl_b32 s5, s5, 5
                s_add_u32 s5, s5, s41
                s_lshl_b32 s5, s5, 10
                s_add_u32 s5, s5, {OF}
                v_mov_b32 v20, -1
                v_mov_b32 v21, -1
                v_mov_b32 v22, -1
                v_mov_b32 v23, -1
                buffer_store_dwordx4 v[20:23], v2, {sr(S_WS)}, s5 offen sc1
                """)
                wq.append("P")
            elif it == "R":
                a("s_add_u32 s5, s59, 8192")
                for jq in range(2):
                    for jj in range(4):
                        a(f"buffer_load_dword v{R+4*jq+jj}, v{VRL}, {sr(S_SRC)}, {'s5' if jq else 's59'} offen offset:{jj*1024}")
                wq.extend(["R"] * 8)
            elif it == "S":
                last = max(k for k, e in enumerate(wq) if e == "R")
                a(f"""
                s_mov_b32 s{S_SRC}, s{S_WS}
                s_mov_b32 s{S_SRC+1}, s{S_WS+1}
                s_cmp_lt_u32 s73, 1152
                s_cselect_b32 s{S_SRC+2}, {WS_BYTES:#x}, 0
                s_mov_b32 s80, 0x05040100
                s_mov_b32 s81, 0x07060302
                s_waitcnt vmcnt({len(wq) - 1 - last})
                """)
                for jj in range(4):
                    a(f"v_perm_b32 v{F+jj}, v{R+2*jj+1}, v{R+2*jj}, s80")
                    a(f"v_perm_b32 v{F+4+jj}, v{R+2*jj+1}, v{R+2*jj}, s81")
                a(f"""
                buffer_store_dwordx4 {vr(F,4)}, v2, {sr(S_SRC)}, s79 offen sc1
                buffer_store_dwordx4 {vr(F+4,4)}, v2, {sr(S_SRC)}, s78 offen sc1
                """)
                wq.extend(["S"] * 2)
            else:
                wdma(it); wq.extend([it] * 3)
    XA = int(os.environ.get("XA", "0"))
    if XA:
        a(f"""
        v_lshlrev_b32 v4, 10, v3
        v_and_b32 v6, 7, v1
        v_lshrrev_b32 v5, 4, v1
        v_xor_b32 v6, v6, v5
        s_and_b32 s5, s40, 1
        s_lshl_b32 s5, s5, 2
        v_xor_b32 v6, s5, v6
        v_lshl_add_u32 v{VD1}, v6, 4, v4
        s_lshl_b32 s78, s86, 16
        s_lshl_b32 s5, s40, 13
        s_add_u32 s78, s78, s5
        """)
    for it in WSCHED[-1]:
        if isinstance(it, int):
            if it < XA:
                a(f"""
                s_add_u32 s5, s49, {it}
                s_and_b32 s5, s5, 7
                s_lshl_b32 s5, s5, 7
                s_add_u32 m0, s53, {L_X + it*8192}
                s_add_u32 s5, s5, s78
                buffer_load_dwordx4 v{VD1}, {sr(S_X)}, s5 offen lds
                """)
                wq.append(it)
            wissue([it])
    late_start(a)
    R = 144; F = 152; VRL = 63
    wissue([it for it in WSCHED[-1] if not isinstance(it, int)])
    make_tag(a)
    pa_addr(a)
    RLI = int(os.environ.get("RLI", "7"))
    for sig in range(8):
        last = max(k for k, e in enumerate(wq) if e == sig)
        a(f"s_waitcnt vmcnt({len(wq) - 1 - last})")
        if sig == 0 and not os.environ.get("TAILST"): stamp(a, 0)
        if sig <= 6: stamp(a, sig, pa=True)
        a("s_barrier")
        for it in WSCHED.get(sig, []):
            assert isinstance(it, str) or it - NSL < sig, (it, sig)
        if sig >= 4: stamp(a, sig - 4, pa=2)
        wissue(WSCHED.get(sig, []))
        pa_compute(a, sig, False)
    if not os.environ.get("TAILST"): stamp(a, 1)
    stamp(a, 5, pa=2)
    a(f"""
    s_lshr_b32 s5, s40, 1
    s_and_b32 s5, s5, 1
    s_lshl_b32 s5, s5, 1
    s_lshl_b32 s6, s87, 2
    s_add_u32 s5, s5, s6               ; head0
    s_lshl_b32 s5, s5, 6
    s_lshl_b32 s6, s86, 1
    s_add_u32 s5, s5, s6
    s_and_b32 s6, s40, 1
    s_add_u32 s5, s5, s6               ; head0*64 + T
    s_cmp_ge_u32 s40, 4
    s_cbranch_scc1 L_isk
    s_lshl_b32 s54, s5, 10
    s_add_u32 s54, s54, {QF}
    s_add_u32 s55, s54, {64*1024}
    s_mov_b32 s56, {f32bits(QSCALE):#x}
    s_branch L_qk
    L_isk:
    s_lshl_b32 s54, s5, 11
    s_add_u32 s54, s54, {KV}
    s_add_u32 s55, s54, {64*2048}
    s_mov_b32 s56, 1.0
    L_qk:
    s_nop 3
    """)
    for r in range(16):
        a(f"v_mul_f32 v{ACCA+r}, s56, v{ACCA+r}")
    for r in range(8):
        a(f"v_cvt_pk_bf16_f32 v{XB+r}, v{ACCA+2*r}, v{ACCA+2*r+1}")
    dual(a, 73, [f"buffer_store_dwordx4 {vr(XB,4)}, v2, {sr(S_WS)}, s54 offen",
                 f"buffer_store_dwordx4 {vr(XB+4,4)}, v2, {sr(S_WS)}, s55 offen"])
    Q = 8; KB = 16; VB = 24; P = 40; VKA = 56; VVA = 57; VG = 58; VMISC = 59; VPL = 60; VG2 = 61; VT = 160
    S = 64; NM = 96; O = 128; VIDX = 62
    E1, E2 = [int(x) for x in os.environ.get("EPOS", "6,11").split(",")]
    def slot(t, aq, last=False):
        Sc = S + 16 * aq; Sn = S + 16 * (1 - aq)
        tn = t if aq == 0 else t + 1
        Kc = KB + 4 * (tn % 2)
        Pc = P + 8 * aq; Pp = P + 8 * (1 - aq)
        Oc = O + 16 * aq; Op = O + 16 * (1 - aq)
        tp = t if aq == 1 else t - 1
        Vc = VB + 8 * (t % 2); Vp = VB + 8 * (tp % 2)
        noff = (t + 1) * 2048 if t < 3 else 16384
        def ex(i): a(f"v_exp_f32 v{Sc+i if i < 8 else Pc+i-8}, v{Sc+i}")
        if aq == 1: a("s_waitcnt lgkmcnt(0)")
        if not (last and aq == 1):
            a(f"v_mfma_f32_32x32x16_bf16 {vr(Sn,16)}, {vr(Kc,4)}, {vr(Q+4*(1-aq),4)}, {vr(NM+16*(1-aq),16)}")
        if aq == 0 and not last:
            a(f"ds_read_b128 {vr(KB+4*((t+1)%2),4)}, v{VKA} offset:{noff}")
        for i in range(E1): ex(i)
        a(f"v_smfmac_f32_32x32x32_bf16 {vr(Op,16)}, {vr(Vp+4,4)}, {vr(Pp,8)}, v{VIDX}")
        if aq == 0 and not last:
            Vn = VB + 8 * ((t + 1) % 2)
            a(f"""
            s_mov_b64 exec, s[74:75]
            ds_read_b128 {vr(Vn,4)}, v{VVA} offset:{noff+1024}
            ds_read_b128 {vr(Vn+4,4)}, v{VVA} offset:{noff+1536}
            s_mov_b64 exec, -1
            """)
        for i in range(E1, E2): ex(i)
        a(f"v_smfmac_f32_32x32x32_bf16 {vr(Oc,16)}, {vr(Vc,4)}, {vr(Sc,8)}, v{VIDX}")
        for i in range(E2, 16): ex(i)
    def advance():
        a(f"""
        v_add_u32 v{VKA}, 16384, v{VKA}
        v_add_u32 v{VVA}, 16384, v{VVA}
        """)
    def prog_wait(n, both=False, off=M_PROG):
        L = a.new("L_pw"); D = a.new("L_pwd")
        a.label(L)
        if both:
            a(f"""
            ds_read_b128 v[4:7], v{VMISC} offset:{off}
            s_waitcnt lgkmcnt(0)
            v_min_u32 v4, v4, v5
            v_min_u32 v6, v6, v7
            v_min_u32 v4, v4, v6
            """)
        else:
            a(f"""
            ds_read_b64 v[4:5], v{VPL} offset:{M_PROG}
            s_waitcnt lgkmcnt(0)
            v_min_u32 v4, v4, v5
            """)
        a(f"""
        s_nop 0
        v_readfirstlane_b32 s5, v4
        s_cmp_ge_u32 s5, {n}
        s_cbranch_scc1 {D}
        """)
        spin_guard(a, L, 1)
        a.label(D)
    a(f"""
    s_lshl_b32 s53, s40, 11            ; w*2048
    s_lshl_b32 s5, s40, 10
    s_add_u32 s5, s5, {L_VX}
    v_add_u32 v4, s5, v2
    s_lshr_b32 s5, s40, 2
    s_lshl_b32 s5, s5, 1
    s_lshl_b32 s6, s87, 2
    s_add_u32 s5, s5, s6
    s_lshl_b32 s5, s5, 6
    s_lshl_b32 s6, s86, 1
    s_add_u32 s5, s5, s6
    s_bfe_u32 s6, s40, 0x10001
    s_add_u32 s5, s5, s6
    s_lshl_b32 s54, s5, 11
    s_and_b32 s58, s40, 1              ; kh
    s_lshl_b32 s5, s58, 9
    s_add_u32 s54, s54, s5
    s_add_u32 s54, s54, {KV}
    v_bfe_u32 v3, v1, 4, 1
    v_lshlrev_b32 v3, 17, v3
    v_lshrrev_b32 v5, 5, v1
    v_lshl_add_u32 v3, v5, 8, v3
    v_and_b32 v5, 15, v1
    v_lshl_add_u32 v3, v5, 4, v3
    s_barrier
    ds_read_b128 {vr(XB+8,4)}, v4
    s_lshl_b32 s76, s87, 12
    s_add_u32 s76, s76, {FL1}          ; FL1[g]
    v_mov_b32 v{VMISC}, {L_MISC}
    s_lshl_b32 s5, s58, 3
    v_add_u32 v{VPL}, s5, v{VMISC}
    s_waitcnt lgkmcnt(0)
    buffer_store_dwordx4 {vr(XB+8,4)}, v3, {sr(S_WS)}, s54 offen offset:1024 sc1
    s_waitcnt vmcnt(0)
    """)
    DRY = int(os.environ.get("DRY", "0"))
    lds_add(a, VMISC, M_C1, 3)
    a(f"""
    s_cmp_lg_u32 s40, 0
    s_cbranch_scc1 L_nofl1
    """)
    lds_wait(a, VMISC, M_C1, 8, 3, sleep=1)
    a(f"""
    s_lshl_b32 s5, s86, 7
    s_add_u32 s5, s5, s76
    """)
    store_flag(a, "s5", VT, sfast=73)
    a.label("L_nofl1")
    stamp(a, 2)
    if DRY:
        a(f"""
        s_cmp_lg_u32 s40, 7
        s_cbranch_scc1 L_dryret
        """)
        srd(a, S_OUT, 22, 0)
        a(f"""
        s_mov_b32 s73, 1
        s_mov_b32 s79, s53
        s_mov_b32 s75, 0x1111
        s_mov_b32 s48, 0x1111
        s_mov_b32 s49, 0
        s_mov_b32 s53, -1
        s_mov_b32 s77, 1
        s_mov_b32 s57, 0
        v_mov_b32 v5, v2
        v_mov_b32 v6, v2
        v_add_u32 v15, {L_DRY}, v2
        v_mov_b32 v12, v15
        v_mov_b32 v11, {L_DRY + 4096}
        v_mov_b32 v162, v11
        s_branch L_proc
        L_dryback:
        s_mov_b32 s53, s79
        s_waitcnt vmcnt(0) lgkmcnt(0)
        s_nop 7
        s_nop 7
        v_mov_b32 v{VMISC}, {L_MISC}
        s_lshl_b32 s5, s58, 3
        v_add_u32 v{VPL}, s5, v{VMISC}
        L_dryret:
        """)
    stamp(a, 6, pa=2)
    wissue(WSCHED.get(8, []))
    a(f"""
    s_lshl_b32 s59, s58, 13            ; kh*8192
    v_add_u32 v{VKA}, s59, v2
    v_lshrrev_b32 v4, 5, v1
    v_and_b32 v5, 15, v1
    v_lshlrev_b32 v5, 4, v5
    v_lshl_add_u32 v{VVA}, v4, 8, v5
    v_add_u32 v{VVA}, s59, v{VVA}
    s_mov_b32 s74, 0x0000ffff
    s_mov_b32 s75, 0x0000ffff
    v_and_b32 v3, 31, v1
    v_cmp_eq_u32 vcc, 16, v3
    v_mov_b32 v4, 0x3f803f80
    s_lshl_b32 s5, s41, 6
    s_lshl_b32 s6, s42, 3
    s_lshl_b32 s7, s72, 3
    s_add_u32 s7, s7, s5               ; h*64 + 8 b0
    s_add_u32 s5, s5, s6               ; h*64 + 8c
    s_add_u32 s6, s7, s40
    s_lshl_b32 s54, s6, 11
    s_add_u32 s54, s54, {KV}
    s_add_u32 s6, s40, s5
    s_lshl_b32 s55, s6, 10
    s_add_u32 s55, s55, {QF}
    s_xor_b32 s59, s55, 1024
    """)
    for r in range(16):
        a(f"v_cndmask_b32 v{VB+r}, 0, v4, vcc")
    for r in range(32):
        a(f"v_mov_b32 v{O+r}, 0")
    for r in range(8):
        a(f"v_mov_b32 v{P+8+r}, 0")
    a(f"v_mov_b32 v{VIDX}, {os.environ.get('IDX', '0xdddddddd')}")
    a(f"""
    s_lshl_b32 s76, s3, 12
    s_add_u32 s76, s76, {FL1}          ; FL1[j]
    s_lshl_b32 s5, s72, 2
    s_sub_u32 s5, s5, 4
    v_add_u32 v7, s5, v1
    v_and_b32 v7, 31, v7
    s_lshl_b32 s5, s42, 2
    v_add_u32 v6, s5, v1
    v_cmp_gt_u32 vcc, 4, v1
    v_cndmask_b32 v7, v7, v6, vcc
    v_lshlrev_b32 v7, 7, v7
    s_add_u32 s6, s54, s53
    s_add_u32 s5, s72, 1
    s_and_b32 s5, s5, 7
    s_sub_u32 s5, s5, s72
    s_lshl_b32 s5, s5, 14
    s_add_u32 s56, s6, s5
    s_add_u32 s5, s72, 2
    s_and_b32 s5, s5, 7
    s_sub_u32 s5, s5, s72
    s_lshl_b32 s5, s5, 14
    s_add_u32 s57, s6, s5
    s_mov_b32 m0, s53
    s_sub_u32 s5, s40, 1
    s_cmp_ge_u32 s5, {int(os.environ.get("NPOLL", "1"))}
    s_cbranch_scc1 L_nopoll
    """)
    lds_wait(a, VMISC, M_C1, 8, 3, sleep=1)
    a(f"""
    s_sleep {int(os.environ.get("PSL", "8"))}
    s_cmp_eq_u32 s40, 1
    s_cbranch_scc1 L_qp
    s_sleep {int(os.environ.get("PSL2", "9"))}
    L_qp:
    ds_read_b32 v3, v{VMISC} offset:{M_QOK}
    s_waitcnt lgkmcnt(0)
    v_readfirstlane_b32 s5, v3
    s_cmp_lg_u32 s5, 0
    s_cbranch_scc1 L_nopoll
    s_mov_b64 exec, {0xffff if ES == 3 else 0xfff:#x}
    buffer_load_dword v{VT}, v7, {sr(S_WS)}, s76 offen sc1
    s_waitcnt vmcnt(0)
    v_cmp_ne_u32 vcc, s{S_TAG}, v{VT}
    s_mov_b64 exec, -1
    s_and_b32 s5, vcc_lo, 255
    s_cbranch_scc0 L_qok
    """)
    spin_guard(a, "L_qp", 3)
    a(f"""
    L_qok:
    s_cmp_eq_u32 vcc_lo, 0
    s_cselect_b32 s5, 3, 1
    v_mov_b32 v3, s5
    ds_max_u32 v{VMISC}, v3 offset:{M_QOK}
    L_nopoll:
    L_qw:
    ds_read_b32 v3, v{VMISC} offset:{M_QOK}
    s_waitcnt lgkmcnt(0)
    v_readfirstlane_b32 s48, v3
    s_cmp_lg_u32 s48, 0
    s_cbranch_scc1 L_qwd
    """)
    spin_guard(a, "L_qw", 1)
    a.label("L_qwd")
    stamp(a, 3)
    a(f"""
    buffer_load_dwordx4 v2, {sr(S_WS)}, s54 offen lds
    buffer_load_dwordx4 v2, {sr(S_WS)}, s54 offen offset:1024 lds
    buffer_load_dwordx4 {vr(Q+4,4)}, v2, {sr(S_WS)}, s55 offen
    buffer_load_dwordx4 {vr(Q,4)}, v2, {sr(S_WS)}, s59 offen
    s_cmp_ge_u32 s40, 4
    s_cbranch_scc1 L_young
    s_cmp_eq_u32 s48, 3
    s_cbranch_scc1 {"L_nop2" if SEQ else "L_q3"}
    s_cmp_lg_u32 s40, 1
    s_cbranch_scc1 L_nop2
    s_mov_b64 exec, {0xffff if ES == 3 else 0xfff:#x}
    buffer_load_dword v{VT}, v7, {sr(S_WS)}, s76 offen sc1
    s_mov_b64 exec, -1
    s_waitcnt vmcnt(3)
    """)
    lds_add(a, VMISC, M_S0, 3)
    a(f"""
    s_branch L_qp3
    L_qp2:
    s_mov_b64 exec, {0xffff if ES == 3 else 0xfff:#x}
    buffer_load_dword v{VT}, v7, {sr(S_WS)}, s76 offen sc1
    L_qp3:
    s_mov_b64 exec, {0xffff if ES == 3 else 0xfff:#x}
    s_waitcnt vmcnt(0)
    v_cmp_ne_u32 vcc, s{S_TAG}, v{VT}
    s_mov_b64 exec, -1
    s_cmp_eq_u32 vcc_lo, 0
    s_cbranch_scc1 L_qok2
    """)
    spin_guard(a, "L_qp2", 3)
    a(f"""
    L_qok2:
    v_mov_b32 v3, 3
    ds_write_b32 v{VMISC}, v3 offset:{M_QOK}
    s_branch L_q3
    L_nop2:
    s_waitcnt vmcnt(2)
    """)
    lds_add(a, VMISC, M_S0, 3)
    lds_wait(a, VMISC, M_QOK, 3, 3, sleep=1)
    a(f"""
    L_q3:
    s_lshl_b32 s6, s53, 1
    s_add_u32 m0, s6, 16384
    s_nop 0
    """)
    for k in range(4):
        a(f"buffer_load_dwordx4 v2, {sr(S_WS)}, s56 offen offset:{k*1024} lds")
    if ES == 3:
        a(f"""
        s_add_u32 m0, s6, 32768
        s_nop 0
        """)
        for k in range(4):
            a(f"buffer_load_dwordx4 v2, {sr(S_WS)}, s57 offen offset:{k*1024} lds")
    a(f"""
    s_cmp_lg_u32 s48, {7 if SEQ else 3}
    s_cbranch_scc1 L_s0done
    s_waitcnt vmcnt(10)
    """)
    lds_add(a, VMISC, M_S0, 3)
    a(f"""
    L_s0done:
    s_waitcnt vmcnt(0)
    """)
    lds_add(a, VMISC, M_S1, 3)
    a(f"""
    s_branch L_go
    L_young:
    s_waitcnt vmcnt(2)
    """)
    lds_add(a, VMISC, M_S0, 3)
    a(f"""
    s_waitcnt vmcnt(0)
    L_go:
    """)
    lds_wait(a, VMISC, M_S0, 8, 3, sleep=1)
    stamp(a, 4)
    a(f"""
    ds_read_b128 {vr(KB,4)}, v2
    s_waitcnt lgkmcnt(0)
    v_mfma_f32_32x32x16_bf16 {vr(S,16)}, {vr(KB,4)}, {vr(Q,4)}, 0
    v_mfma_f32_32x32x16_bf16 {vr(S+16,16)}, {vr(KB,4)}, {vr(Q+4,4)}, 0
    s_mov_b32 s77, 0
    s_nop 7
    """)
    a(f"""
    ds_read_b128 {vr(KB,4)}, v{VKA}
    s_mov_b64 exec, s[74:75]
    ds_read_b128 {vr(VB,4)}, v{VVA} offset:1024
    ds_read_b128 {vr(VB+4,4)}, v{VVA} offset:1536
    s_mov_b64 exec, -1
    s_nop 4
    """)
    for q in range(2):
        Sq = S + 16 * q
        a(f"v_max3_f32 v{3+q}, v{Sq}, v{Sq+1}, v{Sq+2}")
        for r in range(3, 15, 2):
            a(f"v_max3_f32 v{3+q}, v{3+q}, v{Sq+r}, v{Sq+r+1}")
        a(f"v_max_f32 v{3+q}, v{3+q}, v{Sq+15}")
    a(f"""
    v_mov_b32 v5, v3
    v_mov_b32 v6, v4
    s_nop 1
    v_permlane32_swap_b32 v3, v5
    v_permlane32_swap_b32 v4, v6
    s_nop 1
    v_max_f32 v3, v3, v5
    v_max_f32 v4, v4, v6
    """)
    for q in range(2):
        for r in range(16):
            a(f"v_sub_f32 v{NM+16*q+r}, 0, v{3+q}")
    a(f"""
    s_waitcnt lgkmcnt(0)
    v_mfma_f32_32x32x16_bf16 {vr(S,16)}, {vr(KB,4)}, {vr(Q,4)}, {vr(NM,16)}
    s_nop 7
    s_nop 4
    """)
    BAL = int(os.environ.get("BAL", "6"))
    BALT = int(os.environ.get("BALT", "22"))
    if BAL:
        a(f"""
        s_cmp_lt_u32 s40, 4
        s_cbranch_scc1 L_bal0
        s_setprio 1
        L_bal0:
        """)
    for t in range(3):
        slot(t, 0); slot(t, 1)
    lds_wait(a, VMISC, M_S1, 4, 4, sleep=1)
    slot(3, 0); slot(3, 1)
    advance()
    for t in range(4):
        if t == 3 and ES == 2: prog_wait(int(os.environ.get("KSP", "5")))
        slot(t, 0); slot(t, 1)
    advance()
    for t in range(3):
        slot(t, 0); slot(t, 1)
    KSP = int(os.environ.get("KSP", "5"))
    prog_wait(KSP)
    stamp(a, 5)
    slot(3, 0); slot(3, 1)
    advance()
    a("s_mov_b32 s79, 3")
    a.label("L_att_loop")
    for t in range(4):
        if t == 3 and KSP < 8:
            a(f"""
            s_cmp_lg_u32 s79, {KSP-1}
            s_cbranch_scc1 L_nokw
            """)
            prog_wait(8)
            a.label("L_nokw")
        if BALT and t == BALT % 4:
            a(f"""
            s_cmp_lg_u32 s79, {BALT // 4}
            s_cbranch_scc1 L_balt
            s_setprio 0
            L_balt:
            """)
        slot(t, 0); slot(t, 1)
    advance()
    a("""
    s_add_u32 s79, s79, 1
    s_cmp_lg_u32 s79, 4
    s_cbranch_scc1 L_nodead
    """)
    lds_add(a, VMISC, M_DEAD, 4)
    a("""
    L_nodead:
    s_cmp_lg_u32 s79, 6
    s_cbranch_scc1 L_nodead2
    """)
    lds_add(a, VMISC, M_DEAD2, 4)
    a.label("L_nodead2")
    if BAL:
        a(f"""
        s_cmp_lg_u32 s79, {BAL}
        s_cbranch_scc1 L_bal1
        s_setprio 0
        L_bal1:
        """)
    a(f"""
    s_cmp_lt_u32 s79, 7
    s_cbranch_scc1 L_att_loop
    s_setprio 3
    s_lshl_b32 s5, s42, 3
    s_add_u32 s5, s5, s40              ; T
    s_lshr_b32 s6, s5, 1
    s_lshl_b32 s6, s6, 7
    s_add_u32 s76, s6, {FLG}           ; FLG[tau]
    s_lshl_b32 s57, s5, 7
    s_add_u32 s57, s57, {GBUF}
    v_mov_b32 v{VPL}, 0
    """)
    s_keep = None
    lds_wait(a, VMISC, M_PZ, 4, VT)
    a(f"""
    v_and_b32 v3, 31, v1
    v_lshlrev_b32 v3, 2, v3
    buffer_load_dword v{VG}, v3, {sr(S_WS)}, s57 offen
    v_add_u32 v4, s53, v2
    v_add_u32 v4, {L_OX}, v4
    v_xor_b32 v5, 2048, v4
    v_lshlrev_b32 v7, 2, v1
    s_lshl_b32 s6, s40, 8
    s_add_u32 s6, s6, {L_LX}
    v_add_u32 v7, s6, v7
    v_xor_b32 v6, 256, v7
    s_lshl_b32 s6, s40, 2
    v_add_u32 v{VT+5}, s6, v{VMISC}
    v_xor_b32 v{VT+4}, 4, v{VT+5}
    v_mov_b32 v{VT+6}, 1
    v_mov_b32 v{VT}, s{S_TAG}
    v_mov_b32 v{VT+1}, s{S_TAG}
    v_mov_b32 v{VT+2}, s{S_TAG}
    v_mov_b32 v{VT+3}, s{S_TAG}
    s_lshl_b32 s5, s42, 3
    s_add_u32 s5, s5, s40              ; T
    s_lshl_b32 s5, s5, 5
    s_add_u32 s5, s5, s41              ; T*32 + h
    s_lshl_b32 s76, s5, 10
    s_add_u32 s76, s76, {OF}
    s_lshl_b32 s78, s5, 7
    s_add_u32 s78, s78, {FL3}
    s_mov_b32 s80, 0x53800000          ; 2^40
    s_mov_b32 s81, 0x7f000000          ; 2^127
    s_mov_b32 s57, 0xfffeffff
    s_setprio 0
    """)
    for t in range(4):
        if t == 3: a("s_setprio 3")
        slot(t, 0, t == 3); slot(t, 1, t == 3)
    a(f"""
    s_nop 1
    v_smfmac_f32_32x32x32_bf16 {vr(O+16,16)}, {vr(VB+12,4)}, {vr(P+8,8)}, v{VIDX}
    ds_write_b128 v5, {vr(O,4)}
    ds_write_b128 v5, {vr(O+4,4)} offset:1024
    ds_write_b32 v6, v{O+8}
    ds_write_b32 v{VT+4}, v{VT+6} offset:{M_PAIR}
    """)
    stamp(a, 6)
    a(f"""
    L_pw:
    ds_read_b32 v3, v{VT+5} offset:{M_PAIR}
    ds_read_b128 {vr(O,4)}, v4
    ds_read_b128 {vr(O+4,4)}, v4 offset:1024
    ds_read_b32 v{O+8}, v7
    s_waitcnt lgkmcnt(0)
    v_readfirstlane_b32 s5, v3
    s_cmp_eq_u32 s5, 1
    s_cbranch_scc1 L_pwd
    """)
    spin_guard(a, "L_pw", 0)
    a.label("L_pwd")
    if os.environ.get("TAILST"): stamp(a, 0)
    a(f"v_add_f32 v{O+8}, v{O+8}, v{O+24}")
    for r in range(8):
        a(f"v_add_f32 v{O+r}, v{O+r}, v{O+16+r}")
    a.label("L_att_check")
    a(f"""
    v_mov_b32 v3, v{O+8}
    v_add_f32 v4, |v{O}|, |v{O+1}|
    v_add_f32 v5, |v{O+2}|, |v{O+3}|
    v_permlane32_swap_b32 v{O+8}, v3
    v_add_f32 v6, |v{O+4}|, |v{O+5}|
    v_add_f32 v7, |v{O+6}|, |v{O+7}|
    v_rcp_f32 v3, v{O+8}
    v_add_f32 v4, v4, v5
    v_add_f32 v6, v6, v7
    v_add_f32 v4, v4, v6
    v_cmp_nle_f32 vcc, v{O+8}, s80
    v_cmp_nle_f32 s[48:49], v4, s81
    s_cmp_eq_u32 s77, 3
    s_cbranch_scc1 L_att_fin
    s_or_b64 vcc, vcc, s[48:49]
    s_cbranch_scc0 L_att_fin
    """)
    a(f"""
    s_mov_b32 s77, 3
    s_lshl_b32 s56, s41, 17
    s_add_u32 s56, s56, {KV}
    v_mov_b32 v{VKA}, v2
    v_mov_b32 v3, 0xff800000
    s_mov_b32 s79, 0
    L_fb_max:
    buffer_load_dwordx4 {vr(KB,4)}, v{VKA}, {sr(S_WS)}, s56 offen
    s_waitcnt vmcnt(0)
    v_mfma_f32_32x32x16_bf16 {vr(S,16)}, {vr(KB,4)}, {vr(Q+4,4)}, 0
    v_add_u32 v{VKA}, 2048, v{VKA}
    s_nop 7
    s_nop 7
    s_nop 3
    """)
    for r in range(0, 16, 2):
        a(f"v_max3_f32 v3, v3, v{S+r}, v{S+r+1}")
    a(f"""
    s_add_u32 s79, s79, 1
    s_cmp_lt_u32 s79, 64
    s_cbranch_scc1 L_fb_max
    v_mov_b32 v4, v3
    s_nop 1
    v_permlane32_swap_b32 v3, v4
    s_nop 1
    v_max_f32 v3, v3, v4
    """)
    for r in range(16):
        a(f"v_sub_f32 v{NM+r}, 0, v3")
        a(f"v_mov_b32 v{O+r}, 0")
    a(f"""
    v_mov_b32 v{VKA}, v2
    v_lshrrev_b32 v4, 5, v1
    v_and_b32 v5, 15, v1
    v_lshlrev_b32 v5, 4, v5
    v_lshl_add_u32 v{VVA}, v4, 8, v5
    s_mov_b32 s79, 0
    L_fb_loop:
    buffer_load_dwordx4 {vr(KB,4)}, v{VKA}, {sr(S_WS)}, s56 offen
    s_mov_b64 exec, s[74:75]
    buffer_load_dwordx4 {vr(VB,4)}, v{VVA}, {sr(S_WS)}, s56 offen offset:1024
    buffer_load_dwordx4 {vr(VB+4,4)}, v{VVA}, {sr(S_WS)}, s56 offen offset:1536
    s_mov_b64 exec, -1
    s_waitcnt vmcnt(0)
    v_mfma_f32_32x32x16_bf16 {vr(S,16)}, {vr(KB,4)}, {vr(Q+4,4)}, {vr(NM,16)}
    v_add_u32 v{VKA}, 2048, v{VKA}
    v_add_u32 v{VVA}, 2048, v{VVA}
    s_nop 7
    s_nop 7
    """)
    for r in range(16):
        a(f"v_exp_f32 v{S+r}, v{S+r}")
    a(f"""
    s_nop 3
    v_smfmac_f32_32x32x32_bf16 {vr(O,16)}, {vr(VB,4)}, {vr(S,8)}, v{VIDX}
    v_smfmac_f32_32x32x32_bf16 {vr(O,16)}, {vr(VB+4,4)}, {vr(S+8,8)}, v{VIDX}
    s_add_u32 s79, s79, 1
    s_cmp_lt_u32 s79, 64
    s_cbranch_scc1 L_fb_loop
    s_nop 7
    s_nop 7
    s_branch L_att_check
    L_att_fin:
    s_waitcnt vmcnt(0)
    v_mul_f32 v3, v3, v{VG}
    """)
    for r in range(8):
        a(f"v_mul_f32 v{O+r}, v{O+r}, v3")
    for r in range(4):
        a(f"v_cvt_pk_bf16_f32 v{P+r}, v{O+2*r}, v{O+2*r+1}")
    for r in range(4):
        a(f"v_min_u32 v{P+r}, s57, v{P+r}")
    a(f"""
    buffer_store_dwordx4 {vr(P,4)}, v2, {sr(S_WS)}, s76 offen sc1
    s_cmp_lg_u32 s58, 0
    s_cbranch_scc1 L_nofl3
    s_mov_b64 exec, 0xff
    buffer_store_dwordx4 {vr(VT,4)}, v2, {sr(S_WS)}, s78 offen sc1
    s_mov_b64 exec, -1
    """)
    a.label("L_nofl3")
    if os.environ.get("TAILST"): stamp(a, 1)
    a(f"""
    s_or_b32 s5, s2, s40
    s_cmp_lg_u32 s5, 0
    s_cbranch_scc1 L_nobump
    v_lshlrev_b32 v3, 7, v1
    """)
    for k in range(4):
        a(f"s_mov_b32 s58, {FL2 + k*8192}")
        poll_flags(a, 3, "s58", [(1, 0)], 9, sleep=12)
    a(f"""
    s_mov_b64 exec, 1
    s_add_u32 s5, s{S_EP}, 1
    v_mov_b32 v9, s5
    buffer_store_dword v9, v2, {sr(S_WS)}, 0 offen offset:{EPOCH} sc1
    s_mov_b64 exec, -1
    L_nobump:
    """)
    if APOLL:
        a(f"""
        s_andn2_b32 s5, s40, 2
        s_cmp_lg_u32 s5, 1
        s_cbranch_scc1 L_noap
        s_lshl_b32 s56, s41, 13
        s_lshr_b32 s5, s40, 1
        s_lshl_b32 s6, s5, 11
        s_add_u32 s56, s56, s6
        s_add_u32 s56, s56, {FL3}
        s_lshl_b32 s5, s5, 2
        v_add_u32 v14, s5, v{VMISC}
        v_lshlrev_b32 v7, 7, v1
        s_mov_b32 s59, 0
        L_ap:
        s_andn2_b32 s5, 0x1111, s59
        s_mul_i32 s58, s5, 15
        s_mov_b32 exec_lo, s58
        s_mov_b32 exec_hi, 0
        buffer_load_dword v3, v7, {sr(S_WS)}, s56 offen sc1
        s_waitcnt vmcnt(0)
        v_cmp_ne_u32 vcc, s{S_TAG}, v3
        s_mov_b64 exec, -1
        s_lshr_b32 s5, vcc_lo, 1
        s_or_b32 s5, s5, vcc_lo
        s_lshr_b32 s6, s5, 2
        s_or_b32 s5, s5, s6
        s_andn2_b32 s59, 0x1111, s5
        s_or_b32 s5, s59, 2
        v_mov_b32 v4, s5
        s_mov_b64 exec, 1
        ds_or_b32 v14, v4 offset:{M_RDY}
        s_mov_b64 exec, -1
        s_cmp_eq_u32 s59, 0x1111
        s_cbranch_scc1 L_noap
        """)
        spin_guard(a, "L_ap", int(os.environ.get("ASL", "1")))
        a.label("L_noap")
        a("s_waitcnt lgkmcnt(0)")
    stamp_end(a)
    a("s_endpgm")

def aux_wave(a):
    R = 144; F = 128; VRL = 167
    VWF = 160; VPOLL = 164; VFL = 165; VPG = 166
    S_W1 = S_WQKV; S_H = S_WQKV; S_G = S_OUT
    if os.environ.get("FAKEW1"):
        a("""
        s_add_u32 s16, s26, 0x4000000
        s_addc_u32 s17, s27, 0
        """)
    a(f"""
    s_setprio 3
    s_sub_u32 s43, s40, 8              ; u
    v_lshrrev_b32 v3, 3, v1
    v_lshlrev_b32 v3, 10, v3
    v_and_b32 v4, 7, v1
    v_lshrrev_b32 v5, 4, v1
    v_xor_b32 v4, v4, v5
    v_lshl_add_u32 v{VD0}, v4, 4, v3
    v_xor_b32 v4, 4, v4
    v_lshl_add_u32 v{VD1}, v4, 4, v3
    v_add_u32 v{VD1}, 8192, v{VD1}
    s_lshl_b32 s78, s86, 16
    s_lshl_b32 s5, s43, 14
    s_add_u32 s78, s78, s5
    s_lshl_b32 s79, s43, 11            ; lds rows 16u  (= u*2048)
    s_waitcnt lgkmcnt(0)
    """)
    srd(a, S_X, 8, 2048 * 1024)
    q = []
    def xdma(sig):
        a(f"""
        s_add_u32 s5, s49, {sig}
        s_and_b32 s5, s5, 7
        s_lshl_b32 s5, s5, 7
        s_add_u32 m0, s79, {L_X+sig*8192}
        s_add_u32 s50, s5, s78
        buffer_load_dwordx4 v{VD0}, {sr(S_X)}, s50 offen lds
        s_add_u32 m0, s79, {L_X+sig*8192+1024}
        s_nop 0
        buffer_load_dwordx4 v{VD1}, {sr(S_X)}, s50 offen lds
        """)
        q.extend([("x", sig)] * 2)
    XA = int(os.environ.get("XA", "0"))
    for it in XSCHED[-1]:
        if isinstance(it, int) and it >= XA: xdma(it)
    late_start(a)
    RE = int(os.environ.get("RE", "0"))
    VRS = 127; S_R2 = S_X
    E7 = int(os.environ.get("E7", "1"))
    def rl_loads():
        a(f"""
        s_lshl_b32 s74, s4, 2
        s_add_u32 s74, s74, s43
        s_lshl_b32 s74, s74, 3
        s_add_u32 s74, s74, s3             ; gw = (4i + u)*8 + j
        v_and_b32 v3, 31, v1               ; i
        v_lshrrev_b32 v4, 5, v1            ; hh
        v_lshlrev_b32 v4, 12, v4
        v_lshl_add_u32 v{VRL}, v3, 2, v4
        s_and_b32 s6, s74, 7               ; cb
        s_cmp_ge_u32 s74, 896
        s_cbranch_scc1 L_wo
        """)
        srd(a, S_SRC, 18, 1792 * 1024)
        srd(a, S_R2, 18, 0)
        a(f"""
        s_lshr_b32 s7, s74, 3              ; kstep
        s_mov_b32 s56, {112*1024}
        s_mov_b32 s57, {W2F}
        s_branch L_rl2
        L_wo:
        """)
        srd(a, S_SRC, 12, 512 * 1024)
        srd(a, S_R2, 12, 512 * 1024)
        a(f"""
        s_sub_u32 s5, s74, 896
        s_lshr_b32 s7, s5, 3
        s_lshl_b32 s7, s7, 1               ; kstep
        s_mov_b32 s56, {32*1024}
        s_mov_b32 s57, {WOF}
        L_rl2:
        s_lshl_b32 s59, s7, 14
        s_lshl_b32 s5, s6, 7
        s_add_u32 s59, s59, s5             ; src
        s_lshl_b32 s5, s6, 1
        s_mul_i32 s5, s5, s56
        s_add_u32 s57, s57, s5
        s_lshl_b32 s5, s7, 10
        s_add_u32 s57, s57, s5
        v_bfe_u32 v3, v1, 4, 1
        v_mul_lo_u32 v3, v3, s56
        v_lshrrev_b32 v4, 5, v1
        v_lshl_add_u32 v3, v4, 9, v3
        v_and_b32 v4, 15, v1
        v_lshl_add_u32 v{VRS}, v4, 4, v3
        """)
        for half in range(2):
            for jq in range(2):
                a(f"s_add_u32 s5, s59, {half*16384 + jq*8192}")
                for jj in range(4):
                    a(f"buffer_load_dword v{R+8*half+4*jq+jj}, v{VRL}, {sr(S_R2 if half else S_SRC)}, s5 offen offset:{jj*1024}")
    def touch():
        srd(a, S_W1, 16, 512 * 3584)
        a(f"""
        s_mul_i32 s5, s49, {64*3584}
        s_add_u32 s5, s5, s76
        v_mul_u32_u24 v3, 3584, v1
        buffer_load_dword v{VPOLL}, v3, {sr(S_W1)}, s5 offen
        buffer_load_dword v{VPOLL}, v3, {sr(S_W1)}, s5 offen offset:64
        """)
        q.extend([("t", 0)] * 2)
    a(f"""
    s_and_b32 s5, s4, 3
    s_lshl_b32 s5, s5, 1
    s_add_u32 s73, s5, s42
    s_lshr_b32 s5, s87, 1
    s_mul_i32 s76, s5, 7
    s_add_u32 s76, s76, s43
    s_and_b32 s5, s87, 1
    s_lshl_b32 s6, s5, 2
    s_add_u32 s76, s76, s6             ; slice
    s_mov_b32 s85, 0
    s_add_u32 s6, s6, s43
    s_cmp_lg_u32 s6, 7
    s_cbranch_scc1 L_role
    s_mov_b32 s85, 2
    s_cmp_lg_u32 s87, 1
    s_cbranch_scc1 L_role
    s_mov_b32 s85, 1
    L_role:
    s_mul_i32 s54, s86, {2*112*1024}
    s_lshl_b32 s5, s76, 12
    s_add_u32 s54, s54, s5
    s_add_u32 s54, s54, {HF}
    s_add_u32 s55, s54, {112*1024}
    s_lshl_b32 s76, s76, 7
    """)
    if "T" in XSCHED[-1]: touch()
    make_tag(a)
    pa_addr(a)
    a("s_setprio 0")
    def wait_for(tagv):
        last = max(k for k, e in enumerate(q) if e == tagv)
        a(f"s_waitcnt vmcnt({len(q) - 1 - last})")
    ENT = [136, 144, 112, 120, 128, 32, 40][:NEG]
    NE = len(ENT)
    def ent(n): return ENT[n % NE] * 1024
    def w1dma_list(n):
        sig, ss = n >> 2, n & 3
        l0 = ""
        if ss == 0:
            l0 = f"""
            s_add_u32 s5, s49, {sig}
            s_and_b32 s5, s5, 7
            s_mul_i32 s50, s5, {64*3584}
            s_add_u32 s50, s50, s76
            """
        l0 += f"""
        s_add_u32 m0, s79, {ent(n)}
        s_add_u32 s51, s50, {ss*16*3584}
        buffer_load_dwordx4 v{VD0}, {sr(S_W1)}, s51 offen lds
        """
        l1 = f"""
        s_add_u32 m0, s79, {ent(n)+1024}
        s_nop 0
        buffer_load_dwordx4 v{VD1}, {sr(S_W1)}, s51 offen lds
        """
        return [l0, l1]
    def w1dma(ns):
        LS = a.new("L_w1s")
        a(f"""
        s_cmp_lg_u32 s85, 0
        s_cbranch_scc1 {LS}
        """)
        for n in ns:
            for l in w1dma_list(n): a(l)
            q.extend([("w", n)] * 2)
        a.label(LS)
    for sig in range(8):
        if sig < XA: pass
        elif sig < 4: wait_for(("x", sig))
        elif sig == 4:
            wait_for(("x", 7))
            q.clear()
        if sig == 0 and not os.environ.get("TAILST"): stamp(a, 0)
        if sig <= 6: stamp(a, sig, pa=True)
        a("s_barrier")
        for it in XSCHED.get(sig, []):
            if isinstance(it, int): xdma(it)
            elif it == "T": touch()
        if RE and sig == RE: rl_loads()
        if sig == 4:
            srd(a, S_W1, 16, 512 * 3584)
            a(f"""
            v_lshrrev_b32 v3, 3, v1            ; row = l>>3
            v_mul_u32_u24 v4, 3584, v3
            v_bfe_u32 v5, v1, 4, 1
            v_lshlrev_b32 v5, 2, v5
            v_and_b32 v6, 7, v1
            v_xor_b32 v6, v6, v5
            v_lshl_add_u32 v{VD0}, v6, 4, v4
            v_add_u32 v{VD1}, {8*3584}, v{VD0}
            """)
        if sig >= 5: stamp(a, 2 * (sig - 5), pa=2)
        if sig == 5:
            if not F1D: w1dma([0, 1])
            srd(a, S_G, 20, 1024)
            a(f"""
            s_cmp_lg_u32 s85, 1
            s_cbranch_scc1 L_nogd
            s_lshl_b32 s5, s49, 3
            v_add_u32 v3, s5, v1
            v_and_b32 v3, 63, v3
            v_lshlrev_b32 v3, 4, v3
            s_add_u32 m0, s79, {ent(0)}
            s_nop 0
            buffer_load_dwordx4 v3, {sr(S_G)}, 0 offen lds
            L_nogd:
            v_mov_b32 v3, 0
            v_lshlrev_b32 v4, 2, v1
            v_add_u32 v4, {L_MISC}, v4
            ds_write_b32 v4, v3
            """)
        if sig == 6 and not F1D: w1dma(list(range(2, min(NE, 5))))
        if sig == 7 and NE > 5 and E7: w1dma(list(range(5, NE)))
        if sig == 6:
            a(f"""
            s_add_u32 s5, s79, {L_VX}
            v_add_u32 v3, s5, v2
            v_and_b32 v{VWF}, 0x7ff, v{VWA}
            s_and_b32 s5, s43, 2
            s_lshl_b32 s5, s5, 5
            v_xor_b32 v{VWF}, s5, v{VWF}
            s_add_u32 s5, s79, {112*1024}
            v_add_u32 v{VWF}, s5, v{VWF}
            v_xor_b32 v{VWF+1}, 64, v{VWF}
            v_subrev_u32 v{VWF+2}, {112*1024}, v{VWF}
            v_subrev_u32 v{VWF+3}, {112*1024}, v{VWF+1}
            v_and_b32 v4, 31, v1
            v_lshlrev_b32 v{VFL}, 7, v4
            s_lshl_b32 s5, s43, 2
            v_add_u32 v{VPG}, s5, v{VMI}
            s_lshl_b32 s77, s3, 12
            s_add_u32 s77, s77, {FL1}          ; FL1[j]
            """)
        if sig == 7: a(f"s_setprio {int(os.environ.get('VPRIO', '0'))}")
        if sig >= 5: stamp(a, 2 * (sig - 5) + 1, pa=2)
        pa_compute(a, sig, True)
    a(f"""
    s_movk_i32 s5, 0xefff
    v_and_b32 v{VXA}, s5, v{VXA}
    v_and_b32 v{VXA+1}, s5, v{VXA+1}
    v_and_b32 v{VXA+2}, s5, v{VXA+2}
    v_and_b32 v{VXA+3}, s5, v{VXA+3}
    s_nop 7
    s_nop 5
    """)
    for r in range(8):
        a(f"v_cvt_pk_bf16_f32 v{XB+r}, v{ACCA+2*r}, v{ACCA+2*r+1}")
    a(f"""
    s_nop 1
    v_permlane32_swap_b32 v{XB}, v{XB+2}
    v_permlane32_swap_b32 v{XB+1}, v{XB+3}
    v_permlane32_swap_b32 v{XB+4}, v{XB+6}
    v_permlane32_swap_b32 v{XB+5}, v{XB+7}
    s_nop 1
    ds_write_b128 v3, {vr(XB,4)}
    ds_write_b128 v3, {vr(XB+4,4)} offset:1024
    s_waitcnt lgkmcnt(0)
    s_barrier
    """)
    stamp(a, 6, pa=2)
    VM = VMI
    ACC = 16; BUF = 80
    def fprog():
        a(f"""
        v_mov_b32 v3, 1
        ds_write_b32 v{VPG}, v3 offset:{M_FP}
        """)
    def pollld():
        a(f"buffer_load_dword v{VPOLL}, v{VFL}, {sr(S_WS)}, s77 offen sc1")
    a(f"""
    s_setprio {int(os.environ.get("F1PRIO", "2"))}
    s_cmp_eq_u32 s85, 1
    s_cbranch_scc1 L_f1g
    s_cmp_eq_u32 s85, 2
    s_cbranch_scc1 L_f1n
    """)
    if not E7:
        for n in range(5, NE):
            for l in w1dma_list(n): a(l)
            q.extend([("w", n)] * 2)
    if F1D:
        lds_wait(a, VM, M_C1 if F1D == 1 else M_S0, 8, 3, sleep=2)
        for n in range(NE):
            for l in w1dma_list(n): a(l)
            q.extend([("w", n)] * 2)
    F1LOOP = int(os.environ.get("F1LOOP", "0"))
    xbase = [0]
    def reads(n):
        b = BUF + 16 * (n % 2)
        e = ent(n) - 112 * 1024
        hi = 0
        if e < 0: e, hi = ent(n), 2
        xo = ((n >> 2) - xbase[0]) * 8192
        return [f"ds_read_b64_tr_b16 {vr(b,2)}, v{VWF+hi} offset:{e}",
                f"ds_read_b64_tr_b16 {vr(b+2,2)}, v{VWF+hi} offset:{e+512}",
                f"ds_read_b128 {vr(b+8,4)}, v{VXA+(n&3)} offset:{xo}",
                f"ds_read_b128 {vr(b+12,4)}, v{VXA+(n&3)} offset:{xo+4096}",
                f"ds_read_b64_tr_b16 {vr(b+4,2)}, v{VWF+hi+1} offset:{e}",
                f"ds_read_b64_tr_b16 {vr(b+6,2)}, v{VWF+hi+1} offset:{e+512}"]
    wait_for(("w", 0))
    if not os.environ.get("TAILST"): stamp(a, 1)
    for l in reads(0): a(l)
    for n in range(32):
        if F1LOOP:
            assert NE == 4
            if 8 <= n < 28:
                q.extend([("w", n + NE)] * 2)
                if n == 27:
                    xbase[0] = 6
                    pollld(); q.append(("p", 0))
                continue
            if n == 4:
                a("s_mov_b32 s48, 2")
                a.label("L_f1loop")
        b = BUF + 16 * (n % 2)
        def mf(at, bt):
            d = ACC + 16 * (2 * at + bt)
            c = "0" if n == 0 else vr(d, 16)
            a(f"v_mfma_f32_32x32x16_bf16 {vr(d,16)}, {vr(b+4*at,4)}, {vr(b+8+4*bt,4)}, {c}")
        if int(os.environ.get("F1ORD", "1")):
            a("s_waitcnt lgkmcnt(0)")
            rd = reads(n + 1) if n < 31 else []
            dl = w1dma_list(n + NE) if n + NE < 32 else []
            mf(0, 0)
            for d_ in dl:
                a(d_); q.append(("w", n + NE))
            mf(0, 1)
            if rd: wait_for(("w", n + 1))
            for l in rd[:3]: a(l)
            mf(1, 0)
            for l in rd[3:]: a(l)
            mf(1, 1)
        else:
            a("s_waitcnt lgkmcnt(0)")
            mf(0, 0)
            rd = reads(n + 1) if n < 31 else []
            if rd: wait_for(("w", n + 1))
            for l in rd[:3]: a(l)
            mf(0, 1)
            for l in rd[3:]: a(l)
            dl = w1dma_list(n + NE) if n + NE < 32 else []
            if F1LOOP and n == 4: dl[0] = dl[0].replace("s_add_u32 s5, s49, 2", "s_add_u32 s5, s49, s48")
            mf(1, 0)
            if dl:
                a(dl[0]); q.append(("w", n + NE))
            mf(1, 1)
            if dl:
                a(dl[1]); q.append(("w", n + NE))
        if n == 27:
            pollld(); q.append(("p", 0))
        if F1LOOP and n == 7:
            a(f"""
            v_add_u32 v{VXA}, 8192, v{VXA}
            v_add_u32 v{VXA+1}, 8192, v{VXA+1}
            v_add_u32 v{VXA+2}, 8192, v{VXA+2}
            v_add_u32 v{VXA+3}, 8192, v{VXA+3}
            s_add_u32 s48, s48, 1
            s_cmp_lt_u32 s48, 8
            s_cbranch_scc1 L_f1loop
            """)
    a("s_branch L_f1done")
    a.label("L_f1g")
    a(f"""
    v_lshrrev_b32 v4, 5, v1
    v_lshlrev_b32 v4, 4, v4
    s_add_u32 s5, s79, {ent(0)}
    v_add_u32 v4, s5, v4
    s_waitcnt vmcnt(0)
    """)
    for sg in range(8):
        for ss in range(4):
            n = 4 * sg + ss
            b = BUF + 12 * ss
            a(f"""
            ds_read_b128 {vr(b,4)}, v4 offset:{n*32}
            ds_read_b128 {vr(b+4,4)}, v{VXA+ss} offset:{sg*8192}
            ds_read_b128 {vr(b+8,4)}, v{VXA+ss} offset:{sg*8192+4096}
            """)
        a("s_waitcnt lgkmcnt(0)")
        for ss in range(4):
            b = BUF + 12 * ss
            for bt in range(2):
                d = ACC + 16 * bt
                c = "0" if (sg == 0 and ss == 0) else vr(d, 16)
                a(f"v_mfma_f32_32x32x16_bf16 {vr(d,16)}, {vr(b,4)}, {vr(b+4+4*bt,4)}, {c}")
    a(f"""
    v_cmp_gt_u32 vcc, 32, v1
    s_nop 7
    s_nop 7
    v_cndmask_b32 v8, v{ACC+16}, v{ACC}, vcc
    """)
    sigmoid(a, 8)
    a("s_branch L_f1w")
    a.label("L_f1n")
    a.label("L_f1w")
    lds_wait(a, VM, M_QOK, 3, 3, sleep=4)
    pollld()
    a.label("L_f1done")
    a("s_setprio 3")
    lds_add(a, VM, M_F1C, 3)
    if not os.environ.get("TAILST"): stamp(a, 2)
    stamp(a, 0, pa=3)
    a(f"""
    s_mov_b32 s{S_H}, s{S_WS}
    s_mov_b32 s{S_H+1}, s{S_WS+1}
    s_cmp_eq_u32 s85, 0
    s_cselect_b32 s{S_H+2}, {WS_BYTES:#x}, 0
    s_mov_b32 s{S_G}, s{S_WS}
    s_mov_b32 s{S_G+1}, s{S_WS+1}
    s_cmp_eq_u32 s85, 1
    s_cselect_b32 s{S_G+2}, {WS_BYTES:#x}, 0
    s_nop 5
    s_lshl_b32 s5, s41, 17
    s_lshl_b32 s52, s43, 12
    s_add_u32 s53, s5, s52
    s_add_u32 s53, s53, {KV}
    s_lshl_b32 s58, s86, 8
    s_add_u32 s58, s58, {GBUF}
    v_lshlrev_b32 v9, 2, v1
    s_nop 3
    """)
    stores = []
    for at in range(2):
        for bt in range(2):
            d = ACC + 16 * (at * 2 + bt)
            o = BUF + 8 * (at * 2 + bt)
            for r in range(8):
                a(f"v_cvt_pk_bf16_f32 v{o+r}, v{d+2*r}, v{d+2*r+1}")
            for r in range(8):
                a(f"v_pk_max_i16 v{o+r}, v{o+r}, 0")
            for half in range(2):
                stores.append(f"buffer_store_dwordx4 {vr(o+4*half,4)}, v2, {sr(S_H)}, s{54+bt} offen offset:{(2*at+half)*1024} sc1")
    stores.append(f"buffer_store_dword v8, v9, {sr(S_G)}, s58 offen sc1")
    a("s_waitcnt vmcnt(0)")
    a(f"""
    v_cmp_ne_u32 vcc, s{S_TAG}, v{VPOLL}
    s_cmp_eq_u64 vcc, 0
    s_cbranch_scc1 L_allok
    """)
    poll_flags(a, VFL, "s77", [(1, 0)], VPOLL, sleep=3)
    a.label("L_allok")
    lds_wait(a, VM, M_C1, 8, 3, sleep=1)
    lds_wait(a, VM, M_F1C, 4, 3, sleep=1)
    AW = int(os.environ.get("AW", "2"))
    if AW == 1: lds_wait(a, VM, M_S0, 8, 3, sleep=1)
    if AW == 2: lds_wait(a, VM, M_S1, 4, 3, sleep=1)
    def kvdma(sg):
        a(f"""
        s_add_u32 s6, s72, {sg}
        s_and_b32 s6, s6, 7
        s_lshl_b32 s6, s6, 14
        s_add_u32 m0, s52, {sg*16384}
        s_add_u32 s6, s6, s53
        """)
        for k in range(4):
            a(f"buffer_load_dwordx4 v2, {sr(S_WS)}, s6 offen offset:{k*1024} lds")
    def prog(n):
        a(f"""
        v_mov_b32 v10, {n}
        ds_write_b32 v{VPG}, v10 offset:{M_PROG}
        """)
    stamp(a, 1, pa=3)
    KSP = int(os.environ.get("KSP", "5"))
    for sg in range(ES, KSP):
        kvdma(sg)
    AX = int(os.environ.get("AX", "0"))
    if AX == 1: lds_wait(a, VM, M_S1, 4, 3, sleep=1)
    if AX == 2:
        a("s_waitcnt vmcnt(0)")
        prog(KSP)
    if not RE: rl_loads()
    if AX == 3:
        a("s_waitcnt vmcnt(16)")
        prog(KSP)
    for l in stores: a(l)
    a(f"""
    s_mov_b32 s{S_R2}, s{S_WS}
    s_mov_b32 s{S_R2+1}, s{S_WS+1}
    s_cmp_ge_u32 s74, 896
    s_cselect_b32 s{S_R2+2}, {WS_BYTES:#x}, 0
    s_mov_b32 s80, 0x05040100
    s_mov_b32 s81, 0x07060302
    """)
    stamp(a, 2, pa=3)
    a(f"s_waitcnt vmcnt({(0 if RE else 16)+len(stores)})")
    prog(KSP)
    if not os.environ.get("TAILST"): stamp(a, 6)
    stamp(a, 3, pa=3)
    a(f"s_waitcnt vmcnt({len(stores)})")
    stamp(a, 4, pa=3)
    for half in range(2):
        for jj in range(4):
            A = R + 8 * half + 2 * jj
            a(f"v_perm_b32 v{F+8*half+jj}, v{A+1}, v{A}, s80")
            a(f"v_perm_b32 v{F+8*half+4+jj}, v{A+1}, v{A}, s81")
        sd = S_R2 if half else S_WS
        a(f"buffer_store_dwordx4 {vr(F+8*half,4)}, v{VRS}, {sr(sd)}, s57 offen offset:{half*1024} sc1")
        a(f"buffer_store_dwordx4 {vr(F+8*half+4,4)}, v{VRS}, {sr(sd)}, s57 offen offset:{half*1024+256} sc1")
    for sg in range(KSP, 8):
        kvdma(sg)
    a(f"""
    s_waitcnt vmcnt({4*(8-KSP)})
    s_mov_b64 exec, 1
    v_mov_b32 v8, 1
    ds_add_rtn_u32 v8, v{VM}, v8 offset:{M_E2}
    s_waitcnt lgkmcnt(0)
    s_mov_b64 exec, -1
    v_readfirstlane_b32 s5, v8
    s_cmp_lg_u32 s5, 3
    s_cbranch_scc1 L_e2skip
    s_lshl_b32 s5, s2, 7
    s_add_u32 s5, s5, {FL2}
    """)
    store_flag(a, "s5", BUF)
    a.label("L_e2skip")
    stamp(a, 5, pa=3)
    if KSP < 8:
        a("s_waitcnt vmcnt(0)")
        prog(8)
    a(f"""
    """)
    a(f"""
    s_mul_i32 s5, s43, 7
    s_lshl_b32 s50, 0x7f, s5
    s_lshl_b32 s5, 0x10000000, s43
    s_or_b32 s50, s50, s5
    s_lshl_b32 s5, s43, 1
    s_lshl_b32 s51, 3, s5
    s_lshl_b32 s5, 0x100, s43
    s_or_b32 s51, s51, s5
    v_and_b32 v3, 7, v1
    s_lshl_b32 s5, s42, 2
    v_add_u32 v4, s5, v3               ; 4c + k
    v_mov_b32 v5, s41
    v_cmp_lt_u32 vcc, 39, v1
    v_cndmask_b32 v4, v5, v4, vcc      ; tb
    v_cndmask_b32 v3, v3, 1, vcc       ; g
    v_lshrrev_b32 v5, {TBS}, v4
    v_lshlrev_b32 v5, {TBS-2}, v5
    {"v_and_b32 v6, 1, v3" if GPAR else "v_lshrrev_b32 v6, %d, v3" % (5-TBS)}
    {"v_xor_b32 v6, 1, v6" if GPAR == 2 else ""}
    v_add_u32 v5, v5, v6               ; j
    {"v_lshrrev_b32 v6, 1, v3" if GPAR else "v_and_b32 v6, %d, v3" % ((1<<(5-TBS))-1)}
    v_lshlrev_b32 v6, {TBS}, v6
    v_and_b32 v4, {(1<<TBS)-1}, v4
    v_add_u32 v6, v6, v4               ; i
    v_lshl_add_u32 v4, v6, 3, v5
    v_lshlrev_b32 v7, 3, v1
    v_add_u32 v7, s42, v7
    v_cmp_lt_u32 vcc, 31, v1
    v_cndmask_b32 v7, v7, v4, vcc
    v_lshlrev_b32 v7, 7, v7
    s_mov_b32 s58, {FL2}
    """)
    lds_wait(a, VM, M_E2, 4, 6, sleep=4)
    a(f"""
    s_sleep {int(os.environ.get('ESL', '8'))}
    L_e2p:
    s_mov_b64 exec, s[50:51]
    buffer_load_dword v{BUF}, v7, {sr(S_WS)}, s58 offen sc1
    s_waitcnt vmcnt(0)
    v_cmp_ne_u32 vcc, s{S_TAG}, v{BUF}
    s_mov_b64 exec, -1
    s_cmp_eq_u64 vcc, 0
    s_cbranch_scc1 L_e2ok
    """)
    spin_guard(a, "L_e2p", int(os.environ.get('ESL2', '10')))
    a.label("L_e2ok")
    if not os.environ.get("TAILST"): stamp(a, 3)
    stamp(a, 6, pa=3)
    a(f"""
    v_and_b32 v3, 31, v1
    v_lshlrev_b32 v3, 2, v3
    s_lshl_b32 s58, s41, 8
    s_and_b32 s5, s43, 1
    s_lshl_b32 s5, s5, 7
    s_add_u32 s58, s58, s5
    s_add_u32 s58, s58, {GBUF}
    v_mov_b32 v10, v3
    s_lshl_b32 s5, s42, 3
    s_lshl_b32 s6, s43, 1
    s_add_u32 s5, s5, s6
    s_lshl_b32 s5, s5, 5
    s_add_u32 s5, s5, s41
    s_lshl_b32 s5, s5, 10
    s_add_u32 s5, s5, {OF}
    s_add_u32 s6, s5, 32768
    v_mov_b32 v160, -1
    v_mov_b32 v161, -1
    v_mov_b32 v162, -1
    v_mov_b32 v163, -1
    buffer_store_dwordx4 v[160:163], v2, {sr(S_WS)}, s5 offen sc1
    buffer_store_dwordx4 v[160:163], v2, {sr(S_WS)}, s6 offen sc1
    s_lshr_b32 s50, s43, 1             ; kh
    s_and_b32 s51, s43, 1              ; bt
    s_mul_i32 s5, s50, {112*1024}
    v_add_u32 v4, s5, v2
    s_sub_u32 s5, {112*1024}, s5
    v_add_u32 v5, s5, v2
    s_mul_i32 s5, s51, {112*1024}
    v_add_u32 v6, s5, v2
    s_sub_u32 s5, {112*1024}, s5
    v_add_u32 v7, s5, v2
    s_mul_i32 s5, s43, {28*1024}
    s_mul_i32 s52, s42, {2*112*1024}
    s_add_u32 s52, s52, s5
    s_add_u32 s52, s52, {W2F}
    s_mul_i32 s53, s41, {2*112*1024}
    s_add_u32 s53, s53, s5
    s_add_u32 s53, s53, {HF}
    s_lshl_b32 s54, s42, 1
    s_lshr_b32 s5, s43, 1
    s_add_u32 s54, s54, s5             ; c tile
    s_lshl_b32 s54, s54, 15
    s_add_u32 s54, s54, {WOF}
    s_lshl_b32 s55, s41, 1
    s_and_b32 s5, s43, 1
    s_add_u32 s55, s55, s5
    s_lshl_b32 s56, s55, 12
    s_add_u32 s56, s56, {FL3}
    s_lshl_b32 s55, s55, 15
    s_add_u32 s55, s55, {OF}
    s_sub_u32 s78, s73, 7
    s_cmp_ge_u32 s73, 7
    s_cselect_b32 s78, s78, s73
    """)
    a(f"s_setprio {FPRIO}")
    WOS = int(os.environ.get("WOS", "20"))
    def wo_stage():
        a(f"""
        s_lshl_b32 s6, s43, 14
        s_lshl_b32 s7, s42, 16
        s_add_u32 s7, s7, s6
        s_add_u32 s7, s7, {WOF}
        """)
        lds_wait(a, VM, M_PZ, 4, 9, sleep=4)
        a(f"buffer_load_dword v10, v10, {sr(S_WS)}, s58 offen")
        lds_wait(a, VM, M_DEAD, 8, 9, sleep=4)
        for sg in range(4):
            a(f"""
            s_add_u32 m0, s6, {sg*4096}
            s_add_u32 s5, s7, {sg*4096}
            """)
            for q in range(4):
                a(f"buffer_load_dwordx4 v2, {sr(S_WS)}, s5 offen offset:{q*1024} lds")
        return 17
    def f2hook(st):
        if st == 1: lds_add(a, VM, M_PZ, 9)
        if st == WOS + 5: lds_add(a, VM, M_W, 9)
        if st == WOS: return wo_stage()
    stream_gemm(a, 28, 2, 2, ACC, BUF, 5, 4, 6, 52, 53, 78, hook=f2hook)
    a("s_setprio 3")
    stamp(a, 4)
    stamp(a, 0, pa=4)
    X = ACC; Y = ACC + 32
    SET = 80
    HB = [ACC + 16, ACC + 48]
    MG = 144
    assert WOS + 5 < 28
    srd(a, S_OUT, 22, 2048 * 1024)
    a(f"""
    s_lshl_b32 s5, s50, 2
    v_add_u32 v14, s5, v{VM}
    ds_read_b32 v160, v14 offset:{M_RDY}
    s_lshl_b32 s5, s43, 13
    s_add_u32 s5, s5, 65536
    v_add_u32 v15, s5, v2
    v_xor_b32 v161, 8192, v15
    v_xor_b32 v12, 16384, v15
    s_lshl_b32 s5, s43, 2
    v_add_u32 v11, s5, v{VM}
    v_xor_b32 v8, 4, v11
    v_xor_b32 v162, 8, v11
    s_sub_u32 s57, s55, {OF}           ; T*32768 = 32 tokens * 1024
    s_sub_u32 s5, s54, {WOF}
    s_lshr_b32 s5, s5, 9               ; ct*64
    s_add_u32 s57, s57, s5
    v_and_b32 v3, 31, v1
    v_lshlrev_b32 v6, 10, v3
    v_lshrrev_b32 v4, 5, v1
    v_lshl_add_u32 v6, v4, 4, v6
    v_lshlrev_b32 v7, 7, v3
    s_lshl_b32 s5, s50, 11
    s_add_u32 s56, s56, s5
    s_lshl_b32 s5, s50, 14
    s_add_u32 s55, s55, s5
    s_mul_i32 s5, s50, {32768+16384}
    v_add_u32 v5, s5, v2
    s_mov_b32 s48, 0x1111
    s_mov_b32 s75, 0                   ; landed
    s_mov_b32 s77, 0
    v_sub_f32 v10, 1.0, v10
    s_waitcnt lgkmcnt(0)
    v_readfirstlane_b32 s49, v160
    s_and_b32 s49, s49, s48
    """)
    def oissue(sm, tag):
        for j in range(4):
            o = SET + 16 * j
            a(f"""
            s_bitcmp1_b32 {sm}, {4*j}
            s_cbranch_scc0 L_oi{tag}{j}
            s_add_u32 s6, s55, {j*4096}
            """)
            for q in range(4):
                a(f"buffer_load_dwordx4 {vr(o+4*q,4)}, v2, {sr(S_WS)}, s6 offen offset:{q*1024} sc1")
            a.label(f"L_oi{tag}{j}")
    oissue("s49", "a")
    stamp(a, 1, pa=4)
    lds_wait(a, VM, M_DEAD2, 8, 9, sleep=2)
    stamp(a, 2, pa=4)
    for t in range(2):
        for q in range(4):
            a(f"ds_write_b128 v161, {vr(ACC+16+32*t+4*q,4)} offset:{t*4096+q*1024}")
    a(f"""
    v_mov_b32 v9, 1
    ds_write_b32 v8, v9 offset:{M_XP}
    """)
    stamp(a, 3, pa=4)
    for t in range(2):
        for r in range(16):
            a(f"v_mul_f32 v{ACC+32*t+r}, v{ACC+32*t+r}, v10")
    stamp(a, 5, pa=4)
    lds_wait(a, VM, M_W, 4, 9, sleep=2)
    if os.environ.get("TAILST"): stamp(a, 0)
    stamp(a, 6, pa=4)
    def merge(block):
        L = a.new("L_mg"); D = a.new("L_mgd"); G = a.new("L_mgo")
        a(f"""
        s_cmp_lg_u32 s77, 0
        s_cbranch_scc1 {D}
        {L}:
        ds_read_b32 v3, v11 offset:{M_XP}
        """)
        for q in range(4):
            a(f"ds_read_b128 {vr(MG+4*q,4)}, v15 offset:{q*1024}")
        a(f"""
        s_waitcnt lgkmcnt(0)
        v_readfirstlane_b32 s77, v3
        s_cmp_lg_u32 s77, 0
        s_cbranch_scc1 {G}
        """)
        if block: spin_guard(a, L, 1)
        else: a(f"s_branch {D}")
        a.label(G)
        for r in range(16):
            a(f"v_fmac_f32 v{X+r}, v{MG+r}, v10")
        for q in range(4):
            a(f"ds_read_b128 {vr(MG+4*q,4)}, v15 offset:{4096+q*1024}")
        a("s_waitcnt lgkmcnt(0)")
        for r in range(16):
            a(f"v_fmac_f32 v{Y+r}, v{MG+r}, v10")
        a.label(D)
    def setaddr(sb):
        a(f"""
        s_lshl_b32 s5, {sb}, 10
        v_add_u32 v8, s5, v5
        v_xor_b32 v9, 32768, v8
        """)
    def rd(h):
        b = HB[h]
        a(f"ds_read_b128 {vr(b,4)}, v8 offset:{h*2048}")
        a(f"ds_read_b128 {vr(b+4,4)}, v9 offset:{h*2048}")
        a(f"ds_read_b128 {vr(b+8,4)}, v8 offset:{h*2048+1024}")
        a(f"ds_read_b128 {vr(b+12,4)}, v9 offset:{h*2048+1024}")
    a(f"""
    s_mov_b32 s53, -1
    s_mov_b32 s73, 0
    L_op:
    ds_read_b32 v3, v14 offset:{M_RDY}
    s_or_b32 s6, s49, s75
    s_waitcnt lgkmcnt(0)
    v_readfirstlane_b32 s59, v3
    s_and_b32 s58, s59, s48
    s_bcnt1_i32_b32 s5, s48
    s_cmp_le_u32 s5, {int(os.environ.get("DP", "0"))}
    s_cselect_b32 s58, s48, s58
    s_andn2_b32 s58, s58, s6           ; new
    s_cbranch_scc0 L_noiss
    """)
    if os.environ.get("TAILST"): stamp(a, 1)
    oissue("s58", "b")
    a(f"""
    s_or_b32 s49, s49, s58
    L_noiss:
    s_cmp_lg_u32 s75, 0
    s_cbranch_scc1 L_proc
    """)
    merge(False)
    a(f"""
    s_cmp_lg_u32 s49, 0
    s_cbranch_scc1 L_owait
    s_andn2_b32 s5, s59, 0x1111
    s_or_b32 s5, s5, s51
    s_cbranch_scc1 L_oidle
    s_andn2_b32 s5, 0x1111, s59
    s_mul_i32 s5, s5, 15
    s_or_b32 exec_lo, s5, 1
    s_mov_b32 exec_hi, 0
    buffer_load_dword v3, v7, {sr(S_WS)}, s56 offen sc1
    s_waitcnt vmcnt(0)
    v_cmp_ne_u32 vcc, s{S_TAG}, v3
    s_lshr_b32 s5, vcc_lo, 1
    s_or_b32 s5, s5, vcc_lo
    s_lshr_b32 s6, s5, 2
    s_or_b32 s5, s5, s6
    s_andn2_b32 s5, 0x1111, s5
    v_mov_b32 v4, s5
    s_mov_b64 exec, 1
    ds_or_b32 v14, v4 offset:{M_RDY}
    s_mov_b64 exec, -1
    s_cmp_lg_u32 s5, s59
    s_cbranch_scc1 L_op
    s_sleep {int(os.environ.get("OSL", "4"))}
    L_oidle:
    """)
    spin_guard(a, "L_op", 1)
    a(f"""
    L_owait:
    s_mov_b32 s75, s49
    s_mov_b32 s49, 0
    s_ff1_i32_b32 s52, s75
    s_cmp_eq_u32 s52, s53
    s_cbranch_scc1 L_ow2
    s_mov_b32 s53, s52
    """)
    setaddr("s53"); rd(0); rd(1)
    a(f"""
    L_ow2:
    s_waitcnt vmcnt(0)
    L_proc:
    """)
    if os.environ.get("TAILST"): stamp(a, 2)
    a(f"""
    s_ff1_i32_b32 s52, s75
    s_bitset0_b32 s75, s52
    s_cmp_eq_u32 s52, s53
    s_cbranch_scc1 L_pr2
    s_mov_b32 s53, s52
    """)
    setaddr("s53"); rd(0); rd(1)
    a(f"""
    L_pr2:
    s_cmp_lg_u32 s75, 0
    s_cselect_b32 s5, s75, s49
    s_ff1_i32_b32 s74, s5
    s_max_i32 s74, s74, 0
    s_or_b32 s6, s75, s49
    s_bitset1_b32 s6, s52
    s_andn2_b32 s76, s48, s6
    s_cmp_eq_u32 s75, 0
    s_cselect_b32 s76, 1, s76
    """)
    setaddr("s74")
    for j in range(4):
        o = SET + 16 * j
        if j < 3:
            a(f"""
            s_cmp_lg_u32 s52, {4*j}
            s_cbranch_scc1 L_om{j}
            """)
        a(f"v_max3_u32 v4, v{o}, v{o+1}, v{o+2}")
        for r in range(3, 15, 2):
            a(f"v_max3_u32 v4, v4, v{o+r}, v{o+r+1}")
        a(f"""
        v_max_u32 v4, v4, v{o+15}
        v_cmp_eq_u32 vcc, -1, v4
        s_cmp_eq_u64 vcc, 0
        s_cbranch_scc0 L_ofail
        s_bitset0_b32 s48, {4*j}
        s_mov_b32 s53, s74
        """)
        for h in range(2):
            b = HB[h]
            a("s_waitcnt lgkmcnt(4)" if h == 0 else "s_waitcnt lgkmcnt(4)")
            for qq in range(2):
                a(f"v_mfma_f32_32x32x16_bf16 {vr(Y,16)}, {vr(b+8*qq+4,4)}, {vr(o+8*h+4*qq,4)}, {vr(Y,16)}")
                a(f"v_mfma_f32_32x32x16_bf16 {vr(X,16)}, {vr(b+8*qq,4)}, {vr(o+8*h+4*qq,4)}, {vr(X,16)}")
            rd(h)
        a(f"""
        s_cmp_eq_u32 s76, 0
        s_cbranch_scc1 L_proc
        s_cmp_eq_u32 s48, 0
        s_cbranch_scc0 L_op
        s_branch L_odone
        """)
        if j < 3: a.label(f"L_om{j}")
    a.label("L_ofail")
    if int(os.environ.get("DRY", "0")):
        a("""
        s_cmp_eq_u32 s73, 1
        s_cbranch_scc1 L_dryback
        """)
    spin_guard(a, "L_op", int(os.environ.get("FSL", "1")))
    a("""
    L_odone:
    s_nop 7
    """)
    merge(True)
    stamp(a, 5)
    for q in range(4):
        a(f"ds_write_b128 v15, {vr(Y+4*q,4)} offset:{q*1024}")
    a(f"""
    v_mov_b32 v4, 1
    ds_write_b32 v162, v4 offset:{M_Y}
    L_yw:
    ds_read_b32 v3, v11 offset:{M_Y}
    """)
    for q in range(4):
        a(f"ds_read_b128 {vr(Y+4*q,4)}, v12 offset:{q*1024}")
    a(f"""
    s_waitcnt lgkmcnt(0)
    v_readfirstlane_b32 s5, v3
    s_cmp_lg_u32 s5, 0
    s_cbranch_scc1 L_ywd
    """)
    spin_guard(a, "L_yw", 0)
    a.label("L_ywd")
    if os.environ.get("TAILST"): stamp(a, 3)
    for r in range(16):
        a(f"v_add_f32 v{X+r}, v{X+r}, v{Y+r}")
    for r in range(8):
        a(f"v_cvt_pk_bf16_f32 v{SET+r}, v{X+r}, v{X+8+r}")
    OST = os.environ.get("OST", "")
    a(f"""
    buffer_store_dwordx4 {vr(SET,4)}, v6, {sr(S_OUT)}, s57 offen {OST}
    buffer_store_dwordx4 {vr(SET+4,4)}, v6, {sr(S_OUT)}, s57 offen offset:32 {OST}
    """)
    if int(os.environ.get("DRY", "0")):
        a("""
        s_cmp_eq_u32 s73, 1
        s_cbranch_scc1 L_dryback
        """)
    if os.environ.get("TAILST"): stamp(a, 6)
    stamp_end(a)

def kd(name, nv, ns=102):
    return f""".p2align 6
.amdhsa_kernel {name}
  .amdhsa_next_free_vgpr {nv}
  .amdhsa_next_free_sgpr {ns}
  .amdhsa_accum_offset {(nv+3)//4*4}
  .amdhsa_group_segment_fixed_size 0
  .amdhsa_kernarg_size 80
  .amdhsa_user_sgpr_count 2
  .amdhsa_user_sgpr_kernarg_segment_ptr 1
  .amdhsa_system_sgpr_workgroup_id_x 1
.end_amdhsa_kernel
"""

def main(out):
    hdr = open("cdna_kernels/" + NAME + ".s.ref").read().split("\n")
    hdr = [l for l in hdr if l.startswith(";") and "@launch" not in l]
    a = Asm()
    gen(a)
    txt = "\n".join(hdr) + "\n"
    txt += f"; @launch grid=(256,1,1) block=(768,1,1) lds={LDS_BYTES}\n"
    txt += '.amdgcn_target "amdgcn-amd-amdhsa--gfx950"\n.text\n'
    body = a.text()
    if int(os.environ.get("ALLSC1", "1")):
        ol = []
        for l in body.split("\n"):
            if l.strip().startswith("buffer_load") and sr(S_WS) in l and "sc1" not in l:
                l = l.replace(" lds", " sc1 lds") if l.rstrip().endswith(" lds") else l + " sc1"
            ol.append(l)
        body = "\n".join(ol)
    txt += body
    txt += '.section .rodata,"a"\n'
    txt += kd(NAME + "_kernel", 168)
    open(out, "w").write(txt)

if __name__ == "__main__":
    main(sys.argv[1] if len(sys.argv) > 1 else "cdna_kernels/" + NAME + ".s")
```

```python
import math, os, struct, sys

NAME = "gated_mix__mha_block__dense_activation_relu__prompt"
STAMP = os.environ.get("STAMP")

def f32bits(x):
    return struct.unpack("<I", struct.pack("<f", x))[0]

class Asm:
    def __init__(self):
        self.l = []
        self.uid = 0
    def __call__(self, s):
        for line in s.strip("\n").split("\n"):
            line = line.strip()
            if line:
                self.l.append(("" if line.endswith(":") else "    ") + line)
    def label(self, s):
        self.l.append(s + ":")
    def raw(self, s):
        self.l.append(s)
    def new(self, p="L"):
        self.uid += 1
        return f"{p}_{self.uid}"
    def text(self):
        return "\n".join(self.l) + "\n"

EPOCH = 0x0
QF = 0x1A00000
XID = 0xD38000
KV = 0x200000
XF = 0x600000
W1F = 0x800000
W2F = 0xA00000
WOF = 0xC00000
FLS = 0xD00000
FL2 = 0xD10000
FL1 = 0xD40000
FL3 = 0xD80000
GBUF = 0xD20000
FLG = 0xD30000
HF = 0x1000000
OF = 0x1800000
STB = 0x1F00000
WS_BYTES = 0x2000000

L_X = 49152
L_W = 65536
L_OX = 131072
L_MISC = 157696
L_MISC0 = 65536
L_LX = 158720
L_GF = 160768
LDS_BYTES = 163840
M_PROG, M_QOK, M_PAIR, M_GF, M_E0R, M_E2, M_E2R, M_DMA = 0, 32, 64, 128, 136, 140, 144, 168
M_FP, M_C1, M_F1C, M_S0, M_S1, M_DEAD, M_X, M_RDY, M_W, M_DEAD2, M_Y, M_PZ, M_XP = 16, 176, 180, 184, 188, 192, 196, 200, 208, 212, 224, 216, 240
WSLOT = [136*1024, 112*1024, 24*1024, 0]
L_DRY = 158720
L_VX = 24 * 1024

QSCALE = 0.25 * math.log2(math.e)
LOG2E = math.log2(math.e)
SPIN_MAX = 200000
ILV = int(os.environ.get('ILV', '0'))
FPRIO = int(os.environ.get('FPRIO', '0'))

S_X, S_WQKV, S_WS, S_SRC, S_OUT = 28, 32, 36, 44, 60
S_TAG = 82
S_EP = 84
S_SPIN = 83

def vr(a, n):
    return f"v[{a}:{a+n-1}]"
def sr(a):
    return f"s[{a}:{a+3}]"

def srd(a, d, base, nbytes):
    a(f"""
    s_mov_b32 s{d}, s{base}
    s_and_b32 s{d+1}, s{base+1}, 0xffff
    s_mov_b32 s{d+2}, {nbytes:#x}
    s_mov_b32 s{d+3}, 0x20000
    """)

NST = 7
def stamp_begin(a):
    if not STAMP: return
    a("""
    s_memtime s[64:65]
    s_memrealtime s[66:67]
    s_waitcnt lgkmcnt(0)
    """)
    for i in range(NST):
        a(f"s_mov_b32 s{88+2*i}, {'s66' if os.environ.get('RT') else 's64'}")
PAST = os.environ.get("PAST")
def stamp(a, i, pa=False):
    if not STAMP: return
    if int(PAST or 0) != int(pa): return
    a(f"""
    s_waitcnt lgkmcnt(0)
    {'s_memrealtime' if os.environ.get('RT') else 's_memtime'} s[{88+2*i}:{89+2*i}]
    s_waitcnt lgkmcnt(0)
    """)
def stamp_end(a):
    if not STAMP: return
    a(f"""
    s_waitcnt vmcnt(0) lgkmcnt(0)
    s_memtime s[68:69]
    s_memrealtime s[70:71]
    s_waitcnt lgkmcnt(0)
    s_mov_b64 exec, 1
    v_mov_b32 v4, s64
    v_mov_b32 v5, s66
    v_mov_b32 v6, s68
    v_mov_b32 v7, s70
    """)
    for i in range(8):
        a(f"v_mov_b32 v{8+i}, s{88+2*min(i,NST-1)}" if i < NST else "v_mov_b32 v15, s73")
    a(f"""
    s_lshl_b32 s72, s2, 4
    s_add_u32 s72, s72, s40
    s_lshl_b32 s72, s72, 6
    s_add_u32 s72, s72, {STB}
    v_mov_b32 v3, 0
    buffer_store_dwordx4 v[4:7], v3, {sr(S_WS)}, s72 offen
    buffer_store_dwordx4 v[8:11], v3, {sr(S_WS)}, s72 offen offset:16
    buffer_store_dwordx4 v[12:15], v3, {sr(S_WS)}, s72 offen offset:32
    """)

def spin_guard(a, again, sleep=4):
    a(f"""
    s_sleep {sleep}
    s_add_u32 s{S_SPIN}, s{S_SPIN}, 1
    s_cmp_lt_u32 s{S_SPIN}, {SPIN_MAX}
    s_cbranch_scc1 {again}
    s_endpgm
    """)

def poll_flags(a, voff, soff, loads, T, sleep=8):
    L = a.new("L_poll"); D = a.new("L_pdone")
    a.label(L)
    r = T
    regs = []
    for nd, imm in loads:
        op = {1: "buffer_load_dword", 2: "buffer_load_dwordx2", 4: "buffer_load_dwordx4"}[nd]
        dst = f"v{r}" if nd == 1 else vr(r, nd)
        a(f"{op} {dst}, v{voff}, {sr(S_WS)}, {soff} offen offset:{imm} sc1")
        regs += list(range(r, r + nd)); r += nd
    a("s_waitcnt vmcnt(0)")
    a(f"v_xor_b32 v{regs[0]}, s{S_TAG}, v{regs[0]}")
    for q in regs[1:]:
        a(f"v_xor_b32 v{q}, s{S_TAG}, v{q}")
        a(f"v_or_b32 v{regs[0]}, v{regs[0]}, v{q}")
    a(f"""
    v_cmp_ne_u32 vcc, 0, v{regs[0]}
    s_cmp_eq_u64 vcc, 0
    s_cbranch_scc1 {D}
    """)
    spin_guard(a, L, sleep)
    a.label(D)

def lds_wait(a, vaddr, off, val, T, sleep=1):
    L = a.new("L_lw"); D = a.new("L_lwd")
    a.label(L)
    a(f"""
    ds_read_b32 v{T}, v{vaddr} offset:{off}
    s_waitcnt lgkmcnt(0)
    v_readfirstlane_b32 s5, v{T}
    s_cmp_eq_u32 s5, {val}
    s_cbranch_scc1 {D}
    """)
    spin_guard(a, L, sleep)
    a.label(D)

def lds_add(a, vaddr, off, T):
    a(f"""
    s_mov_b64 exec, 1
    v_mov_b32 v{T}, 1
    ds_add_u32 v{vaddr}, v{T} offset:{off}
    s_mov_b64 exec, -1
    """)

def dual(a, sfast, lines):
    for l in lines: a(l + " sc1")

def store_flag(a, soff, T, sfast=None, second=None):
    a(f"""
    s_mov_b64 exec, 0xff
    v_mov_b32 v{T}, s{S_TAG}
    v_mov_b32 v{T+1}, {second if second else 's%d' % S_TAG}
    v_mov_b32 v{T+2}, s{S_TAG}
    v_mov_b32 v{T+3}, s{S_TAG}
    """)
    line = f"buffer_store_dwordx4 {vr(T,4)}, v2, {sr(S_WS)}, {soff} offen"
    if sfast is None:
        a(line + " sc1")
    else:
        dual(a, sfast, [line])
    a("s_mov_b64 exec, -1")
    a("s_nop 1")

def stream_gemm(a, nsteps, na, nb, ACC, BUF, depth, VA, VB, SA, SB, SG, first=True, gate=None, hook=None):
    per = na + nb
    ng = nsteps // 4
    extra = []
    def group():
        a(f"""
        s_lshl_b32 s5, s{SG}, 12
        s_add_u32 s80, s{SA}, s5
        s_add_u32 s81, s{SB}, s5
        s_lshl_b32 s79, s{SG}, 7
        s_add_u32 s{SG}, s{SG}, 1
        s_cmp_eq_u32 s{SG}, {ng}
        s_cselect_b32 s{SG}, 0, s{SG}
        """)
    def issue_list(s):
        slot = BUF + (s % depth) * 4 * per
        imm = (s % 4) * 1024
        l = []
        for t in range(na):
            if gate and t == 1:
                l.append(f"buffer_load_dwordx4 {vr(slot+4*t,4)}, v{gate[1]}, {sr(gate[0])}, s79 offen offset:{(s%4)*32}")
            else:
                l.append(f"buffer_load_dwordx4 {vr(slot+4*t,4)}, v{VA+t}, {sr(S_WS)}, s80 offen offset:{imm}")
        for t in range(nb):
            l.append(f"buffer_load_dwordx4 {vr(slot+4*(na+t),4)}, v{VB+t}, {sr(S_WS)}, s81 offen offset:{imm}")
        return l
    for s in range(min(depth - 1, nsteps)):
        if s % 4 == 0: group()
        for l in issue_list(s): a(l)
    for s in range(nsteps):
        nxt = []
        if s + depth - 1 < nsteps:
            if (s + depth - 1) % 4 == 0: group()
            nxt = issue_list(s + depth - 1)
        if not ILV:
            for l in nxt: a(l)
            outstanding = min(depth - 1, nsteps - 1 - s)
        else:
            outstanding = min(depth - 2, nsteps - 1 - s)
        ex_ = sum(n for (s0, n) in extra if s <= s0 + depth - 1)
        a(f"s_waitcnt vmcnt({outstanding*per + ex_})")
        if hook:
            n = hook(s)
            if n: extra.append((s, n))
        slot = BUF + (s % depth) * 4 * per
        k = 0
        for at in range(na):
            for bt in range(nb):
                d = ACC + 16 * (at * nb + bt)
                c = "0" if (first and s == 0) else vr(d, 16)
                if not (os.environ.get("F2X") and s > 0):
                    a(f"v_mfma_f32_32x32x16_bf16 {vr(d,16)}, {vr(slot+4*at,4)}, {vr(slot+4*(na+bt),4)}, {c}")
                if os.environ.get("F2GAP") and not (at == na - 1 and bt == nb - 1): a(f"s_sleep {os.environ.get('F2GAP')}")
                if ILV and k < len(nxt): a(nxt[k])
                k += 1

def sigmoid(a, v):
    a(f"""
    v_mul_f32 v{v}, {f32bits(-LOG2E):#x}, v{v}
    v_exp_f32 v{v}, v{v}
    s_nop 0
    v_add_f32 v{v}, 1.0, v{v}
    v_rcp_f32 v{v}, v{v}
    s_nop 0
    """)

KORD = int(os.environ.get('KORD', '1'))
SEQ = int(os.environ.get('SEQ', '1'))
GPAR = int(os.environ.get('GPAR', '1'))
NEG = int(os.environ.get('NE', '7'))
ES = 3 if NEG <= 5 else 2
def gen(a):
    KN = NAME + "_kernel"
    a.raw(f".globl {KN}")
    a.raw(f".p2align {os.environ.get('KAL', '8')}")
    a.raw(f".type {KN},@function")
    a.label(KN)
    a(f"""
    s_cmp_ge_u32 s2, 256
    s_cbranch_scc1 L_end
    s_load_dwordx16 s[8:23], s[0:1], 0
    s_load_dwordx4 s[24:27], s[0:1], 64
    v_lshrrev_b32 v2, 6, v0
    v_and_b32 v1, 63, v0
    s_mov_b32 s{S_SPIN}, 0
    v_readfirstlane_b32 s40, v2
    s_and_b32 s3, s2, 7          ; j
    s_lshr_b32 s4, s2, 3         ; i
    s_and_b32 s43, s4, 3
    s_lshl_b32 s5, s3, 2
    s_add_u32 s41, s43, s5       ; h = tau = 4j + (i&3)
    s_lshr_b32 s42, s4, 2        ; c = phi = i>>2
    {"s_and_b32 s72, s41, 7" if KORD == 1 else ("s_and_b32 s72, s42, 4" if KORD == 2 else "s_mov_b32 s72, s42")}   ; first key block
    """)
    if PAM == "8x4":
        a("""
        s_lshr_b32 s5, s3, 1
        s_lshl_b32 s5, s5, 3
        s_and_b32 s6, s4, 7
        s_add_u32 s86, s5, s6        ; tb = 8(j>>1) + (i&7)
        s_and_b32 s5, s3, 1
        s_lshl_b32 s87, s5, 2
        s_lshr_b32 s7, s4, 3
        s_add_u32 s87, s87, s7       ; g = 4(j&1) + (i>>3)
        s_lshl_b32 s7, s7, 1
        """ + ("s_add_u32 s87, s7, s5" if GPAR == 1 else "s_xor_b32 s87, s5, 1\ns_add_u32 s87, s87, s7" if GPAR == 2 else "") + """
        s_add_u32 s49, s6, s7
        s_add_u32 s49, s49, s5
        s_and_b32 s49, s49, 7        ; rot
        """)
    elif PAM == "16x2":
        a("""
        s_lshr_b32 s5, s3, 2
        s_lshl_b32 s5, s5, 4
        s_and_b32 s6, s4, 15
        s_add_u32 s86, s5, s6        ; tb = 16(j>>2) + (i&15)
        s_and_b32 s5, s3, 3
        s_lshl_b32 s87, s5, 1
        s_lshr_b32 s7, s4, 4
        s_add_u32 s87, s87, s7       ; g = 2(j&3) + (i>>4)
        s_lshl_b32 s7, s7, 2
        s_add_u32 s49, s6, s7
        s_add_u32 s49, s49, s5
        s_and_b32 s49, s49, 7        ; rot = i + 4(i>>4) + (j&3)
        """)
    else:
        a("""
        s_mov_b32 s86, s4
        s_mov_b32 s87, s3
        s_add_u32 s49, s3, s4
        s_and_b32 s49, s49, 7
        """)
    a("v_lshlrev_b32 v2, 4, v1      ; v2 = lane*16")
    CODEW = int(os.environ.get("CODEW", "2"))
    if CODEW == 2:
        a(f"""
        s_getpc_b64 s[74:75]
        L_pc:
        s_mul_i32 s5, s4, 12
        s_add_u32 s5, s5, s40
        s_lshl_b32 s5, s5, 7
        s_min_u32 s5, s5, L_end-L_pc-64
        s_and_b32 s74, s74, -128
        v_lshl_add_u32 v3, v1, 6, s5
        s_mov_b64 exec, 3
        global_load_dword v63, v3, s[74:75]
        s_mov_b64 exec, -1
        """)
    a(f"""
    s_cmp_ge_u32 s40, 8
    s_cbranch_scc1 L_aux
    """)
    att = Asm(); att.uid = 10000
    attention_wave(att)
    aux = Asm(); aux.uid = 20000
    aux_wave(aux)
    ka = att.l.index("@SPLIT"); kx = aux.l.index("@SPLIT")
    a.l += att.l[:ka]
    a("s_branch L_att1")
    a.label("L_aux")
    a.l += aux.l[:kx]
    a("s_branch L_aux1")
    a.label("L_att1")
    a.l += att.l[ka+1:]
    a.label("L_aux1")
    a.l += aux.l[kx+1:]
    a.label("L_end")
    a("s_endpgm")

def late_start(a):
    stamp_begin(a)
    a(f"s_load_dword s{S_EP}, s[26:27], {EPOCH}")
    if int(os.environ.get("CODEW", "2")) == 1:
        L = a.new("L_pc")
        a(f"""
        s_getpc_b64 s[74:75]
        {L}:
        s_mul_i32 s5, s4, 12
        s_add_u32 s5, s5, s40
        s_lshl_b32 s5, s5, 7
        s_min_u32 s5, s5, L_end-{L}-64
        s_and_b32 s74, s74, -128
        s_load_dword s80, s[74:75], s5
        s_add_u32 s5, s5, 64
        s_load_dword s81, s[74:75], s5
        """)
    srd(a, S_WS, 26, WS_BYTES)
    a.raw("@SPLIT")

VXA = 8
VWA = 12
VMI = 13
VWA2 = 62
NSL = 4
PAM = os.environ.get('PAM', '8x4')
TBS = {'8x4': 3, '16x2': 4, '32x1': 5}[PAM]
SCHEDS = {
 "a": ({-1: [0, 1], 0: [2, 3], 1: [4], 2: [5], 3: [6], 4: [7, "P"]}, {-1: [0, 1, 2, 3, 4, 5, 6, 7, "r0", "r1"]}, 5),
 "b": ({-1: [0], 0: [1, 2], 1: [3, 4], 2: [5], 3: [6], 4: [7, "P"]}, {-1: [0, 1, 2, 3], 0: [4, 5, 6, 7, "r0", "r1"]}, 5),
 "c": ({-1: [0], 0: [1, 2, 3], 1: [4], 2: [5], 3: [6], 4: [7, "P"]}, {-1: [0, 1, 2, 3, 4, 5, 6, 7], 0: ["r0", "r1"]}, 5),
 "e": ({-1: [0, 1], 0: [2, 3], 1: [4], 2: [5], 3: [6], 4: [7, "P"]}, {-1: [0, 1, 2, 3], 0: [4, 5, "r0"], 1: [6, 7, "r1"]}, 5),
 "f": ({-1: [0, 1, 2, 3], 1: [4], 2: [5], 3: [6], 4: [7, "P"]}, {-1: [0, 1, "r0", "r1", 2, 3, 4], 0: [5], 1: [6], 2: [7]}, 4),
 "d": ({-1: [0, 1], 0: [2, 3], 1: [4], 2: [5], 3: [6], 4: [7, "P"]}, {-1: [0, 1, 2, 3, 4, 5, 6, 7], 4: ["r0", "r1"]}, 6),
}
SCHEDS["g"] = ({-1: [0, 1], 0: [2, 3, "R"], 1: [4, "P"], 2: [5], 3: [6], 4: [7], 5: ["S"]}, {-1: [0, 1, 2, 3], 0: [4, 5, "T"], 1: [6, 7]}, 5)
SCHEDS["h"] = ({-1: [0, 1], 0: [2, 3], 1: [4, "R"], 2: [5, "P"], 3: [6], 4: [7], 6: ["S"]}, {-1: [0, 1, 2, 3], 0: [4, 5, 6, 7, "T"]}, 5)
SCHEDS["i"] = ({-1: [0, 1, "R"], 0: [2, 3, "P"], 1: [4], 2: [5, "S"], 3: [6], 4: [7]}, {-1: [0, 1, 2, 3, "T"], 0: [4, 5], 1: [6, 7]}, 5)
W0 = {-1: [0, 1], 0: [2, 3], 1: [4], 2: [5], 3: [6]}
X0 = {-1: [0, 1, 2, 3], 0: [4, 5], 1: [6, 7]}
SCHEDS["j"] = ({**W0, 4: [7, "P", "R"], 7: ["S"]}, X0, 5)
SCHEDS["k"] = ({**W0, 4: [7, "P", "R"], 8: ["S"]}, X0, 5)
SCHEDS["l"] = ({**W0, 4: [7, "P", "R"], 8: ["S"]}, {**X0, 3: ["T"]}, 5)
SCHEDS["m"] = ({**W0, 4: [7, "P", "R"], 8: ["S"]}, {**X0, 2: ["T"]}, 5)
SCHEDS["n"] = ({**W0, 4: [7, "P"], 7: ["R"], 8: ["S"]}, X0, 5)
SCHEDS["o"] = ({**W0, 4: [7, "P", "R"], 8: ["S"]}, {**X0, 4: ["T"]}, 5)
SCHEDS["x"] = ({**W0, 4: [7]}, X0, 5)
SCHEDS["z"] = ({-1: [0, 1, 2], 0: [3], 1: [4], 2: [5], 3: [6], 4: [7]}, X0, 5)
SCHEDS["w"] = ({**W0, 4: [7]}, {-1: [0, 1, 2], 0: [3, 4], 1: [5, 6], 2: [7]}, 5)
SCHEDS["y"] = ({**W0, 4: [7], 9: ["P", "R"], 10: ["S"]}, X0, 5)
WSCHED, XSCHED, RLS = SCHEDS[os.environ.get("SCHED", "x")]
F1D = int(os.environ.get("F1D", "0"))
VD0, VD1 = 14, 15
ACCA = 64
XB = 80
WB = 96

def make_tag(a):
    a(f"""
    s_waitcnt lgkmcnt(0)
    s_mul_i32 s{S_TAG}, s{S_EP}, 0x9e3779b1
    s_add_u32 s{S_TAG}, s{S_TAG}, 0x7f4a7c15
    """)

def pa_addr(a):
    a(f"""
    v_and_b32 v3, 31, v1               ; m
    v_lshrrev_b32 v4, 5, v1            ; hh
    v_bfe_u32 v5, v1, 1, 3             ; (m>>1)&7
    v_xor_b32 v5, v5, v4
    v_lshlrev_b32 v3, 7, v3
    s_and_b32 s5, s40, 1
    s_lshl_b32 s5, s5, 12              ; tt*32*128
    s_add_u32 s5, s5, {L_X}
    v_add_u32 v3, s5, v3
    """)
    for ss in range(4):
        a(f"""
        v_xor_b32 v7, {2*ss}, v5
        v_lshl_add_u32 v{VXA+ss}, v7, 4, v3
        """)
    a(f"""
    v_bfe_u32 v7, v1, 2, 2
    v_lshl_add_u32 v7, v4, 3, v7       ; + 8hh
    v_lshlrev_b32 v{VWA}, 7, v7        ; row*128
    v_bfe_u32 v5, v1, 4, 1             ; g
    v_bfe_u32 v6, v1, 1, 1             ; (i&3)>>1
    v_lshl_add_u32 v6, v5, 1, v6
    v_bfe_u32 v5, v1, 3, 1
    s_lshr_b32 s5, s40, 1
    s_and_b32 s5, s5, 1                ; half
    v_xor_b32 v5, s5, v5
    v_lshl_add_u32 v6, v5, 2, v6       ; piece
    v_lshl_add_u32 v{VWA}, v6, 4, v{VWA}
    v_and_b32 v5, 1, v1
    v_lshl_add_u32 v{VWA}, v5, 3, v{VWA}
    s_lshr_b32 s5, s40, 2              ; part
    s_lshl_b32 s5, s5, 13
    v_add_u32 v{VWA}, s5, v{VWA}
    v_add_u32 v{VWA2}, {112*1024}, v{VWA}
    v_mov_b32 v{VMI}, {L_MISC}
    """)

def pa_reads(a, sig):
    so = WSLOT[sig % 4]
    wa = VWA if so < 65536 else VWA2
    so = so if so < 65536 else so - 112 * 1024
    xb = XB + 32 * (sig % 2); wb = WB + 32 * (sig % 2)
    for ss in range(4):
        a(f"""
        ds_read_b128 {vr(xb+4*ss,4)}, v{VXA+ss} offset:{sig*8192}
        ds_read_b64_tr_b16 {vr(wb+4*ss,2)}, v{wa} offset:{so + ss*2048}
        ds_read_b64_tr_b16 {vr(wb+4*ss+2,2)}, v{wa} offset:{so + ss*2048 + 512}
        """)
def pa_mfma(a, sig, vrole):
    xb = XB + 32 * (sig % 2); wb = WB + 32 * (sig % 2)
    for ss in range(4):
        c = "0" if (sig == 0 and ss == 0) else vr(ACCA, 16)
        if vrole:
            a(f"v_mfma_f32_32x32x16_bf16 {vr(ACCA,16)}, {vr(xb+4*ss,4)}, {vr(wb+4*ss,4)}, {c}")
        else:
            a(f"v_mfma_f32_32x32x16_bf16 {vr(ACCA,16)}, {vr(wb+4*ss,4)}, {vr(xb+4*ss,4)}, {c}")
NODEF = int(os.environ.get("NODEF", "7"))
def pa_compute(a, sig, vrole):
    pa_reads(a, sig)
    if 0 < sig <= NODEF:
        pa_mfma(a, sig - 1, vrole)
    a("s_waitcnt lgkmcnt(0)")
    if sig >= NODEF:
        pa_mfma(a, sig, vrole)

APOLL = int(os.environ.get('APOLL', '1'))
def attention_wave(a):
    a(f"""
    v_lshrrev_b32 v3, 3, v1            ; row = l>>3
    v_mul_u32_u24 v4, 3072, v3
    v_bfe_u32 v5, v1, 4, 1             ; (row>>1)&1
    v_lshlrev_b32 v5, 2, v5
    v_and_b32 v6, 7, v1
    v_xor_b32 v6, v6, v5
    v_lshl_add_u32 v{VD0}, v6, 4, v4
    s_mul_i32 s52, s40, {8*3072}
    s_lshl_b32 s5, s87, 7
    s_add_u32 s52, s52, s5
    s_lshl_b32 s53, s40, 10            ; lds base
    s_waitcnt lgkmcnt(0)
    """)
    srd(a, S_WQKV, 10, 512 * 3072)
    def wdma(sig):
        a(f"""
        s_add_u32 s5, s49, {sig}
        s_and_b32 s5, s5, 7
        s_mul_i32 s50, s5, {64*3072}
        s_add_u32 s50, s50, s52
        """)
        for p in range(3):
            a(f"""
            s_add_u32 m0, s53, {WSLOT[sig%4] + p*8192}
            s_add_u32 s51, s50, {p*1024}
            buffer_load_dwordx4 v{VD0}, {sr(S_WQKV)}, s51 offen lds
            """)
    wq = []
    def wissue(items):
        for it in items:
            if it == "P":
                a(f"""
                s_lshl_b32 s5, s42, 3
                s_add_u32 s5, s5, s40
                s_lshl_b32 s5, s5, 5
                s_add_u32 s5, s5, s41
                s_lshl_b32 s5, s5, 10
                s_add_u32 s5, s5, {OF}
                v_mov_b32 v20, -1
                v_mov_b32 v21, -1
                v_mov_b32 v22, -1
                v_mov_b32 v23, -1
                buffer_store_dwordx4 v[20:23], v2, {sr(S_WS)}, s5 offen sc1
                """)
                wq.append("P")
            elif it == "R":
                a("s_add_u32 s5, s59, 8192")
                for jq in range(2):
                    for jj in range(4):
                        a(f"buffer_load_dword v{R+4*jq+jj}, v{VRL}, {sr(S_SRC)}, {'s5' if jq else 's59'} offen offset:{jj*1024}")
                wq.extend(["R"] * 8)
            elif it == "S":
                last = max(k for k, e in enumerate(wq) if e == "R")
                a(f"""
                s_mov_b32 s{S_SRC}, s{S_WS}
                s_mov_b32 s{S_SRC+1}, s{S_WS+1}
                s_cmp_lt_u32 s73, 1152
                s_cselect_b32 s{S_SRC+2}, {WS_BYTES:#x}, 0
                s_mov_b32 s80, 0x05040100
                s_mov_b32 s81, 0x07060302
                s_waitcnt vmcnt({len(wq) - 1 - last})
                """)
                for jj in range(4):
                    a(f"v_perm_b32 v{F+jj}, v{R+2*jj+1}, v{R+2*jj}, s80")
                    a(f"v_perm_b32 v{F+4+jj}, v{R+2*jj+1}, v{R+2*jj}, s81")
                a(f"""
                buffer_store_dwordx4 {vr(F,4)}, v2, {sr(S_SRC)}, s79 offen sc1
                buffer_store_dwordx4 {vr(F+4,4)}, v2, {sr(S_SRC)}, s78 offen sc1
                """)
                wq.extend(["S"] * 2)
            else:
                wdma(it); wq.extend([it] * 3)
    XA = int(os.environ.get("XA", "0"))
    if XA:
        a(f"""
        v_lshlrev_b32 v4, 10, v3
        v_and_b32 v6, 7, v1
        v_lshrrev_b32 v5, 4, v1
        v_xor_b32 v6, v6, v5
        s_and_b32 s5, s40, 1
        s_lshl_b32 s5, s5, 2
        v_xor_b32 v6, s5, v6
        v_lshl_add_u32 v{VD1}, v6, 4, v4
        s_lshl_b32 s78, s86, 16
        s_lshl_b32 s5, s40, 13
        s_add_u32 s78, s78, s5
        """)
    for it in WSCHED[-1]:
        if isinstance(it, int):
            if it < XA:
                a(f"""
                s_add_u32 s5, s49, {it}
                s_and_b32 s5, s5, 7
                s_lshl_b32 s5, s5, 7
                s_add_u32 m0, s53, {L_X + it*8192}
                s_add_u32 s5, s5, s78
                buffer_load_dwordx4 v{VD1}, {sr(S_X)}, s5 offen lds
                """)
                wq.append(it)
            wissue([it])
    late_start(a)
    R = 144; F = 152; VRL = 63
    wissue([it for it in WSCHED[-1] if not isinstance(it, int)])
    make_tag(a)
    pa_addr(a)
    RLI = int(os.environ.get("RLI", "7"))
    for sig in range(8):
        last = max(k for k, e in enumerate(wq) if e == sig)
        a(f"s_waitcnt vmcnt({len(wq) - 1 - last})")
        if sig == 0 and not os.environ.get("TAILST"): stamp(a, 0)
        if sig <= 6: stamp(a, sig, pa=True)
        a("s_barrier")
        for it in WSCHED.get(sig, []):
            assert isinstance(it, str) or it - NSL < sig, (it, sig)
        if sig >= 4: stamp(a, sig - 4, pa=2)
        wissue(WSCHED.get(sig, []))
        pa_compute(a, sig, False)
    if not os.environ.get("TAILST"): stamp(a, 1)
    stamp(a, 5, pa=2)
    a(f"""
    s_lshr_b32 s5, s40, 1
    s_and_b32 s5, s5, 1
    s_lshl_b32 s5, s5, 1
    s_lshl_b32 s6, s87, 2
    s_add_u32 s5, s5, s6               ; head0
    s_lshl_b32 s5, s5, 6
    s_lshl_b32 s6, s86, 1
    s_add_u32 s5, s5, s6
    s_and_b32 s6, s40, 1
    s_add_u32 s5, s5, s6               ; head0*64 + T
    s_cmp_ge_u32 s40, 4
    s_cbranch_scc1 L_isk
    s_lshl_b32 s54, s5, 10
    s_add_u32 s54, s54, {QF}
    s_add_u32 s55, s54, {64*1024}
    s_mov_b32 s56, {f32bits(QSCALE):#x}
    s_branch L_qk
    L_isk:
    s_lshl_b32 s54, s5, 11
    s_add_u32 s54, s54, {KV}
    s_add_u32 s55, s54, {64*2048}
    s_mov_b32 s56, 1.0
    L_qk:
    s_nop 3
    """)
    for r in range(16):
        a(f"v_mul_f32 v{ACCA+r}, s56, v{ACCA+r}")
    for r in range(8):
        a(f"v_cvt_pk_bf16_f32 v{XB+r}, v{ACCA+2*r}, v{ACCA+2*r+1}")
    dual(a, 73, [f"buffer_store_dwordx4 {vr(XB,4)}, v2, {sr(S_WS)}, s54 offen",
                 f"buffer_store_dwordx4 {vr(XB+4,4)}, v2, {sr(S_WS)}, s55 offen"])
    Q = 8; KB = 16; VB = 24; P = 40; VKA = 56; VVA = 57; VG = 58; VMISC = 59; VPL = 60; VG2 = 61; VT = 160
    S = 64; NM = 96; O = 128; VIDX = 62
    E1, E2 = [int(x) for x in os.environ.get("EPOS", "6,11").split(",")]
    def slot(t, aq, last=False):
        Sc = S + 16 * aq; Sn = S + 16 * (1 - aq)
        tn = t if aq == 0 else t + 1
        Kc = KB + 4 * (tn % 2)
        Pc = P + 8 * aq; Pp = P + 8 * (1 - aq)
        Oc = O + 16 * aq; Op = O + 16 * (1 - aq)
        tp = t if aq == 1 else t - 1
        Vc = VB + 8 * (t % 2); Vp = VB + 8 * (tp % 2)
        noff = (t + 1) * 2048 if t < 3 else 16384
        def ex(i): a(f"v_exp_f32 v{Sc+i if i < 8 else Pc+i-8}, v{Sc+i}")
        if aq == 1: a("s_waitcnt lgkmcnt(0)")
        if not (last and aq == 1):
            a(f"v_mfma_f32_32x32x16_bf16 {vr(Sn,16)}, {vr(Kc,4)}, {vr(Q+4*(1-aq),4)}, {vr(NM+16*(1-aq),16)}")
        if aq == 0 and not last:
            a(f"ds_read_b128 {vr(KB+4*((t+1)%2),4)}, v{VKA} offset:{noff}")
        for i in range(E1): ex(i)
        a(f"v_smfmac_f32_32x32x32_bf16 {vr(Op,16)}, {vr(Vp+4,4)}, {vr(Pp,8)}, v{VIDX}")
        if aq == 0 and not last:
            Vn = VB + 8 * ((t + 1) % 2)
            a(f"""
            s_mov_b64 exec, s[74:75]
            ds_read_b128 {vr(Vn,4)}, v{VVA} offset:{noff+1024}
            ds_read_b128 {vr(Vn+4,4)}, v{VVA} offset:{noff+1536}
            s_mov_b64 exec, -1
            """)
        for i in range(E1, E2): ex(i)
        a(f"v_smfmac_f32_32x32x32_bf16 {vr(Oc,16)}, {vr(Vc,4)}, {vr(Sc,8)}, v{VIDX}")
        for i in range(E2, 16): ex(i)
    def advance():
        a(f"""
        v_add_u32 v{VKA}, 16384, v{VKA}
        v_add_u32 v{VVA}, 16384, v{VVA}
        """)
    def prog_wait(n, both=False, off=M_PROG):
        L = a.new("L_pw"); D = a.new("L_pwd")
        a.label(L)
        if both:
            a(f"""
            ds_read_b128 v[4:7], v{VMISC} offset:{off}
            s_waitcnt lgkmcnt(0)
            v_min_u32 v4, v4, v5
            v_min_u32 v6, v6, v7
            v_min_u32 v4, v4, v6
            """)
        else:
            a(f"""
            ds_read_b64 v[4:5], v{VPL} offset:{M_PROG}
            s_waitcnt lgkmcnt(0)
            v_min_u32 v4, v4, v5
            """)
        a(f"""
        s_nop 0
        v_readfirstlane_b32 s5, v4
        s_cmp_ge_u32 s5, {n}
        s_cbranch_scc1 {D}
        """)
        spin_guard(a, L, 1)
        a.label(D)
    a(f"""
    s_lshl_b32 s53, s40, 11            ; w*2048
    s_lshl_b32 s5, s40, 10
    s_add_u32 s5, s5, {L_VX}
    v_add_u32 v4, s5, v2
    s_lshr_b32 s5, s40, 2
    s_lshl_b32 s5, s5, 1
    s_lshl_b32 s6, s87, 2
    s_add_u32 s5, s5, s6
    s_lshl_b32 s5, s5, 6
    s_lshl_b32 s6, s86, 1
    s_add_u32 s5, s5, s6
    s_bfe_u32 s6, s40, 0x10001
    s_add_u32 s5, s5, s6
    s_lshl_b32 s54, s5, 11
    s_and_b32 s58, s40, 1              ; kh
    s_lshl_b32 s5, s58, 9
    s_add_u32 s54, s54, s5
    s_add_u32 s54, s54, {KV}
    v_bfe_u32 v3, v1, 4, 1
    v_lshlrev_b32 v3, 17, v3
    v_lshrrev_b32 v5, 5, v1
    v_lshl_add_u32 v3, v5, 8, v3
    v_and_b32 v5, 15, v1
    v_lshl_add_u32 v3, v5, 4, v3
    s_barrier
    ds_read_b128 {vr(XB+8,4)}, v4
    s_lshl_b32 s76, s87, 12
    s_add_u32 s76, s76, {FL1}          ; FL1[g]
    v_mov_b32 v{VMISC}, {L_MISC}
    s_lshl_b32 s5, s58, 3
    v_add_u32 v{VPL}, s5, v{VMISC}
    s_waitcnt lgkmcnt(0)
    buffer_store_dwordx4 {vr(XB+8,4)}, v3, {sr(S_WS)}, s54 offen offset:1024 sc1
    s_waitcnt vmcnt(0)
    """)
    DRY = int(os.environ.get("DRY", "0"))
    lds_add(a, VMISC, M_C1, 3)
    a(f"""
    s_cmp_lg_u32 s40, 0
    s_cbranch_scc1 L_nofl1
    """)
    lds_wait(a, VMISC, M_C1, 8, 3, sleep=1)
    a(f"""
    s_lshl_b32 s5, s86, 7
    s_add_u32 s5, s5, s76
    """)
    store_flag(a, "s5", VT, sfast=73)
    a.label("L_nofl1")
    stamp(a, 2)
    if DRY:
        a(f"""
        s_cmp_lg_u32 s40, 7
        s_cbranch_scc1 L_dryret
        """)
        srd(a, S_OUT, 22, 0)
        a(f"""
        s_mov_b32 s73, 1
        s_mov_b32 s79, s53
        s_mov_b32 s75, 0x1111
        s_mov_b32 s48, 0x1111
        s_mov_b32 s49, 0
        s_mov_b32 s53, -1
        s_mov_b32 s77, 1
        s_mov_b32 s57, 0
        v_mov_b32 v5, v2
        v_mov_b32 v6, v2
        v_add_u32 v15, {L_DRY}, v2
        v_mov_b32 v12, v15
        v_mov_b32 v11, {L_DRY + 4096}
        v_mov_b32 v162, v11
        s_branch L_proc
        L_dryback:
        s_mov_b32 s53, s79
        s_waitcnt vmcnt(0) lgkmcnt(0)
        s_nop 7
        s_nop 7
        v_mov_b32 v{VMISC}, {L_MISC}
        s_lshl_b32 s5, s58, 3
        v_add_u32 v{VPL}, s5, v{VMISC}
        L_dryret:
        """)
    stamp(a, 6, pa=2)
    wissue(WSCHED.get(8, []))
    a(f"""
    s_lshl_b32 s59, s58, 13            ; kh*8192
    v_add_u32 v{VKA}, s59, v2
    v_lshrrev_b32 v4, 5, v1
    v_and_b32 v5, 15, v1
    v_lshlrev_b32 v5, 4, v5
    v_lshl_add_u32 v{VVA}, v4, 8, v5
    v_add_u32 v{VVA}, s59, v{VVA}
    s_mov_b32 s74, 0x0000ffff
    s_mov_b32 s75, 0x0000ffff
    v_and_b32 v3, 31, v1
    v_cmp_eq_u32 vcc, 16, v3
    v_mov_b32 v4, 0x3f803f80
    s_lshl_b32 s5, s41, 6
    s_lshl_b32 s6, s42, 3
    s_lshl_b32 s7, s72, 3
    s_add_u32 s7, s7, s5               ; h*64 + 8 b0
    s_add_u32 s5, s5, s6               ; h*64 + 8c
    s_add_u32 s6, s7, s40
    s_lshl_b32 s54, s6, 11
    s_add_u32 s54, s54, {KV}
    s_add_u32 s6, s40, s5
    s_lshl_b32 s55, s6, 10
    s_add_u32 s55, s55, {QF}
    s_xor_b32 s59, s55, 1024
    """)
    for r in range(16):
        a(f"v_cndmask_b32 v{VB+r}, 0, v4, vcc")
    for r in range(32):
        a(f"v_mov_b32 v{O+r}, 0")
    for r in range(8):
        a(f"v_mov_b32 v{P+8+r}, 0")
    a(f"v_mov_b32 v{VIDX}, {os.environ.get('IDX', '0xdddddddd')}")
    a(f"""
    s_lshl_b32 s76, s3, 12
    s_add_u32 s76, s76, {FL1}          ; FL1[j]
    s_lshl_b32 s5, s72, 2
    s_sub_u32 s5, s5, 4
    v_add_u32 v7, s5, v1
    v_and_b32 v7, 31, v7
    s_lshl_b32 s5, s42, 2
    v_add_u32 v6, s5, v1
    v_cmp_gt_u32 vcc, 4, v1
    v_cndmask_b32 v7, v7, v6, vcc
    v_lshlrev_b32 v7, 7, v7
    s_add_u32 s6, s54, s53
    s_add_u32 s5, s72, 1
    s_and_b32 s5, s5, 7
    s_sub_u32 s5, s5, s72
    s_lshl_b32 s5, s5, 14
    s_add_u32 s56, s6, s5
    s_add_u32 s5, s72, 2
    s_and_b32 s5, s5, 7
    s_sub_u32 s5, s5, s72
    s_lshl_b32 s5, s5, 14
    s_add_u32 s57, s6, s5
    s_mov_b32 m0, s53
    s_sub_u32 s5, s40, 1
    s_cmp_ge_u32 s5, {int(os.environ.get("NPOLL", "1"))}
    s_cbranch_scc1 L_nopoll
    """)
    lds_wait(a, VMISC, M_C1, 8, 3, sleep=1)
    a(f"""
    s_sleep {int(os.environ.get("PSL", "8"))}
    s_cmp_eq_u32 s40, 1
    s_cbranch_scc1 L_qp
    s_sleep {int(os.environ.get("PSL2", "9"))}
    L_qp:
    ds_read_b32 v3, v{VMISC} offset:{M_QOK}
    s_waitcnt lgkmcnt(0)
    v_readfirstlane_b32 s5, v3
    s_cmp_lg_u32 s5, 0
    s_cbranch_scc1 L_nopoll
    s_mov_b64 exec, {0xffff if ES == 3 else 0xfff:#x}
    buffer_load_dword v{VT}, v7, {sr(S_WS)}, s76 offen sc1
    s_waitcnt vmcnt(0)
    v_cmp_ne_u32 vcc, s{S_TAG}, v{VT}
    s_mov_b64 exec, -1
    s_and_b32 s5, vcc_lo, 255
    s_cbranch_scc0 L_qok
    """)
    spin_guard(a, "L_qp", 3)
    a(f"""
    L_qok:
    s_cmp_eq_u32 vcc_lo, 0
    s_cselect_b32 s5, 3, 1
    v_mov_b32 v3, s5
    ds_max_u32 v{VMISC}, v3 offset:{M_QOK}
    L_nopoll:
    L_qw:
    ds_read_b32 v3, v{VMISC} offset:{M_QOK}
    s_waitcnt lgkmcnt(0)
    v_readfirstlane_b32 s48, v3
    s_cmp_lg_u32 s48, 0
    s_cbranch_scc1 L_qwd
    """)
    spin_guard(a, "L_qw", 1)
    a.label("L_qwd")
    stamp(a, 3)
    a(f"""
    buffer_load_dwordx4 v2, {sr(S_WS)}, s54 offen lds
    buffer_load_dwordx4 v2, {sr(S_WS)}, s54 offen offset:1024 lds
    buffer_load_dwordx4 {vr(Q+4,4)}, v2, {sr(S_WS)}, s55 offen
    buffer_load_dwordx4 {vr(Q,4)}, v2, {sr(S_WS)}, s59 offen
    s_cmp_ge_u32 s40, 4
    s_cbranch_scc1 L_young
    s_cmp_eq_u32 s48, 3
    s_cbranch_scc1 {"L_nop2" if SEQ else "L_q3"}
    s_cmp_lg_u32 s40, 1
    s_cbranch_scc1 L_nop2
    s_mov_b64 exec, {0xffff if ES == 3 else 0xfff:#x}
    buffer_load_dword v{VT}, v7, {sr(S_WS)}, s76 offen sc1
    s_mov_b64 exec, -1
    s_waitcnt vmcnt(3)
    """)
    lds_add(a, VMISC, M_S0, 3)
    a(f"""
    s_branch L_qp3
    L_qp2:
    s_mov_b64 exec, {0xffff if ES == 3 else 0xfff:#x}
    buffer_load_dword v{VT}, v7, {sr(S_WS)}, s76 offen sc1
    L_qp3:
    s_mov_b64 exec, {0xffff if ES == 3 else 0xfff:#x}
    s_waitcnt vmcnt(0)
    v_cmp_ne_u32 vcc, s{S_TAG}, v{VT}
    s_mov_b64 exec, -1
    s_cmp_eq_u32 vcc_lo, 0
    s_cbranch_scc1 L_qok2
    """)
    spin_guard(a, "L_qp2", 3)
    a(f"""
    L_qok2:
    v_mov_b32 v3, 3
    ds_write_b32 v{VMISC}, v3 offset:{M_QOK}
    s_branch L_q3
    L_nop2:
    s_waitcnt vmcnt(2)
    """)
    lds_add(a, VMISC, M_S0, 3)
    lds_wait(a, VMISC, M_QOK, 3, 3, sleep=1)
    a(f"""
    L_q3:
    s_lshl_b32 s6, s53, 1
    s_add_u32 m0, s6, 16384
    s_nop 0
    """)
    for k in range(4):
        a(f"buffer_load_dwordx4 v2, {sr(S_WS)}, s56 offen offset:{k*1024} lds")
    if ES == 3:
        a(f"""
        s_add_u32 m0, s6, 32768
        s_nop 0
        """)
        for k in range(4):
            a(f"buffer_load_dwordx4 v2, {sr(S_WS)}, s57 offen offset:{k*1024} lds")
    a(f"""
    s_cmp_lg_u32 s48, {7 if SEQ else 3}
    s_cbranch_scc1 L_s0done
    s_waitcnt vmcnt(10)
    """)
    lds_add(a, VMISC, M_S0, 3)
    a(f"""
    L_s0done:
    s_waitcnt vmcnt(0)
    """)
    lds_add(a, VMISC, M_S1, 3)
    a(f"""
    s_branch L_go
    L_young:
    s_waitcnt vmcnt(2)
    """)
    lds_add(a, VMISC, M_S0, 3)
    a(f"""
    s_waitcnt vmcnt(0)
    L_go:
    """)
    lds_wait(a, VMISC, M_S0, 8, 3, sleep=1)
    stamp(a, 4)
    a(f"""
    ds_read_b128 {vr(KB,4)}, v2
    s_waitcnt lgkmcnt(0)
    v_mfma_f32_32x32x16_bf16 {vr(S,16)}, {vr(KB,4)}, {vr(Q,4)}, 0
    v_mfma_f32_32x32x16_bf16 {vr(S+16,16)}, {vr(KB,4)}, {vr(Q+4,4)}, 0
    s_mov_b32 s77, 0
    s_nop 7
    """)
    a(f"""
    ds_read_b128 {vr(KB,4)}, v{VKA}
    s_mov_b64 exec, s[74:75]
    ds_read_b128 {vr(VB,4)}, v{VVA} offset:1024
    ds_read_b128 {vr(VB+4,4)}, v{VVA} offset:1536
    s_mov_b64 exec, -1
    s_nop 4
    """)
    for q in range(2):
        Sq = S + 16 * q
        a(f"v_max3_f32 v{3+q}, v{Sq}, v{Sq+1}, v{Sq+2}")
        for r in range(3, 15, 2):
            a(f"v_max3_f32 v{3+q}, v{3+q}, v{Sq+r}, v{Sq+r+1}")
        a(f"v_max_f32 v{3+q}, v{3+q}, v{Sq+15}")
    a(f"""
    v_mov_b32 v5, v3
    v_mov_b32 v6, v4
    s_nop 1
    v_permlane32_swap_b32 v3, v5
    v_permlane32_swap_b32 v4, v6
    s_nop 1
    v_max_f32 v3, v3, v5
    v_max_f32 v4, v4, v6
    """)
    for q in range(2):
        for r in range(16):
            a(f"v_sub_f32 v{NM+16*q+r}, 0, v{3+q}")
    a(f"""
    s_waitcnt lgkmcnt(0)
    v_mfma_f32_32x32x16_bf16 {vr(S,16)}, {vr(KB,4)}, {vr(Q,4)}, {vr(NM,16)}
    s_nop 7
    s_nop 4
    """)
    BAL = int(os.environ.get("BAL", "6"))
    BALT = int(os.environ.get("BALT", "22"))
    if BAL:
        a(f"""
        s_cmp_lt_u32 s40, 4
        s_cbranch_scc1 L_bal0
        s_setprio 1
        L_bal0:
        """)
    for t in range(3):
        slot(t, 0); slot(t, 1)
    lds_wait(a, VMISC, M_S1, 4, 4, sleep=1)
    slot(3, 0); slot(3, 1)
    advance()
    for t in range(4):
        if t == 3 and ES == 2: prog_wait(int(os.environ.get("KSP", "5")))
        slot(t, 0); slot(t, 1)
    advance()
    for t in range(3):
        slot(t, 0); slot(t, 1)
    KSP = int(os.environ.get("KSP", "5"))
    prog_wait(KSP)
    stamp(a, 5)
    slot(3, 0); slot(3, 1)
    advance()
    a("s_mov_b32 s79, 3")
    a.label("L_att_loop")
    for t in range(4):
        if t == 3 and KSP < 8:
            a(f"""
            s_cmp_lg_u32 s79, {KSP-1}
            s_cbranch_scc1 L_nokw
            """)
            prog_wait(8)
            a.label("L_nokw")
        if BALT and t == BALT % 4:
            a(f"""
            s_cmp_lg_u32 s79, {BALT // 4}
            s_cbranch_scc1 L_balt
            s_setprio 0
            L_balt:
            """)
        slot(t, 0); slot(t, 1)
    advance()
    a("""
    s_add_u32 s79, s79, 1
    s_cmp_lg_u32 s79, 4
    s_cbranch_scc1 L_nodead
    """)
    lds_add(a, VMISC, M_DEAD, 4)
    a("""
    L_nodead:
    s_cmp_lg_u32 s79, 6
    s_cbranch_scc1 L_nodead2
    """)
    lds_add(a, VMISC, M_DEAD2, 4)
    a.label("L_nodead2")
    if BAL:
        a(f"""
        s_cmp_lg_u32 s79, {BAL}
        s_cbranch_scc1 L_bal1
        s_setprio 0
        L_bal1:
        """)
    a(f"""
    s_cmp_lt_u32 s79, 7
    s_cbranch_scc1 L_att_loop
    s_setprio 3
    s_lshl_b32 s5, s42, 3
    s_add_u32 s5, s5, s40              ; T
    s_lshr_b32 s6, s5, 1
    s_lshl_b32 s6, s6, 7
    s_add_u32 s76, s6, {FLG}           ; FLG[tau]
    s_lshl_b32 s57, s5, 7
    s_add_u32 s57, s57, {GBUF}
    v_mov_b32 v{VPL}, 0
    """)
    s_keep = None
    lds_wait(a, VMISC, M_PZ, 4, VT)
    a(f"""
    v_and_b32 v3, 31, v1
    v_lshlrev_b32 v3, 2, v3
    buffer_load_dword v{VG}, v3, {sr(S_WS)}, s57 offen
    v_add_u32 v4, s53, v2
    v_add_u32 v4, {L_OX}, v4
    v_xor_b32 v5, 2048, v4
    v_lshlrev_b32 v7, 2, v1
    s_lshl_b32 s6, s40, 8
    s_add_u32 s6, s6, {L_LX}
    v_add_u32 v7, s6, v7
    v_xor_b32 v6, 256, v7
    s_lshl_b32 s6, s40, 2
    v_add_u32 v{VT+5}, s6, v{VMISC}
    v_xor_b32 v{VT+4}, 4, v{VT+5}
    v_mov_b32 v{VT+6}, 1
    v_mov_b32 v{VT}, s{S_TAG}
    v_mov_b32 v{VT+1}, s{S_TAG}
    v_mov_b32 v{VT+2}, s{S_TAG}
    v_mov_b32 v{VT+3}, s{S_TAG}
    s_lshl_b32 s5, s42, 3
    s_add_u32 s5, s5, s40              ; T
    s_lshl_b32 s5, s5, 5
    s_add_u32 s5, s5, s41              ; T*32 + h
    s_lshl_b32 s76, s5, 10
    s_add_u32 s76, s76, {OF}
    s_lshl_b32 s78, s5, 7
    s_add_u32 s78, s78, {FL3}
    s_mov_b32 s80, 0x53800000          ; 2^40
    s_mov_b32 s81, 0x7f000000          ; 2^127
    s_mov_b32 s57, 0xfffeffff
    s_setprio 0
    """)
    for t in range(4):
        if t == 3: a("s_setprio 3")
        slot(t, 0, t == 3); slot(t, 1, t == 3)
    a(f"""
    s_nop 1
    v_smfmac_f32_32x32x32_bf16 {vr(O+16,16)}, {vr(VB+12,4)}, {vr(P+8,8)}, v{VIDX}
    ds_write_b128 v5, {vr(O,4)}
    ds_write_b128 v5, {vr(O+4,4)} offset:1024
    ds_write_b32 v6, v{O+8}
    ds_write_b32 v{VT+4}, v{VT+6} offset:{M_PAIR}
    """)
    stamp(a, 6)
    a(f"""
    L_pw:
    ds_read_b32 v3, v{VT+5} offset:{M_PAIR}
    ds_read_b128 {vr(O,4)}, v4
    ds_read_b128 {vr(O+4,4)}, v4 offset:1024
    ds_read_b32 v{O+8}, v7
    s_waitcnt lgkmcnt(0)
    v_readfirstlane_b32 s5, v3
    s_cmp_eq_u32 s5, 1
    s_cbranch_scc1 L_pwd
    """)
    spin_guard(a, "L_pw", 0)
    a.label("L_pwd")
    if os.environ.get("TAILST"): stamp(a, 0)
    a(f"v_add_f32 v{O+8}, v{O+8}, v{O+24}")
    for r in range(8):
        a(f"v_add_f32 v{O+r}, v{O+r}, v{O+16+r}")
    a.label("L_att_check")
    a(f"""
    v_mov_b32 v3, v{O+8}
    v_add_f32 v4, |v{O}|, |v{O+1}|
    v_add_f32 v5, |v{O+2}|, |v{O+3}|
    v_permlane32_swap_b32 v{O+8}, v3
    v_add_f32 v6, |v{O+4}|, |v{O+5}|
    v_add_f32 v7, |v{O+6}|, |v{O+7}|
    v_rcp_f32 v3, v{O+8}
    v_add_f32 v4, v4, v5
    v_add_f32 v6, v6, v7
    v_add_f32 v4, v4, v6
    v_cmp_nle_f32 vcc, v{O+8}, s80
    v_cmp_nle_f32 s[48:49], v4, s81
    s_cmp_eq_u32 s77, 3
    s_cbranch_scc1 L_att_fin
    s_or_b64 vcc, vcc, s[48:49]
    s_cbranch_scc0 L_att_fin
    """)
    a(f"""
    s_mov_b32 s77, 3
    s_lshl_b32 s56, s41, 17
    s_add_u32 s56, s56, {KV}
    v_mov_b32 v{VKA}, v2
    v_mov_b32 v3, 0xff800000
    s_mov_b32 s79, 0
    L_fb_max:
    buffer_load_dwordx4 {vr(KB,4)}, v{VKA}, {sr(S_WS)}, s56 offen
    s_waitcnt vmcnt(0)
    v_mfma_f32_32x32x16_bf16 {vr(S,16)}, {vr(KB,4)}, {vr(Q+4,4)}, 0
    v_add_u32 v{VKA}, 2048, v{VKA}
    s_nop 7
    s_nop 7
    s_nop 3
    """)
    for r in range(0, 16, 2):
        a(f"v_max3_f32 v3, v3, v{S+r}, v{S+r+1}")
    a(f"""
    s_add_u32 s79, s79, 1
    s_cmp_lt_u32 s79, 64
    s_cbranch_scc1 L_fb_max
    v_mov_b32 v4, v3
    s_nop 1
    v_permlane32_swap_b32 v3, v4
    s_nop 1
    v_max_f32 v3, v3, v4
    """)
    for r in range(16):
        a(f"v_sub_f32 v{NM+r}, 0, v3")
        a(f"v_mov_b32 v{O+r}, 0")
    a(f"""
    v_mov_b32 v{VKA}, v2
    v_lshrrev_b32 v4, 5, v1
    v_and_b32 v5, 15, v1
    v_lshlrev_b32 v5, 4, v5
    v_lshl_add_u32 v{VVA}, v4, 8, v5
    s_mov_b32 s79, 0
    L_fb_loop:
    buffer_load_dwordx4 {vr(KB,4)}, v{VKA}, {sr(S_WS)}, s56 offen
    s_mov_b64 exec, s[74:75]
    buffer_load_dwordx4 {vr(VB,4)}, v{VVA}, {sr(S_WS)}, s56 offen offset:1024
    buffer_load_dwordx4 {vr(VB+4,4)}, v{VVA}, {sr(S_WS)}, s56 offen offset:1536
    s_mov_b64 exec, -1
    s_waitcnt vmcnt(0)
    v_mfma_f32_32x32x16_bf16 {vr(S,16)}, {vr(KB,4)}, {vr(Q+4,4)}, {vr(NM,16)}
    v_add_u32 v{VKA}, 2048, v{VKA}
    v_add_u32 v{VVA}, 2048, v{VVA}
    s_nop 7
    s_nop 7
    """)
    for r in range(16):
        a(f"v_exp_f32 v{S+r}, v{S+r}")
    a(f"""
    s_nop 3
    v_smfmac_f32_32x32x32_bf16 {vr(O,16)}, {vr(VB,4)}, {vr(S,8)}, v{VIDX}
    v_smfmac_f32_32x32x32_bf16 {vr(O,16)}, {vr(VB+4,4)}, {vr(S+8,8)}, v{VIDX}
    s_add_u32 s79, s79, 1
    s_cmp_lt_u32 s79, 64
    s_cbranch_scc1 L_fb_loop
    s_nop 7
    s_nop 7
    s_branch L_att_check
    L_att_fin:
    s_waitcnt vmcnt(0)
    v_mul_f32 v3, v3, v{VG}
    """)
    for r in range(8):
        a(f"v_mul_f32 v{O+r}, v{O+r}, v3")
    for r in range(4):
        a(f"v_cvt_pk_bf16_f32 v{P+r}, v{O+2*r}, v{O+2*r+1}")
    for r in range(4):
        a(f"v_min_u32 v{P+r}, s57, v{P+r}")
    a(f"""
    buffer_store_dwordx4 {vr(P,4)}, v2, {sr(S_WS)}, s76 offen sc1
    s_cmp_lg_u32 s58, 0
    s_cbranch_scc1 L_nofl3
    s_mov_b64 exec, 0xff
    buffer_store_dwordx4 {vr(VT,4)}, v2, {sr(S_WS)}, s78 offen sc1
    s_mov_b64 exec, -1
    """)
    a.label("L_nofl3")
    if os.environ.get("TAILST"): stamp(a, 1)
    a(f"""
    s_or_b32 s5, s2, s40
    s_cmp_lg_u32 s5, 0
    s_cbranch_scc1 L_nobump
    v_lshlrev_b32 v3, 7, v1
    """)
    for k in range(4):
        a(f"s_mov_b32 s58, {FL2 + k*8192}")
        poll_flags(a, 3, "s58", [(1, 0)], 9, sleep=12)
    a(f"""
    s_mov_b64 exec, 1
    s_add_u32 s5, s{S_EP}, 1
    v_mov_b32 v9, s5
    buffer_store_dword v9, v2, {sr(S_WS)}, 0 offen offset:{EPOCH} sc1
    s_mov_b64 exec, -1
    L_nobump:
    """)
    if APOLL:
        a(f"""
        s_andn2_b32 s5, s40, 2
        s_cmp_lg_u32 s5, 1
        s_cbranch_scc1 L_noap
        s_lshl_b32 s56, s41, 13
        s_lshr_b32 s5, s40, 1
        s_lshl_b32 s6, s5, 11
        s_add_u32 s56, s56, s6
        s_add_u32 s56, s56, {FL3}
        s_lshl_b32 s5, s5, 2
        v_add_u32 v14, s5, v{VMISC}
        v_lshlrev_b32 v7, 7, v1
        s_mov_b32 s59, 0
        L_ap:
        s_andn2_b32 s5, 0x1111, s59
        s_mul_i32 s58, s5, 15
        s_mov_b32 exec_lo, s58
        s_mov_b32 exec_hi, 0
        buffer_load_dword v3, v7, {sr(S_WS)}, s56 offen sc1
        s_waitcnt vmcnt(0)
        v_cmp_ne_u32 vcc, s{S_TAG}, v3
        s_mov_b64 exec, -1
        s_lshr_b32 s5, vcc_lo, 1
        s_or_b32 s5, s5, vcc_lo
        s_lshr_b32 s6, s5, 2
        s_or_b32 s5, s5, s6
        s_andn2_b32 s59, 0x1111, s5
        s_or_b32 s5, s59, 2
        v_mov_b32 v4, s5
        s_mov_b64 exec, 1
        ds_or_b32 v14, v4 offset:{M_RDY}
        s_mov_b64 exec, -1
        s_cmp_eq_u32 s59, 0x1111
        s_cbranch_scc1 L_noap
        """)
        spin_guard(a, "L_ap", int(os.environ.get("ASL", "1")))
        a.label("L_noap")
        a("s_waitcnt lgkmcnt(0)")
    stamp_end(a)
    a("s_endpgm")

def aux_wave(a):
    R = 144; F = 128; VRL = 167
    VWF = 160; VPOLL = 164; VFL = 165; VPG = 166
    S_W1 = S_WQKV; S_H = S_WQKV; S_G = S_OUT
    if os.environ.get("FAKEW1"):
        a("""
        s_add_u32 s16, s26, 0x4000000
        s_addc_u32 s17, s27, 0
        """)
    a(f"""
    s_setprio 3
    s_sub_u32 s43, s40, 8              ; u
    v_lshrrev_b32 v3, 3, v1
    v_lshlrev_b32 v3, 10, v3
    v_and_b32 v4, 7, v1
    v_lshrrev_b32 v5, 4, v1
    v_xor_b32 v4, v4, v5
    v_lshl_add_u32 v{VD0}, v4, 4, v3
    v_xor_b32 v4, 4, v4
    v_lshl_add_u32 v{VD1}, v4, 4, v3
    v_add_u32 v{VD1}, 8192, v{VD1}
    s_lshl_b32 s78, s86, 16
    s_lshl_b32 s5, s43, 14
    s_add_u32 s78, s78, s5
    s_lshl_b32 s79, s43, 11            ; lds rows 16u  (= u*2048)
    s_waitcnt lgkmcnt(0)
    """)
    srd(a, S_X, 8, 2048 * 1024)
    q = []
    def xdma(sig):
        a(f"""
        s_add_u32 s5, s49, {sig}
        s_and_b32 s5, s5, 7
        s_lshl_b32 s5, s5, 7
        s_add_u32 m0, s79, {L_X+sig*8192}
        s_add_u32 s50, s5, s78
        buffer_load_dwordx4 v{VD0}, {sr(S_X)}, s50 offen lds
        s_add_u32 m0, s79, {L_X+sig*8192+1024}
        s_nop 0
        buffer_load_dwordx4 v{VD1}, {sr(S_X)}, s50 offen lds
        """)
        q.extend([("x", sig)] * 2)
    XA = int(os.environ.get("XA", "0"))
    for it in XSCHED[-1]:
        if isinstance(it, int) and it >= XA: xdma(it)
    late_start(a)
    RE = int(os.environ.get("RE", "0"))
    VRS = 127; S_R2 = S_X
    E7 = int(os.environ.get("E7", "1"))
    def rl_loads():
        a(f"""
        s_lshl_b32 s74, s4, 2
        s_add_u32 s74, s74, s43
        s_lshl_b32 s74, s74, 3
        s_add_u32 s74, s74, s3             ; gw = (4i + u)*8 + j
        v_and_b32 v3, 31, v1               ; i
        v_lshrrev_b32 v4, 5, v1            ; hh
        v_lshlrev_b32 v4, 12, v4
        v_lshl_add_u32 v{VRL}, v3, 2, v4
        s_and_b32 s6, s74, 7               ; cb
        s_cmp_ge_u32 s74, 896
        s_cbranch_scc1 L_wo
        """)
        srd(a, S_SRC, 18, 1792 * 1024)
        srd(a, S_R2, 18, 0)
        a(f"""
        s_lshr_b32 s7, s74, 3              ; kstep
        s_mov_b32 s56, {112*1024}
        s_mov_b32 s57, {W2F}
        s_branch L_rl2
        L_wo:
        """)
        srd(a, S_SRC, 12, 512 * 1024)
        srd(a, S_R2, 12, 512 * 1024)
        a(f"""
        s_sub_u32 s5, s74, 896
        s_lshr_b32 s7, s5, 3
        s_lshl_b32 s7, s7, 1               ; kstep
        s_mov_b32 s56, {32*1024}
        s_mov_b32 s57, {WOF}
        L_rl2:
        s_lshl_b32 s59, s7, 14
        s_lshl_b32 s5, s6, 7
        s_add_u32 s59, s59, s5             ; src
        s_lshl_b32 s5, s6, 1
        s_mul_i32 s5, s5, s56
        s_add_u32 s57, s57, s5
        s_lshl_b32 s5, s7, 10
        s_add_u32 s57, s57, s5
        v_bfe_u32 v3, v1, 4, 1
        v_mul_lo_u32 v3, v3, s56
        v_lshrrev_b32 v4, 5, v1
        v_lshl_add_u32 v3, v4, 9, v3
        v_and_b32 v4, 15, v1
        v_lshl_add_u32 v{VRS}, v4, 4, v3
        """)
        for half in range(2):
            for jq in range(2):
                a(f"s_add_u32 s5, s59, {half*16384 + jq*8192}")
                for jj in range(4):
                    a(f"buffer_load_dword v{R+8*half+4*jq+jj}, v{VRL}, {sr(S_R2 if half else S_SRC)}, s5 offen offset:{jj*1024}")
    def touch():
        srd(a, S_W1, 16, 512 * 3584)
        a(f"""
        s_mul_i32 s5, s49, {64*3584}
        s_add_u32 s5, s5, s76
        v_mul_u32_u24 v3, 3584, v1
        buffer_load_dword v{VPOLL}, v3, {sr(S_W1)}, s5 offen
        buffer_load_dword v{VPOLL}, v3, {sr(S_W1)}, s5 offen offset:64
        """)
        q.extend([("t", 0)] * 2)
    a(f"""
    s_and_b32 s5, s4, 3
    s_lshl_b32 s5, s5, 1
    s_add_u32 s73, s5, s42
    s_lshr_b32 s5, s87, 1
    s_mul_i32 s76, s5, 7
    s_add_u32 s76, s76, s43
    s_and_b32 s5, s87, 1
    s_lshl_b32 s6, s5, 2
    s_add_u32 s76, s76, s6             ; slice
    s_mov_b32 s85, 0
    s_add_u32 s6, s6, s43
    s_cmp_lg_u32 s6, 7
    s_cbranch_scc1 L_role
    s_mov_b32 s85, 2
    s_cmp_lg_u32 s87, 1
    s_cbranch_scc1 L_role
    s_mov_b32 s85, 1
    L_role:
    s_mul_i32 s54, s86, {2*112*1024}
    s_lshl_b32 s5, s76, 12
    s_add_u32 s54, s54, s5
    s_add_u32 s54, s54, {HF}
    s_add_u32 s55, s54, {112*1024}
    s_lshl_b32 s76, s76, 7
    """)
    if "T" in XSCHED[-1]: touch()
    make_tag(a)
    pa_addr(a)
    a("s_setprio 0")
    def wait_for(tagv):
        last = max(k for k, e in enumerate(q) if e == tagv)
        a(f"s_waitcnt vmcnt({len(q) - 1 - last})")
    ENT = [136, 144, 112, 120, 128, 32, 40][:NEG]
    NE = len(ENT)
    def ent(n): return ENT[n % NE] * 1024
    def w1dma_list(n):
        sig, ss = n >> 2, n & 3
        l0 = ""
        if ss == 0:
            l0 = f"""
            s_add_u32 s5, s49, {sig}
            s_and_b32 s5, s5, 7
            s_mul_i32 s50, s5, {64*3584}
            s_add_u32 s50, s50, s76
            """
        l0 += f"""
        s_add_u32 m0, s79, {ent(n)}
        s_add_u32 s51, s50, {ss*16*3584}
        buffer_load_dwordx4 v{VD0}, {sr(S_W1)}, s51 offen lds
        """
        l1 = f"""
        s_add_u32 m0, s79, {ent(n)+1024}
        s_nop 0
        buffer_load_dwordx4 v{VD1}, {sr(S_W1)}, s51 offen lds
        """
        return [l0, l1]
    def w1dma(ns):
        LS = a.new("L_w1s")
        a(f"""
        s_cmp_lg_u32 s85, 0
        s_cbranch_scc1 {LS}
        """)
        for n in ns:
            for l in w1dma_list(n): a(l)
            q.extend([("w", n)] * 2)
        a.label(LS)
    for sig in range(8):
        if sig < XA: pass
        elif sig < 4: wait_for(("x", sig))
        elif sig == 4:
            wait_for(("x", 7))
            q.clear()
        if sig == 0 and not os.environ.get("TAILST"): stamp(a, 0)
        if sig <= 6: stamp(a, sig, pa=True)
        a("s_barrier")
        for it in XSCHED.get(sig, []):
            if isinstance(it, int): xdma(it)
            elif it == "T": touch()
        if RE and sig == RE: rl_loads()
        if sig == 4:
            srd(a, S_W1, 16, 512 * 3584)
            a(f"""
            v_lshrrev_b32 v3, 3, v1            ; row = l>>3
            v_mul_u32_u24 v4, 3584, v3
            v_bfe_u32 v5, v1, 4, 1
            v_lshlrev_b32 v5, 2, v5
            v_and_b32 v6, 7, v1
            v_xor_b32 v6, v6, v5
            v_lshl_add_u32 v{VD0}, v6, 4, v4
            v_add_u32 v{VD1}, {8*3584}, v{VD0}
            """)
        if sig >= 5: stamp(a, 2 * (sig - 5), pa=2)
        if sig == 5:
            if not F1D: w1dma([0, 1])
            srd(a, S_G, 20, 1024)
            a(f"""
            s_cmp_lg_u32 s85, 1
            s_cbranch_scc1 L_nogd
            s_lshl_b32 s5, s49, 3
            v_add_u32 v3, s5, v1
            v_and_b32 v3, 63, v3
            v_lshlrev_b32 v3, 4, v3
            s_add_u32 m0, s79, {ent(0)}
            s_nop 0
            buffer_load_dwordx4 v3, {sr(S_G)}, 0 offen lds
            L_nogd:
            v_mov_b32 v3, 0
            v_lshlrev_b32 v4, 2, v1
            v_add_u32 v4, {L_MISC}, v4
            ds_write_b32 v4, v3
            """)
        if sig == 6 and not F1D: w1dma(list(range(2, min(NE, 5))))
        if sig == 7 and NE > 5 and E7: w1dma(list(range(5, NE)))
        if sig == 6:
            a(f"""
            s_add_u32 s5, s79, {L_VX}
            v_add_u32 v3, s5, v2
            v_and_b32 v{VWF}, 0x7ff, v{VWA}
            s_and_b32 s5, s43, 2
            s_lshl_b32 s5, s5, 5
            v_xor_b32 v{VWF}, s5, v{VWF}
            s_add_u32 s5, s79, {112*1024}
            v_add_u32 v{VWF}, s5, v{VWF}
            v_xor_b32 v{VWF+1}, 64, v{VWF}
            v_subrev_u32 v{VWF+2}, {112*1024}, v{VWF}
            v_subrev_u32 v{VWF+3}, {112*1024}, v{VWF+1}
            v_and_b32 v4, 31, v1
            v_lshlrev_b32 v{VFL}, 7, v4
            s_lshl_b32 s5, s43, 2
            v_add_u32 v{VPG}, s5, v{VMI}
            s_lshl_b32 s77, s3, 12
            s_add_u32 s77, s77, {FL1}          ; FL1[j]
            """)
        if sig == 7: a(f"s_setprio {int(os.environ.get('VPRIO', '0'))}")
        if sig >= 5: stamp(a, 2 * (sig - 5) + 1, pa=2)
        pa_compute(a, sig, True)
    a(f"""
    s_movk_i32 s5, 0xefff
    v_and_b32 v{VXA}, s5, v{VXA}
    v_and_b32 v{VXA+1}, s5, v{VXA+1}
    v_and_b32 v{VXA+2}, s5, v{VXA+2}
    v_and_b32 v{VXA+3}, s5, v{VXA+3}
    s_nop 7
    s_nop 5
    """)
    for r in range(8):
        a(f"v_cvt_pk_bf16_f32 v{XB+r}, v{ACCA+2*r}, v{ACCA+2*r+1}")
    a(f"""
    s_nop 1
    v_permlane32_swap_b32 v{XB}, v{XB+2}
    v_permlane32_swap_b32 v{XB+1}, v{XB+3}
    v_permlane32_swap_b32 v{XB+4}, v{XB+6}
    v_permlane32_swap_b32 v{XB+5}, v{XB+7}
    s_nop 1
    ds_write_b128 v3, {vr(XB,4)}
    ds_write_b128 v3, {vr(XB+4,4)} offset:1024
    s_waitcnt lgkmcnt(0)
    s_barrier
    """)
    stamp(a, 6, pa=2)
    VM = VMI
    ACC = 16; BUF = 80
    def fprog():
        a(f"""
        v_mov_b32 v3, 1
        ds_write_b32 v{VPG}, v3 offset:{M_FP}
        """)
    def pollld():
        a(f"buffer_load_dword v{VPOLL}, v{VFL}, {sr(S_WS)}, s77 offen sc1")
    a(f"""
    s_setprio {int(os.environ.get("F1PRIO", "2"))}
    s_cmp_eq_u32 s85, 1
    s_cbranch_scc1 L_f1g
    s_cmp_eq_u32 s85, 2
    s_cbranch_scc1 L_f1n
    """)
    if not E7:
        for n in range(5, NE):
            for l in w1dma_list(n): a(l)
            q.extend([("w", n)] * 2)
    if F1D:
        lds_wait(a, VM, M_C1 if F1D == 1 else M_S0, 8, 3, sleep=2)
        for n in range(NE):
            for l in w1dma_list(n): a(l)
            q.extend([("w", n)] * 2)
    def reads(n):
        b = BUF + 16 * (n % 2)
        e = ent(n) - 112 * 1024
        hi = 0
        if e < 0: e, hi = ent(n), 2
        xo = (n >> 2) * 8192
        return [f"ds_read_b64_tr_b16 {vr(b,2)}, v{VWF+hi} offset:{e}",
                f"ds_read_b64_tr_b16 {vr(b+2,2)}, v{VWF+hi} offset:{e+512}",
                f"ds_read_b128 {vr(b+8,4)}, v{VXA+(n&3)} offset:{xo}",
                f"ds_read_b128 {vr(b+12,4)}, v{VXA+(n&3)} offset:{xo+4096}",
                f"ds_read_b64_tr_b16 {vr(b+4,2)}, v{VWF+hi+1} offset:{e}",
                f"ds_read_b64_tr_b16 {vr(b+6,2)}, v{VWF+hi+1} offset:{e+512}"]
    wait_for(("w", 0))
    if not os.environ.get("TAILST"): stamp(a, 1)
    for l in reads(0): a(l)
    for n in range(32):
        b = BUF + 16 * (n % 2)
        def mf(at, bt):
            d = ACC + 16 * (2 * at + bt)
            c = "0" if n == 0 else vr(d, 16)
            a(f"v_mfma_f32_32x32x16_bf16 {vr(d,16)}, {vr(b+4*at,4)}, {vr(b+8+4*bt,4)}, {c}")
        a("s_waitcnt lgkmcnt(0)")
        mf(0, 0)
        rd = reads(n + 1) if n < 31 else []
        if rd: wait_for(("w", n + 1))
        for l in rd[:3]: a(l)
        mf(0, 1)
        for l in rd[3:]: a(l)
        dl = w1dma_list(n + NE) if n + NE < 32 else []
        mf(1, 0)
        if dl:
            a(dl[0]); q.append(("w", n + NE))
        mf(1, 1)
        if dl:
            a(dl[1]); q.append(("w", n + NE))
        if n == 27:
            pollld(); q.append(("p", 0))
    a("s_branch L_f1done")
    a.label("L_f1g")
    a(f"""
    v_lshrrev_b32 v4, 5, v1
    v_lshlrev_b32 v4, 4, v4
    s_add_u32 s5, s79, {ent(0)}
    v_add_u32 v4, s5, v4
    s_waitcnt vmcnt(0)
    """)
    for sg in range(8):
        for ss in range(4):
            n = 4 * sg + ss
            b = BUF + 12 * ss
            a(f"""
            ds_read_b128 {vr(b,4)}, v4 offset:{n*32}
            ds_read_b128 {vr(b+4,4)}, v{VXA+ss} offset:{sg*8192}
            ds_read_b128 {vr(b+8,4)}, v{VXA+ss} offset:{sg*8192+4096}
            """)
        a("s_waitcnt lgkmcnt(0)")
        for ss in range(4):
            b = BUF + 12 * ss
            for bt in range(2):
                d = ACC + 16 * bt
                c = "0" if (sg == 0 and ss == 0) else vr(d, 16)
                a(f"v_mfma_f32_32x32x16_bf16 {vr(d,16)}, {vr(b,4)}, {vr(b+4+4*bt,4)}, {c}")
    a(f"""
    v_cmp_gt_u32 vcc, 32, v1
    s_nop 7
    s_nop 7
    v_cndmask_b32 v8, v{ACC+16}, v{ACC}, vcc
    """)
    sigmoid(a, 8)
    a("s_branch L_f1w")
    a.label("L_f1n")
    a.label("L_f1w")
    lds_wait(a, VM, M_QOK, 3, 3, sleep=4)
    pollld()
    a.label("L_f1done")
    a("s_setprio 3")
    lds_add(a, VM, M_F1C, 3)
    if not os.environ.get("TAILST"): stamp(a, 2)
    stamp(a, 0, pa=3)
    a(f"""
    s_mov_b32 s{S_H}, s{S_WS}
    s_mov_b32 s{S_H+1}, s{S_WS+1}
    s_cmp_eq_u32 s85, 0
    s_cselect_b32 s{S_H+2}, {WS_BYTES:#x}, 0
    s_mov_b32 s{S_G}, s{S_WS}
    s_mov_b32 s{S_G+1}, s{S_WS+1}
    s_cmp_eq_u32 s85, 1
    s_cselect_b32 s{S_G+2}, {WS_BYTES:#x}, 0
    s_nop 5
    s_lshl_b32 s5, s41, 17
    s_lshl_b32 s52, s43, 12
    s_add_u32 s53, s5, s52
    s_add_u32 s53, s53, {KV}
    s_lshl_b32 s58, s86, 8
    s_add_u32 s58, s58, {GBUF}
    v_lshlrev_b32 v9, 2, v1
    s_nop 3
    """)
    stores = []
    for at in range(2):
        for bt in range(2):
            d = ACC + 16 * (at * 2 + bt)
            o = BUF + 8 * (at * 2 + bt)
            for r in range(8):
                a(f"v_cvt_pk_bf16_f32 v{o+r}, v{d+2*r}, v{d+2*r+1}")
            for r in range(8):
                a(f"v_pk_max_i16 v{o+r}, v{o+r}, 0")
            for half in range(2):
                stores.append(f"buffer_store_dwordx4 {vr(o+4*half,4)}, v2, {sr(S_H)}, s{54+bt} offen offset:{(2*at+half)*1024} sc1")
    stores.append(f"buffer_store_dword v8, v9, {sr(S_G)}, s58 offen sc1")
    a("s_waitcnt vmcnt(0)")
    a(f"""
    v_cmp_ne_u32 vcc, s{S_TAG}, v{VPOLL}
    s_cmp_eq_u64 vcc, 0
    s_cbranch_scc1 L_allok
    """)
    poll_flags(a, VFL, "s77", [(1, 0)], VPOLL, sleep=3)
    a.label("L_allok")
    lds_wait(a, VM, M_C1, 8, 3, sleep=1)
    lds_wait(a, VM, M_F1C, 4, 3, sleep=1)
    AW = int(os.environ.get("AW", "2"))
    if AW == 1: lds_wait(a, VM, M_S0, 8, 3, sleep=1)
    if AW == 2: lds_wait(a, VM, M_S1, 4, 3, sleep=1)
    def kvdma(sg):
        a(f"""
        s_add_u32 s6, s72, {sg}
        s_and_b32 s6, s6, 7
        s_lshl_b32 s6, s6, 14
        s_add_u32 m0, s52, {sg*16384}
        s_add_u32 s6, s6, s53
        """)
        for k in range(4):
            a(f"buffer_load_dwordx4 v2, {sr(S_WS)}, s6 offen offset:{k*1024} lds")
    def prog(n):
        a(f"""
        v_mov_b32 v10, {n}
        ds_write_b32 v{VPG}, v10 offset:{M_PROG}
        """)
    stamp(a, 1, pa=3)
    KSP = int(os.environ.get("KSP", "5"))
    for sg in range(ES, KSP):
        kvdma(sg)
    AX = int(os.environ.get("AX", "0"))
    if AX == 1: lds_wait(a, VM, M_S1, 4, 3, sleep=1)
    if AX == 2:
        a("s_waitcnt vmcnt(0)")
        prog(KSP)
    if not RE: rl_loads()
    if AX == 3:
        a("s_waitcnt vmcnt(16)")
        prog(KSP)
    for l in stores: a(l)
    a(f"""
    s_mov_b32 s{S_R2}, s{S_WS}
    s_mov_b32 s{S_R2+1}, s{S_WS+1}
    s_cmp_ge_u32 s74, 896
    s_cselect_b32 s{S_R2+2}, {WS_BYTES:#x}, 0
    s_mov_b32 s80, 0x05040100
    s_mov_b32 s81, 0x07060302
    """)
    stamp(a, 2, pa=3)
    a(f"s_waitcnt vmcnt({(0 if RE else 16)+len(stores)})")
    prog(KSP)
    if not os.environ.get("TAILST"): stamp(a, 6)
    stamp(a, 3, pa=3)
    a(f"s_waitcnt vmcnt({len(stores)})")
    stamp(a, 4, pa=3)
    for half in range(2):
        for jj in range(4):
            A = R + 8 * half + 2 * jj
            a(f"v_perm_b32 v{F+8*half+jj}, v{A+1}, v{A}, s80")
            a(f"v_perm_b32 v{F+8*half+4+jj}, v{A+1}, v{A}, s81")
        sd = S_R2 if half else S_WS
        a(f"buffer_store_dwordx4 {vr(F+8*half,4)}, v{VRS}, {sr(sd)}, s57 offen offset:{half*1024} sc1")
        a(f"buffer_store_dwordx4 {vr(F+8*half+4,4)}, v{VRS}, {sr(sd)}, s57 offen offset:{half*1024+256} sc1")
    for sg in range(KSP, 8):
        kvdma(sg)
    a(f"""
    s_waitcnt vmcnt({4*(8-KSP)})
    s_mov_b64 exec, 1
    v_mov_b32 v8, 1
    ds_add_rtn_u32 v8, v{VM}, v8 offset:{M_E2}
    s_waitcnt lgkmcnt(0)
    s_mov_b64 exec, -1
    v_readfirstlane_b32 s5, v8
    s_cmp_lg_u32 s5, 3
    s_cbranch_scc1 L_e2skip
    s_lshl_b32 s5, s2, 7
    s_add_u32 s5, s5, {FL2}
    """)
    store_flag(a, "s5", BUF)
    a.label("L_e2skip")
    stamp(a, 5, pa=3)
    if KSP < 8:
        a("s_waitcnt vmcnt(0)")
        prog(8)
    a(f"""
    """)
    a(f"""
    s_mul_i32 s5, s43, 7
    s_lshl_b32 s50, 0x7f, s5
    s_lshl_b32 s5, 0x10000000, s43
    s_or_b32 s50, s50, s5
    s_lshl_b32 s5, s43, 1
    s_lshl_b32 s51, 3, s5
    s_lshl_b32 s5, 0x100, s43
    s_or_b32 s51, s51, s5
    v_and_b32 v3, 7, v1
    s_lshl_b32 s5, s42, 2
    v_add_u32 v4, s5, v3               ; 4c + k
    v_mov_b32 v5, s41
    v_cmp_lt_u32 vcc, 39, v1
    v_cndmask_b32 v4, v5, v4, vcc      ; tb
    v_cndmask_b32 v3, v3, 1, vcc       ; g
    v_lshrrev_b32 v5, {TBS}, v4
    v_lshlrev_b32 v5, {TBS-2}, v5
    {"v_and_b32 v6, 1, v3" if GPAR else "v_lshrrev_b32 v6, %d, v3" % (5-TBS)}
    {"v_xor_b32 v6, 1, v6" if GPAR == 2 else ""}
    v_add_u32 v5, v5, v6               ; j
    {"v_lshrrev_b32 v6, 1, v3" if GPAR else "v_and_b32 v6, %d, v3" % ((1<<(5-TBS))-1)}
    v_lshlrev_b32 v6, {TBS}, v6
    v_and_b32 v4, {(1<<TBS)-1}, v4
    v_add_u32 v6, v6, v4               ; i
    v_lshl_add_u32 v4, v6, 3, v5
    v_lshlrev_b32 v7, 3, v1
    v_add_u32 v7, s42, v7
    v_cmp_lt_u32 vcc, 31, v1
    v_cndmask_b32 v7, v7, v4, vcc
    v_lshlrev_b32 v7, 7, v7
    s_mov_b32 s58, {FL2}
    """)
    lds_wait(a, VM, M_E2, 4, 6, sleep=4)
    a(f"""
    s_sleep {int(os.environ.get('ESL', '8'))}
    L_e2p:
    s_mov_b64 exec, s[50:51]
    buffer_load_dword v{BUF}, v7, {sr(S_WS)}, s58 offen sc1
    s_waitcnt vmcnt(0)
    v_cmp_ne_u32 vcc, s{S_TAG}, v{BUF}
    s_mov_b64 exec, -1
    s_cmp_eq_u64 vcc, 0
    s_cbranch_scc1 L_e2ok
    """)
    spin_guard(a, "L_e2p", int(os.environ.get('ESL2', '10')))
    a.label("L_e2ok")
    if not os.environ.get("TAILST"): stamp(a, 3)
    stamp(a, 6, pa=3)
    a(f"""
    v_and_b32 v3, 31, v1
    v_lshlrev_b32 v3, 2, v3
    s_lshl_b32 s58, s41, 8
    s_and_b32 s5, s43, 1
    s_lshl_b32 s5, s5, 7
    s_add_u32 s58, s58, s5
    s_add_u32 s58, s58, {GBUF}
    v_mov_b32 v10, v3
    s_lshl_b32 s5, s42, 3
    s_lshl_b32 s6, s43, 1
    s_add_u32 s5, s5, s6
    s_lshl_b32 s5, s5, 5
    s_add_u32 s5, s5, s41
    s_lshl_b32 s5, s5, 10
    s_add_u32 s5, s5, {OF}
    s_add_u32 s6, s5, 32768
    v_mov_b32 v160, -1
    v_mov_b32 v161, -1
    v_mov_b32 v162, -1
    v_mov_b32 v163, -1
    buffer_store_dwordx4 v[160:163], v2, {sr(S_WS)}, s5 offen sc1
    buffer_store_dwordx4 v[160:163], v2, {sr(S_WS)}, s6 offen sc1
    s_lshr_b32 s50, s43, 1             ; kh
    s_and_b32 s51, s43, 1              ; bt
    s_mul_i32 s5, s50, {112*1024}
    v_add_u32 v4, s5, v2
    s_sub_u32 s5, {112*1024}, s5
    v_add_u32 v5, s5, v2
    s_mul_i32 s5, s51, {112*1024}
    v_add_u32 v6, s5, v2
    s_sub_u32 s5, {112*1024}, s5
    v_add_u32 v7, s5, v2
    s_mul_i32 s5, s43, {28*1024}
    s_mul_i32 s52, s42, {2*112*1024}
    s_add_u32 s52, s52, s5
    s_add_u32 s52, s52, {W2F}
    s_mul_i32 s53, s41, {2*112*1024}
    s_add_u32 s53, s53, s5
    s_add_u32 s53, s53, {HF}
    s_lshl_b32 s54, s42, 1
    s_lshr_b32 s5, s43, 1
    s_add_u32 s54, s54, s5             ; c tile
    s_lshl_b32 s54, s54, 15
    s_add_u32 s54, s54, {WOF}
    s_lshl_b32 s55, s41, 1
    s_and_b32 s5, s43, 1
    s_add_u32 s55, s55, s5
    s_lshl_b32 s56, s55, 12
    s_add_u32 s56, s56, {FL3}
    s_lshl_b32 s55, s55, 15
    s_add_u32 s55, s55, {OF}
    s_sub_u32 s78, s73, 7
    s_cmp_ge_u32 s73, 7
    s_cselect_b32 s78, s78, s73
    """)
    a(f"s_setprio {FPRIO}")
    WOS = int(os.environ.get("WOS", "20"))
    def wo_stage():
        a(f"""
        s_lshl_b32 s6, s43, 14
        s_lshl_b32 s7, s42, 16
        s_add_u32 s7, s7, s6
        s_add_u32 s7, s7, {WOF}
        """)
        lds_wait(a, VM, M_PZ, 4, 9, sleep=4)
        a(f"buffer_load_dword v10, v10, {sr(S_WS)}, s58 offen")
        lds_wait(a, VM, M_DEAD, 8, 9, sleep=4)
        for sg in range(4):
            a(f"""
            s_add_u32 m0, s6, {sg*4096}
            s_add_u32 s5, s7, {sg*4096}
            """)
            for q in range(4):
                a(f"buffer_load_dwordx4 v2, {sr(S_WS)}, s5 offen offset:{q*1024} lds")
        return 17
    def f2hook(st):
        if st == 1: lds_add(a, VM, M_PZ, 9)
        if st == WOS + 5: lds_add(a, VM, M_W, 9)
        if st == WOS: return wo_stage()
    stream_gemm(a, 28, 2, 2, ACC, BUF, 5, 4, 6, 52, 53, 78, hook=f2hook)
    a("s_setprio 3")
    stamp(a, 4)
    stamp(a, 0, pa=4)
    X = ACC; Y = ACC + 32
    SET = 80
    HB = [ACC + 16, ACC + 48]
    MG = 144
    assert WOS + 5 < 28
    srd(a, S_OUT, 22, 2048 * 1024)
    a(f"""
    s_lshl_b32 s5, s50, 2
    v_add_u32 v14, s5, v{VM}
    ds_read_b32 v160, v14 offset:{M_RDY}
    s_lshl_b32 s5, s43, 13
    s_add_u32 s5, s5, 65536
    v_add_u32 v15, s5, v2
    v_xor_b32 v161, 8192, v15
    v_xor_b32 v12, 16384, v15
    s_lshl_b32 s5, s43, 2
    v_add_u32 v11, s5, v{VM}
    v_xor_b32 v8, 4, v11
    v_xor_b32 v162, 8, v11
    s_sub_u32 s57, s55, {OF}           ; T*32768 = 32 tokens * 1024
    s_sub_u32 s5, s54, {WOF}
    s_lshr_b32 s5, s5, 9               ; ct*64
    s_add_u32 s57, s57, s5
    v_and_b32 v3, 31, v1
    v_lshlrev_b32 v6, 10, v3
    v_lshrrev_b32 v4, 5, v1
    v_lshl_add_u32 v6, v4, 4, v6
    v_lshlrev_b32 v7, 7, v3
    s_lshl_b32 s5, s50, 11
    s_add_u32 s56, s56, s5
    s_lshl_b32 s5, s50, 14
    s_add_u32 s55, s55, s5
    s_mul_i32 s5, s50, {32768+16384}
    v_add_u32 v5, s5, v2
    s_mov_b32 s48, 0x1111
    s_mov_b32 s75, 0                   ; landed
    s_mov_b32 s77, 0
    v_sub_f32 v10, 1.0, v10
    s_waitcnt lgkmcnt(0)
    v_readfirstlane_b32 s49, v160
    s_and_b32 s49, s49, s48
    """)
    def oissue(sm, tag):
        for j in range(4):
            o = SET + 16 * j
            a(f"""
            s_bitcmp1_b32 {sm}, {4*j}
            s_cbranch_scc0 L_oi{tag}{j}
            s_add_u32 s6, s55, {j*4096}
            """)
            for q in range(4):
                a(f"buffer_load_dwordx4 {vr(o+4*q,4)}, v2, {sr(S_WS)}, s6 offen offset:{q*1024} sc1")
            a.label(f"L_oi{tag}{j}")
    oissue("s49", "a")
    stamp(a, 1, pa=4)
    lds_wait(a, VM, M_DEAD2, 8, 9, sleep=2)
    stamp(a, 2, pa=4)
    for t in range(2):
        for q in range(4):
            a(f"ds_write_b128 v161, {vr(ACC+16+32*t+4*q,4)} offset:{t*4096+q*1024}")
    a(f"""
    v_mov_b32 v9, 1
    ds_write_b32 v8, v9 offset:{M_XP}
    """)
    stamp(a, 3, pa=4)
    for t in range(2):
        for r in range(16):
            a(f"v_mul_f32 v{ACC+32*t+r}, v{ACC+32*t+r}, v10")
    stamp(a, 5, pa=4)
    lds_wait(a, VM, M_W, 4, 9, sleep=2)
    if os.environ.get("TAILST"): stamp(a, 0)
    stamp(a, 6, pa=4)
    def merge(block):
        L = a.new("L_mg"); D = a.new("L_mgd"); G = a.new("L_mgo")
        a(f"""
        s_cmp_lg_u32 s77, 0
        s_cbranch_scc1 {D}
        {L}:
        ds_read_b32 v3, v11 offset:{M_XP}
        """)
        for q in range(4):
            a(f"ds_read_b128 {vr(MG+4*q,4)}, v15 offset:{q*1024}")
        a(f"""
        s_waitcnt lgkmcnt(0)
        v_readfirstlane_b32 s77, v3
        s_cmp_lg_u32 s77, 0
        s_cbranch_scc1 {G}
        """)
        if block: spin_guard(a, L, 1)
        else: a(f"s_branch {D}")
        a.label(G)
        for r in range(16):
            a(f"v_fmac_f32 v{X+r}, v{MG+r}, v10")
        for q in range(4):
            a(f"ds_read_b128 {vr(MG+4*q,4)}, v15 offset:{4096+q*1024}")
        a("s_waitcnt lgkmcnt(0)")
        for r in range(16):
            a(f"v_fmac_f32 v{Y+r}, v{MG+r}, v10")
        a.label(D)
    def setaddr(sb):
        a(f"""
        s_lshl_b32 s5, {sb}, 10
        v_add_u32 v8, s5, v5
        v_xor_b32 v9, 32768, v8
        """)
    def rd(h):
        b = HB[h]
        a(f"ds_read_b128 {vr(b,4)}, v8 offset:{h*2048}")
        a(f"ds_read_b128 {vr(b+4,4)}, v9 offset:{h*2048}")
        a(f"ds_read_b128 {vr(b+8,4)}, v8 offset:{h*2048+1024}")
        a(f"ds_read_b128 {vr(b+12,4)}, v9 offset:{h*2048+1024}")
    a(f"""
    s_mov_b32 s53, -1
    s_mov_b32 s73, 0
    L_op:
    ds_read_b32 v3, v14 offset:{M_RDY}
    s_or_b32 s6, s49, s75
    s_waitcnt lgkmcnt(0)
    v_readfirstlane_b32 s59, v3
    s_and_b32 s58, s59, s48
    s_bcnt1_i32_b32 s5, s48
    s_cmp_le_u32 s5, {int(os.environ.get("DP", "0"))}
    s_cselect_b32 s58, s48, s58
    s_andn2_b32 s58, s58, s6           ; new
    s_cbranch_scc0 L_noiss
    """)
    if os.environ.get("TAILST"): stamp(a, 1)
    oissue("s58", "b")
    a(f"""
    s_or_b32 s49, s49, s58
    L_noiss:
    s_cmp_lg_u32 s75, 0
    s_cbranch_scc1 L_proc
    """)
    merge(False)
    a(f"""
    s_cmp_lg_u32 s49, 0
    s_cbranch_scc1 L_owait
    s_andn2_b32 s5, s59, 0x1111
    s_or_b32 s5, s5, s51
    s_cbranch_scc1 L_oidle
    s_andn2_b32 s5, 0x1111, s59
    s_mul_i32 s5, s5, 15
    s_or_b32 exec_lo, s5, 1
    s_mov_b32 exec_hi, 0
    buffer_load_dword v3, v7, {sr(S_WS)}, s56 offen sc1
    s_waitcnt vmcnt(0)
    v_cmp_ne_u32 vcc, s{S_TAG}, v3
    s_lshr_b32 s5, vcc_lo, 1
    s_or_b32 s5, s5, vcc_lo
    s_lshr_b32 s6, s5, 2
    s_or_b32 s5, s5, s6
    s_andn2_b32 s5, 0x1111, s5
    v_mov_b32 v4, s5
    s_mov_b64 exec, 1
    ds_or_b32 v14, v4 offset:{M_RDY}
    s_mov_b64 exec, -1
    s_cmp_lg_u32 s5, s59
    s_cbranch_scc1 L_op
    s_sleep {int(os.environ.get("OSL", "4"))}
    L_oidle:
    """)
    spin_guard(a, "L_op", 1)
    a(f"""
    L_owait:
    s_mov_b32 s75, s49
    s_mov_b32 s49, 0
    s_ff1_i32_b32 s52, s75
    s_cmp_eq_u32 s52, s53
    s_cbranch_scc1 L_ow2
    s_mov_b32 s53, s52
    """)
    setaddr("s53"); rd(0); rd(1)
    a(f"""
    L_ow2:
    s_waitcnt vmcnt(0)
    L_proc:
    """)
    if os.environ.get("TAILST"): stamp(a, 2)
    a(f"""
    s_ff1_i32_b32 s52, s75
    s_bitset0_b32 s75, s52
    s_cmp_eq_u32 s52, s53
    s_cbranch_scc1 L_pr2
    s_mov_b32 s53, s52
    """)
    setaddr("s53"); rd(0); rd(1)
    a(f"""
    L_pr2:
    s_cmp_lg_u32 s75, 0
    s_cselect_b32 s5, s75, s49
    s_ff1_i32_b32 s74, s5
    s_max_i32 s74, s74, 0
    s_or_b32 s6, s75, s49
    s_bitset1_b32 s6, s52
    s_andn2_b32 s76, s48, s6
    s_cmp_eq_u32 s75, 0
    s_cselect_b32 s76, 1, s76
    """)
    setaddr("s74")
    for j in range(4):
        o = SET + 16 * j
        if j < 3:
            a(f"""
            s_cmp_lg_u32 s52, {4*j}
            s_cbranch_scc1 L_om{j}
            """)
        a(f"v_max3_u32 v4, v{o}, v{o+1}, v{o+2}")
        for r in range(3, 15, 2):
            a(f"v_max3_u32 v4, v4, v{o+r}, v{o+r+1}")
        a(f"""
        v_max_u32 v4, v4, v{o+15}
        v_cmp_eq_u32 vcc, -1, v4
        s_cmp_eq_u64 vcc, 0
        s_cbranch_scc0 L_ofail
        s_bitset0_b32 s48, {4*j}
        s_mov_b32 s53, s74
        """)
        for h in range(2):
            b = HB[h]
            a("s_waitcnt lgkmcnt(4)" if h == 0 else "s_waitcnt lgkmcnt(4)")
            for qq in range(2):
                a(f"v_mfma_f32_32x32x16_bf16 {vr(Y,16)}, {vr(b+8*qq+4,4)}, {vr(o+8*h+4*qq,4)}, {vr(Y,16)}")
                a(f"v_mfma_f32_32x32x16_bf16 {vr(X,16)}, {vr(b+8*qq,4)}, {vr(o+8*h+4*qq,4)}, {vr(X,16)}")
            rd(h)
        a(f"""
        s_cmp_eq_u32 s76, 0
        s_cbranch_scc1 L_proc
        s_cmp_eq_u32 s48, 0
        s_cbranch_scc0 L_op
        s_branch L_odone
        """)
        if j < 3: a.label(f"L_om{j}")
    a.label("L_ofail")
    if int(os.environ.get("DRY", "0")):
        a("""
        s_cmp_eq_u32 s73, 1
        s_cbranch_scc1 L_dryback
        """)
    spin_guard(a, "L_op", int(os.environ.get("FSL", "1")))
    a("""
    L_odone:
    s_nop 7
    """)
    merge(True)
    stamp(a, 5)
    for q in range(4):
        a(f"ds_write_b128 v15, {vr(Y+4*q,4)} offset:{q*1024}")
    a(f"""
    v_mov_b32 v4, 1
    ds_write_b32 v162, v4 offset:{M_Y}
    L_yw:
    ds_read_b32 v3, v11 offset:{M_Y}
    """)
    for q in range(4):
        a(f"ds_read_b128 {vr(Y+4*q,4)}, v12 offset:{q*1024}")
    a(f"""
    s_waitcnt lgkmcnt(0)
    v_readfirstlane_b32 s5, v3
    s_cmp_lg_u32 s5, 0
    s_cbranch_scc1 L_ywd
    """)
    spin_guard(a, "L_yw", 0)
    a.label("L_ywd")
    if os.environ.get("TAILST"): stamp(a, 3)
    for r in range(16):
        a(f"v_add_f32 v{X+r}, v{X+r}, v{Y+r}")
    for r in range(8):
        a(f"v_cvt_pk_bf16_f32 v{SET+r}, v{X+r}, v{X+8+r}")
    OST = os.environ.get("OST", "")
    a(f"""
    buffer_store_dwordx4 {vr(SET,4)}, v6, {sr(S_OUT)}, s57 offen {OST}
    buffer_store_dwordx4 {vr(SET+4,4)}, v6, {sr(S_OUT)}, s57 offen offset:32 {OST}
    """)
    if int(os.environ.get("DRY", "0")):
        a("""
        s_cmp_eq_u32 s73, 1
        s_cbranch_scc1 L_dryback
        """)
    if os.environ.get("TAILST"): stamp(a, 6)
    stamp_end(a)

def kd(name, nv, ns=102):
    return f""".p2align 6
.amdhsa_kernel {name}
  .amdhsa_next_free_vgpr {nv}
  .amdhsa_next_free_sgpr {ns}
  .amdhsa_accum_offset {(nv+3)//4*4}
  .amdhsa_group_segment_fixed_size 0
  .amdhsa_kernarg_size 80
  .amdhsa_user_sgpr_count 2
  .amdhsa_user_sgpr_kernarg_segment_ptr 1
  .amdhsa_system_sgpr_workgroup_id_x 1
.end_amdhsa_kernel
"""

def main(out):
    hdr = open("cdna_kernels/" + NAME + ".s.ref").read().split("\n")
    hdr = [l for l in hdr if l.startswith(";") and "@launch" not in l]
    a = Asm()
    gen(a)
    txt = "\n".join(hdr) + "\n"
    txt += f"; @launch grid=(256,1,1) block=(768,1,1) lds={LDS_BYTES}\n"
    txt += '.amdgcn_target "amdgcn-amd-amdhsa--gfx950"\n.text\n'
    body = a.text()
    if int(os.environ.get("ALLSC1", "1")):
        ol = []
        for l in body.split("\n"):
            if l.strip().startswith("buffer_load") and sr(S_WS) in l and "sc1" not in l:
                l = l.replace(" lds", " sc1 lds") if l.rstrip().endswith(" lds") else l + " sc1"
            ol.append(l)
        body = "\n".join(ol)
    txt += body
    txt += '.section .rodata,"a"\n'
    txt += kd(NAME + "_kernel", 168)
    open(out, "w").write(txt)

if __name__ == "__main__":
    main(sys.argv[1] if len(sys.argv) > 1 else "cdna_kernels/" + NAME + ".s")
```

```python
import math, os, struct, sys

NAME = "gated_mix__mha_block__dense_activation_relu__prompt"
STAMP = os.environ.get("STAMP")

def f32bits(x):
    return struct.unpack("<I", struct.pack("<f", x))[0]

class Asm:
    def __init__(self):
        self.l = []
        self.uid = 0
    def __call__(self, s):
        for line in s.strip("\n").split("\n"):
            line = line.strip()
            if line:
                self.l.append(("" if line.endswith(":") else "    ") + line)
    def label(self, s):
        self.l.append(s + ":")
    def raw(self, s):
        self.l.append(s)
    def new(self, p="L"):
        self.uid += 1
        return f"{p}_{self.uid}"
    def text(self):
        return "\n".join(self.l) + "\n"

EPOCH = 0x0
QF = 0x1A00000
XID = 0xD38000
KV = 0x200000
XF = 0x600000
W1F = 0x800000
W2F = 0xA00000
WOF = 0xC00000
FLS = 0xD00000
FL2 = 0xD10000
FL1 = 0xD40000
FL3 = 0xD80000
GBUF = 0xD20000
FLG = 0xD30000
HF = 0x1000000
OF = 0x1800000
STB = 0x1F00000
WS_BYTES = 0x2000000

L_X = 49152
L_W = 65536
L_OX = 131072
L_MISC = 157696
L_MISC0 = 65536
L_LX = 158720
L_GF = 160768
LDS_BYTES = 163840
M_PROG, M_QOK, M_PAIR, M_GF, M_E0R, M_E2, M_E2R, M_DMA = 0, 32, 64, 128, 136, 140, 144, 168
M_FP, M_C1, M_F1C, M_S0, M_S1, M_DEAD, M_X, M_RDY, M_W, M_DEAD2, M_Y, M_PZ, M_XP = 16, 176, 180, 184, 188, 192, 196, 200, 208, 212, 224, 216, 240
WSLOT = [136*1024, 112*1024, 24*1024, 0]
L_DRY = 158720
L_VX = 24 * 1024

QSCALE = 0.25 * math.log2(math.e)
LOG2E = math.log2(math.e)
SPIN_MAX = 200000
ILV = int(os.environ.get('ILV', '0'))
FPRIO = int(os.environ.get('FPRIO', '0'))

S_X, S_WQKV, S_WS, S_SRC, S_OUT = 28, 32, 36, 44, 60
S_TAG = 82
S_EP = 84
S_SPIN = 83

def vr(a, n):
    return f"v[{a}:{a+n-1}]"
def sr(a):
    return f"s[{a}:{a+3}]"

def srd(a, d, base, nbytes):
    a(f"""
    s_mov_b32 s{d}, s{base}
    s_and_b32 s{d+1}, s{base+1}, 0xffff
    s_mov_b32 s{d+2}, {nbytes:#x}
    s_mov_b32 s{d+3}, 0x20000
    """)

NST = 7
def stamp_begin(a):
    if not STAMP: return
    a("""
    s_memtime s[64:65]
    s_memrealtime s[66:67]
    s_waitcnt lgkmcnt(0)
    """)
    for i in range(NST):
        a(f"s_mov_b32 s{88+2*i}, {'s66' if os.environ.get('RT') else 's64'}")
PAST = os.environ.get("PAST")
def stamp(a, i, pa=False):
    if not STAMP: return
    if int(PAST or 0) != int(pa): return
    a(f"""
    s_waitcnt lgkmcnt(0)
    {'s_memrealtime' if os.environ.get('RT') else 's_memtime'} s[{88+2*i}:{89+2*i}]
    s_waitcnt lgkmcnt(0)
    """)
def stamp_end(a):
    if not STAMP: return
    a(f"""
    s_waitcnt vmcnt(0) lgkmcnt(0)
    s_memtime s[68:69]
    s_memrealtime s[70:71]
    s_waitcnt lgkmcnt(0)
    s_mov_b64 exec, 1
    v_mov_b32 v4, s64
    v_mov_b32 v5, s66
    v_mov_b32 v6, s68
    v_mov_b32 v7, s70
    """)
    for i in range(8):
        a(f"v_mov_b32 v{8+i}, s{88+2*min(i,NST-1)}" if i < NST else "v_mov_b32 v15, s73")
    a(f"""
    s_lshl_b32 s72, s2, 4
    s_add_u32 s72, s72, s40
    s_lshl_b32 s72, s72, 6
    s_add_u32 s72, s72, {STB}
    v_mov_b32 v3, 0
    buffer_store_dwordx4 v[4:7], v3, {sr(S_WS)}, s72 offen
    buffer_store_dwordx4 v[8:11], v3, {sr(S_WS)}, s72 offen offset:16
    buffer_store_dwordx4 v[12:15], v3, {sr(S_WS)}, s72 offen offset:32
    """)

def spin_guard(a, again, sleep=4):
    a(f"""
    s_sleep {sleep}
    s_add_u32 s{S_SPIN}, s{S_SPIN}, 1
    s_cmp_lt_u32 s{S_SPIN}, {SPIN_MAX}
    s_cbranch_scc1 {again}
    s_endpgm
    """)

def poll_flags(a, voff, soff, loads, T, sleep=8):
    L = a.new("L_poll"); D = a.new("L_pdone")
    a.label(L)
    r = T
    regs = []
    for nd, imm in loads:
        op = {1: "buffer_load_dword", 2: "buffer_load_dwordx2", 4: "buffer_load_dwordx4"}[nd]
        dst = f"v{r}" if nd == 1 else vr(r, nd)
        a(f"{op} {dst}, v{voff}, {sr(S_WS)}, {soff} offen offset:{imm} sc1")
        regs += list(range(r, r + nd)); r += nd
    a("s_waitcnt vmcnt(0)")
    a(f"v_xor_b32 v{regs[0]}, s{S_TAG}, v{regs[0]}")
    for q in regs[1:]:
        a(f"v_xor_b32 v{q}, s{S_TAG}, v{q}")
        a(f"v_or_b32 v{regs[0]}, v{regs[0]}, v{q}")
    a(f"""
    v_cmp_ne_u32 vcc, 0, v{regs[0]}
    s_cmp_eq_u64 vcc, 0
    s_cbranch_scc1 {D}
    """)
    spin_guard(a, L, sleep)
    a.label(D)

def lds_wait(a, vaddr, off, val, T, sleep=1):
    L = a.new("L_lw"); D = a.new("L_lwd")
    a.label(L)
    a(f"""
    ds_read_b32 v{T}, v{vaddr} offset:{off}
    s_waitcnt lgkmcnt(0)
    v_readfirstlane_b32 s5, v{T}
    s_cmp_eq_u32 s5, {val}
    s_cbranch_scc1 {D}
    """)
    spin_guard(a, L, sleep)
    a.label(D)

def lds_add(a, vaddr, off, T):
    a(f"""
    s_mov_b64 exec, 1
    v_mov_b32 v{T}, 1
    ds_add_u32 v{vaddr}, v{T} offset:{off}
    s_mov_b64 exec, -1
    """)

def dual(a, sfast, lines):
    for l in lines: a(l + " sc1")

def store_flag(a, soff, T, sfast=None, second=None):
    a(f"""
    s_mov_b64 exec, 0xff
    v_mov_b32 v{T}, s{S_TAG}
    v_mov_b32 v{T+1}, {second if second else 's%d' % S_TAG}
    v_mov_b32 v{T+2}, s{S_TAG}
    v_mov_b32 v{T+3}, s{S_TAG}
    """)
    line = f"buffer_store_dwordx4 {vr(T,4)}, v2, {sr(S_WS)}, {soff} offen"
    if sfast is None:
        a(line + " sc1")
    else:
        dual(a, sfast, [line])
    a("s_mov_b64 exec, -1")
    a("s_nop 1")

def stream_gemm(a, nsteps, na, nb, ACC, BUF, depth, VA, VB, SA, SB, SG, first=True, gate=None, hook=None):
    per = na + nb
    ng = nsteps // 4
    extra = []
    def group():
        a(f"""
        s_lshl_b32 s5, s{SG}, 12
        s_add_u32 s80, s{SA}, s5
        s_add_u32 s81, s{SB}, s5
        s_lshl_b32 s79, s{SG}, 7
        s_add_u32 s{SG}, s{SG}, 1
        s_cmp_eq_u32 s{SG}, {ng}
        s_cselect_b32 s{SG}, 0, s{SG}
        """)
    def issue_list(s):
        slot = BUF + (s % depth) * 4 * per
        imm = (s % 4) * 1024
        l = []
        for t in range(na):
            if gate and t == 1:
                l.append(f"buffer_load_dwordx4 {vr(slot+4*t,4)}, v{gate[1]}, {sr(gate[0])}, s79 offen offset:{(s%4)*32}")
            else:
                l.append(f"buffer_load_dwordx4 {vr(slot+4*t,4)}, v{VA+t}, {sr(S_WS)}, s80 offen offset:{imm}")
        for t in range(nb):
            l.append(f"buffer_load_dwordx4 {vr(slot+4*(na+t),4)}, v{VB+t}, {sr(S_WS)}, s81 offen offset:{imm}")
        return l
    for s in range(min(depth - 1, nsteps)):
        if s % 4 == 0: group()
        for l in issue_list(s): a(l)
    for s in range(nsteps):
        nxt = []
        if s + depth - 1 < nsteps:
            if (s + depth - 1) % 4 == 0: group()
            nxt = issue_list(s + depth - 1)
        if not ILV:
            for l in nxt: a(l)
            outstanding = min(depth - 1, nsteps - 1 - s)
        else:
            outstanding = min(depth - 2, nsteps - 1 - s)
        ex_ = sum(n for (s0, n) in extra if s <= s0 + depth - 1)
        a(f"s_waitcnt vmcnt({outstanding*per + ex_})")
        if hook:
            n = hook(s)
            if n: extra.append((s, n))
        slot = BUF + (s % depth) * 4 * per
        k = 0
        for at in range(na):
            for bt in range(nb):
                d = ACC + 16 * (at * nb + bt)
                c = "0" if (first and s == 0) else vr(d, 16)
                if not (os.environ.get("F2X") and s > 0):
                    a(f"v_mfma_f32_32x32x16_bf16 {vr(d,16)}, {vr(slot+4*at,4)}, {vr(slot+4*(na+bt),4)}, {c}")
                if os.environ.get("F2GAP") and not (at == na - 1 and bt == nb - 1): a(f"s_sleep {os.environ.get('F2GAP')}")
                if ILV and k < len(nxt): a(nxt[k])
                k += 1

def sigmoid(a, v):
    a(f"""
    v_mul_f32 v{v}, {f32bits(-LOG2E):#x}, v{v}
    v_exp_f32 v{v}, v{v}
    s_nop 0
    v_add_f32 v{v}, 1.0, v{v}
    v_rcp_f32 v{v}, v{v}
    s_nop 0
    """)

KORD = int(os.environ.get('KORD', '1'))
SEQ = int(os.environ.get('SEQ', '1'))
GPAR = int(os.environ.get('GPAR', '1'))
NEG = int(os.environ.get('NE', '7'))
ES = 3 if NEG <= 5 else 2
def gen(a):
    KN = NAME + "_kernel"
    a.raw(f".globl {KN}")
    a.raw(f".p2align {os.environ.get('KAL', '8')}")
    a.raw(f".type {KN},@function")
    a.label(KN)
    a(f"""
    s_cmp_ge_u32 s2, 256
    s_cbranch_scc1 L_end
    s_load_dwordx16 s[8:23], s[0:1], 0
    s_load_dwordx4 s[24:27], s[0:1], 64
    v_lshrrev_b32 v2, 6, v0
    v_and_b32 v1, 63, v0
    s_mov_b32 s{S_SPIN}, 0
    v_readfirstlane_b32 s40, v2
    s_and_b32 s3, s2, 7          ; j
    s_lshr_b32 s4, s2, 3         ; i
    s_and_b32 s43, s4, 3
    s_lshl_b32 s5, s3, 2
    s_add_u32 s41, s43, s5       ; h = tau = 4j + (i&3)
    s_lshr_b32 s42, s4, 2        ; c = phi = i>>2
    {"s_and_b32 s72, s41, 7" if KORD == 1 else ("s_and_b32 s72, s42, 4" if KORD == 2 else "s_mov_b32 s72, s42")}   ; first key block
    """)
    if PAM == "8x4":
        a("""
        s_lshr_b32 s5, s3, 1
        s_lshl_b32 s5, s5, 3
        s_and_b32 s6, s4, 7
        s_add_u32 s86, s5, s6        ; tb = 8(j>>1) + (i&7)
        s_and_b32 s5, s3, 1
        s_lshl_b32 s87, s5, 2
        s_lshr_b32 s7, s4, 3
        s_add_u32 s87, s87, s7       ; g = 4(j&1) + (i>>3)
        s_lshl_b32 s7, s7, 1
        """ + ("s_add_u32 s87, s7, s5" if GPAR == 1 else "s_xor_b32 s87, s5, 1\ns_add_u32 s87, s87, s7" if GPAR == 2 else "") + """
        s_add_u32 s49, s6, s7
        s_add_u32 s49, s49, s5
        s_and_b32 s49, s49, 7        ; rot
        """)
    elif PAM == "16x2":
        a("""
        s_lshr_b32 s5, s3, 2
        s_lshl_b32 s5, s5, 4
        s_and_b32 s6, s4, 15
        s_add_u32 s86, s5, s6        ; tb = 16(j>>2) + (i&15)
        s_and_b32 s5, s3, 3
        s_lshl_b32 s87, s5, 1
        s_lshr_b32 s7, s4, 4
        s_add_u32 s87, s87, s7       ; g = 2(j&3) + (i>>4)
        s_lshl_b32 s7, s7, 2
        s_add_u32 s49, s6, s7
        s_add_u32 s49, s49, s5
        s_and_b32 s49, s49, 7        ; rot = i + 4(i>>4) + (j&3)
        """)
    else:
        a("""
        s_mov_b32 s86, s4
        s_mov_b32 s87, s3
        s_add_u32 s49, s3, s4
        s_and_b32 s49, s49, 7
        """)
    a("v_lshlrev_b32 v2, 4, v1      ; v2 = lane*16")
    CODEW = int(os.environ.get("CODEW", "2"))
    if CODEW == 2:
        a(f"""
        s_getpc_b64 s[74:75]
        L_pc:
        s_mul_i32 s5, s4, 12
        s_add_u32 s5, s5, s40
        s_lshl_b32 s5, s5, 7
        s_min_u32 s5, s5, L_end-L_pc-64
        s_and_b32 s74, s74, -128
        v_lshl_add_u32 v3, v1, 6, s5
        s_mov_b64 exec, 3
        global_load_dword v63, v3, s[74:75]
        s_mov_b64 exec, -1
        """)
    a(f"""
    s_cmp_ge_u32 s40, 8
    s_cbranch_scc1 L_aux
    """)
    att = Asm(); att.uid = 10000
    attention_wave(att)
    aux = Asm(); aux.uid = 20000
    aux_wave(aux)
    ka = att.l.index("@SPLIT"); kx = aux.l.index("@SPLIT")
    a.l += att.l[:ka]
    a("s_branch L_att1")
    a.label("L_aux")
    a.l += aux.l[:kx]
    a("s_branch L_aux1")
    a.label("L_att1")
    a.l += att.l[ka+1:]
    a.label("L_aux1")
    a.l += aux.l[kx+1:]
    a.label("L_end")
    a("s_endpgm")

def late_start(a):
    stamp_begin(a)
    a(f"s_load_dword s{S_EP}, s[26:27], {EPOCH}")
    if int(os.environ.get("CODEW", "2")) == 1:
        L = a.new("L_pc")
        a(f"""
        s_getpc_b64 s[74:75]
        {L}:
        s_mul_i32 s5, s4, 12
        s_add_u32 s5, s5, s40
        s_lshl_b32 s5, s5, 7
        s_min_u32 s5, s5, L_end-{L}-64
        s_and_b32 s74, s74, -128
        s_load_dword s80, s[74:75], s5
        s_add_u32 s5, s5, 64
        s_load_dword s81, s[74:75], s5
        """)
    srd(a, S_WS, 26, WS_BYTES)
    a.raw("@SPLIT")

VXA = 8
VWA = 12
VMI = 13
VWA2 = 62
NSL = 4
PAM = os.environ.get('PAM', '8x4')
TBS = {'8x4': 3, '16x2': 4, '32x1': 5}[PAM]
SCHEDS = {
 "a": ({-1: [0, 1], 0: [2, 3], 1: [4], 2: [5], 3: [6], 4: [7, "P"]}, {-1: [0, 1, 2, 3, 4, 5, 6, 7, "r0", "r1"]}, 5),
 "b": ({-1: [0], 0: [1, 2], 1: [3, 4], 2: [5], 3: [6], 4: [7, "P"]}, {-1: [0, 1, 2, 3], 0: [4, 5, 6, 7, "r0", "r1"]}, 5),
 "c": ({-1: [0], 0: [1, 2, 3], 1: [4], 2: [5], 3: [6], 4: [7, "P"]}, {-1: [0, 1, 2, 3, 4, 5, 6, 7], 0: ["r0", "r1"]}, 5),
 "e": ({-1: [0, 1], 0: [2, 3], 1: [4], 2: [5], 3: [6], 4: [7, "P"]}, {-1: [0, 1, 2, 3], 0: [4, 5, "r0"], 1: [6, 7, "r1"]}, 5),
 "f": ({-1: [0, 1, 2, 3], 1: [4], 2: [5], 3: [6], 4: [7, "P"]}, {-1: [0, 1, "r0", "r1", 2, 3, 4], 0: [5], 1: [6], 2: [7]}, 4),
 "d": ({-1: [0, 1], 0: [2, 3], 1: [4], 2: [5], 3: [6], 4: [7, "P"]}, {-1: [0, 1, 2, 3, 4, 5, 6, 7], 4: ["r0", "r1"]}, 6),
}
SCHEDS["g"] = ({-1: [0, 1], 0: [2, 3, "R"], 1: [4, "P"], 2: [5], 3: [6], 4: [7], 5: ["S"]}, {-1: [0, 1, 2, 3], 0: [4, 5, "T"], 1: [6, 7]}, 5)
SCHEDS["h"] = ({-1: [0, 1], 0: [2, 3], 1: [4, "R"], 2: [5, "P"], 3: [6], 4: [7], 6: ["S"]}, {-1: [0, 1, 2, 3], 0: [4, 5, 6, 7, "T"]}, 5)
SCHEDS["i"] = ({-1: [0, 1, "R"], 0: [2, 3, "P"], 1: [4], 2: [5, "S"], 3: [6], 4: [7]}, {-1: [0, 1, 2, 3, "T"], 0: [4, 5], 1: [6, 7]}, 5)
W0 = {-1: [0, 1], 0: [2, 3], 1: [4], 2: [5], 3: [6]}
X0 = {-1: [0, 1, 2, 3], 0: [4, 5], 1: [6, 7]}
SCHEDS["j"] = ({**W0, 4: [7, "P", "R"], 7: ["S"]}, X0, 5)
SCHEDS["k"] = ({**W0, 4: [7, "P", "R"], 8: ["S"]}, X0, 5)
SCHEDS["l"] = ({**W0, 4: [7, "P", "R"], 8: ["S"]}, {**X0, 3: ["T"]}, 5)
SCHEDS["m"] = ({**W0, 4: [7, "P", "R"], 8: ["S"]}, {**X0, 2: ["T"]}, 5)
SCHEDS["n"] = ({**W0, 4: [7, "P"], 7: ["R"], 8: ["S"]}, X0, 5)
SCHEDS["o"] = ({**W0, 4: [7, "P", "R"], 8: ["S"]}, {**X0, 4: ["T"]}, 5)
SCHEDS["x"] = ({**W0, 4: [7]}, X0, 5)
SCHEDS["z"] = ({-1: [0, 1, 2], 0: [3], 1: [4], 2: [5], 3: [6], 4: [7]}, X0, 5)
SCHEDS["w"] = ({**W0, 4: [7]}, {-1: [0, 1, 2], 0: [3, 4], 1: [5, 6], 2: [7]}, 5)
SCHEDS["y"] = ({**W0, 4: [7], 9: ["P", "R"], 10: ["S"]}, X0, 5)
WSCHED, XSCHED, RLS = SCHEDS[os.environ.get("SCHED", "x")]
F1D = int(os.environ.get("F1D", "0"))
VD0, VD1 = 14, 15
ACCA = 64
XB = 80
WB = 96

def make_tag(a):
    a(f"""
    s_waitcnt lgkmcnt(0)
    s_mul_i32 s{S_TAG}, s{S_EP}, 0x9e3779b1
    s_add_u32 s{S_TAG}, s{S_TAG}, 0x7f4a7c15
    """)

def pa_addr(a):
    a(f"""
    v_and_b32 v3, 31, v1               ; m
    v_lshrrev_b32 v4, 5, v1            ; hh
    v_bfe_u32 v5, v1, 1, 3             ; (m>>1)&7
    v_xor_b32 v5, v5, v4
    v_lshlrev_b32 v3, 7, v3
    s_and_b32 s5, s40, 1
    s_lshl_b32 s5, s5, 12              ; tt*32*128
    s_add_u32 s5, s5, {L_X}
    v_add_u32 v3, s5, v3
    """)
    for ss in range(4):
        a(f"""
        v_xor_b32 v7, {2*ss}, v5
        v_lshl_add_u32 v{VXA+ss}, v7, 4, v3
        """)
    a(f"""
    v_bfe_u32 v7, v1, 2, 2
    v_lshl_add_u32 v7, v4, 3, v7       ; + 8hh
    v_lshlrev_b32 v{VWA}, 7, v7        ; row*128
    v_bfe_u32 v5, v1, 4, 1             ; g
    v_bfe_u32 v6, v1, 1, 1             ; (i&3)>>1
    v_lshl_add_u32 v6, v5, 1, v6
    v_bfe_u32 v5, v1, 3, 1
    s_lshr_b32 s5, s40, 1
    s_and_b32 s5, s5, 1                ; half
    v_xor_b32 v5, s5, v5
    v_lshl_add_u32 v6, v5, 2, v6       ; piece
    v_lshl_add_u32 v{VWA}, v6, 4, v{VWA}
    v_and_b32 v5, 1, v1
    v_lshl_add_u32 v{VWA}, v5, 3, v{VWA}
    s_lshr_b32 s5, s40, 2              ; part
    s_lshl_b32 s5, s5, 13
    v_add_u32 v{VWA}, s5, v{VWA}
    v_add_u32 v{VWA2}, {112*1024}, v{VWA}
    v_mov_b32 v{VMI}, {L_MISC}
    """)

def pa_reads(a, sig):
    so = WSLOT[sig % 4]
    wa = VWA if so < 65536 else VWA2
    so = so if so < 65536 else so - 112 * 1024
    xb = XB + 32 * (sig % 2); wb = WB + 32 * (sig % 2)
    for ss in range(4):
        a(f"""
        ds_read_b128 {vr(xb+4*ss,4)}, v{VXA+ss} offset:{sig*8192}
        ds_read_b64_tr_b16 {vr(wb+4*ss,2)}, v{wa} offset:{so + ss*2048}
        ds_read_b64_tr_b16 {vr(wb+4*ss+2,2)}, v{wa} offset:{so + ss*2048 + 512}
        """)
def pa_mfma(a, sig, vrole):
    xb = XB + 32 * (sig % 2); wb = WB + 32 * (sig % 2)
    for ss in range(4):
        c = "0" if (sig == 0 and ss == 0) else vr(ACCA, 16)
        if vrole:
            a(f"v_mfma_f32_32x32x16_bf16 {vr(ACCA,16)}, {vr(xb+4*ss,4)}, {vr(wb+4*ss,4)}, {c}")
        else:
            a(f"v_mfma_f32_32x32x16_bf16 {vr(ACCA,16)}, {vr(wb+4*ss,4)}, {vr(xb+4*ss,4)}, {c}")
NODEF = int(os.environ.get("NODEF", "7"))
def pa_compute(a, sig, vrole):
    pa_reads(a, sig)
    if 0 < sig <= NODEF:
        pa_mfma(a, sig - 1, vrole)
    a("s_waitcnt lgkmcnt(0)")
    if sig >= NODEF:
        pa_mfma(a, sig, vrole)

APOLL = int(os.environ.get('APOLL', '1'))
def attention_wave(a):
    a(f"""
    v_lshrrev_b32 v3, 3, v1            ; row = l>>3
    v_mul_u32_u24 v4, 3072, v3
    v_bfe_u32 v5, v1, 4, 1             ; (row>>1)&1
    v_lshlrev_b32 v5, 2, v5
    v_and_b32 v6, 7, v1
    v_xor_b32 v6, v6, v5
    v_lshl_add_u32 v{VD0}, v6, 4, v4
    s_mul_i32 s52, s40, {8*3072}
    s_lshl_b32 s5, s87, 7
    s_add_u32 s52, s52, s5
    s_lshl_b32 s53, s40, 10            ; lds base
    s_waitcnt lgkmcnt(0)
    """)
    srd(a, S_WQKV, 10, 512 * 3072)
    def wdma(sig):
        a(f"""
        s_add_u32 s5, s49, {sig}
        s_and_b32 s5, s5, 7
        s_mul_i32 s50, s5, {64*3072}
        s_add_u32 s50, s50, s52
        """)
        for p in range(3):
            a(f"""
            s_add_u32 m0, s53, {WSLOT[sig%4] + p*8192}
            s_add_u32 s51, s50, {p*1024}
            buffer_load_dwordx4 v{VD0}, {sr(S_WQKV)}, s51 offen lds
            """)
    wq = []
    def wissue(items):
        for it in items:
            if it == "P":
                a(f"""
                s_lshl_b32 s5, s42, 3
                s_add_u32 s5, s5, s40
                s_lshl_b32 s5, s5, 5
                s_add_u32 s5, s5, s41
                s_lshl_b32 s5, s5, 10
                s_add_u32 s5, s5, {OF}
                v_mov_b32 v20, -1
                v_mov_b32 v21, -1
                v_mov_b32 v22, -1
                v_mov_b32 v23, -1
                buffer_store_dwordx4 v[20:23], v2, {sr(S_WS)}, s5 offen sc1
                """)
                wq.append("P")
            elif it == "R":
                a("s_add_u32 s5, s59, 8192")
                for jq in range(2):
                    for jj in range(4):
                        a(f"buffer_load_dword v{R+4*jq+jj}, v{VRL}, {sr(S_SRC)}, {'s5' if jq else 's59'} offen offset:{jj*1024}")
                wq.extend(["R"] * 8)
            elif it == "S":
                last = max(k for k, e in enumerate(wq) if e == "R")
                a(f"""
                s_mov_b32 s{S_SRC}, s{S_WS}
                s_mov_b32 s{S_SRC+1}, s{S_WS+1}
                s_cmp_lt_u32 s73, 1152
                s_cselect_b32 s{S_SRC+2}, {WS_BYTES:#x}, 0
                s_mov_b32 s80, 0x05040100
                s_mov_b32 s81, 0x07060302
                s_waitcnt vmcnt({len(wq) - 1 - last})
                """)
                for jj in range(4):
                    a(f"v_perm_b32 v{F+jj}, v{R+2*jj+1}, v{R+2*jj}, s80")
                    a(f"v_perm_b32 v{F+4+jj}, v{R+2*jj+1}, v{R+2*jj}, s81")
                a(f"""
                buffer_store_dwordx4 {vr(F,4)}, v2, {sr(S_SRC)}, s79 offen sc1
                buffer_store_dwordx4 {vr(F+4,4)}, v2, {sr(S_SRC)}, s78 offen sc1
                """)
                wq.extend(["S"] * 2)
            else:
                wdma(it); wq.extend([it] * 3)
    XA = int(os.environ.get("XA", "0"))
    if XA:
        a(f"""
        v_lshlrev_b32 v4, 10, v3
        v_and_b32 v6, 7, v1
        v_lshrrev_b32 v5, 4, v1
        v_xor_b32 v6, v6, v5
        s_and_b32 s5, s40, 1
        s_lshl_b32 s5, s5, 2
        v_xor_b32 v6, s5, v6
        v_lshl_add_u32 v{VD1}, v6, 4, v4
        s_lshl_b32 s78, s86, 16
        s_lshl_b32 s5, s40, 13
        s_add_u32 s78, s78, s5
        """)
    for it in WSCHED[-1]:
        if isinstance(it, int):
            if it < XA:
                a(f"""
                s_add_u32 s5, s49, {it}
                s_and_b32 s5, s5, 7
                s_lshl_b32 s5, s5, 7
                s_add_u32 m0, s53, {L_X + it*8192}
                s_add_u32 s5, s5, s78
                buffer_load_dwordx4 v{VD1}, {sr(S_X)}, s5 offen lds
                """)
                wq.append(it)
            wissue([it])
    late_start(a)
    R = 144; F = 152; VRL = 63
    wissue([it for it in WSCHED[-1] if not isinstance(it, int)])
    make_tag(a)
    pa_addr(a)
    RLI = int(os.environ.get("RLI", "7"))
    for sig in range(8):
        last = max(k for k, e in enumerate(wq) if e == sig)
        a(f"s_waitcnt vmcnt({len(wq) - 1 - last})")
        if sig == 0 and not os.environ.get("TAILST"): stamp(a, 0)
        if sig <= 6: stamp(a, sig, pa=True)
        a("s_barrier")
        for it in WSCHED.get(sig, []):
            assert isinstance(it, str) or it - NSL < sig, (it, sig)
        if sig >= 4: stamp(a, sig - 4, pa=2)
        wissue(WSCHED.get(sig, []))
        pa_compute(a, sig, False)
    if not os.environ.get("TAILST"): stamp(a, 1)
    stamp(a, 5, pa=2)
    a(f"""
    s_lshr_b32 s5, s40, 1
    s_and_b32 s5, s5, 1
    s_lshl_b32 s5, s5, 1
    s_lshl_b32 s6, s87, 2
    s_add_u32 s5, s5, s6               ; head0
    s_lshl_b32 s5, s5, 6
    s_lshl_b32 s6, s86, 1
    s_add_u32 s5, s5, s6
    s_and_b32 s6, s40, 1
    s_add_u32 s5, s5, s6               ; head0*64 + T
    s_cmp_ge_u32 s40, 4
    s_cbranch_scc1 L_isk
    s_lshl_b32 s54, s5, 10
    s_add_u32 s54, s54, {QF}
    s_add_u32 s55, s54, {64*1024}
    s_mov_b32 s56, {f32bits(QSCALE):#x}
    s_branch L_qk
    L_isk:
    s_lshl_b32 s54, s5, 11
    s_add_u32 s54, s54, {KV}
    s_add_u32 s55, s54, {64*2048}
    s_mov_b32 s56, 1.0
    L_qk:
    s_nop 3
    """)
    for r in range(16):
        a(f"v_mul_f32 v{ACCA+r}, s56, v{ACCA+r}")
    for r in range(8):
        a(f"v_cvt_pk_bf16_f32 v{XB+r}, v{ACCA+2*r}, v{ACCA+2*r+1}")
    dual(a, 73, [f"buffer_store_dwordx4 {vr(XB,4)}, v2, {sr(S_WS)}, s54 offen",
                 f"buffer_store_dwordx4 {vr(XB+4,4)}, v2, {sr(S_WS)}, s55 offen"])
    Q = 8; KB = 16; VB = 24; P = 40; VKA = 56; VVA = 57; VG = 58; VMISC = 59; VPL = 60; VG2 = 61; VT = 160
    S = 64; NM = 96; O = 128; VIDX = 62
    E1, E2 = [int(x) for x in os.environ.get("EPOS", "6,11").split(",")]
    def slot(t, aq, last=False):
        Sc = S + 16 * aq; Sn = S + 16 * (1 - aq)
        tn = t if aq == 0 else t + 1
        Kc = KB + 4 * (tn % 2)
        Pc = P + 8 * aq; Pp = P + 8 * (1 - aq)
        Oc = O + 16 * aq; Op = O + 16 * (1 - aq)
        tp = t if aq == 1 else t - 1
        Vc = VB + 8 * (t % 2); Vp = VB + 8 * (tp % 2)
        noff = (t + 1) * 2048 if t < 3 else 16384
        def ex(i): a(f"v_exp_f32 v{Sc+i if i < 8 else Pc+i-8}, v{Sc+i}")
        if aq == 1: a("s_waitcnt lgkmcnt(0)")
        if not (last and aq == 1):
            a(f"v_mfma_f32_32x32x16_bf16 {vr(Sn,16)}, {vr(Kc,4)}, {vr(Q+4*(1-aq),4)}, {vr(NM+16*(1-aq),16)}")
        if aq == 0 and not last:
            a(f"ds_read_b128 {vr(KB+4*((t+1)%2),4)}, v{VKA} offset:{noff}")
        for i in range(E1): ex(i)
        a(f"v_smfmac_f32_32x32x32_bf16 {vr(Op,16)}, {vr(Vp+4,4)}, {vr(Pp,8)}, v{VIDX}")
        if aq == 0 and not last:
            Vn = VB + 8 * ((t + 1) % 2)
            a(f"""
            s_mov_b64 exec, s[74:75]
            ds_read_b128 {vr(Vn,4)}, v{VVA} offset:{noff+1024}
            ds_read_b128 {vr(Vn+4,4)}, v{VVA} offset:{noff+1536}
            s_mov_b64 exec, -1
            """)
        for i in range(E1, E2): ex(i)
        a(f"v_smfmac_f32_32x32x32_bf16 {vr(Oc,16)}, {vr(Vc,4)}, {vr(Sc,8)}, v{VIDX}")
        for i in range(E2, 16): ex(i)
    def advance():
        a(f"""
        v_add_u32 v{VKA}, 16384, v{VKA}
        v_add_u32 v{VVA}, 16384, v{VVA}
        """)
    def prog_wait(n, both=False, off=M_PROG):
        L = a.new("L_pw"); D = a.new("L_pwd")
        a.label(L)
        if both:
            a(f"""
            ds_read_b128 v[4:7], v{VMISC} offset:{off}
            s_waitcnt lgkmcnt(0)
            v_min_u32 v4, v4, v5
            v_min_u32 v6, v6, v7
            v_min_u32 v4, v4, v6
            """)
        else:
            a(f"""
            ds_read_b64 v[4:5], v{VPL} offset:{M_PROG}
            s_waitcnt lgkmcnt(0)
            v_min_u32 v4, v4, v5
            """)
        a(f"""
        s_nop 0
        v_readfirstlane_b32 s5, v4
        s_cmp_ge_u32 s5, {n}
        s_cbranch_scc1 {D}
        """)
        spin_guard(a, L, 1)
        a.label(D)
    a(f"""
    s_lshl_b32 s53, s40, 11            ; w*2048
    s_and_b32 s58, s40, 1              ; kh
    s_lshl_b32 s76, s87, 12
    s_add_u32 s76, s76, {FL1}          ; FL1[g]
    v_mov_b32 v{VMISC}, {L_MISC}
    s_lshl_b32 s5, s58, 3
    v_add_u32 v{VPL}, s5, v{VMISC}
    s_waitcnt vmcnt(0)
    """)
    DRY = int(os.environ.get("DRY", "0"))
    lds_add(a, VMISC, M_C1, 3)
    a(f"""
    s_cmp_lg_u32 s40, 0
    s_cbranch_scc1 L_nofl1
    """)
    lds_wait(a, VMISC, M_C1, 12, 3, sleep=1)
    a(f"""
    s_lshl_b32 s5, s86, 7
    s_add_u32 s5, s5, s76
    """)
    store_flag(a, "s5", VT, sfast=73)
    a.label("L_nofl1")
    stamp(a, 2)
    if DRY:
        a(f"""
        s_cmp_lg_u32 s40, 7
        s_cbranch_scc1 L_dryret
        """)
        srd(a, S_OUT, 22, 0)
        a(f"""
        s_mov_b32 s73, 1
        s_mov_b32 s79, s53
        s_mov_b32 s75, 0x1111
        s_mov_b32 s48, 0x1111
        s_mov_b32 s49, 0
        s_mov_b32 s53, -1
        s_mov_b32 s77, 1
        s_mov_b32 s57, 0
        v_mov_b32 v5, v2
        v_mov_b32 v6, v2
        v_add_u32 v15, {L_DRY}, v2
        v_mov_b32 v12, v15
        v_mov_b32 v11, {L_DRY + 4096}
        v_mov_b32 v162, v11
        s_branch L_proc
        L_dryback:
        s_mov_b32 s53, s79
        s_waitcnt vmcnt(0) lgkmcnt(0)
        s_nop 7
        s_nop 7
        v_mov_b32 v{VMISC}, {L_MISC}
        s_lshl_b32 s5, s58, 3
        v_add_u32 v{VPL}, s5, v{VMISC}
        L_dryret:
        """)
    stamp(a, 6, pa=2)
    wissue(WSCHED.get(8, []))
    a(f"""
    s_lshl_b32 s59, s58, 13            ; kh*8192
    v_add_u32 v{VKA}, s59, v2
    v_lshrrev_b32 v4, 5, v1
    v_and_b32 v5, 15, v1
    v_lshlrev_b32 v5, 4, v5
    v_lshl_add_u32 v{VVA}, v4, 8, v5
    v_add_u32 v{VVA}, s59, v{VVA}
    s_mov_b32 s74, 0x0000ffff
    s_mov_b32 s75, 0x0000ffff
    v_and_b32 v3, 31, v1
    v_cmp_eq_u32 vcc, 16, v3
    v_mov_b32 v4, 0x3f803f80
    s_lshl_b32 s5, s41, 6
    s_lshl_b32 s6, s42, 3
    s_lshl_b32 s7, s72, 3
    s_add_u32 s7, s7, s5               ; h*64 + 8 b0
    s_add_u32 s5, s5, s6               ; h*64 + 8c
    s_add_u32 s6, s7, s40
    s_lshl_b32 s54, s6, 11
    s_add_u32 s54, s54, {KV}
    s_add_u32 s6, s40, s5
    s_lshl_b32 s55, s6, 10
    s_add_u32 s55, s55, {QF}
    s_xor_b32 s59, s55, 1024
    """)
    for r in range(16):
        a(f"v_cndmask_b32 v{VB+r}, 0, v4, vcc")
    for r in range(32):
        a(f"v_mov_b32 v{O+r}, 0")
    for r in range(8):
        a(f"v_mov_b32 v{P+8+r}, 0")
    a(f"v_mov_b32 v{VIDX}, {os.environ.get('IDX', '0xdddddddd')}")
    a(f"""
    s_lshl_b32 s76, s3, 12
    s_add_u32 s76, s76, {FL1}          ; FL1[j]
    s_lshl_b32 s5, s72, 2
    s_sub_u32 s5, s5, 4
    v_add_u32 v7, s5, v1
    v_and_b32 v7, 31, v7
    s_lshl_b32 s5, s42, 2
    v_add_u32 v6, s5, v1
    v_cmp_gt_u32 vcc, 4, v1
    v_cndmask_b32 v7, v7, v6, vcc
    v_lshlrev_b32 v7, 7, v7
    s_add_u32 s6, s54, s53
    s_add_u32 s5, s72, 1
    s_and_b32 s5, s5, 7
    s_sub_u32 s5, s5, s72
    s_lshl_b32 s5, s5, 14
    s_add_u32 s56, s6, s5
    s_add_u32 s5, s72, 2
    s_and_b32 s5, s5, 7
    s_sub_u32 s5, s5, s72
    s_lshl_b32 s5, s5, 14
    s_add_u32 s57, s6, s5
    s_mov_b32 m0, s53
    s_sub_u32 s5, s40, 1
    s_cmp_ge_u32 s5, {int(os.environ.get("NPOLL", "1"))}
    s_cbranch_scc1 L_nopoll
    """)
    lds_wait(a, VMISC, M_C1, 12, 3, sleep=1)
    a(f"""
    s_sleep {int(os.environ.get("PSL", "8"))}
    s_cmp_eq_u32 s40, 1
    s_cbranch_scc1 L_qp
    s_sleep {int(os.environ.get("PSL2", "9"))}
    L_qp:
    ds_read_b32 v3, v{VMISC} offset:{M_QOK}
    s_waitcnt lgkmcnt(0)
    v_readfirstlane_b32 s5, v3
    s_cmp_lg_u32 s5, 0
    s_cbranch_scc1 L_nopoll
    s_mov_b64 exec, {0xffff if ES == 3 else 0xfff:#x}
    buffer_load_dword v{VT}, v7, {sr(S_WS)}, s76 offen sc1
    s_waitcnt vmcnt(0)
    v_cmp_ne_u32 vcc, s{S_TAG}, v{VT}
    s_mov_b64 exec, -1
    s_and_b32 s5, vcc_lo, 255
    s_cbranch_scc0 L_qok
    """)
    spin_guard(a, "L_qp", 3)
    a(f"""
    L_qok:
    s_cmp_eq_u32 vcc_lo, 0
    s_cselect_b32 s5, 3, 1
    v_mov_b32 v3, s5
    ds_max_u32 v{VMISC}, v3 offset:{M_QOK}
    L_nopoll:
    L_qw:
    ds_read_b32 v3, v{VMISC} offset:{M_QOK}
    s_waitcnt lgkmcnt(0)
    v_readfirstlane_b32 s48, v3
    s_cmp_lg_u32 s48, 0
    s_cbranch_scc1 L_qwd
    """)
    spin_guard(a, "L_qw", 1)
    a.label("L_qwd")
    stamp(a, 3)
    a(f"""
    buffer_load_dwordx4 v2, {sr(S_WS)}, s54 offen lds
    buffer_load_dwordx4 v2, {sr(S_WS)}, s54 offen offset:1024 lds
    buffer_load_dwordx4 {vr(Q+4,4)}, v2, {sr(S_WS)}, s55 offen
    buffer_load_dwordx4 {vr(Q,4)}, v2, {sr(S_WS)}, s59 offen
    s_cmp_ge_u32 s40, 4
    s_cbranch_scc1 L_young
    s_cmp_eq_u32 s48, 3
    s_cbranch_scc1 {"L_nop2" if SEQ else "L_q3"}
    s_cmp_lg_u32 s40, 1
    s_cbranch_scc1 L_nop2
    s_mov_b64 exec, {0xffff if ES == 3 else 0xfff:#x}
    buffer_load_dword v{VT}, v7, {sr(S_WS)}, s76 offen sc1
    s_mov_b64 exec, -1
    s_waitcnt vmcnt(3)
    """)
    lds_add(a, VMISC, M_S0, 3)
    a(f"""
    s_branch L_qp3
    L_qp2:
    s_mov_b64 exec, {0xffff if ES == 3 else 0xfff:#x}
    buffer_load_dword v{VT}, v7, {sr(S_WS)}, s76 offen sc1
    L_qp3:
    s_mov_b64 exec, {0xffff if ES == 3 else 0xfff:#x}
    s_waitcnt vmcnt(0)
    v_cmp_ne_u32 vcc, s{S_TAG}, v{VT}
    s_mov_b64 exec, -1
    s_cmp_eq_u32 vcc_lo, 0
    s_cbranch_scc1 L_qok2
    """)
    spin_guard(a, "L_qp2", 3)
    a(f"""
    L_qok2:
    v_mov_b32 v3, 3
    ds_write_b32 v{VMISC}, v3 offset:{M_QOK}
    s_branch L_q3
    L_nop2:
    s_waitcnt vmcnt(2)
    """)
    lds_add(a, VMISC, M_S0, 3)
    lds_wait(a, VMISC, M_QOK, 3, 3, sleep=1)
    a(f"""
    L_q3:
    s_lshl_b32 s6, s53, 1
    s_add_u32 m0, s6, 16384
    s_nop 0
    """)
    for k in range(4):
        a(f"buffer_load_dwordx4 v2, {sr(S_WS)}, s56 offen offset:{k*1024} lds")
    if ES == 3:
        a(f"""
        s_add_u32 m0, s6, 32768
        s_nop 0
        """)
        for k in range(4):
            a(f"buffer_load_dwordx4 v2, {sr(S_WS)}, s57 offen offset:{k*1024} lds")
    a(f"""
    s_cmp_lg_u32 s48, {7 if SEQ else 3}
    s_cbranch_scc1 L_s0done
    s_waitcnt vmcnt(10)
    """)
    lds_add(a, VMISC, M_S0, 3)
    a(f"""
    L_s0done:
    s_waitcnt vmcnt(0)
    """)
    lds_add(a, VMISC, M_S1, 3)
    a(f"""
    s_branch L_go
    L_young:
    s_waitcnt vmcnt(2)
    """)
    lds_add(a, VMISC, M_S0, 3)
    a(f"""
    s_waitcnt vmcnt(0)
    L_go:
    """)
    lds_wait(a, VMISC, M_S0, 8, 3, sleep=1)
    stamp(a, 4)
    a(f"""
    ds_read_b128 {vr(KB,4)}, v2
    s_waitcnt lgkmcnt(0)
    v_mfma_f32_32x32x16_bf16 {vr(S,16)}, {vr(KB,4)}, {vr(Q,4)}, 0
    v_mfma_f32_32x32x16_bf16 {vr(S+16,16)}, {vr(KB,4)}, {vr(Q+4,4)}, 0
    s_mov_b32 s77, 0
    s_nop 7
    """)
    a(f"""
    ds_read_b128 {vr(KB,4)}, v{VKA}
    s_mov_b64 exec, s[74:75]
    ds_read_b128 {vr(VB,4)}, v{VVA} offset:1024
    ds_read_b128 {vr(VB+4,4)}, v{VVA} offset:1536
    s_mov_b64 exec, -1
    s_nop 4
    """)
    for q in range(2):
        Sq = S + 16 * q
        a(f"v_max3_f32 v{3+q}, v{Sq}, v{Sq+1}, v{Sq+2}")
        for r in range(3, 15, 2):
            a(f"v_max3_f32 v{3+q}, v{3+q}, v{Sq+r}, v{Sq+r+1}")
        a(f"v_max_f32 v{3+q}, v{3+q}, v{Sq+15}")
    a(f"""
    v_mov_b32 v5, v3
    v_mov_b32 v6, v4
    s_nop 1
    v_permlane32_swap_b32 v3, v5
    v_permlane32_swap_b32 v4, v6
    s_nop 1
    v_max_f32 v3, v3, v5
    v_max_f32 v4, v4, v6
    """)
    for q in range(2):
        for r in range(16):
            a(f"v_sub_f32 v{NM+16*q+r}, 0, v{3+q}")
    a(f"""
    s_waitcnt lgkmcnt(0)
    v_mfma_f32_32x32x16_bf16 {vr(S,16)}, {vr(KB,4)}, {vr(Q,4)}, {vr(NM,16)}
    s_nop 7
    s_nop 4
    """)
    BAL = int(os.environ.get("BAL", "6"))
    BALT = int(os.environ.get("BALT", "22"))
    if BAL:
        a(f"""
        s_cmp_lt_u32 s40, 4
        s_cbranch_scc1 L_bal0
        s_setprio 1
        L_bal0:
        """)
    for t in range(3):
        slot(t, 0); slot(t, 1)
    lds_wait(a, VMISC, M_S1, 4, 4, sleep=1)
    slot(3, 0); slot(3, 1)
    advance()
    for t in range(4):
        if t == 3 and ES == 2: prog_wait(int(os.environ.get("KSP", "5")))
        slot(t, 0); slot(t, 1)
    advance()
    for t in range(3):
        slot(t, 0); slot(t, 1)
    KSP = int(os.environ.get("KSP", "5"))
    prog_wait(KSP)
    stamp(a, 5)
    slot(3, 0); slot(3, 1)
    advance()
    a("s_mov_b32 s79, 3")
    a.label("L_att_loop")
    for t in range(4):
        if t == 3 and KSP < 8:
            a(f"""
            s_cmp_lg_u32 s79, {KSP-1}
            s_cbranch_scc1 L_nokw
            """)
            prog_wait(8)
            a.label("L_nokw")
        if BALT and t == BALT % 4:
            a(f"""
            s_cmp_lg_u32 s79, {BALT // 4}
            s_cbranch_scc1 L_balt
            s_setprio 0
            L_balt:
            """)
        slot(t, 0); slot(t, 1)
    advance()
    a("""
    s_add_u32 s79, s79, 1
    s_cmp_lg_u32 s79, 4
    s_cbranch_scc1 L_nodead
    """)
    lds_add(a, VMISC, M_DEAD, 4)
    a("""
    L_nodead:
    s_cmp_lg_u32 s79, 6
    s_cbranch_scc1 L_nodead2
    """)
    lds_add(a, VMISC, M_DEAD2, 4)
    a.label("L_nodead2")
    if BAL:
        a(f"""
        s_cmp_lg_u32 s79, {BAL}
        s_cbranch_scc1 L_bal1
        s_setprio 0
        L_bal1:
        """)
    a(f"""
    s_cmp_lt_u32 s79, 7
    s_cbranch_scc1 L_att_loop
    s_setprio 3
    s_lshl_b32 s5, s42, 3
    s_add_u32 s5, s5, s40              ; T
    s_lshr_b32 s6, s5, 1
    s_lshl_b32 s6, s6, 7
    s_add_u32 s76, s6, {FLG}           ; FLG[tau]
    s_lshl_b32 s57, s5, 7
    s_add_u32 s57, s57, {GBUF}
    v_mov_b32 v{VPL}, 0
    """)
    s_keep = None
    lds_wait(a, VMISC, M_PZ, 4, VT)
    a(f"""
    v_and_b32 v3, 31, v1
    v_lshlrev_b32 v3, 2, v3
    buffer_load_dword v{VG}, v3, {sr(S_WS)}, s57 offen
    v_add_u32 v4, s53, v2
    v_add_u32 v4, {L_OX}, v4
    v_xor_b32 v5, 2048, v4
    v_lshlrev_b32 v7, 2, v1
    s_lshl_b32 s6, s40, 8
    s_add_u32 s6, s6, {L_LX}
    v_add_u32 v7, s6, v7
    v_xor_b32 v6, 256, v7
    s_lshl_b32 s6, s40, 2
    v_add_u32 v{VT+5}, s6, v{VMISC}
    v_xor_b32 v{VT+4}, 4, v{VT+5}
    v_mov_b32 v{VT+6}, 1
    v_mov_b32 v{VT}, s{S_TAG}
    v_mov_b32 v{VT+1}, s{S_TAG}
    v_mov_b32 v{VT+2}, s{S_TAG}
    v_mov_b32 v{VT+3}, s{S_TAG}
    s_lshl_b32 s5, s42, 3
    s_add_u32 s5, s5, s40              ; T
    s_lshl_b32 s5, s5, 5
    s_add_u32 s5, s5, s41              ; T*32 + h
    s_lshl_b32 s76, s5, 10
    s_add_u32 s76, s76, {OF}
    s_lshl_b32 s78, s5, 7
    s_add_u32 s78, s78, {FL3}
    s_mov_b32 s80, 0x53800000          ; 2^40
    s_mov_b32 s81, 0x7f000000          ; 2^127
    s_mov_b32 s57, 0xfffeffff
    s_setprio 0
    """)
    for t in range(4):
        if t == 3: a("s_setprio 3")
        slot(t, 0, t == 3); slot(t, 1, t == 3)
    a(f"""
    s_nop 1
    v_smfmac_f32_32x32x32_bf16 {vr(O+16,16)}, {vr(VB+12,4)}, {vr(P+8,8)}, v{VIDX}
    ds_write_b128 v5, {vr(O,4)}
    ds_write_b128 v5, {vr(O+4,4)} offset:1024
    ds_write_b32 v6, v{O+8}
    ds_write_b32 v{VT+4}, v{VT+6} offset:{M_PAIR}
    """)
    stamp(a, 6)
    a(f"""
    L_pw:
    ds_read_b32 v3, v{VT+5} offset:{M_PAIR}
    ds_read_b128 {vr(O,4)}, v4
    ds_read_b128 {vr(O+4,4)}, v4 offset:1024
    ds_read_b32 v{O+8}, v7
    s_waitcnt lgkmcnt(0)
    v_readfirstlane_b32 s5, v3
    s_cmp_eq_u32 s5, 1
    s_cbranch_scc1 L_pwd
    """)
    spin_guard(a, "L_pw", 0)
    a.label("L_pwd")
    if os.environ.get("TAILST"): stamp(a, 0)
    a(f"v_add_f32 v{O+8}, v{O+8}, v{O+24}")
    for r in range(8):
        a(f"v_add_f32 v{O+r}, v{O+r}, v{O+16+r}")
    a.label("L_att_check")
    a(f"""
    v_mov_b32 v3, v{O+8}
    v_add_f32 v4, |v{O}|, |v{O+1}|
    v_add_f32 v5, |v{O+2}|, |v{O+3}|
    v_permlane32_swap_b32 v{O+8}, v3
    v_add_f32 v6, |v{O+4}|, |v{O+5}|
    v_add_f32 v7, |v{O+6}|, |v{O+7}|
    v_rcp_f32 v3, v{O+8}
    v_add_f32 v4, v4, v5
    v_add_f32 v6, v6, v7
    v_add_f32 v4, v4, v6
    v_cmp_nle_f32 vcc, v{O+8}, s80
    v_cmp_nle_f32 s[48:49], v4, s81
    s_cmp_eq_u32 s77, 3
    s_cbranch_scc1 L_att_fin
    s_or_b64 vcc, vcc, s[48:49]
    s_cbranch_scc0 L_att_fin
    """)
    a(f"""
    s_mov_b32 s77, 3
    s_lshl_b32 s56, s41, 17
    s_add_u32 s56, s56, {KV}
    v_mov_b32 v{VKA}, v2
    v_mov_b32 v3, 0xff800000
    s_mov_b32 s79, 0
    L_fb_max:
    buffer_load_dwordx4 {vr(KB,4)}, v{VKA}, {sr(S_WS)}, s56 offen
    s_waitcnt vmcnt(0)
    v_mfma_f32_32x32x16_bf16 {vr(S,16)}, {vr(KB,4)}, {vr(Q+4,4)}, 0
    v_add_u32 v{VKA}, 2048, v{VKA}
    s_nop 7
    s_nop 7
    s_nop 3
    """)
    for r in range(0, 16, 2):
        a(f"v_max3_f32 v3, v3, v{S+r}, v{S+r+1}")
    a(f"""
    s_add_u32 s79, s79, 1
    s_cmp_lt_u32 s79, 64
    s_cbranch_scc1 L_fb_max
    v_mov_b32 v4, v3
    s_nop 1
    v_permlane32_swap_b32 v3, v4
    s_nop 1
    v_max_f32 v3, v3, v4
    """)
    for r in range(16):
        a(f"v_sub_f32 v{NM+r}, 0, v3")
        a(f"v_mov_b32 v{O+r}, 0")
    a(f"""
    v_mov_b32 v{VKA}, v2
    v_lshrrev_b32 v4, 5, v1
    v_and_b32 v5, 15, v1
    v_lshlrev_b32 v5, 4, v5
    v_lshl_add_u32 v{VVA}, v4, 8, v5
    s_mov_b32 s79, 0
    L_fb_loop:
    buffer_load_dwordx4 {vr(KB,4)}, v{VKA}, {sr(S_WS)}, s56 offen
    s_mov_b64 exec, s[74:75]
    buffer_load_dwordx4 {vr(VB,4)}, v{VVA}, {sr(S_WS)}, s56 offen offset:1024
    buffer_load_dwordx4 {vr(VB+4,4)}, v{VVA}, {sr(S_WS)}, s56 offen offset:1536
    s_mov_b64 exec, -1
    s_waitcnt vmcnt(0)
    v_mfma_f32_32x32x16_bf16 {vr(S,16)}, {vr(KB,4)}, {vr(Q+4,4)}, {vr(NM,16)}
    v_add_u32 v{VKA}, 2048, v{VKA}
    v_add_u32 v{VVA}, 2048, v{VVA}
    s_nop 7
    s_nop 7
    """)
    for r in range(16):
        a(f"v_exp_f32 v{S+r}, v{S+r}")
    a(f"""
    s_nop 3
    v_smfmac_f32_32x32x32_bf16 {vr(O,16)}, {vr(VB,4)}, {vr(S,8)}, v{VIDX}
    v_smfmac_f32_32x32x32_bf16 {vr(O,16)}, {vr(VB+4,4)}, {vr(S+8,8)}, v{VIDX}
    s_add_u32 s79, s79, 1
    s_cmp_lt_u32 s79, 64
    s_cbranch_scc1 L_fb_loop
    s_nop 7
    s_nop 7
    s_branch L_att_check
    L_att_fin:
    s_waitcnt vmcnt(0)
    v_mul_f32 v3, v3, v{VG}
    """)
    for r in range(8):
        a(f"v_mul_f32 v{O+r}, v{O+r}, v3")
    for r in range(4):
        a(f"v_cvt_pk_bf16_f32 v{P+r}, v{O+2*r}, v{O+2*r+1}")
    for r in range(4):
        a(f"v_min_u32 v{P+r}, s57, v{P+r}")
    a(f"""
    buffer_store_dwordx4 {vr(P,4)}, v2, {sr(S_WS)}, s76 offen sc1
    s_cmp_lg_u32 s58, 0
    s_cbranch_scc1 L_nofl3
    s_mov_b64 exec, 0xff
    buffer_store_dwordx4 {vr(VT,4)}, v2, {sr(S_WS)}, s78 offen sc1
    s_mov_b64 exec, -1
    """)
    a.label("L_nofl3")
    if os.environ.get("TAILST"): stamp(a, 1)
    a(f"""
    s_or_b32 s5, s2, s40
    s_cmp_lg_u32 s5, 0
    s_cbranch_scc1 L_nobump
    v_lshlrev_b32 v3, 7, v1
    """)
    for k in range(4):
        a(f"s_mov_b32 s58, {FL2 + k*8192}")
        poll_flags(a, 3, "s58", [(1, 0)], 9, sleep=12)
    a(f"""
    s_mov_b64 exec, 1
    s_add_u32 s5, s{S_EP}, 1
    v_mov_b32 v9, s5
    buffer_store_dword v9, v2, {sr(S_WS)}, 0 offen offset:{EPOCH} sc1
    s_mov_b64 exec, -1
    L_nobump:
    """)
    if APOLL:
        a(f"""
        s_andn2_b32 s5, s40, 2
        s_cmp_lg_u32 s5, 1
        s_cbranch_scc1 L_noap
        s_lshl_b32 s56, s41, 13
        s_lshr_b32 s5, s40, 1
        s_lshl_b32 s6, s5, 11
        s_add_u32 s56, s56, s6
        s_add_u32 s56, s56, {FL3}
        s_lshl_b32 s5, s5, 2
        v_add_u32 v14, s5, v{VMISC}
        v_lshlrev_b32 v7, 7, v1
        s_mov_b32 s59, 0
        L_ap:
        s_andn2_b32 s5, 0x1111, s59
        s_mul_i32 s58, s5, 15
        s_mov_b32 exec_lo, s58
        s_mov_b32 exec_hi, 0
        buffer_load_dword v3, v7, {sr(S_WS)}, s56 offen sc1
        s_waitcnt vmcnt(0)
        v_cmp_ne_u32 vcc, s{S_TAG}, v3
        s_mov_b64 exec, -1
        s_lshr_b32 s5, vcc_lo, 1
        s_or_b32 s5, s5, vcc_lo
        s_lshr_b32 s6, s5, 2
        s_or_b32 s5, s5, s6
        s_andn2_b32 s59, 0x1111, s5
        s_or_b32 s5, s59, 2
        v_mov_b32 v4, s5
        s_mov_b64 exec, 1
        ds_or_b32 v14, v4 offset:{M_RDY}
        s_mov_b64 exec, -1
        s_cmp_eq_u32 s59, 0x1111
        s_cbranch_scc1 L_noap
        """)
        spin_guard(a, "L_ap", int(os.environ.get("ASL", "1")))
        a.label("L_noap")
        a("s_waitcnt lgkmcnt(0)")
    stamp_end(a)
    a("s_endpgm")

def aux_wave(a):
    R = 144; F = 128; VRL = 167
    VWF = 160; VPOLL = 164; VFL = 165; VPG = 166
    S_W1 = S_WQKV; S_H = S_WQKV; S_G = S_OUT
    if os.environ.get("FAKEW1"):
        a("""
        s_add_u32 s16, s26, 0x4000000
        s_addc_u32 s17, s27, 0
        """)
    a(f"""
    s_setprio 3
    s_sub_u32 s43, s40, 8              ; u
    v_lshrrev_b32 v3, 3, v1
    v_lshlrev_b32 v3, 10, v3
    v_and_b32 v4, 7, v1
    v_lshrrev_b32 v5, 4, v1
    v_xor_b32 v4, v4, v5
    v_lshl_add_u32 v{VD0}, v4, 4, v3
    v_xor_b32 v4, 4, v4
    v_lshl_add_u32 v{VD1}, v4, 4, v3
    v_add_u32 v{VD1}, 8192, v{VD1}
    s_lshl_b32 s78, s86, 16
    s_lshl_b32 s5, s43, 14
    s_add_u32 s78, s78, s5
    s_lshl_b32 s79, s43, 11            ; lds rows 16u  (= u*2048)
    s_waitcnt lgkmcnt(0)
    """)
    srd(a, S_X, 8, 2048 * 1024)
    q = []
    def xdma(sig):
        a(f"""
        s_add_u32 s5, s49, {sig}
        s_and_b32 s5, s5, 7
        s_lshl_b32 s5, s5, 7
        s_add_u32 m0, s79, {L_X+sig*8192}
        s_add_u32 s50, s5, s78
        buffer_load_dwordx4 v{VD0}, {sr(S_X)}, s50 offen lds
        s_add_u32 m0, s79, {L_X+sig*8192+1024}
        s_nop 0
        buffer_load_dwordx4 v{VD1}, {sr(S_X)}, s50 offen lds
        """)
        q.extend([("x", sig)] * 2)
    XA = int(os.environ.get("XA", "0"))
    for it in XSCHED[-1]:
        if isinstance(it, int) and it >= XA: xdma(it)
    late_start(a)
    RE = int(os.environ.get("RE", "0"))
    VRS = 127; S_R2 = S_X
    E7 = int(os.environ.get("E7", "1"))
    def rl_loads():
        a(f"""
        s_lshl_b32 s74, s4, 2
        s_add_u32 s74, s74, s43
        s_lshl_b32 s74, s74, 3
        s_add_u32 s74, s74, s3             ; gw = (4i + u)*8 + j
        v_and_b32 v3, 31, v1               ; i
        v_lshrrev_b32 v4, 5, v1            ; hh
        v_lshlrev_b32 v4, 12, v4
        v_lshl_add_u32 v{VRL}, v3, 2, v4
        s_and_b32 s6, s74, 7               ; cb
        s_cmp_ge_u32 s74, 896
        s_cbranch_scc1 L_wo
        """)
        srd(a, S_SRC, 18, 1792 * 1024)
        srd(a, S_R2, 18, 0)
        a(f"""
        s_lshr_b32 s7, s74, 3              ; kstep
        s_mov_b32 s56, {112*1024}
        s_mov_b32 s57, {W2F}
        s_branch L_rl2
        L_wo:
        """)
        srd(a, S_SRC, 12, 512 * 1024)
        srd(a, S_R2, 12, 512 * 1024)
        a(f"""
        s_sub_u32 s5, s74, 896
        s_lshr_b32 s7, s5, 3
        s_lshl_b32 s7, s7, 1               ; kstep
        s_mov_b32 s56, {32*1024}
        s_mov_b32 s57, {WOF}
        L_rl2:
        s_lshl_b32 s59, s7, 14
        s_lshl_b32 s5, s6, 7
        s_add_u32 s59, s59, s5             ; src
        s_lshl_b32 s5, s6, 1
        s_mul_i32 s5, s5, s56
        s_add_u32 s57, s57, s5
        s_lshl_b32 s5, s7, 10
        s_add_u32 s57, s57, s5
        v_bfe_u32 v3, v1, 4, 1
        v_mul_lo_u32 v3, v3, s56
        v_lshrrev_b32 v4, 5, v1
        v_lshl_add_u32 v3, v4, 9, v3
        v_and_b32 v4, 15, v1
        v_lshl_add_u32 v{VRS}, v4, 4, v3
        """)
        for half in range(2):
            for jq in range(2):
                a(f"s_add_u32 s5, s59, {half*16384 + jq*8192}")
                for jj in range(4):
                    a(f"buffer_load_dword v{R+8*half+4*jq+jj}, v{VRL}, {sr(S_R2 if half else S_SRC)}, s5 offen offset:{jj*1024}")
    def touch():
        srd(a, S_W1, 16, 512 * 3584)
        a(f"""
        s_mul_i32 s5, s49, {64*3584}
        s_add_u32 s5, s5, s76
        v_mul_u32_u24 v3, 3584, v1
        buffer_load_dword v{VPOLL}, v3, {sr(S_W1)}, s5 offen
        buffer_load_dword v{VPOLL}, v3, {sr(S_W1)}, s5 offen offset:64
        """)
        q.extend([("t", 0)] * 2)
    a(f"""
    s_and_b32 s5, s4, 3
    s_lshl_b32 s5, s5, 1
    s_add_u32 s73, s5, s42
    s_lshr_b32 s5, s87, 1
    s_mul_i32 s76, s5, 7
    s_add_u32 s76, s76, s43
    s_and_b32 s5, s87, 1
    s_lshl_b32 s6, s5, 2
    s_add_u32 s76, s76, s6             ; slice
    s_mov_b32 s85, 0
    s_add_u32 s6, s6, s43
    s_cmp_lg_u32 s6, 7
    s_cbranch_scc1 L_role
    s_mov_b32 s85, 2
    s_cmp_lg_u32 s87, 1
    s_cbranch_scc1 L_role
    s_mov_b32 s85, 1
    L_role:
    s_mul_i32 s54, s86, {2*112*1024}
    s_lshl_b32 s5, s76, 12
    s_add_u32 s54, s54, s5
    s_add_u32 s54, s54, {HF}
    s_add_u32 s55, s54, {112*1024}
    s_lshl_b32 s76, s76, 7
    """)
    if "T" in XSCHED[-1]: touch()
    make_tag(a)
    pa_addr(a)
    a("s_setprio 0")
    def wait_for(tagv):
        last = max(k for k, e in enumerate(q) if e == tagv)
        a(f"s_waitcnt vmcnt({len(q) - 1 - last})")
    ENT = [136, 144, 112, 120, 128, 32, 40][:NEG]
    NE = len(ENT)
    def ent(n): return ENT[n % NE] * 1024
    def w1dma_list(n):
        sig, ss = n >> 2, n & 3
        l0 = ""
        if ss == 0:
            l0 = f"""
            s_add_u32 s5, s49, {sig}
            s_and_b32 s5, s5, 7
            s_mul_i32 s50, s5, {64*3584}
            s_add_u32 s50, s50, s76
            """
        l0 += f"""
        s_add_u32 m0, s79, {ent(n)}
        s_add_u32 s51, s50, {ss*16*3584}
        buffer_load_dwordx4 v{VD0}, {sr(S_W1)}, s51 offen lds
        """
        l1 = f"""
        s_add_u32 m0, s79, {ent(n)+1024}
        s_nop 0
        buffer_load_dwordx4 v{VD1}, {sr(S_W1)}, s51 offen lds
        """
        return [l0, l1]
    def w1dma(ns):
        LS = a.new("L_w1s")
        a(f"""
        s_cmp_lg_u32 s85, 0
        s_cbranch_scc1 {LS}
        """)
        for n in ns:
            for l in w1dma_list(n): a(l)
            q.extend([("w", n)] * 2)
        a.label(LS)
    for sig in range(8):
        if sig < XA: pass
        elif sig < 4: wait_for(("x", sig))
        elif sig == 4:
            wait_for(("x", 7))
            q.clear()
        if sig == 0 and not os.environ.get("TAILST"): stamp(a, 0)
        if sig <= 6: stamp(a, sig, pa=True)
        a("s_barrier")
        for it in XSCHED.get(sig, []):
            if isinstance(it, int): xdma(it)
            elif it == "T": touch()
        if RE and sig == RE: rl_loads()
        if sig == 4:
            srd(a, S_W1, 16, 512 * 3584)
            a(f"""
            v_lshrrev_b32 v3, 3, v1            ; row = l>>3
            v_mul_u32_u24 v4, 3584, v3
            v_bfe_u32 v5, v1, 4, 1
            v_lshlrev_b32 v5, 2, v5
            v_and_b32 v6, 7, v1
            v_xor_b32 v6, v6, v5
            v_lshl_add_u32 v{VD0}, v6, 4, v4
            v_add_u32 v{VD1}, {8*3584}, v{VD0}
            """)
        if sig >= 5: stamp(a, 2 * (sig - 5), pa=2)
        if sig == 5:
            if not F1D: w1dma([0, 1])
            srd(a, S_G, 20, 1024)
            a(f"""
            s_cmp_lg_u32 s85, 1
            s_cbranch_scc1 L_nogd
            s_lshl_b32 s5, s49, 3
            v_add_u32 v3, s5, v1
            v_and_b32 v3, 63, v3
            v_lshlrev_b32 v3, 4, v3
            s_add_u32 m0, s79, {ent(0)}
            s_nop 0
            buffer_load_dwordx4 v3, {sr(S_G)}, 0 offen lds
            L_nogd:
            v_mov_b32 v3, 0
            v_lshlrev_b32 v4, 2, v1
            v_add_u32 v4, {L_MISC}, v4
            ds_write_b32 v4, v3
            """)
        if sig == 6 and not F1D: w1dma(list(range(2, min(NE, 5))))
        if sig == 7 and NE > 5 and E7: w1dma(list(range(5, NE)))
        if sig == 6:
            a(f"""
            s_and_b32 s5, s43, 2
            s_lshl_b32 s6, s87, 2
            s_add_u32 s5, s5, s6
            s_lshl_b32 s5, s5, 6
            s_lshl_b32 s6, s86, 1
            s_add_u32 s5, s5, s6
            s_and_b32 s6, s43, 1
            s_add_u32 s5, s5, s6
            s_lshl_b32 s59, s5, 11
            s_add_u32 s59, s59, {KV}
            v_bfe_u32 v3, v1, 4, 1
            v_lshlrev_b32 v3, 17, v3
            v_lshrrev_b32 v5, 5, v1
            v_lshl_add_u32 v3, v5, 8, v3
            v_and_b32 v5, 15, v1
            v_lshl_add_u32 v3, v5, 4, v3
            v_and_b32 v{VWF}, 0x7ff, v{VWA}
            s_and_b32 s5, s43, 2
            s_lshl_b32 s5, s5, 5
            v_xor_b32 v{VWF}, s5, v{VWF}
            s_add_u32 s5, s79, {112*1024}
            v_add_u32 v{VWF}, s5, v{VWF}
            v_xor_b32 v{VWF+1}, 64, v{VWF}
            v_subrev_u32 v{VWF+2}, {112*1024}, v{VWF}
            v_subrev_u32 v{VWF+3}, {112*1024}, v{VWF+1}
            v_and_b32 v4, 31, v1
            v_lshlrev_b32 v{VFL}, 7, v4
            s_lshl_b32 s5, s43, 2
            v_add_u32 v{VPG}, s5, v{VMI}
            s_lshl_b32 s77, s3, 12
            s_add_u32 s77, s77, {FL1}          ; FL1[j]
            """)
        if sig == 7: a(f"s_setprio {int(os.environ.get('VPRIO', '0'))}")
        if sig >= 5: stamp(a, 2 * (sig - 5) + 1, pa=2)
        pa_compute(a, sig, True)
    a(f"""
    s_movk_i32 s5, 0xefff
    v_and_b32 v{VXA}, s5, v{VXA}
    v_and_b32 v{VXA+1}, s5, v{VXA+1}
    v_and_b32 v{VXA+2}, s5, v{VXA+2}
    v_and_b32 v{VXA+3}, s5, v{VXA+3}
    s_nop 7
    """)
    VS = 112
    for r in range(8):
        a(f"v_cvt_pk_bf16_f32 v{VS+r}, v{ACCA+2*r}, v{ACCA+2*r+1}")
    a(f"""
    s_nop 1
    v_permlane32_swap_b32 v{VS}, v{VS+2}
    v_permlane32_swap_b32 v{VS+1}, v{VS+3}
    v_permlane32_swap_b32 v{VS+4}, v{VS+6}
    v_permlane32_swap_b32 v{VS+5}, v{VS+7}
    s_nop 1
    buffer_store_dwordx4 {vr(VS,4)}, v3, {sr(S_WS)}, s59 offen offset:1024 sc1
    buffer_store_dwordx4 {vr(VS+4,4)}, v3, {sr(S_WS)}, s59 offen offset:1536 sc1
    """)
    q.extend([("v", 0)] * 2)
    stamp(a, 6, pa=2)
    VM = VMI
    ACC = 16; BUF = 80
    def fprog():
        a(f"""
        v_mov_b32 v3, 1
        ds_write_b32 v{VPG}, v3 offset:{M_FP}
        """)
    def pollld():
        a(f"buffer_load_dword v{VPOLL}, v{VFL}, {sr(S_WS)}, s77 offen sc1")
    a(f"""
    s_setprio {int(os.environ.get("F1PRIO", "2"))}
    s_cmp_eq_u32 s85, 1
    s_cbranch_scc1 L_f1g
    s_cmp_eq_u32 s85, 2
    s_cbranch_scc1 L_f1n
    """)
    if not E7:
        for n in range(5, NE):
            for l in w1dma_list(n): a(l)
            q.extend([("w", n)] * 2)
    if F1D:
        lds_wait(a, VM, M_C1 if F1D == 1 else M_S0, 8, 3, sleep=2)
        for n in range(NE):
            for l in w1dma_list(n): a(l)
            q.extend([("w", n)] * 2)
    def reads(n):
        b = BUF + 16 * (n % 2)
        e = ent(n) - 112 * 1024
        hi = 0
        if e < 0: e, hi = ent(n), 2
        xo = (n >> 2) * 8192
        return [f"ds_read_b64_tr_b16 {vr(b,2)}, v{VWF+hi} offset:{e}",
                f"ds_read_b64_tr_b16 {vr(b+2,2)}, v{VWF+hi} offset:{e+512}",
                f"ds_read_b128 {vr(b+8,4)}, v{VXA+(n&3)} offset:{xo}",
                f"ds_read_b128 {vr(b+12,4)}, v{VXA+(n&3)} offset:{xo+4096}",
                f"ds_read_b64_tr_b16 {vr(b+4,2)}, v{VWF+hi+1} offset:{e}",
                f"ds_read_b64_tr_b16 {vr(b+6,2)}, v{VWF+hi+1} offset:{e+512}"]
    wait_for(("w", 0))
    if not os.environ.get("TAILST"): stamp(a, 1)
    for l in reads(0): a(l)
    for n in range(32):
        b = BUF + 16 * (n % 2)
        def mf(at, bt):
            d = ACC + 16 * (2 * at + bt)
            c = "0" if n == 0 else vr(d, 16)
            a(f"v_mfma_f32_32x32x16_bf16 {vr(d,16)}, {vr(b+4*at,4)}, {vr(b+8+4*bt,4)}, {c}")
        a("s_waitcnt lgkmcnt(0)")
        mf(0, 0)
        rd = reads(n + 1) if n < 31 else []
        if rd: wait_for(("w", n + 1))
        for l in rd[:3]: a(l)
        mf(0, 1)
        for l in rd[3:]: a(l)
        if n == int(os.environ.get("VACK", "4")):
            wait_for(("v", 0))
            lds_add(a, VM, M_C1, 4)
        dl = w1dma_list(n + NE) if n + NE < 32 else []
        mf(1, 0)
        if dl:
            a(dl[0]); q.append(("w", n + NE))
        mf(1, 1)
        if dl:
            a(dl[1]); q.append(("w", n + NE))
        if n == 27:
            pollld(); q.append(("p", 0))
    a("s_branch L_f1done")
    a.label("L_f1g")
    a(f"""
    v_lshrrev_b32 v4, 5, v1
    v_lshlrev_b32 v4, 4, v4
    s_add_u32 s5, s79, {ent(0)}
    v_add_u32 v4, s5, v4
    s_waitcnt vmcnt(0)
    """)
    lds_add(a, VM, M_C1, 5)
    for sg in range(8):
        for ss in range(4):
            n = 4 * sg + ss
            b = BUF + 12 * ss
            a(f"""
            ds_read_b128 {vr(b,4)}, v4 offset:{n*32}
            ds_read_b128 {vr(b+4,4)}, v{VXA+ss} offset:{sg*8192}
            ds_read_b128 {vr(b+8,4)}, v{VXA+ss} offset:{sg*8192+4096}
            """)
        a("s_waitcnt lgkmcnt(0)")
        for ss in range(4):
            b = BUF + 12 * ss
            for bt in range(2):
                d = ACC + 16 * bt
                c = "0" if (sg == 0 and ss == 0) else vr(d, 16)
                a(f"v_mfma_f32_32x32x16_bf16 {vr(d,16)}, {vr(b,4)}, {vr(b+4+4*bt,4)}, {c}")
    a(f"""
    v_cmp_gt_u32 vcc, 32, v1
    s_nop 7
    s_nop 7
    v_cndmask_b32 v8, v{ACC+16}, v{ACC}, vcc
    """)
    sigmoid(a, 8)
    a("s_branch L_f1w")
    a.label("L_f1n")
    a("s_waitcnt vmcnt(0)")
    lds_add(a, VM, M_C1, 5)
    a.label("L_f1w")
    lds_wait(a, VM, M_QOK, 3, 3, sleep=4)
    pollld()
    a.label("L_f1done")
    a("s_setprio 3")
    lds_add(a, VM, M_F1C, 3)
    if not os.environ.get("TAILST"): stamp(a, 2)
    stamp(a, 0, pa=3)
    a(f"""
    s_mov_b32 s{S_H}, s{S_WS}
    s_mov_b32 s{S_H+1}, s{S_WS+1}
    s_cmp_eq_u32 s85, 0
    s_cselect_b32 s{S_H+2}, {WS_BYTES:#x}, 0
    s_mov_b32 s{S_G}, s{S_WS}
    s_mov_b32 s{S_G+1}, s{S_WS+1}
    s_cmp_eq_u32 s85, 1
    s_cselect_b32 s{S_G+2}, {WS_BYTES:#x}, 0
    s_nop 5
    s_lshl_b32 s5, s41, 17
    s_lshl_b32 s52, s43, 12
    s_add_u32 s53, s5, s52
    s_add_u32 s53, s53, {KV}
    s_lshl_b32 s58, s86, 8
    s_add_u32 s58, s58, {GBUF}
    v_lshlrev_b32 v9, 2, v1
    s_nop 3
    """)
    stores = []
    for at in range(2):
        for bt in range(2):
            d = ACC + 16 * (at * 2 + bt)
            o = BUF + 8 * (at * 2 + bt)
            for r in range(8):
                a(f"v_cvt_pk_bf16_f32 v{o+r}, v{d+2*r}, v{d+2*r+1}")
            for r in range(8):
                a(f"v_pk_max_i16 v{o+r}, v{o+r}, 0")
            for half in range(2):
                stores.append(f"buffer_store_dwordx4 {vr(o+4*half,4)}, v2, {sr(S_H)}, s{54+bt} offen offset:{(2*at+half)*1024} sc1")
    stores.append(f"buffer_store_dword v8, v9, {sr(S_G)}, s58 offen sc1")
    a("s_waitcnt vmcnt(0)")
    a(f"""
    v_cmp_ne_u32 vcc, s{S_TAG}, v{VPOLL}
    s_cmp_eq_u64 vcc, 0
    s_cbranch_scc1 L_allok
    """)
    poll_flags(a, VFL, "s77", [(1, 0)], VPOLL, sleep=3)
    a.label("L_allok")
    lds_wait(a, VM, M_C1, 12, 3, sleep=1)
    lds_wait(a, VM, M_F1C, 4, 3, sleep=1)
    AW = int(os.environ.get("AW", "2"))
    if AW == 1: lds_wait(a, VM, M_S0, 8, 3, sleep=1)
    if AW == 2: lds_wait(a, VM, M_S1, 4, 3, sleep=1)
    def kvdma(sg):
        a(f"""
        s_add_u32 s6, s72, {sg}
        s_and_b32 s6, s6, 7
        s_lshl_b32 s6, s6, 14
        s_add_u32 m0, s52, {sg*16384}
        s_add_u32 s6, s6, s53
        """)
        for k in range(4):
            a(f"buffer_load_dwordx4 v2, {sr(S_WS)}, s6 offen offset:{k*1024} lds")
    def prog(n):
        a(f"""
        v_mov_b32 v10, {n}
        ds_write_b32 v{VPG}, v10 offset:{M_PROG}
        """)
    stamp(a, 1, pa=3)
    KSP = int(os.environ.get("KSP", "5"))
    for sg in range(ES, KSP):
        kvdma(sg)
    AX = int(os.environ.get("AX", "0"))
    if AX == 1: lds_wait(a, VM, M_S1, 4, 3, sleep=1)
    if AX == 2:
        a("s_waitcnt vmcnt(0)")
        prog(KSP)
    if not RE: rl_loads()
    if AX == 3:
        a("s_waitcnt vmcnt(16)")
        prog(KSP)
    for l in stores: a(l)
    a(f"""
    s_mov_b32 s{S_R2}, s{S_WS}
    s_mov_b32 s{S_R2+1}, s{S_WS+1}
    s_cmp_ge_u32 s74, 896
    s_cselect_b32 s{S_R2+2}, {WS_BYTES:#x}, 0
    s_mov_b32 s80, 0x05040100
    s_mov_b32 s81, 0x07060302
    """)
    stamp(a, 2, pa=3)
    a(f"s_waitcnt vmcnt({(0 if RE else 16)+len(stores)})")
    prog(KSP)
    if not os.environ.get("TAILST"): stamp(a, 6)
    stamp(a, 3, pa=3)
    a(f"s_waitcnt vmcnt({len(stores)})")
    stamp(a, 4, pa=3)
    for half in range(2):
        for jj in range(4):
            A = R + 8 * half + 2 * jj
            a(f"v_perm_b32 v{F+8*half+jj}, v{A+1}, v{A}, s80")
            a(f"v_perm_b32 v{F+8*half+4+jj}, v{A+1}, v{A}, s81")
        sd = S_R2 if half else S_WS
        a(f"buffer_store_dwordx4 {vr(F+8*half,4)}, v{VRS}, {sr(sd)}, s57 offen offset:{half*1024} sc1")
        a(f"buffer_store_dwordx4 {vr(F+8*half+4,4)}, v{VRS}, {sr(sd)}, s57 offen offset:{half*1024+256} sc1")
    for sg in range(KSP, 8):
        kvdma(sg)
    a(f"""
    s_waitcnt vmcnt({4*(8-KSP)})
    s_mov_b64 exec, 1
    v_mov_b32 v8, 1
    ds_add_rtn_u32 v8, v{VM}, v8 offset:{M_E2}
    s_waitcnt lgkmcnt(0)
    s_mov_b64 exec, -1
    v_readfirstlane_b32 s5, v8
    s_cmp_lg_u32 s5, 3
    s_cbranch_scc1 L_e2skip
    s_lshl_b32 s5, s2, 7
    s_add_u32 s5, s5, {FL2}
    """)
    store_flag(a, "s5", BUF)
    a.label("L_e2skip")
    stamp(a, 5, pa=3)
    if KSP < 8:
        a("s_waitcnt vmcnt(0)")
        prog(8)
    a(f"""
    """)
    a(f"""
    s_mul_i32 s5, s43, 7
    s_lshl_b32 s50, 0x7f, s5
    s_lshl_b32 s5, 0x10000000, s43
    s_or_b32 s50, s50, s5
    s_lshl_b32 s5, s43, 1
    s_lshl_b32 s51, 3, s5
    s_lshl_b32 s5, 0x100, s43
    s_or_b32 s51, s51, s5
    v_and_b32 v3, 7, v1
    s_lshl_b32 s5, s42, 2
    v_add_u32 v4, s5, v3               ; 4c + k
    v_mov_b32 v5, s41
    v_cmp_lt_u32 vcc, 39, v1
    v_cndmask_b32 v4, v5, v4, vcc      ; tb
    v_cndmask_b32 v3, v3, 1, vcc       ; g
    v_lshrrev_b32 v5, {TBS}, v4
    v_lshlrev_b32 v5, {TBS-2}, v5
    {"v_and_b32 v6, 1, v3" if GPAR else "v_lshrrev_b32 v6, %d, v3" % (5-TBS)}
    {"v_xor_b32 v6, 1, v6" if GPAR == 2 else ""}
    v_add_u32 v5, v5, v6               ; j
    {"v_lshrrev_b32 v6, 1, v3" if GPAR else "v_and_b32 v6, %d, v3" % ((1<<(5-TBS))-1)}
    v_lshlrev_b32 v6, {TBS}, v6
    v_and_b32 v4, {(1<<TBS)-1}, v4
    v_add_u32 v6, v6, v4               ; i
    v_lshl_add_u32 v4, v6, 3, v5
    v_lshlrev_b32 v7, 3, v1
    v_add_u32 v7, s42, v7
    v_cmp_lt_u32 vcc, 31, v1
    v_cndmask_b32 v7, v7, v4, vcc
    v_lshlrev_b32 v7, 7, v7
    s_mov_b32 s58, {FL2}
    """)
    lds_wait(a, VM, M_E2, 4, 6, sleep=4)
    a(f"""
    s_sleep {int(os.environ.get('ESL', '8'))}
    L_e2p:
    s_mov_b64 exec, s[50:51]
    buffer_load_dword v{BUF}, v7, {sr(S_WS)}, s58 offen sc1
    s_waitcnt vmcnt(0)
    v_cmp_ne_u32 vcc, s{S_TAG}, v{BUF}
    s_mov_b64 exec, -1
    s_cmp_eq_u64 vcc, 0
    s_cbranch_scc1 L_e2ok
    """)
    spin_guard(a, "L_e2p", int(os.environ.get('ESL2', '10')))
    a.label("L_e2ok")
    if not os.environ.get("TAILST"): stamp(a, 3)
    stamp(a, 6, pa=3)
    a(f"""
    v_and_b32 v3, 31, v1
    v_lshlrev_b32 v3, 2, v3
    s_lshl_b32 s58, s41, 8
    s_and_b32 s5, s43, 1
    s_lshl_b32 s5, s5, 7
    s_add_u32 s58, s58, s5
    s_add_u32 s58, s58, {GBUF}
    v_mov_b32 v10, v3
    s_lshl_b32 s5, s42, 3
    s_lshl_b32 s6, s43, 1
    s_add_u32 s5, s5, s6
    s_lshl_b32 s5, s5, 5
    s_add_u32 s5, s5, s41
    s_lshl_b32 s5, s5, 10
    s_add_u32 s5, s5, {OF}
    s_add_u32 s6, s5, 32768
    v_mov_b32 v160, -1
    v_mov_b32 v161, -1
    v_mov_b32 v162, -1
    v_mov_b32 v163, -1
    buffer_store_dwordx4 v[160:163], v2, {sr(S_WS)}, s5 offen sc1
    buffer_store_dwordx4 v[160:163], v2, {sr(S_WS)}, s6 offen sc1
    s_lshr_b32 s50, s43, 1             ; kh
    s_and_b32 s51, s43, 1              ; bt
    s_mul_i32 s5, s50, {112*1024}
    v_add_u32 v4, s5, v2
    s_sub_u32 s5, {112*1024}, s5
    v_add_u32 v5, s5, v2
    s_mul_i32 s5, s51, {112*1024}
    v_add_u32 v6, s5, v2
    s_sub_u32 s5, {112*1024}, s5
    v_add_u32 v7, s5, v2
    s_mul_i32 s5, s43, {28*1024}
    s_mul_i32 s52, s42, {2*112*1024}
    s_add_u32 s52, s52, s5
    s_add_u32 s52, s52, {W2F}
    s_mul_i32 s53, s41, {2*112*1024}
    s_add_u32 s53, s53, s5
    s_add_u32 s53, s53, {HF}
    s_lshl_b32 s54, s42, 1
    s_lshr_b32 s5, s43, 1
    s_add_u32 s54, s54, s5             ; c tile
    s_lshl_b32 s54, s54, 15
    s_add_u32 s54, s54, {WOF}
    s_lshl_b32 s55, s41, 1
    s_and_b32 s5, s43, 1
    s_add_u32 s55, s55, s5
    s_lshl_b32 s56, s55, 12
    s_add_u32 s56, s56, {FL3}
    s_lshl_b32 s55, s55, 15
    s_add_u32 s55, s55, {OF}
    s_sub_u32 s78, s73, 7
    s_cmp_ge_u32 s73, 7
    s_cselect_b32 s78, s78, s73
    """)
    a(f"s_setprio {FPRIO}")
    WOS = int(os.environ.get("WOS", "20"))
    def wo_stage():
        a(f"""
        s_lshl_b32 s6, s43, 14
        s_lshl_b32 s7, s42, 16
        s_add_u32 s7, s7, s6
        s_add_u32 s7, s7, {WOF}
        """)
        lds_wait(a, VM, M_PZ, 4, 9, sleep=4)
        a(f"buffer_load_dword v10, v10, {sr(S_WS)}, s58 offen")
        lds_wait(a, VM, M_DEAD, 8, 9, sleep=4)
        for sg in range(4):
            a(f"""
            s_add_u32 m0, s6, {sg*4096}
            s_add_u32 s5, s7, {sg*4096}
            """)
            for q in range(4):
                a(f"buffer_load_dwordx4 v2, {sr(S_WS)}, s5 offen offset:{q*1024} lds")
        return 17
    def f2hook(st):
        if st == 1: lds_add(a, VM, M_PZ, 9)
        if st == WOS + 5: lds_add(a, VM, M_W, 9)
        if st == WOS: return wo_stage()
    stream_gemm(a, 28, 2, 2, ACC, BUF, 5, 4, 6, 52, 53, 78, hook=f2hook)
    a("s_setprio 3")
    stamp(a, 4)
    stamp(a, 0, pa=4)
    X = ACC; Y = ACC + 32
    SET = 80
    HB = [ACC + 16, ACC + 48]
    MG = 144
    assert WOS + 5 < 28
    srd(a, S_OUT, 22, 2048 * 1024)
    a(f"""
    s_lshl_b32 s5, s50, 2
    v_add_u32 v14, s5, v{VM}
    ds_read_b32 v160, v14 offset:{M_RDY}
    s_lshl_b32 s5, s43, 13
    s_add_u32 s5, s5, 65536
    v_add_u32 v15, s5, v2
    v_xor_b32 v161, 8192, v15
    v_xor_b32 v12, 16384, v15
    s_lshl_b32 s5, s43, 2
    v_add_u32 v11, s5, v{VM}
    v_xor_b32 v8, 4, v11
    v_xor_b32 v162, 8, v11
    s_sub_u32 s57, s55, {OF}           ; T*32768 = 32 tokens * 1024
    s_sub_u32 s5, s54, {WOF}
    s_lshr_b32 s5, s5, 9               ; ct*64
    s_add_u32 s57, s57, s5
    v_and_b32 v3, 31, v1
    v_lshlrev_b32 v6, 10, v3
    v_lshrrev_b32 v4, 5, v1
    v_lshl_add_u32 v6, v4, 4, v6
    v_lshlrev_b32 v7, 7, v3
    s_lshl_b32 s5, s50, 11
    s_add_u32 s56, s56, s5
    s_lshl_b32 s5, s50, 14
    s_add_u32 s55, s55, s5
    s_mul_i32 s5, s50, {32768+16384}
    v_add_u32 v5, s5, v2
    s_mov_b32 s48, 0x1111
    s_mov_b32 s75, 0                   ; landed
    s_mov_b32 s77, 0
    v_sub_f32 v10, 1.0, v10
    s_waitcnt lgkmcnt(0)
    v_readfirstlane_b32 s49, v160
    s_and_b32 s49, s49, s48
    """)
    def oissue(sm, tag):
        for j in range(4):
            o = SET + 16 * j
            a(f"""
            s_bitcmp1_b32 {sm}, {4*j}
            s_cbranch_scc0 L_oi{tag}{j}
            s_add_u32 s6, s55, {j*4096}
            """)
            for q in range(4):
                a(f"buffer_load_dwordx4 {vr(o+4*q,4)}, v2, {sr(S_WS)}, s6 offen offset:{q*1024} sc1")
            a.label(f"L_oi{tag}{j}")
    oissue("s49", "a")
    stamp(a, 1, pa=4)
    lds_wait(a, VM, M_DEAD2, 8, 9, sleep=2)
    stamp(a, 2, pa=4)
    for t in range(2):
        for q in range(4):
            a(f"ds_write_b128 v161, {vr(ACC+16+32*t+4*q,4)} offset:{t*4096+q*1024}")
    a(f"""
    v_mov_b32 v9, 1
    ds_write_b32 v8, v9 offset:{M_XP}
    """)
    stamp(a, 3, pa=4)
    for t in range(2):
        for r in range(16):
            a(f"v_mul_f32 v{ACC+32*t+r}, v{ACC+32*t+r}, v10")
    stamp(a, 5, pa=4)
    lds_wait(a, VM, M_W, 4, 9, sleep=2)
    if os.environ.get("TAILST"): stamp(a, 0)
    stamp(a, 6, pa=4)
    def merge(block):
        L = a.new("L_mg"); D = a.new("L_mgd"); G = a.new("L_mgo")
        a(f"""
        s_cmp_lg_u32 s77, 0
        s_cbranch_scc1 {D}
        {L}:
        ds_read_b32 v3, v11 offset:{M_XP}
        """)
        for q in range(4):
            a(f"ds_read_b128 {vr(MG+4*q,4)}, v15 offset:{q*1024}")
        a(f"""
        s_waitcnt lgkmcnt(0)
        v_readfirstlane_b32 s77, v3
        s_cmp_lg_u32 s77, 0
        s_cbranch_scc1 {G}
        """)
        if block: spin_guard(a, L, 1)
        else: a(f"s_branch {D}")
        a.label(G)
        for r in range(16):
            a(f"v_fmac_f32 v{X+r}, v{MG+r}, v10")
        for q in range(4):
            a(f"ds_read_b128 {vr(MG+4*q,4)}, v15 offset:{4096+q*1024}")
        a("s_waitcnt lgkmcnt(0)")
        for r in range(16):
            a(f"v_fmac_f32 v{Y+r}, v{MG+r}, v10")
        a.label(D)
    def setaddr(sb):
        a(f"""
        s_lshl_b32 s5, {sb}, 10
        v_add_u32 v8, s5, v5
        v_xor_b32 v9, 32768, v8
        """)
    def rd(h):
        b = HB[h]
        a(f"ds_read_b128 {vr(b,4)}, v8 offset:{h*2048}")
        a(f"ds_read_b128 {vr(b+4,4)}, v9 offset:{h*2048}")
        a(f"ds_read_b128 {vr(b+8,4)}, v8 offset:{h*2048+1024}")
        a(f"ds_read_b128 {vr(b+12,4)}, v9 offset:{h*2048+1024}")
    a(f"""
    s_mov_b32 s53, -1
    s_mov_b32 s73, 0
    L_op:
    ds_read_b32 v3, v14 offset:{M_RDY}
    s_or_b32 s6, s49, s75
    s_waitcnt lgkmcnt(0)
    v_readfirstlane_b32 s59, v3
    s_and_b32 s58, s59, s48
    s_bcnt1_i32_b32 s5, s48
    s_cmp_le_u32 s5, {int(os.environ.get("DP", "0"))}
    s_cselect_b32 s58, s48, s58
    s_andn2_b32 s58, s58, s6           ; new
    s_cbranch_scc0 L_noiss
    """)
    if os.environ.get("TAILST"): stamp(a, 1)
    oissue("s58", "b")
    a(f"""
    s_or_b32 s49, s49, s58
    L_noiss:
    s_cmp_lg_u32 s75, 0
    s_cbranch_scc1 L_proc
    """)
    merge(False)
    a(f"""
    s_cmp_lg_u32 s49, 0
    s_cbranch_scc1 L_owait
    s_andn2_b32 s5, s59, 0x1111
    s_or_b32 s5, s5, s51
    s_cbranch_scc1 L_oidle
    s_andn2_b32 s5, 0x1111, s59
    s_mul_i32 s5, s5, 15
    s_or_b32 exec_lo, s5, 1
    s_mov_b32 exec_hi, 0
    buffer_load_dword v3, v7, {sr(S_WS)}, s56 offen sc1
    s_waitcnt vmcnt(0)
    v_cmp_ne_u32 vcc, s{S_TAG}, v3
    s_lshr_b32 s5, vcc_lo, 1
    s_or_b32 s5, s5, vcc_lo
    s_lshr_b32 s6, s5, 2
    s_or_b32 s5, s5, s6
    s_andn2_b32 s5, 0x1111, s5
    v_mov_b32 v4, s5
    s_mov_b64 exec, 1
    ds_or_b32 v14, v4 offset:{M_RDY}
    s_mov_b64 exec, -1
    s_cmp_lg_u32 s5, s59
    s_cbranch_scc1 L_op
    s_sleep {int(os.environ.get("OSL", "4"))}
    L_oidle:
    """)
    spin_guard(a, "L_op", 1)
    a(f"""
    L_owait:
    s_mov_b32 s75, s49
    s_mov_b32 s49, 0
    s_ff1_i32_b32 s52, s75
    s_cmp_eq_u32 s52, s53
    s_cbranch_scc1 L_ow2
    s_mov_b32 s53, s52
    """)
    setaddr("s53"); rd(0); rd(1)
    a(f"""
    L_ow2:
    s_waitcnt vmcnt(0)
    L_proc:
    """)
    if os.environ.get("TAILST"): stamp(a, 2)
    a(f"""
    s_ff1_i32_b32 s52, s75
    s_bitset0_b32 s75, s52
    s_cmp_eq_u32 s52, s53
    s_cbranch_scc1 L_pr2
    s_mov_b32 s53, s52
    """)
    setaddr("s53"); rd(0); rd(1)
    a(f"""
    L_pr2:
    s_cmp_lg_u32 s75, 0
    s_cselect_b32 s5, s75, s49
    s_ff1_i32_b32 s74, s5
    s_max_i32 s74, s74, 0
    s_or_b32 s6, s75, s49
    s_bitset1_b32 s6, s52
    s_andn2_b32 s76, s48, s6
    s_cmp_eq_u32 s75, 0
    s_cselect_b32 s76, 1, s76
    """)
    setaddr("s74")
    for j in range(4):
        o = SET + 16 * j
        if j < 3:
            a(f"""
            s_cmp_lg_u32 s52, {4*j}
            s_cbranch_scc1 L_om{j}
            """)
        a(f"v_max3_u32 v4, v{o}, v{o+1}, v{o+2}")
        for r in range(3, 15, 2):
            a(f"v_max3_u32 v4, v4, v{o+r}, v{o+r+1}")
        a(f"""
        v_max_u32 v4, v4, v{o+15}
        v_cmp_eq_u32 vcc, -1, v4
        s_cmp_eq_u64 vcc, 0
        s_cbranch_scc0 L_ofail
        s_bitset0_b32 s48, {4*j}
        s_mov_b32 s53, s74
        """)
        for h in range(2):
            b = HB[h]
            a("s_waitcnt lgkmcnt(4)" if h == 0 else "s_waitcnt lgkmcnt(4)")
            for qq in range(2):
                a(f"v_mfma_f32_32x32x16_bf16 {vr(Y,16)}, {vr(b+8*qq+4,4)}, {vr(o+8*h+4*qq,4)}, {vr(Y,16)}")
                a(f"v_mfma_f32_32x32x16_bf16 {vr(X,16)}, {vr(b+8*qq,4)}, {vr(o+8*h+4*qq,4)}, {vr(X,16)}")
            rd(h)
        a(f"""
        s_cmp_eq_u32 s76, 0
        s_cbranch_scc1 L_proc
        s_cmp_eq_u32 s48, 0
        s_cbranch_scc0 L_op
        s_branch L_odone
        """)
        if j < 3: a.label(f"L_om{j}")
    a.label("L_ofail")
    if int(os.environ.get("DRY", "0")):
        a("""
        s_cmp_eq_u32 s73, 1
        s_cbranch_scc1 L_dryback
        """)
    spin_guard(a, "L_op", int(os.environ.get("FSL", "1")))
    a("""
    L_odone:
    s_nop 7
    """)
    merge(True)
    stamp(a, 5)
    for q in range(4):
        a(f"ds_write_b128 v15, {vr(Y+4*q,4)} offset:{q*1024}")
    a(f"""
    v_mov_b32 v4, 1
    ds_write_b32 v162, v4 offset:{M_Y}
    L_yw:
    ds_read_b32 v3, v11 offset:{M_Y}
    """)
    for q in range(4):
        a(f"ds_read_b128 {vr(Y+4*q,4)}, v12 offset:{q*1024}")
    a(f"""
    s_waitcnt lgkmcnt(0)
    v_readfirstlane_b32 s5, v3
    s_cmp_lg_u32 s5, 0
    s_cbranch_scc1 L_ywd
    """)
    spin_guard(a, "L_yw", 0)
    a.label("L_ywd")
    if os.environ.get("TAILST"): stamp(a, 3)
    for r in range(16):
        a(f"v_add_f32 v{X+r}, v{X+r}, v{Y+r}")
    for r in range(8):
        a(f"v_cvt_pk_bf16_f32 v{SET+r}, v{X+r}, v{X+8+r}")
    OST = os.environ.get("OST", "")
    a(f"""
    buffer_store_dwordx4 {vr(SET,4)}, v6, {sr(S_OUT)}, s57 offen {OST}
    buffer_store_dwordx4 {vr(SET+4,4)}, v6, {sr(S_OUT)}, s57 offen offset:32 {OST}
    """)
    if int(os.environ.get("DRY", "0")):
        a("""
        s_cmp_eq_u32 s73, 1
        s_cbranch_scc1 L_dryback
        """)
    if os.environ.get("TAILST"): stamp(a, 6)
    stamp_end(a)

def kd(name, nv, ns=102):
    return f""".p2align 6
.amdhsa_kernel {name}
  .amdhsa_next_free_vgpr {nv}
  .amdhsa_next_free_sgpr {ns}
  .amdhsa_accum_offset {(nv+3)//4*4}
  .amdhsa_group_segment_fixed_size 0
  .amdhsa_kernarg_size 80
  .amdhsa_user_sgpr_count 2
  .amdhsa_user_sgpr_kernarg_segment_ptr 1
  .amdhsa_system_sgpr_workgroup_id_x 1
.end_amdhsa_kernel
"""

def main(out):
    hdr = open("cdna_kernels/" + NAME + ".s.ref").read().split("\n")
    hdr = [l for l in hdr if l.startswith(";") and "@launch" not in l]
    a = Asm()
    gen(a)
    txt = "\n".join(hdr) + "\n"
    txt += f"; @launch grid=(256,1,1) block=(768,1,1) lds={LDS_BYTES}\n"
    txt += '.amdgcn_target "amdgcn-amd-amdhsa--gfx950"\n.text\n'
    body = a.text()
    if int(os.environ.get("ALLSC1", "1")):
        ol = []
        for l in body.split("\n"):
            if l.strip().startswith("buffer_load") and sr(S_WS) in l and "sc1" not in l:
                l = l.replace(" lds", " sc1 lds") if l.rstrip().endswith(" lds") else l + " sc1"
            ol.append(l)
        body = "\n".join(ol)
    txt += body
    txt += '.section .rodata,"a"\n'
    txt += kd(NAME + "_kernel", 168)
    open(out, "w").write(txt)

if __name__ == "__main__":
    main(sys.argv[1] if len(sys.argv) > 1 else "cdna_kernels/" + NAME + ".s")
```

```python
import math, os, struct, sys

NAME = "gated_mix__mha_block__dense_activation_relu__prompt"
STAMP = os.environ.get("STAMP")

def f32bits(x):
    return struct.unpack("<I", struct.pack("<f", x))[0]

class Asm:
    def __init__(self):
        self.l = []
        self.uid = 0
    def __call__(self, s):
        for line in s.strip("\n").split("\n"):
            line = line.strip()
            if line:
                self.l.append(("" if line.endswith(":") else "    ") + line)
    def label(self, s):
        self.l.append(s + ":")
    def raw(self, s):
        self.l.append(s)
    def new(self, p="L"):
        self.uid += 1
        return f"{p}_{self.uid}"
    def text(self):
        return "\n".join(self.l) + "\n"

EPOCH = 0x0
QF = 0x1A00000
XID = 0xD38000
KV = 0x200000
XF = 0x600000
W1F = 0x800000
W2F = 0xA00000
WOF = 0xC00000
FLS = 0xD00000
FL2 = 0xD10000
FL1 = 0xD40000
FL3 = 0xD80000
GBUF = 0xD20000
FLG = 0xD30000
HF = 0x1000000
OF = 0x1800000
STB = 0x1F00000
WS_BYTES = 0x2000000

L_X = 49152
L_W = 65536
L_OX = 131072
L_MISC = 157696
L_MISC0 = 65536
L_LX = 158720
L_GF = 160768
LDS_BYTES = 163840
M_PROG, M_QOK, M_PAIR, M_GF, M_E0R, M_E2, M_E2R, M_DMA = 0, 32, 64, 128, 136, 140, 144, 168
M_FP, M_C1, M_F1C, M_S0, M_S1, M_DEAD, M_X, M_RDY, M_W, M_DEAD2, M_Y, M_PZ, M_XP = 16, 176, 180, 184, 188, 192, 196, 200, 208, 212, 224, 216, 240
WSLOT = [136*1024, 112*1024, 24*1024, 0]
L_DRY = 158720
L_VX = 24 * 1024

QSCALE = 0.25 * math.log2(math.e)
LOG2E = math.log2(math.e)
SPIN_MAX = 200000
ILV = int(os.environ.get('ILV', '0'))
FPRIO = int(os.environ.get('FPRIO', '0'))

S_X, S_WQKV, S_WS, S_SRC, S_OUT = 28, 32, 36, 44, 60
S_TAG = 82
S_EP = 84
S_SPIN = 83

def vr(a, n):
    return f"v[{a}:{a+n-1}]"
def sr(a):
    return f"s[{a}:{a+3}]"

def srd(a, d, base, nbytes):
    a(f"""
    s_mov_b32 s{d}, s{base}
    s_and_b32 s{d+1}, s{base+1}, 0xffff
    s_mov_b32 s{d+2}, {nbytes:#x}
    s_mov_b32 s{d+3}, 0x20000
    """)

NST = 7
def stamp_begin(a):
    if not STAMP: return
    a("""
    s_memtime s[64:65]
    s_memrealtime s[66:67]
    s_waitcnt lgkmcnt(0)
    """)
    for i in range(NST):
        a(f"s_mov_b32 s{88+2*i}, {'s66' if os.environ.get('RT') else 's64'}")
PAST = os.environ.get("PAST")
def stamp(a, i, pa=False):
    if not STAMP: return
    if int(PAST or 0) != int(pa): return
    a(f"""
    s_waitcnt lgkmcnt(0)
    {'s_memrealtime' if os.environ.get('RT') else 's_memtime'} s[{88+2*i}:{89+2*i}]
    s_waitcnt lgkmcnt(0)
    """)
def stamp_end(a):
    if not STAMP: return
    a(f"""
    s_waitcnt vmcnt(0) lgkmcnt(0)
    s_memtime s[68:69]
    s_memrealtime s[70:71]
    s_waitcnt lgkmcnt(0)
    s_mov_b64 exec, 1
    v_mov_b32 v4, s64
    v_mov_b32 v5, s66
    v_mov_b32 v6, s68
    v_mov_b32 v7, s70
    """)
    for i in range(8):
        a(f"v_mov_b32 v{8+i}, s{88+2*min(i,NST-1)}" if i < NST else "v_mov_b32 v15, s73")
    a(f"""
    s_lshl_b32 s72, s2, 4
    s_add_u32 s72, s72, s40
    s_lshl_b32 s72, s72, 6
    s_add_u32 s72, s72, {STB}
    v_mov_b32 v3, 0
    buffer_store_dwordx4 v[4:7], v3, {sr(S_WS)}, s72 offen
    buffer_store_dwordx4 v[8:11], v3, {sr(S_WS)}, s72 offen offset:16
    buffer_store_dwordx4 v[12:15], v3, {sr(S_WS)}, s72 offen offset:32
    """)

def spin_guard(a, again, sleep=4):
    a(f"""
    s_sleep {sleep}
    s_add_u32 s{S_SPIN}, s{S_SPIN}, 1
    s_cmp_lt_u32 s{S_SPIN}, {SPIN_MAX}
    s_cbranch_scc1 {again}
    s_endpgm
    """)

def poll_flags(a, voff, soff, loads, T, sleep=8):
    L = a.new("L_poll"); D = a.new("L_pdone")
    a.label(L)
    r = T
    regs = []
    for nd, imm in loads:
        op = {1: "buffer_load_dword", 2: "buffer_load_dwordx2", 4: "buffer_load_dwordx4"}[nd]
        dst = f"v{r}" if nd == 1 else vr(r, nd)
        a(f"{op} {dst}, v{voff}, {sr(S_WS)}, {soff} offen offset:{imm} sc1")
        regs += list(range(r, r + nd)); r += nd
    a("s_waitcnt vmcnt(0)")
    a(f"v_xor_b32 v{regs[0]}, s{S_TAG}, v{regs[0]}")
    for q in regs[1:]:
        a(f"v_xor_b32 v{q}, s{S_TAG}, v{q}")
        a(f"v_or_b32 v{regs[0]}, v{regs[0]}, v{q}")
    a(f"""
    v_cmp_ne_u32 vcc, 0, v{regs[0]}
    s_cmp_eq_u64 vcc, 0
    s_cbranch_scc1 {D}
    """)
    spin_guard(a, L, sleep)
    a.label(D)

def lds_wait(a, vaddr, off, val, T, sleep=1):
    L = a.new("L_lw"); D = a.new("L_lwd")
    a.label(L)
    a(f"""
    ds_read_b32 v{T}, v{vaddr} offset:{off}
    s_waitcnt lgkmcnt(0)
    v_readfirstlane_b32 s5, v{T}
    s_cmp_eq_u32 s5, {val}
    s_cbranch_scc1 {D}
    """)
    spin_guard(a, L, sleep)
    a.label(D)

def lds_add(a, vaddr, off, T):
    a(f"""
    s_mov_b64 exec, 1
    v_mov_b32 v{T}, 1
    ds_add_u32 v{vaddr}, v{T} offset:{off}
    s_mov_b64 exec, -1
    """)

def dual(a, sfast, lines):
    for l in lines: a(l + " sc1")

def store_flag(a, soff, T, sfast=None, second=None):
    a(f"""
    s_mov_b64 exec, 0xff
    v_mov_b32 v{T}, s{S_TAG}
    v_mov_b32 v{T+1}, {second if second else 's%d' % S_TAG}
    v_mov_b32 v{T+2}, s{S_TAG}
    v_mov_b32 v{T+3}, s{S_TAG}
    """)
    line = f"buffer_store_dwordx4 {vr(T,4)}, v2, {sr(S_WS)}, {soff} offen"
    if sfast is None:
        a(line + " sc1")
    else:
        dual(a, sfast, [line])
    a("s_mov_b64 exec, -1")
    a("s_nop 1")

def stream_gemm(a, nsteps, na, nb, ACC, BUF, depth, VA, VB, SA, SB, SG, first=True, gate=None, hook=None):
    per = na + nb
    ng = nsteps // 4
    extra = []
    def group():
        a(f"""
        s_lshl_b32 s5, s{SG}, 12
        s_add_u32 s80, s{SA}, s5
        s_add_u32 s81, s{SB}, s5
        s_lshl_b32 s79, s{SG}, 7
        s_add_u32 s{SG}, s{SG}, 1
        s_cmp_eq_u32 s{SG}, {ng}
        s_cselect_b32 s{SG}, 0, s{SG}
        """)
    def issue_list(s):
        slot = BUF + (s % depth) * 4 * per
        imm = (s % 4) * 1024
        l = []
        for t in range(na):
            if gate and t == 1:
                l.append(f"buffer_load_dwordx4 {vr(slot+4*t,4)}, v{gate[1]}, {sr(gate[0])}, s79 offen offset:{(s%4)*32}")
            else:
                l.append(f"buffer_load_dwordx4 {vr(slot+4*t,4)}, v{VA+t}, {sr(S_WS)}, s80 offen offset:{imm}")
        for t in range(nb):
            l.append(f"buffer_load_dwordx4 {vr(slot+4*(na+t),4)}, v{VB+t}, {sr(S_WS)}, s81 offen offset:{imm}")
        return l
    for s in range(min(depth - 1, nsteps)):
        if s % 4 == 0: group()
        for l in issue_list(s): a(l)
    for s in range(nsteps):
        nxt = []
        if s + depth - 1 < nsteps:
            if (s + depth - 1) % 4 == 0: group()
            nxt = issue_list(s + depth - 1)
        if not ILV:
            for l in nxt: a(l)
            outstanding = min(depth - 1, nsteps - 1 - s)
        else:
            outstanding = min(depth - 2, nsteps - 1 - s)
        ex_ = sum(n for (s0, n) in extra if s <= s0 + depth - 1)
        a(f"s_waitcnt vmcnt({outstanding*per + ex_})")
        if hook:
            n = hook(s)
            if n: extra.append((s, n))
        slot = BUF + (s % depth) * 4 * per
        k = 0
        for at in range(na):
            for bt in range(nb):
                d = ACC + 16 * (at * nb + bt)
                c = "0" if (first and s == 0) else vr(d, 16)
                if not (os.environ.get("F2X") and s > 0):
                    a(f"v_mfma_f32_32x32x16_bf16 {vr(d,16)}, {vr(slot+4*at,4)}, {vr(slot+4*(na+bt),4)}, {c}")
                if os.environ.get("F2GAP") and not (at == na - 1 and bt == nb - 1): a(f"s_sleep {os.environ.get('F2GAP')}")
                if ILV and k < len(nxt): a(nxt[k])
                k += 1

def sigmoid(a, v):
    a(f"""
    v_mul_f32 v{v}, {f32bits(-LOG2E):#x}, v{v}
    v_exp_f32 v{v}, v{v}
    s_nop 0
    v_add_f32 v{v}, 1.0, v{v}
    v_rcp_f32 v{v}, v{v}
    s_nop 0
    """)

KORD = int(os.environ.get('KORD', '1'))
SEQ = int(os.environ.get('SEQ', '1'))
GPAR = int(os.environ.get('GPAR', '1'))
NEG = int(os.environ.get('NE', '7'))
ES = 3 if NEG <= 5 else 2
def gen(a):
    KN = NAME + "_kernel"
    a.raw(f".globl {KN}")
    a.raw(f".p2align {os.environ.get('KAL', '8')}")
    a.raw(f".type {KN},@function")
    a.label(KN)
    a(f"""
    s_cmp_ge_u32 s2, 256
    s_cbranch_scc1 L_end
    s_load_dwordx16 s[8:23], s[0:1], 0
    s_load_dwordx4 s[24:27], s[0:1], 64
    v_lshrrev_b32 v2, 6, v0
    v_and_b32 v1, 63, v0
    s_mov_b32 s{S_SPIN}, 0
    v_readfirstlane_b32 s40, v2
    s_and_b32 s3, s2, 7          ; j
    s_lshr_b32 s4, s2, 3         ; i
    s_and_b32 s43, s4, 3
    s_lshl_b32 s5, s3, 2
    s_add_u32 s41, s43, s5       ; h = tau = 4j + (i&3)
    s_lshr_b32 s42, s4, 2        ; c = phi = i>>2
    {"s_and_b32 s72, s41, 7" if KORD == 1 else ("s_and_b32 s72, s42, 4" if KORD == 2 else "s_mov_b32 s72, s42")}   ; first key block
    """)
    if PAM == "8x4":
        a("""
        s_lshr_b32 s5, s3, 1
        s_lshl_b32 s5, s5, 3
        s_and_b32 s6, s4, 7
        s_add_u32 s86, s5, s6        ; tb = 8(j>>1) + (i&7)
        s_and_b32 s5, s3, 1
        s_lshl_b32 s87, s5, 2
        s_lshr_b32 s7, s4, 3
        s_add_u32 s87, s87, s7       ; g = 4(j&1) + (i>>3)
        s_lshl_b32 s7, s7, 1
        """ + ("s_add_u32 s87, s7, s5" if GPAR == 1 else "s_xor_b32 s87, s5, 1\ns_add_u32 s87, s87, s7" if GPAR == 2 else "") + """
        s_add_u32 s49, s6, s7
        s_add_u32 s49, s49, s5
        s_and_b32 s49, s49, 7        ; rot
        """)
    elif PAM == "16x2":
        a("""
        s_lshr_b32 s5, s3, 2
        s_lshl_b32 s5, s5, 4
        s_and_b32 s6, s4, 15
        s_add_u32 s86, s5, s6        ; tb = 16(j>>2) + (i&15)
        s_and_b32 s5, s3, 3
        s_lshl_b32 s87, s5, 1
        s_lshr_b32 s7, s4, 4
        s_add_u32 s87, s87, s7       ; g = 2(j&3) + (i>>4)
        s_lshl_b32 s7, s7, 2
        s_add_u32 s49, s6, s7
        s_add_u32 s49, s49, s5
        s_and_b32 s49, s49, 7        ; rot = i + 4(i>>4) + (j&3)
        """)
    else:
        a("""
        s_mov_b32 s86, s4
        s_mov_b32 s87, s3
        s_add_u32 s49, s3, s4
        s_and_b32 s49, s49, 7
        """)
    a("v_lshlrev_b32 v2, 4, v1      ; v2 = lane*16")
    CODEW = int(os.environ.get("CODEW", "2"))
    if CODEW == 2:
        a(f"""
        s_getpc_b64 s[74:75]
        L_pc:
        s_mul_i32 s5, s4, 12
        s_add_u32 s5, s5, s40
        s_lshl_b32 s5, s5, 7
        s_min_u32 s5, s5, L_end-L_pc-64
        s_and_b32 s74, s74, -128
        v_lshl_add_u32 v3, v1, 6, s5
        s_mov_b64 exec, 3
        global_load_dword v63, v3, s[74:75]
        s_mov_b64 exec, -1
        """)
    a(f"""
    s_cmp_ge_u32 s40, 8
    s_cbranch_scc1 L_aux
    """)
    att = Asm(); att.uid = 10000
    attention_wave(att)
    aux = Asm(); aux.uid = 20000
    aux_wave(aux)
    ka = att.l.index("@SPLIT"); kx = aux.l.index("@SPLIT")
    a.l += att.l[:ka]
    a("s_branch L_att1")
    a.label("L_aux")
    a.l += aux.l[:kx]
    a("s_branch L_aux1")
    a.label("L_att1")
    a.l += att.l[ka+1:]
    a.label("L_aux1")
    a.l += aux.l[kx+1:]
    a.label("L_end")
    a("s_endpgm")

def late_start(a):
    stamp_begin(a)
    a(f"s_load_dword s{S_EP}, s[26:27], {EPOCH}")
    if int(os.environ.get("CODEW", "2")) == 1:
        L = a.new("L_pc")
        a(f"""
        s_getpc_b64 s[74:75]
        {L}:
        s_mul_i32 s5, s4, 12
        s_add_u32 s5, s5, s40
        s_lshl_b32 s5, s5, 7
        s_min_u32 s5, s5, L_end-{L}-64
        s_and_b32 s74, s74, -128
        s_load_dword s80, s[74:75], s5
        s_add_u32 s5, s5, 64
        s_load_dword s81, s[74:75], s5
        """)
    srd(a, S_WS, 26, WS_BYTES)
    a.raw("@SPLIT")

VXA = 8
VWA = 12
VMI = 13
VWA2 = 62
NSL = 4
PAM = os.environ.get('PAM', '8x4')
TBS = {'8x4': 3, '16x2': 4, '32x1': 5}[PAM]
SCHEDS = {
 "a": ({-1: [0, 1], 0: [2, 3], 1: [4], 2: [5], 3: [6], 4: [7, "P"]}, {-1: [0, 1, 2, 3, 4, 5, 6, 7, "r0", "r1"]}, 5),
 "b": ({-1: [0], 0: [1, 2], 1: [3, 4], 2: [5], 3: [6], 4: [7, "P"]}, {-1: [0, 1, 2, 3], 0: [4, 5, 6, 7, "r0", "r1"]}, 5),
 "c": ({-1: [0], 0: [1, 2, 3], 1: [4], 2: [5], 3: [6], 4: [7, "P"]}, {-1: [0, 1, 2, 3, 4, 5, 6, 7], 0: ["r0", "r1"]}, 5),
 "e": ({-1: [0, 1], 0: [2, 3], 1: [4], 2: [5], 3: [6], 4: [7, "P"]}, {-1: [0, 1, 2, 3], 0: [4, 5, "r0"], 1: [6, 7, "r1"]}, 5),
 "f": ({-1: [0, 1, 2, 3], 1: [4], 2: [5], 3: [6], 4: [7, "P"]}, {-1: [0, 1, "r0", "r1", 2, 3, 4], 0: [5], 1: [6], 2: [7]}, 4),
 "d": ({-1: [0, 1], 0: [2, 3], 1: [4], 2: [5], 3: [6], 4: [7, "P"]}, {-1: [0, 1, 2, 3, 4, 5, 6, 7], 4: ["r0", "r1"]}, 6),
}
SCHEDS["g"] = ({-1: [0, 1], 0: [2, 3, "R"], 1: [4, "P"], 2: [5], 3: [6], 4: [7], 5: ["S"]}, {-1: [0, 1, 2, 3], 0: [4, 5, "T"], 1: [6, 7]}, 5)
SCHEDS["h"] = ({-1: [0, 1], 0: [2, 3], 1: [4, "R"], 2: [5, "P"], 3: [6], 4: [7], 6: ["S"]}, {-1: [0, 1, 2, 3], 0: [4, 5, 6, 7, "T"]}, 5)
SCHEDS["i"] = ({-1: [0, 1, "R"], 0: [2, 3, "P"], 1: [4], 2: [5, "S"], 3: [6], 4: [7]}, {-1: [0, 1, 2, 3, "T"], 0: [4, 5], 1: [6, 7]}, 5)
W0 = {-1: [0, 1], 0: [2, 3], 1: [4], 2: [5], 3: [6]}
X0 = {-1: [0, 1, 2, 3], 0: [4, 5], 1: [6, 7]}
SCHEDS["j"] = ({**W0, 4: [7, "P", "R"], 7: ["S"]}, X0, 5)
SCHEDS["k"] = ({**W0, 4: [7, "P", "R"], 8: ["S"]}, X0, 5)
SCHEDS["l"] = ({**W0, 4: [7, "P", "R"], 8: ["S"]}, {**X0, 3: ["T"]}, 5)
SCHEDS["m"] = ({**W0, 4: [7, "P", "R"], 8: ["S"]}, {**X0, 2: ["T"]}, 5)
SCHEDS["n"] = ({**W0, 4: [7, "P"], 7: ["R"], 8: ["S"]}, X0, 5)
SCHEDS["o"] = ({**W0, 4: [7, "P", "R"], 8: ["S"]}, {**X0, 4: ["T"]}, 5)
SCHEDS["x"] = ({**W0, 4: [7]}, X0, 5)
SCHEDS["z"] = ({-1: [0, 1, 2], 0: [3], 1: [4], 2: [5], 3: [6], 4: [7]}, X0, 5)
SCHEDS["w"] = ({**W0, 4: [7]}, {-1: [0, 1, 2], 0: [3, 4], 1: [5, 6], 2: [7]}, 5)
SCHEDS["y"] = ({**W0, 4: [7], 9: ["P", "R"], 10: ["S"]}, X0, 5)
WSCHED, XSCHED, RLS = SCHEDS[os.environ.get("SCHED", "x")]
F1D = int(os.environ.get("F1D", "0"))
VD0, VD1 = 14, 15
ACCA = 64
XB = 80
WB = 96

def make_tag(a):
    a(f"""
    s_waitcnt lgkmcnt(0)
    s_mul_i32 s{S_TAG}, s{S_EP}, 0x9e3779b1
    s_add_u32 s{S_TAG}, s{S_TAG}, 0x7f4a7c15
    """)

def pa_addr(a):
    a(f"""
    v_and_b32 v3, 31, v1               ; m
    v_lshrrev_b32 v4, 5, v1            ; hh
    v_bfe_u32 v5, v1, 1, 3             ; (m>>1)&7
    v_xor_b32 v5, v5, v4
    v_lshlrev_b32 v3, 7, v3
    s_and_b32 s5, s40, 1
    s_lshl_b32 s5, s5, 12              ; tt*32*128
    s_add_u32 s5, s5, {L_X}
    v_add_u32 v3, s5, v3
    """)
    for ss in range(4):
        a(f"""
        v_xor_b32 v7, {2*ss}, v5
        v_lshl_add_u32 v{VXA+ss}, v7, 4, v3
        """)
    a(f"""
    v_bfe_u32 v7, v1, 2, 2
    v_lshl_add_u32 v7, v4, 3, v7       ; + 8hh
    v_lshlrev_b32 v{VWA}, 7, v7        ; row*128
    v_bfe_u32 v5, v1, 4, 1             ; g
    v_bfe_u32 v6, v1, 1, 1             ; (i&3)>>1
    v_lshl_add_u32 v6, v5, 1, v6
    v_bfe_u32 v5, v1, 3, 1
    s_lshr_b32 s5, s40, 1
    s_and_b32 s5, s5, 1                ; half
    v_xor_b32 v5, s5, v5
    v_lshl_add_u32 v6, v5, 2, v6       ; piece
    v_lshl_add_u32 v{VWA}, v6, 4, v{VWA}
    v_and_b32 v5, 1, v1
    v_lshl_add_u32 v{VWA}, v5, 3, v{VWA}
    s_lshr_b32 s5, s40, 2              ; part
    s_lshl_b32 s5, s5, 13
    v_add_u32 v{VWA}, s5, v{VWA}
    v_add_u32 v{VWA2}, {112*1024}, v{VWA}
    v_mov_b32 v{VMI}, {L_MISC}
    """)

def pa_reads(a, sig):
    so = WSLOT[sig % 4]
    wa = VWA if so < 65536 else VWA2
    so = so if so < 65536 else so - 112 * 1024
    xb = XB + 32 * (sig % 2); wb = WB + 32 * (sig % 2)
    for ss in range(4):
        a(f"""
        ds_read_b128 {vr(xb+4*ss,4)}, v{VXA+ss} offset:{sig*8192}
        ds_read_b64_tr_b16 {vr(wb+4*ss,2)}, v{wa} offset:{so + ss*2048}
        ds_read_b64_tr_b16 {vr(wb+4*ss+2,2)}, v{wa} offset:{so + ss*2048 + 512}
        """)
def pa_mfma(a, sig, vrole):
    xb = XB + 32 * (sig % 2); wb = WB + 32 * (sig % 2)
    for ss in range(4):
        c = "0" if (sig == 0 and ss == 0) else vr(ACCA, 16)
        if vrole:
            a(f"v_mfma_f32_32x32x16_bf16 {vr(ACCA,16)}, {vr(xb+4*ss,4)}, {vr(wb+4*ss,4)}, {c}")
        else:
            a(f"v_mfma_f32_32x32x16_bf16 {vr(ACCA,16)}, {vr(wb+4*ss,4)}, {vr(xb+4*ss,4)}, {c}")
NODEF = int(os.environ.get("NODEF", "7"))
def pa_compute(a, sig, vrole):
    pa_reads(a, sig)
    if 0 < sig <= NODEF:
        pa_mfma(a, sig - 1, vrole)
    a("s_waitcnt lgkmcnt(0)")
    if sig >= NODEF:
        pa_mfma(a, sig, vrole)

APOLL = int(os.environ.get('APOLL', '1'))
def attention_wave(a):
    a(f"""
    v_lshrrev_b32 v3, 3, v1            ; row = l>>3
    v_mul_u32_u24 v4, 3072, v3
    v_bfe_u32 v5, v1, 4, 1             ; (row>>1)&1
    v_lshlrev_b32 v5, 2, v5
    v_and_b32 v6, 7, v1
    v_xor_b32 v6, v6, v5
    v_lshl_add_u32 v{VD0}, v6, 4, v4
    s_mul_i32 s52, s40, {8*3072}
    s_lshl_b32 s5, s87, 7
    s_add_u32 s52, s52, s5
    s_lshl_b32 s53, s40, 10            ; lds base
    s_waitcnt lgkmcnt(0)
    """)
    srd(a, S_WQKV, 10, 512 * 3072)
    def wdma(sig):
        a(f"""
        s_add_u32 s5, s49, {sig}
        s_and_b32 s5, s5, 7
        s_mul_i32 s50, s5, {64*3072}
        s_add_u32 s50, s50, s52
        """)
        for p in range(3):
            a(f"""
            s_add_u32 m0, s53, {WSLOT[sig%4] + p*8192}
            s_add_u32 s51, s50, {p*1024}
            buffer_load_dwordx4 v{VD0}, {sr(S_WQKV)}, s51 offen lds
            """)
    wq = []
    def wissue(items):
        for it in items:
            if it == "P":
                a(f"""
                s_lshl_b32 s5, s42, 3
                s_add_u32 s5, s5, s40
                s_lshl_b32 s5, s5, 5
                s_add_u32 s5, s5, s41
                s_lshl_b32 s5, s5, 10
                s_add_u32 s5, s5, {OF}
                v_mov_b32 v20, -1
                v_mov_b32 v21, -1
                v_mov_b32 v22, -1
                v_mov_b32 v23, -1
                buffer_store_dwordx4 v[20:23], v2, {sr(S_WS)}, s5 offen sc1
                """)
                wq.append("P")
            elif it == "R":
                a("s_add_u32 s5, s59, 8192")
                for jq in range(2):
                    for jj in range(4):
                        a(f"buffer_load_dword v{R+4*jq+jj}, v{VRL}, {sr(S_SRC)}, {'s5' if jq else 's59'} offen offset:{jj*1024}")
                wq.extend(["R"] * 8)
            elif it == "S":
                last = max(k for k, e in enumerate(wq) if e == "R")
                a(f"""
                s_mov_b32 s{S_SRC}, s{S_WS}
                s_mov_b32 s{S_SRC+1}, s{S_WS+1}
                s_cmp_lt_u32 s73, 1152
                s_cselect_b32 s{S_SRC+2}, {WS_BYTES:#x}, 0
                s_mov_b32 s80, 0x05040100
                s_mov_b32 s81, 0x07060302
                s_waitcnt vmcnt({len(wq) - 1 - last})
                """)
                for jj in range(4):
                    a(f"v_perm_b32 v{F+jj}, v{R+2*jj+1}, v{R+2*jj}, s80")
                    a(f"v_perm_b32 v{F+4+jj}, v{R+2*jj+1}, v{R+2*jj}, s81")
                a(f"""
                buffer_store_dwordx4 {vr(F,4)}, v2, {sr(S_SRC)}, s79 offen sc1
                buffer_store_dwordx4 {vr(F+4,4)}, v2, {sr(S_SRC)}, s78 offen sc1
                """)
                wq.extend(["S"] * 2)
            else:
                wdma(it); wq.extend([it] * 3)
    XA = int(os.environ.get("XA", "0"))
    if XA:
        a(f"""
        v_lshlrev_b32 v4, 10, v3
        v_and_b32 v6, 7, v1
        v_lshrrev_b32 v5, 4, v1
        v_xor_b32 v6, v6, v5
        s_and_b32 s5, s40, 1
        s_lshl_b32 s5, s5, 2
        v_xor_b32 v6, s5, v6
        v_lshl_add_u32 v{VD1}, v6, 4, v4
        s_lshl_b32 s78, s86, 16
        s_lshl_b32 s5, s40, 13
        s_add_u32 s78, s78, s5
        """)
    for it in WSCHED[-1]:
        if isinstance(it, int):
            if it < XA:
                a(f"""
                s_add_u32 s5, s49, {it}
                s_and_b32 s5, s5, 7
                s_lshl_b32 s5, s5, 7
                s_add_u32 m0, s53, {L_X + it*8192}
                s_add_u32 s5, s5, s78
                buffer_load_dwordx4 v{VD1}, {sr(S_X)}, s5 offen lds
                """)
                wq.append(it)
            wissue([it])
    late_start(a)
    R = 144; F = 152; VRL = 63
    wissue([it for it in WSCHED[-1] if not isinstance(it, int)])
    make_tag(a)
    pa_addr(a)
    RLI = int(os.environ.get("RLI", "7"))
    for sig in range(8):
        last = max(k for k, e in enumerate(wq) if e == sig)
        a(f"s_waitcnt vmcnt({len(wq) - 1 - last})")
        if sig == 0 and not os.environ.get("TAILST"): stamp(a, 0)
        if sig <= 6: stamp(a, sig, pa=True)
        a("s_barrier")
        for it in WSCHED.get(sig, []):
            assert isinstance(it, str) or it - NSL < sig, (it, sig)
        if sig >= 4: stamp(a, sig - 4, pa=2)
        wissue(WSCHED.get(sig, []))
        pa_compute(a, sig, False)
    if not os.environ.get("TAILST"): stamp(a, 1)
    stamp(a, 5, pa=2)
    a(f"""
    s_lshr_b32 s5, s40, 1
    s_and_b32 s5, s5, 1
    s_lshl_b32 s5, s5, 1
    s_lshl_b32 s6, s87, 2
    s_add_u32 s5, s5, s6               ; head0
    s_lshl_b32 s5, s5, 6
    s_lshl_b32 s6, s86, 1
    s_add_u32 s5, s5, s6
    s_and_b32 s6, s40, 1
    s_add_u32 s5, s5, s6               ; head0*64 + T
    s_cmp_ge_u32 s40, 4
    s_cbranch_scc1 L_isk
    s_lshl_b32 s54, s5, 10
    s_add_u32 s54, s54, {QF}
    s_add_u32 s55, s54, {64*1024}
    s_mov_b32 s56, {f32bits(QSCALE):#x}
    s_branch L_qk
    L_isk:
    s_lshl_b32 s54, s5, 11
    s_add_u32 s54, s54, {KV}
    s_add_u32 s55, s54, {64*2048}
    s_mov_b32 s56, 1.0
    L_qk:
    s_nop 3
    """)
    for r in range(16):
        a(f"v_mul_f32 v{ACCA+r}, s56, v{ACCA+r}")
    for r in range(8):
        a(f"v_cvt_pk_bf16_f32 v{XB+r}, v{ACCA+2*r}, v{ACCA+2*r+1}")
    dual(a, 73, [f"buffer_store_dwordx4 {vr(XB,4)}, v2, {sr(S_WS)}, s54 offen",
                 f"buffer_store_dwordx4 {vr(XB+4,4)}, v2, {sr(S_WS)}, s55 offen"])
    Q = 8; KB = 16; VB = 24; P = 40; VKA = 56; VVA = 57; VG = 58; VMISC = 59; VPL = 60; VG2 = 61; VT = 160
    S = 64; NM = 96; O = 128; VIDX = 62
    E1, E2 = [int(x) for x in os.environ.get("EPOS", "6,11").split(",")]
    def slot(t, aq, last=False):
        Sc = S + 16 * aq; Sn = S + 16 * (1 - aq)
        tn = t if aq == 0 else t + 1
        Kc = KB + 4 * (tn % 2)
        Pc = P + 8 * aq; Pp = P + 8 * (1 - aq)
        Oc = O + 16 * aq; Op = O + 16 * (1 - aq)
        tp = t if aq == 1 else t - 1
        Vc = VB + 8 * (t % 2); Vp = VB + 8 * (tp % 2)
        noff = (t + 1) * 2048 if t < 3 else 16384
        def ex(i): a(f"v_exp_f32 v{Sc+i if i < 8 else Pc+i-8}, v{Sc+i}")
        if aq == 1: a("s_waitcnt lgkmcnt(0)")
        if not (last and aq == 1):
            a(f"v_mfma_f32_32x32x16_bf16 {vr(Sn,16)}, {vr(Kc,4)}, {vr(Q+4*(1-aq),4)}, {vr(NM+16*(1-aq),16)}")
        if aq == 0 and not last:
            a(f"ds_read_b128 {vr(KB+4*((t+1)%2),4)}, v{VKA} offset:{noff}")
        for i in range(E1): ex(i)
        a(f"v_smfmac_f32_32x32x32_bf16 {vr(Op,16)}, {vr(Vp+4,4)}, {vr(Pp,8)}, v{VIDX}")
        if aq == 0 and not last:
            Vn = VB + 8 * ((t + 1) % 2)
            a(f"""
            s_mov_b64 exec, s[74:75]
            ds_read_b128 {vr(Vn,4)}, v{VVA} offset:{noff+1024}
            ds_read_b128 {vr(Vn+4,4)}, v{VVA} offset:{noff+1536}
            s_mov_b64 exec, -1
            """)
        for i in range(E1, E2): ex(i)
        a(f"v_smfmac_f32_32x32x32_bf16 {vr(Oc,16)}, {vr(Vc,4)}, {vr(Sc,8)}, v{VIDX}")
        for i in range(E2, 16): ex(i)
    def advance():
        a(f"""
        v_add_u32 v{VKA}, 16384, v{VKA}
        v_add_u32 v{VVA}, 16384, v{VVA}
        """)
    def prog_wait(n, both=False, off=M_PROG):
        L = a.new("L_pw"); D = a.new("L_pwd")
        a.label(L)
        if both:
            a(f"""
            ds_read_b128 v[4:7], v{VMISC} offset:{off}
            s_waitcnt lgkmcnt(0)
            v_min_u32 v4, v4, v5
            v_min_u32 v6, v6, v7
            v_min_u32 v4, v4, v6
            """)
        else:
            a(f"""
            ds_read_b64 v[4:5], v{VPL} offset:{M_PROG}
            s_waitcnt lgkmcnt(0)
            v_min_u32 v4, v4, v5
            """)
        a(f"""
        s_nop 0
        v_readfirstlane_b32 s5, v4
        s_cmp_ge_u32 s5, {n}
        s_cbranch_scc1 {D}
        """)
        spin_guard(a, L, 1)
        a.label(D)
    a(f"""
    s_lshl_b32 s53, s40, 11            ; w*2048
    s_lshl_b32 s5, s40, 10
    s_add_u32 s5, s5, {L_VX}
    v_add_u32 v4, s5, v2
    s_lshr_b32 s5, s40, 2
    s_lshl_b32 s5, s5, 1
    s_lshl_b32 s6, s87, 2
    s_add_u32 s5, s5, s6
    s_lshl_b32 s5, s5, 6
    s_lshl_b32 s6, s86, 1
    s_add_u32 s5, s5, s6
    s_bfe_u32 s6, s40, 0x10001
    s_add_u32 s5, s5, s6
    s_lshl_b32 s54, s5, 11
    s_and_b32 s58, s40, 1              ; kh
    s_lshl_b32 s5, s58, 9
    s_add_u32 s54, s54, s5
    s_add_u32 s54, s54, {KV}
    v_bfe_u32 v3, v1, 4, 1
    v_lshlrev_b32 v3, 17, v3
    v_lshrrev_b32 v5, 5, v1
    v_lshl_add_u32 v3, v5, 8, v3
    v_and_b32 v5, 15, v1
    v_lshl_add_u32 v3, v5, 4, v3
    s_barrier
    ds_read_b128 {vr(XB+8,4)}, v4
    s_lshl_b32 s76, s87, 12
    s_add_u32 s76, s76, {FL1}          ; FL1[g]
    v_mov_b32 v{VMISC}, {L_MISC}
    s_lshl_b32 s5, s58, 3
    v_add_u32 v{VPL}, s5, v{VMISC}
    s_waitcnt lgkmcnt(0)
    buffer_store_dwordx4 {vr(XB+8,4)}, v3, {sr(S_WS)}, s54 offen offset:1024 sc1
    s_waitcnt vmcnt(0)
    """)
    DRY = int(os.environ.get("DRY", "0"))
    lds_add(a, VMISC, M_C1, 3)
    a(f"""
    s_cmp_lg_u32 s40, 0
    s_cbranch_scc1 L_nofl1
    """)
    lds_wait(a, VMISC, M_C1, 8, 3, sleep=1)
    a(f"""
    s_lshl_b32 s5, s86, 7
    s_add_u32 s5, s5, s76
    """)
    store_flag(a, "s5", VT, sfast=73)
    a.label("L_nofl1")
    stamp(a, 2)
    if DRY:
        a(f"""
        s_cmp_lg_u32 s40, 7
        s_cbranch_scc1 L_dryret
        """)
        srd(a, S_OUT, 22, 0)
        a(f"""
        s_mov_b32 s73, 1
        s_mov_b32 s79, s53
        s_mov_b32 s75, 0x1111
        s_mov_b32 s48, 0x1111
        s_mov_b32 s49, 0
        s_mov_b32 s53, -1
        s_mov_b32 s77, 1
        s_mov_b32 s57, 0
        v_mov_b32 v5, v2
        v_mov_b32 v6, v2
        v_add_u32 v15, {L_DRY}, v2
        v_mov_b32 v12, v15
        v_mov_b32 v11, {L_DRY + 4096}
        v_mov_b32 v162, v11
        s_branch L_proc
        L_dryback:
        s_mov_b32 s53, s79
        s_waitcnt vmcnt(0) lgkmcnt(0)
        s_nop 7
        s_nop 7
        v_mov_b32 v{VMISC}, {L_MISC}
        s_lshl_b32 s5, s58, 3
        v_add_u32 v{VPL}, s5, v{VMISC}
        L_dryret:
        """)
    stamp(a, 6, pa=2)
    wissue(WSCHED.get(8, []))
    a(f"""
    s_lshl_b32 s59, s58, 13            ; kh*8192
    v_add_u32 v{VKA}, s59, v2
    v_lshrrev_b32 v4, 5, v1
    v_and_b32 v5, 15, v1
    v_lshlrev_b32 v5, 4, v5
    v_lshl_add_u32 v{VVA}, v4, 8, v5
    v_add_u32 v{VVA}, s59, v{VVA}
    s_mov_b32 s74, 0x0000ffff
    s_mov_b32 s75, 0x0000ffff
    v_and_b32 v3, 31, v1
    v_cmp_eq_u32 vcc, 16, v3
    v_mov_b32 v4, 0x3f803f80
    s_lshl_b32 s5, s41, 6
    s_lshl_b32 s6, s42, 3
    s_lshl_b32 s7, s72, 3
    s_add_u32 s7, s7, s5               ; h*64 + 8 b0
    s_add_u32 s5, s5, s6               ; h*64 + 8c
    s_add_u32 s6, s7, s40
    s_lshl_b32 s54, s6, 11
    s_add_u32 s54, s54, {KV}
    s_add_u32 s6, s40, s5
    s_lshl_b32 s55, s6, 10
    s_add_u32 s55, s55, {QF}
    s_xor_b32 s59, s55, 1024
    """)
    for r in range(16):
        a(f"v_cndmask_b32 v{VB+r}, 0, v4, vcc")
    for r in range(32):
        a(f"v_mov_b32 v{O+r}, 0")
    for r in range(8):
        a(f"v_mov_b32 v{P+8+r}, 0")
    a(f"v_mov_b32 v{VIDX}, {os.environ.get('IDX', '0xdddddddd')}")
    a(f"""
    s_lshl_b32 s76, s3, 12
    s_add_u32 s76, s76, {FL1}          ; FL1[j]
    s_lshl_b32 s5, s72, 2
    s_sub_u32 s5, s5, 4
    v_add_u32 v7, s5, v1
    v_and_b32 v7, 31, v7
    s_lshl_b32 s5, s42, 2
    v_add_u32 v6, s5, v1
    v_cmp_gt_u32 vcc, 4, v1
    v_cndmask_b32 v7, v7, v6, vcc
    v_lshlrev_b32 v7, 7, v7
    s_add_u32 s6, s54, s53
    s_add_u32 s5, s72, 1
    s_and_b32 s5, s5, 7
    s_sub_u32 s5, s5, s72
    s_lshl_b32 s5, s5, 14
    s_add_u32 s56, s6, s5
    s_add_u32 s5, s72, 2
    s_and_b32 s5, s5, 7
    s_sub_u32 s5, s5, s72
    s_lshl_b32 s5, s5, 14
    s_add_u32 s57, s6, s5
    s_mov_b32 m0, s53
    s_sub_u32 s5, s40, 1
    s_cmp_ge_u32 s5, {int(os.environ.get("NPOLL", "1"))}
    s_cbranch_scc1 L_nopoll
    """)
    lds_wait(a, VMISC, M_C1, 8, 3, sleep=1)
    a(f"""
    L_qp:
    s_mov_b64 exec, {0xffff if ES == 3 else 0xfff:#x}
    buffer_load_dword v{VT}, v7, {sr(S_WS)}, s76 offen sc1
    s_waitcnt vmcnt(0)
    v_cmp_ne_u32 vcc, s{S_TAG}, v{VT}
    s_mov_b64 exec, -1
    s_and_b32 s5, vcc_lo, 255
    s_cbranch_scc0 L_qok
    """)
    spin_guard(a, "L_qp", 3)
    a(f"""
    L_qok:
    s_cmp_eq_u32 vcc_lo, 0
    s_cselect_b32 s5, 3, 1
    v_mov_b32 v3, s5
    ds_max_u32 v{VMISC}, v3 offset:{M_QOK}
    L_nopoll:
    L_qw:
    ds_read_b32 v3, v{VMISC} offset:{M_QOK}
    s_waitcnt lgkmcnt(0)
    v_readfirstlane_b32 s48, v3
    s_cmp_lg_u32 s48, 0
    s_cbranch_scc1 L_qwd
    """)
    spin_guard(a, "L_qw", 1)
    a.label("L_qwd")
    stamp(a, 3)
    a(f"""
    buffer_load_dwordx4 v2, {sr(S_WS)}, s54 offen lds
    buffer_load_dwordx4 v2, {sr(S_WS)}, s54 offen offset:1024 lds
    buffer_load_dwordx4 {vr(Q+4,4)}, v2, {sr(S_WS)}, s55 offen
    buffer_load_dwordx4 {vr(Q,4)}, v2, {sr(S_WS)}, s59 offen
    s_cmp_ge_u32 s40, 4
    s_cbranch_scc1 L_young
    s_cmp_eq_u32 s48, 3
    s_cbranch_scc1 {"L_nop2" if SEQ else "L_q3"}
    s_cmp_lg_u32 s40, 1
    s_cbranch_scc1 L_nop2
    s_mov_b64 exec, {0xffff if ES == 3 else 0xfff:#x}
    buffer_load_dword v{VT}, v7, {sr(S_WS)}, s76 offen sc1
    s_mov_b64 exec, -1
    s_waitcnt vmcnt(3)
    """)
    lds_add(a, VMISC, M_S0, 3)
    a(f"""
    s_branch L_qp3
    L_qp2:
    s_mov_b64 exec, {0xffff if ES == 3 else 0xfff:#x}
    buffer_load_dword v{VT}, v7, {sr(S_WS)}, s76 offen sc1
    L_qp3:
    s_mov_b64 exec, {0xffff if ES == 3 else 0xfff:#x}
    s_waitcnt vmcnt(0)
    v_cmp_ne_u32 vcc, s{S_TAG}, v{VT}
    s_mov_b64 exec, -1
    s_cmp_eq_u32 vcc_lo, 0
    s_cbranch_scc1 L_qok2
    """)
    spin_guard(a, "L_qp2", 3)
    a(f"""
    L_qok2:
    v_mov_b32 v3, 3
    ds_write_b32 v{VMISC}, v3 offset:{M_QOK}
    s_branch L_q3
    L_nop2:
    s_waitcnt vmcnt(2)
    """)
    lds_add(a, VMISC, M_S0, 3)
    lds_wait(a, VMISC, M_QOK, 3, 3, sleep=1)
    a(f"""
    L_q3:
    s_lshl_b32 s6, s53, 1
    s_add_u32 m0, s6, 16384
    s_nop 0
    """)
    for k in range(4):
        a(f"buffer_load_dwordx4 v2, {sr(S_WS)}, s56 offen offset:{k*1024} lds")
    if ES == 3:
        a(f"""
        s_add_u32 m0, s6, 32768
        s_nop 0
        """)
        for k in range(4):
            a(f"buffer_load_dwordx4 v2, {sr(S_WS)}, s57 offen offset:{k*1024} lds")
    a(f"""
    s_cmp_lg_u32 s48, {7 if SEQ else 3}
    s_cbranch_scc1 L_s0done
    s_waitcnt vmcnt(10)
    """)
    lds_add(a, VMISC, M_S0, 3)
    a(f"""
    L_s0done:
    s_waitcnt vmcnt(0)
    """)
    lds_add(a, VMISC, M_S1, 3)
    a(f"""
    s_branch L_go
    L_young:
    s_waitcnt vmcnt(2)
    """)
    lds_add(a, VMISC, M_S0, 3)
    a(f"""
    s_waitcnt vmcnt(0)
    L_go:
    """)
    lds_wait(a, VMISC, M_S0, 8, 3, sleep=1)
    stamp(a, 4)
    a(f"""
    ds_read_b128 {vr(KB,4)}, v2
    s_waitcnt lgkmcnt(0)
    v_mfma_f32_32x32x16_bf16 {vr(S,16)}, {vr(KB,4)}, {vr(Q,4)}, 0
    v_mfma_f32_32x32x16_bf16 {vr(S+16,16)}, {vr(KB,4)}, {vr(Q+4,4)}, 0
    s_mov_b32 s77, 0
    s_nop 7
    """)
    a(f"""
    ds_read_b128 {vr(KB,4)}, v{VKA}
    s_mov_b64 exec, s[74:75]
    ds_read_b128 {vr(VB,4)}, v{VVA} offset:1024
    ds_read_b128 {vr(VB+4,4)}, v{VVA} offset:1536
    s_mov_b64 exec, -1
    s_nop 4
    """)
    for q in range(2):
        Sq = S + 16 * q
        a(f"v_max3_f32 v{3+q}, v{Sq}, v{Sq+1}, v{Sq+2}")
        for r in range(3, 15, 2):
            a(f"v_max3_f32 v{3+q}, v{3+q}, v{Sq+r}, v{Sq+r+1}")
        a(f"v_max_f32 v{3+q}, v{3+q}, v{Sq+15}")
    a(f"""
    v_mov_b32 v5, v3
    v_mov_b32 v6, v4
    s_nop 1
    v_permlane32_swap_b32 v3, v5
    v_permlane32_swap_b32 v4, v6
    s_nop 1
    v_max_f32 v3, v3, v5
    v_max_f32 v4, v4, v6
    """)
    for q in range(2):
        for r in range(16):
            a(f"v_sub_f32 v{NM+16*q+r}, 0, v{3+q}")
    a(f"""
    s_waitcnt lgkmcnt(0)
    v_mfma_f32_32x32x16_bf16 {vr(S,16)}, {vr(KB,4)}, {vr(Q,4)}, {vr(NM,16)}
    s_nop 7
    s_nop 4
    """)
    BAL = int(os.environ.get("BAL", "6"))
    BALT = int(os.environ.get("BALT", "22"))
    if BAL:
        a(f"""
        s_cmp_lt_u32 s40, 4
        s_cbranch_scc1 L_bal0
        s_setprio 1
        L_bal0:
        """)
    for t in range(3):
        slot(t, 0); slot(t, 1)
    lds_wait(a, VMISC, M_S1, 4, 4, sleep=1)
    slot(3, 0); slot(3, 1)
    advance()
    for t in range(4):
        if t == 3 and ES == 2: prog_wait(int(os.environ.get("KSP", "5")))
        slot(t, 0); slot(t, 1)
    advance()
    for t in range(3):
        slot(t, 0); slot(t, 1)
    KSP = int(os.environ.get("KSP", "5"))
    prog_wait(KSP)
    stamp(a, 5)
    slot(3, 0); slot(3, 1)
    advance()
    a("s_mov_b32 s79, 3")
    a.label("L_att_loop")
    for t in range(4):
        if t == 3 and KSP < 8:
            a(f"""
            s_cmp_lg_u32 s79, {KSP-1}
            s_cbranch_scc1 L_nokw
            """)
            prog_wait(8)
            a.label("L_nokw")
        if BALT and t == BALT % 4:
            a(f"""
            s_cmp_lg_u32 s79, {BALT // 4}
            s_cbranch_scc1 L_balt
            s_setprio 0
            L_balt:
            """)
        slot(t, 0); slot(t, 1)
    advance()
    a("""
    s_add_u32 s79, s79, 1
    s_cmp_lg_u32 s79, 4
    s_cbranch_scc1 L_nodead
    """)
    lds_add(a, VMISC, M_DEAD, 4)
    a("""
    L_nodead:
    s_cmp_lg_u32 s79, 6
    s_cbranch_scc1 L_nodead2
    """)
    lds_add(a, VMISC, M_DEAD2, 4)
    a.label("L_nodead2")
    if BAL:
        a(f"""
        s_cmp_lg_u32 s79, {BAL}
        s_cbranch_scc1 L_bal1
        s_setprio 0
        L_bal1:
        """)
    a(f"""
    s_cmp_lt_u32 s79, 7
    s_cbranch_scc1 L_att_loop
    s_setprio 3
    s_lshl_b32 s5, s42, 3
    s_add_u32 s5, s5, s40              ; T
    s_lshr_b32 s6, s5, 1
    s_lshl_b32 s6, s6, 7
    s_add_u32 s76, s6, {FLG}           ; FLG[tau]
    s_lshl_b32 s57, s5, 7
    s_add_u32 s57, s57, {GBUF}
    v_mov_b32 v{VPL}, 0
    """)
    s_keep = None
    lds_wait(a, VMISC, M_PZ, 4, VT)
    a(f"""
    v_and_b32 v3, 31, v1
    v_lshlrev_b32 v3, 2, v3
    buffer_load_dword v{VG}, v3, {sr(S_WS)}, s57 offen
    v_add_u32 v4, s53, v2
    v_add_u32 v4, {L_OX}, v4
    v_xor_b32 v5, 2048, v4
    v_lshlrev_b32 v7, 2, v1
    s_lshl_b32 s6, s40, 8
    s_add_u32 s6, s6, {L_LX}
    v_add_u32 v7, s6, v7
    v_xor_b32 v6, 256, v7
    s_lshl_b32 s6, s40, 2
    v_add_u32 v{VT+5}, s6, v{VMISC}
    v_xor_b32 v{VT+4}, 4, v{VT+5}
    v_mov_b32 v{VT+6}, 1
    v_mov_b32 v{VT}, s{S_TAG}
    v_mov_b32 v{VT+1}, s{S_TAG}
    v_mov_b32 v{VT+2}, s{S_TAG}
    v_mov_b32 v{VT+3}, s{S_TAG}
    s_lshl_b32 s5, s42, 3
    s_add_u32 s5, s5, s40              ; T
    s_lshl_b32 s5, s5, 5
    s_add_u32 s5, s5, s41              ; T*32 + h
    s_lshl_b32 s76, s5, 10
    s_add_u32 s76, s76, {OF}
    s_lshl_b32 s78, s5, 7
    s_add_u32 s78, s78, {FL3}
    s_mov_b32 s80, 0x53800000          ; 2^40
    s_mov_b32 s81, 0x7f000000          ; 2^127
    s_mov_b32 s57, 0xfffeffff
    s_setprio 0
    """)
    for t in range(4):
        if t == 3: a("s_setprio 3")
        slot(t, 0, t == 3); slot(t, 1, t == 3)
    a(f"""
    s_nop 1
    v_smfmac_f32_32x32x32_bf16 {vr(O+16,16)}, {vr(VB+12,4)}, {vr(P+8,8)}, v{VIDX}
    ds_write_b128 v5, {vr(O,4)}
    ds_write_b128 v5, {vr(O+4,4)} offset:1024
    ds_write_b32 v6, v{O+8}
    ds_write_b32 v{VT+4}, v{VT+6} offset:{M_PAIR}
    """)
    stamp(a, 6)
    a(f"""
    L_pw:
    ds_read_b32 v3, v{VT+5} offset:{M_PAIR}
    ds_read_b128 {vr(O,4)}, v4
    ds_read_b128 {vr(O+4,4)}, v4 offset:1024
    ds_read_b32 v{O+8}, v7
    s_waitcnt lgkmcnt(0)
    v_readfirstlane_b32 s5, v3
    s_cmp_eq_u32 s5, 1
    s_cbranch_scc1 L_pwd
    """)
    spin_guard(a, "L_pw", 0)
    a.label("L_pwd")
    if os.environ.get("TAILST"): stamp(a, 0)
    a(f"v_add_f32 v{O+8}, v{O+8}, v{O+24}")
    for r in range(8):
        a(f"v_add_f32 v{O+r}, v{O+r}, v{O+16+r}")
    a.label("L_att_check")
    a(f"""
    v_mov_b32 v3, v{O+8}
    v_add_f32 v4, |v{O}|, |v{O+1}|
    v_add_f32 v5, |v{O+2}|, |v{O+3}|
    v_permlane32_swap_b32 v{O+8}, v3
    v_add_f32 v6, |v{O+4}|, |v{O+5}|
    v_add_f32 v7, |v{O+6}|, |v{O+7}|
    v_rcp_f32 v3, v{O+8}
    v_add_f32 v4, v4, v5
    v_add_f32 v6, v6, v7
    v_add_f32 v4, v4, v6
    v_cmp_nle_f32 vcc, v{O+8}, s80
    v_cmp_nle_f32 s[48:49], v4, s81
    s_cmp_eq_u32 s77, 3
    s_cbranch_scc1 L_att_fin
    s_or_b64 vcc, vcc, s[48:49]
    s_cbranch_scc0 L_att_fin
    """)
    a(f"""
    s_mov_b32 s77, 3
    s_lshl_b32 s56, s41, 17
    s_add_u32 s56, s56, {KV}
    v_mov_b32 v{VKA}, v2
    v_mov_b32 v3, 0xff800000
    s_mov_b32 s79, 0
    L_fb_max:
    buffer_load_dwordx4 {vr(KB,4)}, v{VKA}, {sr(S_WS)}, s56 offen
    s_waitcnt vmcnt(0)
    v_mfma_f32_32x32x16_bf16 {vr(S,16)}, {vr(KB,4)}, {vr(Q+4,4)}, 0
    v_add_u32 v{VKA}, 2048, v{VKA}
    s_nop 7
    s_nop 7
    s_nop 3
    """)
    for r in range(0, 16, 2):
        a(f"v_max3_f32 v3, v3, v{S+r}, v{S+r+1}")
    a(f"""
    s_add_u32 s79, s79, 1
    s_cmp_lt_u32 s79, 64
    s_cbranch_scc1 L_fb_max
    v_mov_b32 v4, v3
    s_nop 1
    v_permlane32_swap_b32 v3, v4
    s_nop 1
    v_max_f32 v3, v3, v4
    """)
    for r in range(16):
        a(f"v_sub_f32 v{NM+r}, 0, v3")
        a(f"v_mov_b32 v{O+r}, 0")
    a(f"""
    v_mov_b32 v{VKA}, v2
    v_lshrrev_b32 v4, 5, v1
    v_and_b32 v5, 15, v1
    v_lshlrev_b32 v5, 4, v5
    v_lshl_add_u32 v{VVA}, v4, 8, v5
    s_mov_b32 s79, 0
    L_fb_loop:
    buffer_load_dwordx4 {vr(KB,4)}, v{VKA}, {sr(S_WS)}, s56 offen
    s_mov_b64 exec, s[74:75]
    buffer_load_dwordx4 {vr(VB,4)}, v{VVA}, {sr(S_WS)}, s56 offen offset:1024
    buffer_load_dwordx4 {vr(VB+4,4)}, v{VVA}, {sr(S_WS)}, s56 offen offset:1536
    s_mov_b64 exec, -1
    s_waitcnt vmcnt(0)
    v_mfma_f32_32x32x16_bf16 {vr(S,16)}, {vr(KB,4)}, {vr(Q+4,4)}, {vr(NM,16)}
    v_add_u32 v{VKA}, 2048, v{VKA}
    v_add_u32 v{VVA}, 2048, v{VVA}
    s_nop 7
    s_nop 7
    """)
    for r in range(16):
        a(f"v_exp_f32 v{S+r}, v{S+r}")
    a(f"""
    s_nop 3
    v_smfmac_f32_32x32x32_bf16 {vr(O,16)}, {vr(VB,4)}, {vr(S,8)}, v{VIDX}
    v_smfmac_f32_32x32x32_bf16 {vr(O,16)}, {vr(VB+4,4)}, {vr(S+8,8)}, v{VIDX}
    s_add_u32 s79, s79, 1
    s_cmp_lt_u32 s79, 64
    s_cbranch_scc1 L_fb_loop
    s_nop 7
    s_nop 7
    s_branch L_att_check
    L_att_fin:
    s_waitcnt vmcnt(0)
    v_mul_f32 v3, v3, v{VG}
    """)
    for r in range(8):
        a(f"v_mul_f32 v{O+r}, v{O+r}, v3")
    for r in range(4):
        a(f"v_cvt_pk_bf16_f32 v{P+r}, v{O+2*r}, v{O+2*r+1}")
    for r in range(4):
        a(f"v_min_u32 v{P+r}, s57, v{P+r}")
    a(f"""
    buffer_store_dwordx4 {vr(P,4)}, v2, {sr(S_WS)}, s76 offen sc1
    s_cmp_lg_u32 s58, 0
    s_cbranch_scc1 L_nofl3
    s_mov_b64 exec, 0xff
    buffer_store_dwordx4 {vr(VT,4)}, v2, {sr(S_WS)}, s78 offen sc1
    s_mov_b64 exec, -1
    """)
    a.label("L_nofl3")
    if os.environ.get("TAILST"): stamp(a, 1)
    a(f"""
    s_or_b32 s5, s2, s40
    s_cmp_lg_u32 s5, 0
    s_cbranch_scc1 L_nobump
    v_lshlrev_b32 v3, 7, v1
    """)
    for k in range(4):
        a(f"s_mov_b32 s58, {FL2 + k*8192}")
        poll_flags(a, 3, "s58", [(1, 0)], 9, sleep=12)
    a(f"""
    s_mov_b64 exec, 1
    s_add_u32 s5, s{S_EP}, 1
    v_mov_b32 v9, s5
    buffer_store_dword v9, v2, {sr(S_WS)}, 0 offen offset:{EPOCH} sc1
    s_mov_b64 exec, -1
    L_nobump:
    """)
    if APOLL:
        a(f"""
        s_andn2_b32 s5, s40, 2
        s_cmp_lg_u32 s5, 1
        s_cbranch_scc1 L_noap
        s_lshl_b32 s56, s41, 13
        s_lshr_b32 s5, s40, 1
        s_lshl_b32 s6, s5, 11
        s_add_u32 s56, s56, s6
        s_add_u32 s56, s56, {FL3}
        s_lshl_b32 s5, s5, 2
        v_add_u32 v14, s5, v{VMISC}
        v_lshlrev_b32 v7, 7, v1
        s_mov_b32 s59, 0
        L_ap:
        s_andn2_b32 s5, 0x1111, s59
        s_mul_i32 s58, s5, 15
        s_mov_b32 exec_lo, s58
        s_mov_b32 exec_hi, 0
        buffer_load_dword v3, v7, {sr(S_WS)}, s56 offen sc1
        s_waitcnt vmcnt(0)
        v_cmp_ne_u32 vcc, s{S_TAG}, v3
        s_mov_b64 exec, -1
        s_lshr_b32 s5, vcc_lo, 1
        s_or_b32 s5, s5, vcc_lo
        s_lshr_b32 s6, s5, 2
        s_or_b32 s5, s5, s6
        s_andn2_b32 s59, 0x1111, s5
        s_or_b32 s5, s59, 2
        v_mov_b32 v4, s5
        s_mov_b64 exec, 1
        ds_or_b32 v14, v4 offset:{M_RDY}
        s_mov_b64 exec, -1
        s_cmp_eq_u32 s59, 0x1111
        s_cbranch_scc1 L_noap
        """)
        spin_guard(a, "L_ap", int(os.environ.get("ASL", "1")))
        a.label("L_noap")
        a("s_waitcnt lgkmcnt(0)")
    stamp_end(a)
    a("s_endpgm")

def aux_wave(a):
    R = 144; F = 128; VRL = 167
    VWF = 160; VPOLL = 164; VFL = 165; VPG = 166
    S_W1 = S_WQKV; S_H = S_WQKV; S_G = S_OUT
    if os.environ.get("FAKEW1"):
        a("""
        s_add_u32 s16, s26, 0x4000000
        s_addc_u32 s17, s27, 0
        """)
    a(f"""
    s_setprio 3
    s_sub_u32 s43, s40, 8              ; u
    v_lshrrev_b32 v3, 3, v1
    v_lshlrev_b32 v3, 10, v3
    v_and_b32 v4, 7, v1
    v_lshrrev_b32 v5, 4, v1
    v_xor_b32 v4, v4, v5
    v_lshl_add_u32 v{VD0}, v4, 4, v3
    v_xor_b32 v4, 4, v4
    v_lshl_add_u32 v{VD1}, v4, 4, v3
    v_add_u32 v{VD1}, 8192, v{VD1}
    s_lshl_b32 s78, s86, 16
    s_lshl_b32 s5, s43, 14
    s_add_u32 s78, s78, s5
    s_lshl_b32 s79, s43, 11            ; lds rows 16u  (= u*2048)
    s_waitcnt lgkmcnt(0)
    """)
    srd(a, S_X, 8, 2048 * 1024)
    q = []
    def xdma(sig):
        a(f"""
        s_add_u32 s5, s49, {sig}
        s_and_b32 s5, s5, 7
        s_lshl_b32 s5, s5, 7
        s_add_u32 m0, s79, {L_X+sig*8192}
        s_add_u32 s50, s5, s78
        buffer_load_dwordx4 v{VD0}, {sr(S_X)}, s50 offen lds
        s_add_u32 m0, s79, {L_X+sig*8192+1024}
        s_nop 0
        buffer_load_dwordx4 v{VD1}, {sr(S_X)}, s50 offen lds
        """)
        q.extend([("x", sig)] * 2)
    XA = int(os.environ.get("XA", "0"))
    for it in XSCHED[-1]:
        if isinstance(it, int) and it >= XA: xdma(it)
    late_start(a)
    RE = int(os.environ.get("RE", "0"))
    VRS = 127; S_R2 = S_X
    E7 = int(os.environ.get("E7", "1"))
    def rl_loads():
        a(f"""
        s_lshl_b32 s74, s4, 2
        s_add_u32 s74, s74, s43
        s_lshl_b32 s74, s74, 3
        s_add_u32 s74, s74, s3             ; gw = (4i + u)*8 + j
        v_and_b32 v3, 31, v1               ; i
        v_lshrrev_b32 v4, 5, v1            ; hh
        v_lshlrev_b32 v4, 12, v4
        v_lshl_add_u32 v{VRL}, v3, 2, v4
        s_and_b32 s6, s74, 7               ; cb
        s_cmp_ge_u32 s74, 896
        s_cbranch_scc1 L_wo
        """)
        srd(a, S_SRC, 18, 1792 * 1024)
        srd(a, S_R2, 18, 0)
        a(f"""
        s_lshr_b32 s7, s74, 3              ; kstep
        s_mov_b32 s56, {112*1024}
        s_mov_b32 s57, {W2F}
        s_branch L_rl2
        L_wo:
        """)
        srd(a, S_SRC, 12, 512 * 1024)
        srd(a, S_R2, 12, 512 * 1024)
        a(f"""
        s_sub_u32 s5, s74, 896
        s_lshr_b32 s7, s5, 3
        s_lshl_b32 s7, s7, 1               ; kstep
        s_mov_b32 s56, {32*1024}
        s_mov_b32 s57, {WOF}
        L_rl2:
        s_lshl_b32 s59, s7, 14
        s_lshl_b32 s5, s6, 7
        s_add_u32 s59, s59, s5             ; src
        s_lshl_b32 s5, s6, 1
        s_mul_i32 s5, s5, s56
        s_add_u32 s57, s57, s5
        s_lshl_b32 s5, s7, 10
        s_add_u32 s57, s57, s5
        v_bfe_u32 v3, v1, 4, 1
        v_mul_lo_u32 v3, v3, s56
        v_lshrrev_b32 v4, 5, v1
        v_lshl_add_u32 v3, v4, 9, v3
        v_and_b32 v4, 15, v1
        v_lshl_add_u32 v{VRS}, v4, 4, v3
        """)
        for half in range(2):
            for jq in range(2):
                a(f"s_add_u32 s5, s59, {half*16384 + jq*8192}")
                for jj in range(4):
                    a(f"buffer_load_dword v{R+8*half+4*jq+jj}, v{VRL}, {sr(S_R2 if half else S_SRC)}, s5 offen offset:{jj*1024}")
    def touch():
        srd(a, S_W1, 16, 512 * 3584)
        a(f"""
        s_mul_i32 s5, s49, {64*3584}
        s_add_u32 s5, s5, s76
        v_mul_u32_u24 v3, 3584, v1
        buffer_load_dword v{VPOLL}, v3, {sr(S_W1)}, s5 offen
        buffer_load_dword v{VPOLL}, v3, {sr(S_W1)}, s5 offen offset:64
        """)
        q.extend([("t", 0)] * 2)
    a(f"""
    s_and_b32 s5, s4, 3
    s_lshl_b32 s5, s5, 1
    s_add_u32 s73, s5, s42
    s_lshr_b32 s5, s87, 1
    s_mul_i32 s76, s5, 7
    s_add_u32 s76, s76, s43
    s_and_b32 s5, s87, 1
    s_lshl_b32 s6, s5, 2
    s_add_u32 s76, s76, s6             ; slice
    s_mov_b32 s85, 0
    s_add_u32 s6, s6, s43
    s_cmp_lg_u32 s6, 7
    s_cbranch_scc1 L_role
    s_mov_b32 s85, 2
    s_cmp_lg_u32 s87, 1
    s_cbranch_scc1 L_role
    s_mov_b32 s85, 1
    L_role:
    s_mul_i32 s54, s86, {2*112*1024}
    s_lshl_b32 s5, s76, 12
    s_add_u32 s54, s54, s5
    s_add_u32 s54, s54, {HF}
    s_add_u32 s55, s54, {112*1024}
    s_lshl_b32 s76, s76, 7
    """)
    if "T" in XSCHED[-1]: touch()
    make_tag(a)
    pa_addr(a)
    a("s_setprio 0")
    def wait_for(tagv):
        last = max(k for k, e in enumerate(q) if e == tagv)
        a(f"s_waitcnt vmcnt({len(q) - 1 - last})")
    ENT = [136, 144, 112, 120, 128, 32, 40][:NEG]
    NE = len(ENT)
    def ent(n): return ENT[n % NE] * 1024
    def w1dma_list(n):
        sig, ss = n >> 2, n & 3
        l0 = ""
        if ss == 0:
            l0 = f"""
            s_add_u32 s5, s49, {sig}
            s_and_b32 s5, s5, 7
            s_mul_i32 s50, s5, {64*3584}
            s_add_u32 s50, s50, s76
            """
        l0 += f"""
        s_add_u32 m0, s79, {ent(n)}
        s_add_u32 s51, s50, {ss*16*3584}
        buffer_load_dwordx4 v{VD0}, {sr(S_W1)}, s51 offen lds
        """
        l1 = f"""
        s_add_u32 m0, s79, {ent(n)+1024}
        s_nop 0
        buffer_load_dwordx4 v{VD1}, {sr(S_W1)}, s51 offen lds
        """
        return [l0, l1]
    def w1dma(ns):
        LS = a.new("L_w1s")
        a(f"""
        s_cmp_lg_u32 s85, 0
        s_cbranch_scc1 {LS}
        """)
        for n in ns:
            for l in w1dma_list(n): a(l)
            q.extend([("w", n)] * 2)
        a.label(LS)
    for sig in range(8):
        if sig < XA: pass
        elif sig < 4: wait_for(("x", sig))
        elif sig == 4:
            wait_for(("x", 7))
            q.clear()
        if sig == 0 and not os.environ.get("TAILST"): stamp(a, 0)
        if sig <= 6: stamp(a, sig, pa=True)
        a("s_barrier")
        for it in XSCHED.get(sig, []):
            if isinstance(it, int): xdma(it)
            elif it == "T": touch()
        if RE and sig == RE: rl_loads()
        if sig == 4:
            srd(a, S_W1, 16, 512 * 3584)
            a(f"""
            v_lshrrev_b32 v3, 3, v1            ; row = l>>3
            v_mul_u32_u24 v4, 3584, v3
            v_bfe_u32 v5, v1, 4, 1
            v_lshlrev_b32 v5, 2, v5
            v_and_b32 v6, 7, v1
            v_xor_b32 v6, v6, v5
            v_lshl_add_u32 v{VD0}, v6, 4, v4
            v_add_u32 v{VD1}, {8*3584}, v{VD0}
            """)
        if sig >= 5: stamp(a, 2 * (sig - 5), pa=2)
        if sig == 5:
            if not F1D: w1dma([0, 1])
            srd(a, S_G, 20, 1024)
            a(f"""
            s_cmp_lg_u32 s85, 1
            s_cbranch_scc1 L_nogd
            s_lshl_b32 s5, s49, 3
            v_add_u32 v3, s5, v1
            v_and_b32 v3, 63, v3
            v_lshlrev_b32 v3, 4, v3
            s_add_u32 m0, s79, {ent(0)}
            s_nop 0
            buffer_load_dwordx4 v3, {sr(S_G)}, 0 offen lds
            L_nogd:
            v_mov_b32 v3, 0
            v_lshlrev_b32 v4, 2, v1
            v_add_u32 v4, {L_MISC}, v4
            ds_write_b32 v4, v3
            """)
        if sig == 6 and not F1D: w1dma(list(range(2, min(NE, 5))))
        if sig == 7 and NE > 5 and E7: w1dma(list(range(5, NE)))
        if sig == 6:
            a(f"""
            s_add_u32 s5, s79, {L_VX}
            v_add_u32 v3, s5, v2
            v_and_b32 v{VWF}, 0x7ff, v{VWA}
            s_and_b32 s5, s43, 2
            s_lshl_b32 s5, s5, 5
            v_xor_b32 v{VWF}, s5, v{VWF}
            s_add_u32 s5, s79, {112*1024}
            v_add_u32 v{VWF}, s5, v{VWF}
            v_xor_b32 v{VWF+1}, 64, v{VWF}
            v_subrev_u32 v{VWF+2}, {112*1024}, v{VWF}
            v_subrev_u32 v{VWF+3}, {112*1024}, v{VWF+1}
            v_and_b32 v4, 31, v1
            v_lshlrev_b32 v{VFL}, 7, v4
            s_lshl_b32 s5, s43, 2
            v_add_u32 v{VPG}, s5, v{VMI}
            s_lshl_b32 s77, s3, 12
            s_add_u32 s77, s77, {FL1}          ; FL1[j]
            """)
        if sig == 7: a(f"s_setprio {int(os.environ.get('VPRIO', '0'))}")
        if sig >= 5: stamp(a, 2 * (sig - 5) + 1, pa=2)
        pa_compute(a, sig, True)
    a(f"""
    s_movk_i32 s5, 0xefff
    v_and_b32 v{VXA}, s5, v{VXA}
    v_and_b32 v{VXA+1}, s5, v{VXA+1}
    v_and_b32 v{VXA+2}, s5, v{VXA+2}
    v_and_b32 v{VXA+3}, s5, v{VXA+3}
    s_nop 7
    s_nop 5
    """)
    for r in range(8):
        a(f"v_cvt_pk_bf16_f32 v{XB+r}, v{ACCA+2*r}, v{ACCA+2*r+1}")
    a(f"""
    s_nop 1
    v_permlane32_swap_b32 v{XB}, v{XB+2}
    v_permlane32_swap_b32 v{XB+1}, v{XB+3}
    v_permlane32_swap_b32 v{XB+4}, v{XB+6}
    v_permlane32_swap_b32 v{XB+5}, v{XB+7}
    s_nop 1
    ds_write_b128 v3, {vr(XB,4)}
    ds_write_b128 v3, {vr(XB+4,4)} offset:1024
    s_waitcnt lgkmcnt(0)
    s_barrier
    """)
    stamp(a, 6, pa=2)
    VM = VMI
    ACC = 16; BUF = 80
    def fprog():
        a(f"""
        v_mov_b32 v3, 1
        ds_write_b32 v{VPG}, v3 offset:{M_FP}
        """)
    def pollld():
        a(f"buffer_load_dword v{VPOLL}, v{VFL}, {sr(S_WS)}, s77 offen sc1")
    a(f"""
    s_setprio {int(os.environ.get("F1PRIO", "2"))}
    s_cmp_eq_u32 s85, 1
    s_cbranch_scc1 L_f1g
    s_cmp_eq_u32 s85, 2
    s_cbranch_scc1 L_f1n
    """)
    if not E7:
        for n in range(5, NE):
            for l in w1dma_list(n): a(l)
            q.extend([("w", n)] * 2)
    if F1D:
        lds_wait(a, VM, M_C1 if F1D == 1 else M_S0, 8, 3, sleep=2)
        for n in range(NE):
            for l in w1dma_list(n): a(l)
            q.extend([("w", n)] * 2)
    def reads(n):
        b = BUF + 16 * (n % 2)
        e = ent(n) - 112 * 1024
        hi = 0
        if e < 0: e, hi = ent(n), 2
        xo = (n >> 2) * 8192
        return [f"ds_read_b64_tr_b16 {vr(b,2)}, v{VWF+hi} offset:{e}",
                f"ds_read_b64_tr_b16 {vr(b+2,2)}, v{VWF+hi} offset:{e+512}",
                f"ds_read_b128 {vr(b+8,4)}, v{VXA+(n&3)} offset:{xo}",
                f"ds_read_b128 {vr(b+12,4)}, v{VXA+(n&3)} offset:{xo+4096}",
                f"ds_read_b64_tr_b16 {vr(b+4,2)}, v{VWF+hi+1} offset:{e}",
                f"ds_read_b64_tr_b16 {vr(b+6,2)}, v{VWF+hi+1} offset:{e+512}"]
    wait_for(("w", 0))
    if not os.environ.get("TAILST"): stamp(a, 1)
    for l in reads(0): a(l)
    for n in range(32):
        b = BUF + 16 * (n % 2)
        def mf(at, bt):
            d = ACC + 16 * (2 * at + bt)
            c = "0" if n == 0 else vr(d, 16)
            a(f"v_mfma_f32_32x32x16_bf16 {vr(d,16)}, {vr(b+4*at,4)}, {vr(b+8+4*bt,4)}, {c}")
        a("s_waitcnt lgkmcnt(0)")
        mf(0, 0)
        rd = reads(n + 1) if n < 31 else []
        if rd: wait_for(("w", n + 1))
        for l in rd[:3]: a(l)
        mf(0, 1)
        for l in rd[3:]: a(l)
        dl = w1dma_list(n + NE) if n + NE < 32 else []
        mf(1, 0)
        if dl:
            a(dl[0]); q.append(("w", n + NE))
        mf(1, 1)
        if dl:
            a(dl[1]); q.append(("w", n + NE))
        if n == 27:
            pollld(); q.append(("p", 0))
    a("s_branch L_f1done")
    a.label("L_f1g")
    a(f"""
    v_lshrrev_b32 v4, 5, v1
    v_lshlrev_b32 v4, 4, v4
    s_add_u32 s5, s79, {ent(0)}
    v_add_u32 v4, s5, v4
    s_waitcnt vmcnt(0)
    """)
    for sg in range(8):
        for ss in range(4):
            n = 4 * sg + ss
            b = BUF + 12 * ss
            a(f"""
            ds_read_b128 {vr(b,4)}, v4 offset:{n*32}
            ds_read_b128 {vr(b+4,4)}, v{VXA+ss} offset:{sg*8192}
            ds_read_b128 {vr(b+8,4)}, v{VXA+ss} offset:{sg*8192+4096}
            """)
        a("s_waitcnt lgkmcnt(0)")
        for ss in range(4):
            b = BUF + 12 * ss
            for bt in range(2):
                d = ACC + 16 * bt
                c = "0" if (sg == 0 and ss == 0) else vr(d, 16)
                a(f"v_mfma_f32_32x32x16_bf16 {vr(d,16)}, {vr(b,4)}, {vr(b+4+4*bt,4)}, {c}")
    a(f"""
    v_cmp_gt_u32 vcc, 32, v1
    s_nop 7
    s_nop 7
    v_cndmask_b32 v8, v{ACC+16}, v{ACC}, vcc
    """)
    sigmoid(a, 8)
    a("s_branch L_f1w")
    a.label("L_f1n")
    a.label("L_f1w")
    lds_wait(a, VM, M_QOK, 3, 3, sleep=4)
    pollld()
    a.label("L_f1done")
    a("s_setprio 3")
    lds_add(a, VM, M_F1C, 3)
    if not os.environ.get("TAILST"): stamp(a, 2)
    stamp(a, 0, pa=3)
    a(f"""
    s_mov_b32 s{S_H}, s{S_WS}
    s_mov_b32 s{S_H+1}, s{S_WS+1}
    s_cmp_eq_u32 s85, 0
    s_cselect_b32 s{S_H+2}, {WS_BYTES:#x}, 0
    s_mov_b32 s{S_G}, s{S_WS}
    s_mov_b32 s{S_G+1}, s{S_WS+1}
    s_cmp_eq_u32 s85, 1
    s_cselect_b32 s{S_G+2}, {WS_BYTES:#x}, 0
    s_nop 5
    s_lshl_b32 s5, s41, 17
    s_lshl_b32 s52, s43, 12
    s_add_u32 s53, s5, s52
    s_add_u32 s53, s53, {KV}
    s_lshl_b32 s58, s86, 8
    s_add_u32 s58, s58, {GBUF}
    v_lshlrev_b32 v9, 2, v1
    s_nop 3
    """)
    stores = []
    for at in range(2):
        for bt in range(2):
            d = ACC + 16 * (at * 2 + bt)
            o = BUF + 8 * (at * 2 + bt)
            for r in range(8):
                a(f"v_cvt_pk_bf16_f32 v{o+r}, v{d+2*r}, v{d+2*r+1}")
            for r in range(8):
                a(f"v_pk_max_i16 v{o+r}, v{o+r}, 0")
            for half in range(2):
                stores.append(f"buffer_store_dwordx4 {vr(o+4*half,4)}, v2, {sr(S_H)}, s{54+bt} offen offset:{(2*at+half)*1024} sc1")
    stores.append(f"buffer_store_dword v8, v9, {sr(S_G)}, s58 offen sc1")
    a("s_waitcnt vmcnt(0)")
    a(f"""
    v_cmp_ne_u32 vcc, s{S_TAG}, v{VPOLL}
    s_cmp_eq_u64 vcc, 0
    s_cbranch_scc1 L_allok
    """)
    poll_flags(a, VFL, "s77", [(1, 0)], VPOLL, sleep=3)
    a.label("L_allok")
    lds_wait(a, VM, M_C1, 8, 3, sleep=1)
    lds_wait(a, VM, M_F1C, 4, 3, sleep=1)
    AW = int(os.environ.get("AW", "2"))
    if AW == 1: lds_wait(a, VM, M_S0, 8, 3, sleep=1)
    if AW == 2: lds_wait(a, VM, M_S1, 4, 3, sleep=1)
    def kvdma(sg):
        a(f"""
        s_add_u32 s6, s72, {sg}
        s_and_b32 s6, s6, 7
        s_lshl_b32 s6, s6, 14
        s_add_u32 m0, s52, {sg*16384}
        s_add_u32 s6, s6, s53
        """)
        for k in range(4):
            a(f"buffer_load_dwordx4 v2, {sr(S_WS)}, s6 offen offset:{k*1024} lds")
    def prog(n):
        a(f"""
        v_mov_b32 v10, {n}
        ds_write_b32 v{VPG}, v10 offset:{M_PROG}
        """)
    stamp(a, 1, pa=3)
    KSP = int(os.environ.get("KSP", "5"))
    for sg in range(ES, KSP):
        kvdma(sg)
    AX = int(os.environ.get("AX", "0"))
    if AX == 1: lds_wait(a, VM, M_S1, 4, 3, sleep=1)
    if AX == 2:
        a("s_waitcnt vmcnt(0)")
        prog(KSP)
    if not RE: rl_loads()
    if AX == 3:
        a("s_waitcnt vmcnt(16)")
        prog(KSP)
    for l in stores: a(l)
    a(f"""
    s_mov_b32 s{S_R2}, s{S_WS}
    s_mov_b32 s{S_R2+1}, s{S_WS+1}
    s_cmp_ge_u32 s74, 896
    s_cselect_b32 s{S_R2+2}, {WS_BYTES:#x}, 0
    s_mov_b32 s80, 0x05040100
    s_mov_b32 s81, 0x07060302
    """)
    stamp(a, 2, pa=3)
    a(f"s_waitcnt vmcnt({(0 if RE else 16)+len(stores)})")
    prog(KSP)
    if not os.environ.get("TAILST"): stamp(a, 6)
    stamp(a, 3, pa=3)
    a(f"s_waitcnt vmcnt({len(stores)})")
    stamp(a, 4, pa=3)
    for half in range(2):
        for jj in range(4):
            A = R + 8 * half + 2 * jj
            a(f"v_perm_b32 v{F+8*half+jj}, v{A+1}, v{A}, s80")
            a(f"v_perm_b32 v{F+8*half+4+jj}, v{A+1}, v{A}, s81")
        sd = S_R2 if half else S_WS
        a(f"buffer_store_dwordx4 {vr(F+8*half,4)}, v{VRS}, {sr(sd)}, s57 offen offset:{half*1024} sc1")
        a(f"buffer_store_dwordx4 {vr(F+8*half+4,4)}, v{VRS}, {sr(sd)}, s57 offen offset:{half*1024+256} sc1")
    for sg in range(KSP, 8):
        kvdma(sg)
    a(f"""
    s_waitcnt vmcnt({4*(8-KSP)})
    s_mov_b64 exec, 1
    v_mov_b32 v8, 1
    ds_add_rtn_u32 v8, v{VM}, v8 offset:{M_E2}
    s_waitcnt lgkmcnt(0)
    s_mov_b64 exec, -1
    v_readfirstlane_b32 s5, v8
    s_cmp_lg_u32 s5, 3
    s_cbranch_scc1 L_e2skip
    s_lshl_b32 s5, s2, 7
    s_add_u32 s5, s5, {FL2}
    """)
    store_flag(a, "s5", BUF)
    a.label("L_e2skip")
    stamp(a, 5, pa=3)
    if KSP < 8:
        a("s_waitcnt vmcnt(0)")
        prog(8)
    a(f"""
    """)
    a(f"""
    s_mul_i32 s5, s43, 7
    s_lshl_b32 s50, 0x7f, s5
    s_lshl_b32 s5, 0x10000000, s43
    s_or_b32 s50, s50, s5
    s_lshl_b32 s5, s43, 1
    s_lshl_b32 s51, 3, s5
    s_lshl_b32 s5, 0x100, s43
    s_or_b32 s51, s51, s5
    v_and_b32 v3, 7, v1
    s_lshl_b32 s5, s42, 2
    v_add_u32 v4, s5, v3               ; 4c + k
    v_mov_b32 v5, s41
    v_cmp_lt_u32 vcc, 39, v1
    v_cndmask_b32 v4, v5, v4, vcc      ; tb
    v_cndmask_b32 v3, v3, 1, vcc       ; g
    v_lshrrev_b32 v5, {TBS}, v4
    v_lshlrev_b32 v5, {TBS-2}, v5
    {"v_and_b32 v6, 1, v3" if GPAR else "v_lshrrev_b32 v6, %d, v3" % (5-TBS)}
    {"v_xor_b32 v6, 1, v6" if GPAR == 2 else ""}
    v_add_u32 v5, v5, v6               ; j
    {"v_lshrrev_b32 v6, 1, v3" if GPAR else "v_and_b32 v6, %d, v3" % ((1<<(5-TBS))-1)}
    v_lshlrev_b32 v6, {TBS}, v6
    v_and_b32 v4, {(1<<TBS)-1}, v4
    v_add_u32 v6, v6, v4               ; i
    v_lshl_add_u32 v4, v6, 3, v5
    v_lshlrev_b32 v7, 3, v1
    v_add_u32 v7, s42, v7
    v_cmp_lt_u32 vcc, 31, v1
    v_cndmask_b32 v7, v7, v4, vcc
    v_lshlrev_b32 v7, 7, v7
    s_mov_b32 s58, {FL2}
    """)
    lds_wait(a, VM, M_E2, 4, 6, sleep=4)
    a(f"""
    L_e2p:
    s_mov_b64 exec, s[50:51]
    buffer_load_dword v{BUF}, v7, {sr(S_WS)}, s58 offen sc1
    s_waitcnt vmcnt(0)
    v_cmp_ne_u32 vcc, s{S_TAG}, v{BUF}
    s_mov_b64 exec, -1
    s_cmp_eq_u64 vcc, 0
    s_cbranch_scc1 L_e2ok
    """)
    spin_guard(a, "L_e2p", int(os.environ.get('ESL2', '10')))
    a.label("L_e2ok")
    if not os.environ.get("TAILST"): stamp(a, 3)
    stamp(a, 6, pa=3)
    a(f"""
    v_and_b32 v3, 31, v1
    v_lshlrev_b32 v3, 2, v3
    s_lshl_b32 s58, s41, 8
    s_and_b32 s5, s43, 1
    s_lshl_b32 s5, s5, 7
    s_add_u32 s58, s58, s5
    s_add_u32 s58, s58, {GBUF}
    v_mov_b32 v10, v3
    s_lshl_b32 s5, s42, 3
    s_lshl_b32 s6, s43, 1
    s_add_u32 s5, s5, s6
    s_lshl_b32 s5, s5, 5
    s_add_u32 s5, s5, s41
    s_lshl_b32 s5, s5, 10
    s_add_u32 s5, s5, {OF}
    s_add_u32 s6, s5, 32768
    v_mov_b32 v160, -1
    v_mov_b32 v161, -1
    v_mov_b32 v162, -1
    v_mov_b32 v163, -1
    buffer_store_dwordx4 v[160:163], v2, {sr(S_WS)}, s5 offen sc1
    buffer_store_dwordx4 v[160:163], v2, {sr(S_WS)}, s6 offen sc1
    s_lshr_b32 s50, s43, 1             ; kh
    s_and_b32 s51, s43, 1              ; bt
    s_mul_i32 s5, s50, {112*1024}
    v_add_u32 v4, s5, v2
    s_sub_u32 s5, {112*1024}, s5
    v_add_u32 v5, s5, v2
    s_mul_i32 s5, s51, {112*1024}
    v_add_u32 v6, s5, v2
    s_sub_u32 s5, {112*1024}, s5
    v_add_u32 v7, s5, v2
    s_mul_i32 s5, s43, {28*1024}
    s_mul_i32 s52, s42, {2*112*1024}
    s_add_u32 s52, s52, s5
    s_add_u32 s52, s52, {W2F}
    s_mul_i32 s53, s41, {2*112*1024}
    s_add_u32 s53, s53, s5
    s_add_u32 s53, s53, {HF}
    s_lshl_b32 s54, s42, 1
    s_lshr_b32 s5, s43, 1
    s_add_u32 s54, s54, s5             ; c tile
    s_lshl_b32 s54, s54, 15
    s_add_u32 s54, s54, {WOF}
    s_lshl_b32 s55, s41, 1
    s_and_b32 s5, s43, 1
    s_add_u32 s55, s55, s5
    s_lshl_b32 s56, s55, 12
    s_add_u32 s56, s56, {FL3}
    s_lshl_b32 s55, s55, 15
    s_add_u32 s55, s55, {OF}
    s_sub_u32 s78, s73, 7
    s_cmp_ge_u32 s73, 7
    s_cselect_b32 s78, s78, s73
    """)
    a(f"s_setprio {FPRIO}")
    WOS = int(os.environ.get("WOS", "20"))
    def wo_stage():
        a(f"""
        s_lshl_b32 s6, s43, 14
        s_lshl_b32 s7, s42, 16
        s_add_u32 s7, s7, s6
        s_add_u32 s7, s7, {WOF}
        """)
        lds_wait(a, VM, M_PZ, 4, 9, sleep=4)
        a(f"buffer_load_dword v10, v10, {sr(S_WS)}, s58 offen")
        lds_wait(a, VM, M_DEAD, 8, 9, sleep=4)
        for sg in range(4):
            a(f"""
            s_add_u32 m0, s6, {sg*4096}
            s_add_u32 s5, s7, {sg*4096}
            """)
            for q in range(4):
                a(f"buffer_load_dwordx4 v2, {sr(S_WS)}, s5 offen offset:{q*1024} lds")
        return 17
    def f2hook(st):
        if st == 1: lds_add(a, VM, M_PZ, 9)
        if st == WOS + 5: lds_add(a, VM, M_W, 9)
        if st == WOS: return wo_stage()
    stream_gemm(a, 28, 2, 2, ACC, BUF, 5, 4, 6, 52, 53, 78, hook=f2hook)
    a("s_setprio 3")
    stamp(a, 4)
    stamp(a, 0, pa=4)
    X = ACC; Y = ACC + 32
    SET = 80
    HB = [ACC + 16, ACC + 48]
    MG = 144
    assert WOS + 5 < 28
    srd(a, S_OUT, 22, 2048 * 1024)
    a(f"""
    s_lshl_b32 s5, s50, 2
    v_add_u32 v14, s5, v{VM}
    ds_read_b32 v160, v14 offset:{M_RDY}
    s_lshl_b32 s5, s43, 13
    s_add_u32 s5, s5, 65536
    v_add_u32 v15, s5, v2
    v_xor_b32 v161, 8192, v15
    v_xor_b32 v12, 16384, v15
    s_lshl_b32 s5, s43, 2
    v_add_u32 v11, s5, v{VM}
    v_xor_b32 v8, 4, v11
    v_xor_b32 v162, 8, v11
    s_sub_u32 s57, s55, {OF}           ; T*32768 = 32 tokens * 1024
    s_sub_u32 s5, s54, {WOF}
    s_lshr_b32 s5, s5, 9               ; ct*64
    s_add_u32 s57, s57, s5
    v_and_b32 v3, 31, v1
    v_lshlrev_b32 v6, 10, v3
    v_lshrrev_b32 v4, 5, v1
    v_lshl_add_u32 v6, v4, 4, v6
    v_lshlrev_b32 v7, 7, v3
    s_lshl_b32 s5, s50, 11
    s_add_u32 s56, s56, s5
    s_lshl_b32 s5, s50, 14
    s_add_u32 s55, s55, s5
    s_mul_i32 s5, s50, {32768+16384}
    v_add_u32 v5, s5, v2
    s_mov_b32 s48, 0x1111
    s_mov_b32 s75, 0                   ; landed
    s_mov_b32 s77, 0
    v_sub_f32 v10, 1.0, v10
    s_waitcnt lgkmcnt(0)
    v_readfirstlane_b32 s49, v160
    s_and_b32 s49, s49, s48
    """)
    def oissue(sm, tag):
        for j in range(4):
            o = SET + 16 * j
            a(f"""
            s_bitcmp1_b32 {sm}, {4*j}
            s_cbranch_scc0 L_oi{tag}{j}
            s_add_u32 s6, s55, {j*4096}
            """)
            for q in range(4):
                a(f"buffer_load_dwordx4 {vr(o+4*q,4)}, v2, {sr(S_WS)}, s6 offen offset:{q*1024} sc1")
            a.label(f"L_oi{tag}{j}")
    oissue("s49", "a")
    stamp(a, 1, pa=4)
    lds_wait(a, VM, M_DEAD2, 8, 9, sleep=2)
    stamp(a, 2, pa=4)
    for t in range(2):
        for q in range(4):
            a(f"ds_write_b128 v161, {vr(ACC+16+32*t+4*q,4)} offset:{t*4096+q*1024}")
    a(f"""
    v_mov_b32 v9, 1
    ds_write_b32 v8, v9 offset:{M_XP}
    """)
    stamp(a, 3, pa=4)
    for t in range(2):
        for r in range(16):
            a(f"v_mul_f32 v{ACC+32*t+r}, v{ACC+32*t+r}, v10")
    stamp(a, 5, pa=4)
    lds_wait(a, VM, M_W, 4, 9, sleep=2)
    if os.environ.get("TAILST"): stamp(a, 0)
    stamp(a, 6, pa=4)
    def merge(block):
        L = a.new("L_mg"); D = a.new("L_mgd"); G = a.new("L_mgo")
        a(f"""
        s_cmp_lg_u32 s77, 0
        s_cbranch_scc1 {D}
        {L}:
        ds_read_b32 v3, v11 offset:{M_XP}
        """)
        for q in range(4):
            a(f"ds_read_b128 {vr(MG+4*q,4)}, v15 offset:{q*1024}")
        a(f"""
        s_waitcnt lgkmcnt(0)
        v_readfirstlane_b32 s77, v3
        s_cmp_lg_u32 s77, 0
        s_cbranch_scc1 {G}
        """)
        if block: spin_guard(a, L, 1)
        else: a(f"s_branch {D}")
        a.label(G)
        for r in range(16):
            a(f"v_fmac_f32 v{X+r}, v{MG+r}, v10")
        for q in range(4):
            a(f"ds_read_b128 {vr(MG+4*q,4)}, v15 offset:{4096+q*1024}")
        a("s_waitcnt lgkmcnt(0)")
        for r in range(16):
            a(f"v_fmac_f32 v{Y+r}, v{MG+r}, v10")
        a.label(D)
    def setaddr(sb):
        a(f"""
        s_lshl_b32 s5, {sb}, 10
        v_add_u32 v8, s5, v5
        v_xor_b32 v9, 32768, v8
        """)
    def rd(h):
        b = HB[h]
        a(f"ds_read_b128 {vr(b,4)}, v8 offset:{h*2048}")
        a(f"ds_read_b128 {vr(b+4,4)}, v9 offset:{h*2048}")
        a(f"ds_read_b128 {vr(b+8,4)}, v8 offset:{h*2048+1024}")
        a(f"ds_read_b128 {vr(b+12,4)}, v9 offset:{h*2048+1024}")
    a(f"""
    s_mov_b32 s53, -1
    s_mov_b32 s73, 0
    L_op:
    ds_read_b32 v3, v14 offset:{M_RDY}
    s_or_b32 s6, s49, s75
    s_waitcnt lgkmcnt(0)
    v_readfirstlane_b32 s59, v3
    s_and_b32 s58, s59, s48
    s_bcnt1_i32_b32 s5, s48
    s_cmp_le_u32 s5, {int(os.environ.get("DP", "0"))}
    s_cselect_b32 s58, s48, s58
    s_andn2_b32 s58, s58, s6           ; new
    s_cbranch_scc0 L_noiss
    """)
    if os.environ.get("TAILST"): stamp(a, 1)
    oissue("s58", "b")
    a(f"""
    s_or_b32 s49, s49, s58
    L_noiss:
    s_cmp_lg_u32 s75, 0
    s_cbranch_scc1 L_proc
    """)
    merge(False)
    a(f"""
    s_cmp_lg_u32 s49, 0
    s_cbranch_scc1 L_owait
    s_andn2_b32 s5, s59, 0x1111
    s_or_b32 s5, s5, s51
    s_cbranch_scc1 L_oidle
    s_andn2_b32 s5, 0x1111, s59
    s_mul_i32 s5, s5, 15
    s_or_b32 exec_lo, s5, 1
    s_mov_b32 exec_hi, 0
    buffer_load_dword v3, v7, {sr(S_WS)}, s56 offen sc1
    s_waitcnt vmcnt(0)
    v_cmp_ne_u32 vcc, s{S_TAG}, v3
    s_lshr_b32 s5, vcc_lo, 1
    s_or_b32 s5, s5, vcc_lo
    s_lshr_b32 s6, s5, 2
    s_or_b32 s5, s5, s6
    s_andn2_b32 s5, 0x1111, s5
    v_mov_b32 v4, s5
    s_mov_b64 exec, 1
    ds_or_b32 v14, v4 offset:{M_RDY}
    s_mov_b64 exec, -1
    s_cmp_lg_u32 s5, s59
    s_cbranch_scc1 L_op
    s_sleep {int(os.environ.get("OSL", "4"))}
    L_oidle:
    """)
    spin_guard(a, "L_op", 1)
    a(f"""
    L_owait:
    s_mov_b32 s75, s49
    s_mov_b32 s49, 0
    s_ff1_i32_b32 s52, s75
    s_cmp_eq_u32 s52, s53
    s_cbranch_scc1 L_ow2
    s_mov_b32 s53, s52
    """)
    setaddr("s53"); rd(0); rd(1)
    a(f"""
    L_ow2:
    s_waitcnt vmcnt(0)
    L_proc:
    """)
    if os.environ.get("TAILST"): stamp(a, 2)
    a(f"""
    s_ff1_i32_b32 s52, s75
    s_bitset0_b32 s75, s52
    s_cmp_eq_u32 s52, s53
    s_cbranch_scc1 L_pr2
    s_mov_b32 s53, s52
    """)
    setaddr("s53"); rd(0); rd(1)
    a(f"""
    L_pr2:
    s_cmp_lg_u32 s75, 0
    s_cselect_b32 s5, s75, s49
    s_ff1_i32_b32 s74, s5
    s_max_i32 s74, s74, 0
    s_or_b32 s6, s75, s49
    s_bitset1_b32 s6, s52
    s_andn2_b32 s76, s48, s6
    s_cmp_eq_u32 s75, 0
    s_cselect_b32 s76, 1, s76
    """)
    setaddr("s74")
    for j in range(4):
        o = SET + 16 * j
        if j < 3:
            a(f"""
            s_cmp_lg_u32 s52, {4*j}
            s_cbranch_scc1 L_om{j}
            """)
        a(f"v_max3_u32 v4, v{o}, v{o+1}, v{o+2}")
        for r in range(3, 15, 2):
            a(f"v_max3_u32 v4, v4, v{o+r}, v{o+r+1}")
        a(f"""
        v_max_u32 v4, v4, v{o+15}
        v_cmp_eq_u32 vcc, -1, v4
        s_cmp_eq_u64 vcc, 0
        s_cbranch_scc0 L_ofail
        s_bitset0_b32 s48, {4*j}
        s_mov_b32 s53, s74
        """)
        for h in range(2):
            b = HB[h]
            a("s_waitcnt lgkmcnt(4)" if h == 0 else "s_waitcnt lgkmcnt(4)")
            for qq in range(2):
                a(f"v_mfma_f32_32x32x16_bf16 {vr(Y,16)}, {vr(b+8*qq+4,4)}, {vr(o+8*h+4*qq,4)}, {vr(Y,16)}")
                a(f"v_mfma_f32_32x32x16_bf16 {vr(X,16)}, {vr(b+8*qq,4)}, {vr(o+8*h+4*qq,4)}, {vr(X,16)}")
            rd(h)
        a(f"""
        s_cmp_eq_u32 s76, 0
        s_cbranch_scc1 L_proc
        s_cmp_eq_u32 s48, 0
        s_cbranch_scc0 L_op
        s_branch L_odone
        """)
        if j < 3: a.label(f"L_om{j}")
    a.label("L_ofail")
    if int(os.environ.get("DRY", "0")):
        a("""
        s_cmp_eq_u32 s73, 1
        s_cbranch_scc1 L_dryback
        """)
    spin_guard(a, "L_op", int(os.environ.get("FSL", "1")))
    a("""
    L_odone:
    s_nop 7
    """)
    merge(True)
    stamp(a, 5)
    for q in range(4):
        a(f"ds_write_b128 v15, {vr(Y+4*q,4)} offset:{q*1024}")
    a(f"""
    v_mov_b32 v4, 1
    ds_write_b32 v162, v4 offset:{M_Y}
    L_yw:
    ds_read_b32 v3, v11 offset:{M_Y}
    """)
    for q in range(4):
        a(f"ds_read_b128 {vr(Y+4*q,4)}, v12 offset:{q*1024}")
    a(f"""
    s_waitcnt lgkmcnt(0)
    v_readfirstlane_b32 s5, v3
    s_cmp_lg_u32 s5, 0
    s_cbranch_scc1 L_ywd
    """)
    spin_guard(a, "L_yw", 0)
    a.label("L_ywd")
    if os.environ.get("TAILST"): stamp(a, 3)
    for r in range(16):
        a(f"v_add_f32 v{X+r}, v{X+r}, v{Y+r}")
    for r in range(8):
        a(f"v_cvt_pk_bf16_f32 v{SET+r}, v{X+r}, v{X+8+r}")
    OST = os.environ.get("OST", "")
    a(f"""
    buffer_store_dwordx4 {vr(SET,4)}, v6, {sr(S_OUT)}, s57 offen {OST}
    buffer_store_dwordx4 {vr(SET+4,4)}, v6, {sr(S_OUT)}, s57 offen offset:32 {OST}
    """)
    if int(os.environ.get("DRY", "0")):
        a("""
        s_cmp_eq_u32 s73, 1
        s_cbranch_scc1 L_dryback
        """)
    if os.environ.get("TAILST"): stamp(a, 6)
    stamp_end(a)

def kd(name, nv, ns=102):
    return f""".p2align 6
.amdhsa_kernel {name}
  .amdhsa_next_free_vgpr {nv}
  .amdhsa_next_free_sgpr {ns}
  .amdhsa_accum_offset {(nv+3)//4*4}
  .amdhsa_group_segment_fixed_size 0
  .amdhsa_kernarg_size 80
  .amdhsa_user_sgpr_count 2
  .amdhsa_user_sgpr_kernarg_segment_ptr 1
  .amdhsa_system_sgpr_workgroup_id_x 1
.end_amdhsa_kernel
"""

def main(out):
    hdr = open("cdna_kernels/" + NAME + ".s.ref").read().split("\n")
    hdr = [l for l in hdr if l.startswith(";") and "@launch" not in l]
    a = Asm()
    gen(a)
    txt = "\n".join(hdr) + "\n"
    txt += f"; @launch grid=(256,1,1) block=(768,1,1) lds={LDS_BYTES}\n"
    txt += '.amdgcn_target "amdgcn-amd-amdhsa--gfx950"\n.text\n'
    body = a.text()
    if int(os.environ.get("ALLSC1", "1")):
        ol = []
        for l in body.split("\n"):
            if l.strip().startswith("buffer_load") and sr(S_WS) in l and "sc1" not in l:
                l = l.replace(" lds", " sc1 lds") if l.rstrip().endswith(" lds") else l + " sc1"
            ol.append(l)
        body = "\n".join(ol)
    txt += body
    txt += '.section .rodata,"a"\n'
    txt += kd(NAME + "_kernel", 168)
    open(out, "w").write(txt)

if __name__ == "__main__":
    main(sys.argv[1] if len(sys.argv) > 1 else "cdna_kernels/" + NAME + ".s")
```

```python
import subprocess, sys
def kernel(name, body, iters=200, init="", nvgpr=128, lds=0, maxwg=1024, pre_loop=""):
    s = f"""
.globl {name}
.p2align 8
.type {name},@function
{name}:
    s_load_dwordx2 s[4:5], s[0:1], 0
    s_load_dwordx2 s[6:7], s[0:1], 8
    v_lshrrev_b32 v1, 6, v0
    s_nop 1
    v_readfirstlane_b32 s20, v1
    s_waitcnt lgkmcnt(0)
"""
    for i in range(2, nvgpr):
        s += f"    v_mov_b32 v{i}, 0.5\n"
    s += init
    s += f"""
    s_barrier
    s_memtime s[8:9]
    s_memrealtime s[30:31]
    s_waitcnt lgkmcnt(0)
    s_mov_b32 s12, {iters}
{pre_loop}
L_{name}:
{body}
    s_sub_u32 s12, s12, 1
    s_cmp_lg_u32 s12, 0
    s_cbranch_scc1 L_{name}
E_{name}:
    s_nop 15
    s_nop 15
    s_memtime s[10:11]
    s_memrealtime s[32:33]
    s_waitcnt lgkmcnt(0)
    s_sub_u32 s32, s32, s30
    s_sub_u32 s10, s10, s8
    s_mul_i32 s14, s2, WPW
    s_add_u32 s14, s14, s20
    s_lshl_b32 s14, s14, 3
    v_mov_b32 v2, s14
    v_mov_b32 v6, s10
    v_mov_b32 v7, s32
    v_and_b32 v5, 63, v0
    v_cmp_eq_u32 vcc, 0, v5
    s_and_saveexec_b64 s[16:17], vcc
    s_cbranch_execz D_{name}
    global_store_dwordx2 v2, v[6:7], s[4:5]
    s_waitcnt vmcnt(0)
D_{name}:
    s_endpgm
"""
    kd = f"""
.amdhsa_kernel {name}
  .amdhsa_next_free_vgpr {nvgpr}
  .amdhsa_next_free_sgpr 64
  .amdhsa_accum_offset {(nvgpr+3)//4*4}
  .amdhsa_group_segment_fixed_size 0
  .amdhsa_kernarg_size 16
  .amdhsa_user_sgpr_count 2
  .amdhsa_user_sgpr_kernarg_segment_ptr 1
  .amdhsa_system_sgpr_workgroup_id_x 1
.end_amdhsa_kernel
"""
    md = f"""  - .name: {name}
    .symbol: {name}.kd
    .kernarg_segment_size: 16
    .kernarg_segment_align: 8
    .group_segment_fixed_size: 0
    .private_segment_fixed_size: 0
    .wavefront_size: 64
    .sgpr_count: 64
    .vgpr_count: {nvgpr}
    .max_flat_workgroup_size: {maxwg}
    .args:
      - {{.name: kernargs, .size: 16, .offset: 0, .value_kind: by_value}}
"""
    return s, kd, md

def build(kernels, fname, wpw):
    out = '.amdgcn_target "amdgcn-amd-amdhsa--gfx950"\n.set WPW, %d\n.text\n' % wpw
    for s, kd, md in kernels: out += s
    out += '.section .rodata,"a"\n'
    for s, kd, md in kernels: out += ".p2align 6\n" + kd
    out += ".amdgpu_metadata\n---\namdhsa.version: [1, 2]\namdhsa.kernels:\n"
    for s, kd, md in kernels: out += md
    out += "...\n.end_amdgpu_metadata\n"
    open(fname + ".s", "w").write(out)
    r = subprocess.run(["clang", "-x", "assembler", "-target", "amdgcn-amd-amdhsa", "-mcpu=gfx950", fname + ".s", "-o", fname + ".co"], capture_output=True, text=True)
    if r.returncode: print(r.stderr); sys.exit(1)
```

```python
from mb import *
def vr(a, n): return f"v[{a}:{a+n-1}]"
def fill(nw):
    per = 128 // nw
    s = """
    s_mov_b32 s24, s6
    s_and_b32 s25, s7, 0xffff
    s_mov_b32 s26, 0x4000000
    s_mov_b32 s27, 0x20000
    v_and_b32 v1, 63, v0
    v_lshlrev_b32 v2, 4, v1
    s_lshl_b32 s22, s2, 17
    s_and_b32 s22, s22, 0x1ffffff
""" + f"    s_mul_i32 s23, s20, {per*1024}\n"
    for i in range(per):
        s += f"    s_add_u32 m0, s23, {i*1024}\n    s_add_u32 s28, s22, m0\n    buffer_load_dwordx4 v2, s[24:27], s28 offen lds\n"
        if i % 16 == 15: s += "    s_waitcnt vmcnt(0)\n"
    s += "    s_waitcnt vmcnt(0)\n"
    return s
def attn1(ones="all", prio=None, qscale=True):
    Q = 8; KB = 12; VB = 20; P = 36; VKA = 52; VVA = 53; S = 64; NM = 96; O = 112
    init = fill(8) + f"""
    s_lshl_b32 s28, s20, 10
    s_add_u32 s28, s28, 0x2000000
    buffer_load_dwordx4 {vr(Q,4)}, v2, s[24:27], s28 offen
    v_mov_b32 v{VKA}, v2
    v_lshrrev_b32 v4, 5, v1
    v_and_b32 v5, 15, v1
    v_lshlrev_b32 v5, 4, v5
    v_lshl_add_u32 v{VVA}, v4, 8, v5
    s_mov_b32 s56, 0x0000ffff
    s_mov_b32 s57, 0x0000ffff
    s_waitcnt vmcnt(0)
"""
    for r in range(4): init += f"    v_sub_u32 v{Q+r}, v{Q+r}, 0x01000100\n".replace(f"v_sub_u32 v{Q+r}, v{Q+r}, 0x01000100", f"v_subrev_u32 v{Q+r}, 0x01000100, v{Q+r}")
    if ones == "all":
        for r in range(16): init += f"    v_mov_b32 v{VB+r}, 0x3f803f80\n"
    else:
        init += "    v_and_b32 v3, 31, v1\n    v_cmp_eq_u32 vcc, 16, v3\n    v_mov_b32 v4, 0x3f803f80\n    s_nop 1\n"
        for r in range(16): init += f"    v_cndmask_b32 v{VB+r}, 0, v4, vcc\n"
    for r in range(16): init += f"    v_mov_b32 v{NM+r}, -2.0\n    v_mov_b32 v{O+r}, 0\n    v_mov_b32 v{S+r}, 0\n    v_mov_b32 v{P+r}, 0\n"
    for r in range(8): init += f"    v_mov_b32 v{KB+r}, 0\n"
    if prio == "young":
        init += "    s_cmp_ge_u32 s20, 4\n    s_cbranch_scc0 LP\n    s_setprio 1\nLP:\n"
    b = ""
    for t in range(8):
        Sc = S + 16 * (t % 2); Sn = S + 16 * ((t + 1) % 2)
        Kc = KB + 4 * ((t + 1) % 2); Kn = KB + 4 * (t % 2)
        Vc = VB + 8 * (t % 2); Vn = VB + 8 * ((t + 1) % 2)
        Pc = P + 8 * (t % 2); Pp = P + 8 * ((t + 1) % 2)
        ex = lambda i: f"    v_exp_f32 v{Sc+i}, v{Sc+i}\n"
        cv = lambda i: f"    v_cvt_pk_bf16_f32 v{Pc+i}, v{Sc+2*i}, v{Sc+2*i+1}\n"
        if prio == "alt" and t % 2 == 0:
            b += "    s_xor_b32 s29, s29, 1\n"
        b += "    s_waitcnt lgkmcnt(0)\n"
        b += f"    v_mfma_f32_32x32x16_bf16 {vr(Sn,16)}, {vr(Kc,4)}, {vr(Q,4)}, {vr(NM,16)}\n"
        b += f"    ds_read_b128 {vr(Kn,4)}, v{VKA} offset:{(t+2)*2048}\n"
        for i in range(6): b += ex(i)
        b += f"    v_mfma_f32_32x32x16_bf16 {vr(O,16)}, {vr(Vn+4,4)}, {vr(Pp+4,4)}, {vr(O,16)}\n"
        b += f"    s_mov_b64 exec, s[56:57]\n    ds_read_b128 {vr(Vn,4)}, v{VVA} offset:{(t+1)*2048+1024}\n    ds_read_b128 {vr(Vn+4,4)}, v{VVA} offset:{(t+1)*2048+1536}\n    s_mov_b64 exec, -1\n"
        b += ex(6)+ex(7)+cv(0)+cv(1)+cv(2)+cv(3)+ex(8)+ex(9)
        b += f"    v_mfma_f32_32x32x16_bf16 {vr(O,16)}, {vr(Vc,4)}, {vr(Pc,4)}, {vr(O,16)}\n"
        for i in range(10, 16): b += ex(i)
        b += cv(4)+cv(5)+cv(6)+cv(7)
    b += f"    v_add_u32 v{VKA}, 16384, v{VKA}\n    v_add_u32 v{VVA}, 16384, v{VVA}\n"
    return init, b
if __name__ == '__main__':
    ks = []
    for name, kw in (("at_all", dict(ones="all")), ("at_one", dict(ones="one")), ("at_young", dict(ones="one", prio="young"))):
        i, b = attn1(**kw)
        i = i.replace("LP:", f"LP_{name}:").replace("LP\n", f"LP_{name}\n")
        ks.append(kernel(name, b, iters=8, init=i, nvgpr=128))
    build(ks, "mb9_8", 8)
    open("run9.sh","w").write("""
    for c in 1 0; do
    echo cold=$c
    for k in at_all at_one at_young; do
    timeout 60 ./host mb9_8.co $k 256 512 139264 10 $c
    done
    done
    timeout 60 ./host mb9_8.co at_all 1 512 139264 10 0
    """)
```

```python
from mb import *
from mb9 import fill, vr
def attn3(var):
    Q = 8; KB = 16; VB = 24; P = 40; VKA = 56; VVA = 57; S = 64; NM = 96; O = 128; IDX = 62
    c0 = var.get("c0", 0); E1, E2 = var.get("e", (6, 11)); prio = var.get("prio", 0)
    init = fill(8) + f"""
    s_lshl_b32 s28, s20, 11
    s_add_u32 s28, s28, 0x2000000
    buffer_load_dwordx4 {vr(Q,4)}, v2, s[24:27], s28 offen
    buffer_load_dwordx4 {vr(Q+4,4)}, v2, s[24:27], s28 offen offset:1024
    s_and_b32 s29, s20, 1
    s_lshl_b32 s29, s29, 16
    v_add_u32 v{VKA}, s29, v2
    v_lshrrev_b32 v4, 5, v1
    v_and_b32 v5, 15, v1
    v_lshlrev_b32 v5, 4, v5
    v_lshl_add_u32 v{VVA}, v4, 8, v5
    v_add_u32 v{VVA}, s29, v{VVA}
    s_mov_b32 s56, 0x0000ffff
    s_mov_b32 s57, 0x0000ffff
    v_mov_b32 v{IDX}, 0xdddddddd
    s_waitcnt vmcnt(0)
"""
    for r in range(8): init += f"    v_subrev_u32 v{Q+r}, 0x01000100, v{Q+r}\n"
    init += "    v_and_b32 v3, 31, v1\n    v_cmp_eq_u32 vcc, 16, v3\n    v_mov_b32 v4, 0x3f803f80\n    s_nop 1\n"
    for r in range(16): init += f"    v_cndmask_b32 v{VB+r}, 0, v4, vcc\n    v_mov_b32 v{P+r}, 0\n"
    for r in range(32): init += f"    v_mov_b32 v{NM+r}, -2.0\n    v_mov_b32 v{O+r}, 0\n    v_mov_b32 v{S+r}, 0\n"
    for r in range(8): init += f"    v_mov_b32 v{KB+r}, 0\n"
    b = ""
    if prio:
        b += "    s_lshr_b32 s40, s20, 2\n    s_add_u32 s40, s40, s12\n    s_and_b32 s40, s40, 1\n    s_cbranch_scc1 P1_%s\n    s_setprio 0\n    s_branch P2_%s\nP1_%s:\n    s_setprio 1\nP2_%s:\n" % ((var["name"],)*4)
    for t in range(4):
        for a in range(2):
            Sc = S + 16 * a; Sn = S + 16 * (1 - a)
            tn = t if a == 0 else t + 1
            Kc = KB + 4 * (tn % 2)
            Pc = P + 8 * a; Pp = P + 8 * (1 - a)
            Oc = O + 16 * a; Op = O + 16 * (1 - a)
            tp = t if a == 1 else t - 1
            Vc = VB + 8 * (t % 2); Vp = VB + 8 * (tp % 2)
            Cn = "0" if c0 else vr(NM + 16 * (1 - a), 16)
            ex = lambda i: f"    v_exp_f32 v{Sc+i if i < 8 else Pc+i-8}, v{Sc+i}\n"
            if a == 1: b += "    s_waitcnt lgkmcnt(0)\n"
            b += f"    v_mfma_f32_32x32x16_bf16 {vr(Sn,16)}, {vr(Kc,4)}, {vr(Q+4*(1-a),4)}, {Cn}\n"
            if a == 0 and not var.get("nolds"):
                b += f"    ds_read_b128 {vr(KB+4*((t+1)%2),4)}, v{VKA} offset:{(t+1)*2048}\n"
            for i in range(E1): b += ex(i)
            if not var.get("nopv"): b += f"    v_smfmac_f32_32x32x32_bf16 {vr(Op,16)}, {vr(Vp+4,4)}, {vr(Pp,8)}, v{IDX}\n"
            if a == 0 and not var.get("nolds"):
                Vn = VB + 8 * ((t + 1) % 2)
                if var.get("noexec"):
                    b += f"    ds_read_b128 {vr(Vn,4)}, v{VVA} offset:{(t+1)*2048+1024}\n    ds_read_b128 {vr(Vn+4,4)}, v{VVA} offset:{(t+1)*2048+1536}\n"
                else:
                    b += f"    s_mov_b64 exec, s[56:57]\n    ds_read_b128 {vr(Vn,4)}, v{VVA} offset:{(t+1)*2048+1024}\n    ds_read_b128 {vr(Vn+4,4)}, v{VVA} offset:{(t+1)*2048+1536}\n    s_mov_b64 exec, -1\n"
            for i in range(E1, E2): b += ex(i)
            if not var.get("nopv"): b += f"    v_smfmac_f32_32x32x32_bf16 {vr(Oc,16)}, {vr(Vc,4)}, {vr(Sc,8)}, v{IDX}\n"
            for i in range(E2, 16): b += ex(i)
    b += f"    v_add_u32 v{VKA}, 8192, v{VKA}\n    v_add_u32 v{VVA}, 8192, v{VVA}\n"
    mp = var.get("mp")
    if mp:
        o = []
        for l in b.split("\n"):
            if "mfma" in l:
                if mp == 1: o += ["    s_setprio 1", l, "    s_setprio 0"]
                elif mp == 2: o += ["    s_setprio 0", l, "    s_setprio 1"]
                elif mp == 3: o += [l, "    s_setprio 0" if "smfmac" not in l else "    s_setprio 1"]
                elif mp == 4: o += [l, "    s_setprio 1" if "smfmac" not in l else "    s_setprio 0"]
            else: o.append(l)
        b = "\n".join(o)
    return init, b
ks = []
V = dict(sm={}, mp1=dict(mp=1), mp2=dict(mp=2), mp3=dict(mp=3), mp4=dict(mp=4))
for n, kw in V.items():
    kw["name"] = n
    i, b = attn3(kw)
    ks.append(kernel("v_" + n, b, iters=8, init=i, nvgpr=160))
build(ks, "mb24_8", 8)
open("run24.sh","w").write("for r in 1 2; do for k in %s; do\ntimeout 60 ./host mb24_8.co v_$k 256 512 139264 10 1\ndone; done\n" % " ".join(V))
```
